```python
import torch

def _softmax(x, axis=-1):
    return torch.softmax(x, dim=axis)
def _gelu(x):
    return torch.nn.functional.gelu(x, approximate="tanh")
def _silu(x):
    return torch.nn.functional.silu(x)
def _sigmoid(x):
    return torch.sigmoid(x)
def _layernorm(x, axis=-1, eps=1e-5):
    m = x.mean(dim=axis, keepdim=True)
    v = x.var(dim=axis, keepdim=True, unbiased=False)
    return (x - m) / torch.sqrt(v + eps)
def _scatter_add(tgt, idx, src, axis=0):
    return tgt.clone().index_add_(axis, idx, src)
def _segment_sum(src, seg, n):
    out = torch.zeros((n,) + src.shape[1:], dtype=src.dtype)
    return out.index_add_(0, seg, src)
def _pad(x, pw):
    flat = tuple(v for pair in reversed(pw) for v in pair)
    return torch.nn.functional.pad(x, flat)

kernel_name = 'sequential_preLN__sliding_local_dilated__glu_gated_geglu__prompt'

def setup_inputs():

    _w = (lambda a: (lambda t: t.to(torch.bfloat16) if t.is_floating_point() else t)(torch.as_tensor(a)))
    def _A_setup():
        B, S, D = 1, 2048, 512
        return {
            "x": _w((lambda *s: torch.randn(*s, dtype=torch.bfloat16) * 0.05)(B, S, D)),
            "wqkv": _w((lambda *s: torch.randn(*s, dtype=torch.bfloat16) * 0.05)(D, 3 * D)),
            "wo": _w((lambda *s: torch.randn(*s, dtype=torch.bfloat16) * 0.05)(D, D)),
        }
    _A_in = _A_setup()

    def _B_setup():
        B, S, Dm, Df = 1, 2048, 512, 1376
        return {
            "x": _w((lambda *s: torch.randn(*s, dtype=torch.bfloat16) * 0.05)(B, S, Dm)),
            "w_gate": _w((lambda *s: torch.randn(*s, dtype=torch.bfloat16) * 0.8)(Dm, Df) * (Dm ** -0.5)),
            "w_up": _w((lambda *s: torch.randn(*s, dtype=torch.bfloat16) * 0.8)(Dm, Df) * (Dm ** -0.5)),
            "w_down": _w((lambda *s: torch.randn(*s, dtype=torch.bfloat16) * 0.8)(Df, Dm) * (Df ** -0.5)),
        }
    _B_in = _B_setup()

    return {
        "A_x": _A_in["x"],
        "A_wqkv": _A_in["wqkv"],
        "A_wo": _A_in["wo"],
        "B_x": _B_in["x"],
        "B_w_gate": _B_in["w_gate"],
        "B_w_up": _B_in["w_up"],
        "B_w_down": _B_in["w_down"],
    }

def reference(A_x, A_wqkv, A_wo, B_x, B_w_gate, B_w_up, B_w_down):
    def _A_ref(x, wqkv, wo):
        B, S, D = x.shape
        H = 32; Dh = D // H
        W, dil = 8, 2
        qkv = (lambda x, *d: x.permute(*d))((x @ wqkv).reshape(B, S, 3, H, Dh), 2, 0, 3, 1, 4)
        q, k, v = qkv[0], qkv[1], qkv[2]
        scale = Dh ** -0.5
        pos = torch.arange(S)
        off = torch.arange(W) * dil
        idx = pos[:, None] - off[None, :]
        mask = idx >= 0
        idx_c = torch.where(mask, idx, 0).reshape(-1)
        kg = k[:, :, idx_c, :].reshape(B, H, S, W, Dh)
        vg = v[:, :, idx_c, :].reshape(B, H, S, W, Dh)
        logits = torch.einsum("bhsd,bhswd->bhsw", q, kg) * scale
        logits = torch.where(mask[None, None, :, :], logits, -1e9)
        attn = _softmax(logits, axis=-1)
        o = torch.einsum("bhsw,bhswd->bhsd", attn, vg)
        return (lambda x, *d: x.permute(*d))(o, 0, 2, 1, 3).reshape(B, S, D) @ wo

    def _B_ref(x, w_gate, w_up, w_down):
        g = torch.einsum("bsd,df->bsf", x, w_gate)
        u = torch.einsum("bsd,df->bsf", x, w_up)
        h = _gelu(g) * u
        return torch.einsum("bsf,fd->bsd", h, w_down)

    x = A_x
    h = x + _A_ref(_layernorm(x, axis=-1), A_wqkv, A_wo)
    h2 = h + _B_ref(_layernorm(h, axis=-1), B_w_gate, B_w_up, B_w_down)
    return h2
```

```python
import re

TRANS = ("v_exp_f32", "v_rcp_f32", "v_rsq_f32", "v_log_f32", "v_sqrt_f32", "v_rcp_iflag_f32")
REG_RE = re.compile(r"^(-|\|)?(abs\()?([vas])(\d+|\[(\d+):(\d+)\])\)?\|?$")

def regs_of(tok):
    tok = tok.strip()
    if tok in ("vcc", "vcc_lo", "vcc_hi"): return [("s", "vcc")]
    if tok in ("exec", "exec_lo", "exec_hi"): return [("s", "exec")]
    if tok == "m0": return [("s", "m0")]
    m = REG_RE.match(tok)
    if not m: return []
    k = m.group(3)
    if m.group(5) is not None:
        return [(k, i) for i in range(int(m.group(5)), int(m.group(6)) + 1)]
    return [(k, int(m.group(4)))]

def split_ops(s):
    out, depth, cur = [], 0, ""
    for ch in s:
        if ch in "[(": depth += 1
        if ch in "])": depth -= 1
        if ch == "," and depth == 0:
            out.append(cur.strip()); cur = ""
        else: cur += ch
    if cur.strip(): out.append(cur.strip())
    return out

class Ins:
    __slots__ = ("text", "op", "rd", "wr", "kind", "passes", "tag", "srcc", "ab", "data", "dpp", "arg", "wide")
    def __init__(self, text, tag=None):
        self.text = text; self.tag = tag; self.passes = 0; self.srcc = []; self.ab = []; self.data = []
        self.dpp = False; self.arg = None; self.wide = False
        parts = text.split(None, 1)
        op = self.op = parts[0]
        rest = parts[1] if len(parts) > 1 else ""
        ops = split_ops(rest)
        mods = ""
        if ops:
            last = ops[-1].split(None, 1)
            ops[-1] = last[0]
            mods = last[1] if len(last) > 1 else ""
        R = [regs_of(o) for o in ops]
        flat = lambda l: [x for y in l for x in y]
        self.rd, self.wr = [], []
        if op.startswith("v_mfma"):
            self.kind = "mfma"; self.wr = R[0]; self.ab = R[1] + R[2]; self.srcc = R[3]; self.rd = self.ab + self.srcc
            self.passes = 8 if "32x32" in op else 4
        elif op.startswith("v_"):
            self.kind = "trans" if op.split("_e")[0] in TRANS or op in TRANS else "valu"
            self.dpp = ("_dpp" in op) or ("row_" in mods) or ("quad_perm" in mods)
            if "swap" in op:
                self.wr = R[0] + R[1]; self.rd = R[0] + R[1]; self.kind = "perm"
            elif op.startswith(("v_add_co", "v_sub_co", "v_addc_co", "v_subb_co")):
                self.wr = R[0] + R[1]; self.rd = flat(R[2:])
            else:
                self.wr = R[0]; self.rd = flat(R[1:])
                if op.startswith(("v_fmac", "v_dot2c", "v_writelane", "v_pk_fmac")) or self.dpp: self.rd = self.rd + R[0]
            if op.startswith(("v_readlane", "v_readfirstlane")): self.kind = "rdlane"
        elif op.startswith("ds_"):
            self.kind = "ds"
            if op.startswith(("ds_read", "ds_bpermute", "ds_permute", "ds_swizzle")): self.wr = R[0]; self.rd = flat(R[1:])
            else: self.rd = flat(R)
        elif op.startswith(("buffer_", "global_")):
            self.kind = "vmem"
            if op in ("buffer_inv", "buffer_wbl2"): pass
            elif "load" in op:
                if re.search(r"\blds\b", mods) or "load_lds" in op:
                    self.rd = flat(R) + [("s", "m0")]; self.arg = "dma"
                else:
                    self.wr = R[0]; self.rd = flat(R[1:])
            else:
                self.rd = flat(R)
                self.data = R[0] if op.startswith("buffer_") else R[1]
                self.wide = op.endswith(("x3", "x4"))
                if "atomic" in op and re.search(r"\bsc0\b", mods): self.wr = self.data
        elif op.startswith("s_"):
            if op.startswith(("s_load", "s_memtime", "s_memrealtime", "s_buffer_load")):
                self.kind = "smem"; self.wr = R[0]; self.rd = flat(R[1:])
            elif op in ("s_waitcnt", "s_nop", "s_barrier", "s_sleep", "s_setprio", "s_endpgm"):
                self.kind = "ctl"; self.arg = rest
            elif op.startswith(("s_branch", "s_cbranch")):
                self.kind = "branch"
                if "vcc" in op: self.rd = [("s", "vcc")]
            elif op.startswith("s_cmp") or op.startswith("s_bitcmp"):
                self.kind = "salu"; self.rd = flat(R)
            else:
                self.kind = "salu"; self.wr = R[0]; self.rd = flat(R[1:])
                if "saveexec" in op: self.wr = self.wr + [("s", "exec")]
        else:
            raise ValueError("unknown op " + text)

class Pseudo:
    def __init__(self, kind, arg=None, keep=False):
        self.kind = kind; self.arg = arg; self.keep = keep

VALUISH = ("valu", "trans", "perm", "rdlane")

def need(p, c):
    n = 0
    pw = set(p.wr)
    if p.kind in VALUISH:
        vw = {r for r in pw if r[0] in "va"}
        sw = {r for r in pw if r[0] == "s"}
        if vw:
            hit = vw & set(c.rd)
            if hit:
                if c.kind == "mfma": n = max(n, 2)
                if c.kind == "perm" or c.dpp: n = max(n, 2)
                if c.kind == "rdlane": n = max(n, 1)
                if p.kind == "trans" and c.kind in ("valu", "perm", "rdlane", "mfma", "vmem", "ds"): n = max(n, 1)
        if sw:
            hit = sw & set(c.rd)
            if hit:
                if c.kind == "vmem": n = max(n, 5)
                elif c.kind in VALUISH: n = max(n, 4 if c.op.startswith(("v_readlane", "v_writelane")) else 2)
                elif c.kind in ("salu", "branch", "smem"): n = max(n, 1)
            if ("s", "exec") in sw: n = max(n, 5)
    elif p.kind == "mfma":
        big = {4: 8, 8: 12}[p.passes]
        if c.kind == "mfma":
            if pw & set(c.ab): n = max(n, big)
            ov = pw & set(c.srcc)
            if ov and not (list(p.wr) == list(c.srcc) and p.passes == c.passes): n = max(n, big - 2)
            if (pw & set(c.wr)) and not ov: n = max(n, big)
        elif c.kind in VALUISH or c.kind in ("vmem", "ds"):
            if pw & (set(c.rd) | set(c.wr)): n = max(n, big)
            if set(p.srcc) & set(c.wr): n = max(n, {4: 3, 8: 7}[p.passes])
    elif p.kind == "salu":
        if ("s", "m0") in pw and c.kind == "vmem" and c.arg == "dma": n = max(n, 1)
    elif p.kind == "vmem":
        if p.wide and set(p.data) & set(c.wr): n = max(n, 2)
    return n

def maxneed(p):
    if p.kind == "mfma": return {4: 8, 8: 12}[p.passes]
    if p.kind in VALUISH: return 5 if any(r[0] == "s" for r in p.wr) else 2
    if p.kind == "salu": return 1
    if p.kind == "vmem" and p.wide: return 2
    return 0

class Gen:
    def __init__(self):
        self.items = []
        self.stack = []
        self.uid = 0
    def __call__(self, text, tag=None):
        for line in text.strip().split("\n"):
            line = line.split(";")[0].strip()
            if line: self.items.append(Ins(line, tag))
    def label(self, name, keep=False): self.items.append(Pseudo("label", name, keep))
    def branch(self, text, keep=False):
        self.items.append(Pseudo("flush", None, keep)); self.items.append(Ins(text))
    def waitvm(self, *tags): self.items.append(Pseudo("waitvm", tags))
    def waitds(self): self.items.append(Pseudo("waitds"))
    def raw(self, text): self.items.append(Pseudo("raw", text))
    def comment(self, text): self.items.append(Pseudo("raw", "; " + text))
    def newlabel(self, base="L"):
        self.uid += 1; return f"{base}_{self.uid}"
    def begin(self): self.stack.append(self.items); self.items = []
    def end(self):
        s = self.items; self.items = self.stack.pop(); return s
    def add(self, stream): self.items.extend(stream)
    def finalize(self):
        out = []
        recent = []
        vm = []
        lg = []
        smem = []
        stats = {"nops": 0, "ins": 0}
        def push(ins):
            st = 1
            if ins.op == "s_nop": st = int(ins.arg) + 1
            for i in range(len(recent)): recent[i][1] += st
            while recent and recent[0][1] > 16: recent.pop(0)
            recent.append([ins, 0])
            out.append("    " + ins.text); stats["ins"] += 1
        def pad(n):
            while n > 0:
                k = min(n, 16); push(Ins(f"s_nop {k-1}")); stats["nops"] += k; n -= k
        def wait(vn=None, ln=None):
            nonlocal vm, lg, smem
            t = "s_waitcnt"
            if vn is not None:
                vn = min(vn, 63); t += f" vmcnt({vn})"; vm = vm[len(vm) - vn:] if vn else []
            if ln is not None:
                if smem: ln = 0
                ln = min(ln, 15); t += f" lgkmcnt({ln})"; lg = lg[len(lg) - ln:] if ln else []
                if ln == 0: smem = []
            push(Ins(t))
        def flushhaz():
            n = 0
            for p, d in recent: n = max(n, maxneed(p) - d)
            pad(n)
        for it in self.items:
            if isinstance(it, Pseudo):
                if it.kind == "raw": out.append(it.arg)
                elif it.kind in ("label", "flush"):
                    if not it.keep and (vm or lg or smem): wait(0 if vm else None, 0 if (lg or smem) else None)
                    flushhaz()
                    if it.kind == "label": out.append(it.arg + ":")
                elif it.kind == "waitvm":
                    idx = -1
                    for i, o in enumerate(vm):
                        if o.tag in it.arg or not it.arg: idx = i
                    if idx >= 0: wait(vn=len(vm) - 1 - idx)
                elif it.kind == "waitds":
                    if lg or smem: wait(ln=0)
                continue
            ins = it
            touched = set(ins.rd) | set(ins.wr)
            vn = ln = None
            for i, o in enumerate(vm):
                if set(o.wr) & touched: vn = len(vm) - 1 - i
            for i, o in enumerate(lg):
                if set(o.wr) & touched: ln = len(lg) - 1 - i
            for o in smem:
                if set(o.wr) & touched: ln = 0
            if vn is not None or ln is not None: wait(vn, ln)
            n = 0
            for p, d in recent: n = max(n, need(p, ins) - d)
            pad(n)
            if ins.op == "s_waitcnt":
                m = re.search(r"vmcnt\((\d+)\)", ins.arg)
                if m: k = int(m.group(1)); vm = vm[max(0, len(vm) - k):] if k else []
                m = re.search(r"lgkmcnt\((\d+)\)", ins.arg)
                if m:
                    k = int(m.group(1)); lg = lg[max(0, len(lg) - k):] if k else []
                    if k == 0: smem = []
            push(ins)
            if ins.kind == "vmem": vm.append(ins)
            elif ins.kind == "ds": lg.append(ins)
            elif ins.kind == "smem": smem.append(ins)
            if ins.op in ("s_branch", "s_endpgm"):
                vm, lg, smem = [], [], []
        self.stats = stats
        return "\n".join(out) + "\n"

def zipstreams(main, filler, start=0, end=None):
    end = len(main) if end is None else end
    n = end - start
    out = list(main[:start])
    fi = 0
    for i in range(n):
        out.append(main[start + i])
        tgt = (len(filler) * (i + 1) + n - 1) // n
        while fi < tgt: out.append(filler[fi]); fi += 1
    out.extend(main[end:])
    return out

def vr(i, n=1, k="v"):
    return f"{k}{i}" if n == 1 else f"{k}[{i}:{i+n-1}]"
def ar(i, n=1): return vr(i, n, "a")
def sr(i, n=1): return vr(i, n, "s")

class Alloc:
    def __init__(self, lo, hi): self.free = list(range(lo, hi)); self.hi = lo
    def __call__(self, n=1, align=None):
        align = align or (2 if n > 1 else 1)
        fs = set(self.free)
        for b in self.free:
            if b % align == 0 and all((b + i) in fs for i in range(n)):
                for i in range(n): self.free.remove(b + i)
                self.hi = max(self.hi, b + n)
                return b
        raise RuntimeError(f"out of regs for {n}")
    def release(self, b, n=1):
        for i in range(n):
            assert (b + i) not in self.free, f"double free {b+i}"
            self.free.append(b + i)
        self.free.sort()
```

```python
import sys, struct
sys.path.insert(0, "gen")
from asmgen import *

NAME = "sequential_preLN__sliding_local_dilated__glu_gated_geglu__prompt"
WS_O, WS_H, WS_HH, WS_HST, WS_CS = 0x000000, 0x200000, 0x400000, 0xA00000, 0xA40000
WS_F1, WS_F2, WS_F3, WS_FC, WS_STAMP = 0xB00000, 0xB20000, 0xB40000, 0xB60000, 0xC00000
WS_SIZE = 0x1000000
HHP = 96
SX, SWQ, SWO, SWG, SWU, SWD, SOUT, SDBG, SWS = [f"s[{b}:{b+3}]" for b in range(8, 44, 4)]
sW, sRB, sCB, sR128, sCGX, sISCS = "s44", "s45", "s46", "s47", "s48", "s49"
sNON = "s[50:51]"
POLL_LIMIT = 1 << 16
LOG2E = 1.4426950408889634

def f32(x): return "0x%08x" % struct.unpack("<I", struct.pack("<f", x))[0]

class K:
    def __init__(self, stamps=False, upto="D", opt=None):
        self.g = Gen(); self.V = Alloc(0, 256); self.A = Alloc(0, 256)
        self.stamps = stamps; self.upto = upto; self.nstamp = 0; self.tail = []
        self.opt = opt or {}; self.snames = []
    def stamp(self, name=""):
        if not self.stamps: return
        i = self.nstamp; self.nstamp += 1; self.snames.append(name)
        self.g("s_memrealtime s[72:73]"); self.g("s_waitcnt lgkmcnt(0)"); self.g(f"v_writelane_b32 v{self.vST}, s72, {i}")

    def poll(self, vaddr, tmp):
        g = self.g; L = g.newlabel("L_poll"); Lgo = g.newlabel("L_go")
        g("s_mov_b32 s52, 0")
        g.label(L, keep=True)
        g(f"buffer_load_dwordx2 {vr(tmp,2)}, {vr(vaddr)}, {SWS}, 0 offen sc1")
        g("s_add_u32 s52, s52, 1")
        g(f"s_cmp_gt_u32 s52, {POLL_LIMIT}")
        g(f"s_cbranch_scc1 {Lgo}")
        g("s_waitcnt vmcnt(0)")
        g(f"v_cmp_ne_u64 vcc, {sNON}, {vr(tmp,2)}")
        g(f"s_cbranch_vccnz {L}")
        g.label(Lgo, keep=True)
    def flag(self, soff):
        g = self.g
        g("s_mov_b64 exec, 0xffff")
        g(f"buffer_store_dwordx2 {vr(self.vNON,2)}, {vr(self.vL8)}, {SWS}, {soff} offen sc1", tag="flag")
        g("s_mov_b64 exec, -1")

    def prologue(self):
        g, V = self.g, self.V
        g("s_cmp_ge_u32 s2, 256")
        g("s_cbranch_scc1 L_end")
        g("s_load_dwordx16 s[48:63], s[0:1], 0")
        g("s_load_dwordx4 s[64:67], s[0:1], 64")
        g("s_memrealtime s[100:101]")
        v0 = V(1); assert v0 == 0
        self.vL = V(1); self.vL16 = V(1); self.vL8 = V(1); self.vNON = V(2); self.vHP = V(8, 4)
        t = V(1)
        if self.stamps:
            self.vST = V(1); g(f"v_mov_b32 v{self.vST}, 0"); self.nstamp = 1; self.snames.append("start")
        g(f"v_lshrrev_b32 v{t}, 6, v0")
        g(f"v_and_b32 v{self.vL}, 63, v0")
        g(f"v_readfirstlane_b32 {sW}, v{t}")
        g("s_and_b32 s4, s2, 7")
        g("s_lshr_b32 s5, s2, 3")
        g("s_getpc_b64 s[6:7]")
        g.raw("L_pc:")
        g(f"v_lshrrev_b32 v{t}, 4, v0")
        g(f"v_lshl_add_u32 v{t}, s5, 4, v{t}")
        g(f"v_lshlrev_b32 v{t}, 7, v{t}")
        g(f"v_min_u32 v{t}, L_codeend-L_pc-4, v{t}")
        self.vJunk = V(1)
        g(f"global_load_dword v{self.vJunk}, v{t}, s[6:7]")
        g("s_lshl_b32 s3, s4, 2"); g("s_lshr_b32 s6, s5, 3"); g(f"s_add_u32 {sRB}, s3, s6")
        g(f"s_and_b32 {sCB}, s5, 7")
        g("s_lshl_b32 s3, s4, 1"); g("s_lshr_b32 s6, s5, 4"); g(f"s_add_u32 {sR128}, s3, s6")
        g(f"v_lshlrev_b32 v{self.vL16}, 4, v{self.vL}")
        g(f"v_lshlrev_b32 v{self.vL8}, 3, v{self.vL}")
        V.release(t)
    def srd(self, base, ptr, size):
        g = self.g
        g(f"s_mov_b32 s{base}, s{ptr}"); g(f"s_and_b32 s{base+1}, s{ptr+1}, 0xffff")
        g(f"s_mov_b32 s{base+2}, {size}"); g(f"s_mov_b32 s{base+3}, 0x20000")

    def phaseA(self):
        g, V = self.g, self.V
        L = self.vL
        RING = 81920; TAB = 155648; TCSV = TAB + 1024
        vXs, vWs = V(1), V(1)
        a, b, c = V(1), V(1), V(1)
        g(f"s_and_b32 s3, {sW}, 1"); g("s_lshl_b32 s6, s3, 3")
        g(f"v_lshrrev_b32 v{a}, 3, v{L}")
        g(f"v_add_u32 v{b}, s6, v{a}")
        g(f"v_bfe_u32 v{c}, v{b}, 1, 3")
        g(f"v_and_b32 v{vXs}, 7, v{L}")
        g(f"v_xor_b32 v{c}, v{c}, v{vXs}")
        g(f"v_lshlrev_b32 v{b}, 10, v{b}")
        g(f"v_lshl_add_u32 v{vXs}, v{c}, 4, v{b}")
        g(f"s_lshr_b32 s6, {sW}, 1"); g("s_lshl_b32 s6, s6, 7")
        g(f"v_add_u32 v{vXs}, s6, v{vXs}")
        g(f"v_bfe_u32 v{b}, v{L}, 4, 1")
        g("s_lshl_b32 s6, s3, 1")
        g(f"v_or_b32 v{b}, s6, v{b}")
        g(f"v_bfe_u32 v{c}, v{L}, 1, 2")
        g(f"v_xor_b32 v{b}, v{b}, v{c}")
        g(f"v_and_b32 v{c}, 1, v{L}")
        g(f"v_lshlrev_b32 v{c}, 4, v{c}")
        g(f"v_lshl_add_u32 v{b}, v{b}, 5, v{c}")
        g(f"v_mul_u32_u24 v{a}, 3072, v{a}")
        g(f"s_mul_i32 s6, {sW}, {8*3072}"); g(f"s_lshl_b32 s7, {sCB}, 7"); g("s_add_u32 s6, s6, s7")
        g(f"v_add3_u32 v{vWs}, v{a}, v{b}, s6")
        sXb, sX0, sXm, sWm, sEx = "s68", "s69", "s70", "s71", "s5"
        g(f"s_lshl_b32 {sXb}, {sRB}, 16"); g(f"s_sub_u32 {sXb}, {sXb}, 16384"); g(f"s_max_i32 {sX0}, {sXb}, 0")
        g(f"s_lshl_b32 {sXm}, {sW}, 10")
        g(f"s_mul_i32 {sWm}, {sW}, 3072"); g(f"s_add_u32 {sWm}, {sWm}, {RING}")
        g("s_cmp_eq_u32 s3, 0"); g(f"s_cselect_b32 {sEx}, 0xffffff00, -1")
        g("s_waitcnt lgkmcnt(0)")
        self.srd(8, 48, 2048*512*2); self.srd(12, 50, 512*1536*2)
        if self.stamps: g(f"v_writelane_b32 v{self.vST}, s100, 0")
        g(f"s_or_b32 s3, s2, {sW}"); g("s_cmp_eq_u32 s3, 0")
        g.branch("s_cbranch_scc1 L_pubnonce", keep=True)
        g.label("L_pubdone", keep=True)
        g.begin()
        g.label("L_pubnonce", keep=True)
        self.srd(36, 64, 256)
        g("s_or_b32 s100, s100, 1")
        g(f"v_mov_b32 v{self.vNON}, s100"); g(f"v_mov_b32 v{self.vNON+1}, s101"); g(f"v_mov_b32 v{a}, 0")
        g("s_mov_b64 exec, 1")
        g(f"buffer_store_dwordx2 {vr(self.vNON,2)}, v{a}, {SDBG}, 0 offen sc1")
        g("s_mov_b64 exec, -1")
        g.branch("s_branch L_pubdone", keep=True)
        self.tail.append(g.end())
        def xjob(q, t):
            g.begin()
            g(f"s_add_u32 m0, {sXm}, {t*16384 + q*4096}")
            if t == 0:
                g(f"s_add_u32 s3, {sX0}, {q*256}"); g(f"s_mov_b32 exec_lo, {sEx}")
            else:
                g(f"s_add_u32 s3, {sXb}, {t*16384 + q*256}")
            g(f"buffer_load_dwordx4 v{vXs}, {SX}, s3 offen lds", tag=f"x{q}")
            if t == 0: g("s_mov_b32 exec_lo, -1")
            return g.end()
        def wjob(s, p):
            g.begin()
            g(f"s_add_u32 m0, {sWm}, {(s % 6)*12288}")
            g(f"s_mov_b32 s3, {s*32*3072}")
            g(f"buffer_load_dwordx4 v{vWs}, {SWQ}, s3 offen offset:{p*1024} lds", tag=f"w{s}")
            return g.end()
        jobs = []
        for s in range(16):
            if s % 4 == 0: jobs += [(-1, xjob(s // 4, t)) for t in range(5)]
            jobs += [(s - 6, wjob(s, p)) for p in range(3)]
        INIT = self.opt.get("a_init", 17)
        for _, st in jobs[:INIT]: g.add(st)
        jpos = INIT
        self.srd(16, 52, 512*512*2); self.srd(20, 56, 512*1376*2); self.srd(24, 58, 512*1376*2); self.srd(28, 60, 1376*512*2)
        self.srd(32, 62, 2048*512*2); self.srd(36, 64, 256); self.srd(40, 66, WS_SIZE)
        g("s_lshr_b32 s3, s2, 3"); g("s_and_b32 s3, s3, 15")
        g("s_cmp_eq_u32 s3, 15"); g(f"s_cselect_b32 {sISCS}, 1, 0"); g(f"s_cselect_b32 {sCGX}, {sR128}, s3")
        vXr = [V(1), V(1)]; vXr4 = [V(1), V(1)]; vSr = [V(1), V(1)]; vWr = V(1)
        ONES = V(4, 4)
        g(f"v_bfe_u32 v{a}, v{L}, 1, 3")
        g(f"v_lshrrev_b32 v{b}, 4, v{L}")
        g(f"v_xor_b32 v{a}, v{a}, v{b}")
        g(f"v_lshlrev_b32 v{a}, 4, v{a}")
        g(f"v_and_b32 v{c}, 15, v{L}")
        g(f"v_lshl_add_u32 v{vXr[0]}, v{c}, 7, v{a}")
        g(f"v_xor_b32 v{vXr[1]}, 64, v{vXr[0]}")
        g(f"s_add_u32 s3, {sW}, 1"); g("s_lshl_b32 s3, s3, 14")
        for i in range(2):
            g(f"v_add_u32 v{vXr4[i]}, 0x10000, v{vXr[i]}")
            g(f"v_add_u32 v{vSr[i]}, s3, v{vXr[i]}")
        g(f"v_bfe_u32 v{a}, v{L}, 3, 2")
        g(f"v_xor_b32 v{a}, {sW}, v{a}")
        g(f"v_lshlrev_b32 v{a}, 5, v{a}")
        g(f"v_mul_u32_u24 v{b}, 3072, v{b}")
        g(f"v_bfe_u32 v{c}, v{L}, 2, 2")
        g(f"v_lshl_add_u32 v{a}, v{c}, 7, v{a}")
        g(f"v_and_b32 v{c}, 3, v{L}")
        g(f"v_lshl_add_u32 v{a}, v{c}, 3, v{a}")
        g(f"v_add_u32 v{a}, {RING}, v{a}")
        g(f"v_add_u32 v{vWr}, v{a}, v{b}")
        for i in range(4): g(f"v_mov_b32 v{ONES+i}, 0x3f803f80")
        g(f"v_lshrrev_b32 v{a}, 3, v{L}"); g(f"v_and_b32 v{b}, 7, v{L}"); g(f"v_lshlrev_b32 v{a}, 11, v{a}")
        g(f"v_lshl_add_u32 v{a}, v{b}, 4, v{a}")
        g(f"ds_write_b128 v{a}, {vr(ONES,4)}")
        self.flag_addrs(a, b, c)
        XF = [[V(4, 4) for t in range(5)] for _ in range(2)]
        WF = [[V(4, 4) for p in range(3)] for _ in range(2)]
        SF = [V(4, 4) for _ in range(2)]
        Q = [V(4, 4) for t in range(5)]; Kc = [V(4, 4) for t in range(5)]; Vc = [V(4, 4) for t in range(5)]
        G0, GS, SS = V(4, 4), V(4, 4), V(4, 4)
        def reads(s):
            g.begin(); bi = s & 1
            for p in range(3):
                for j2 in range(2):
                    g(f"ds_read_b64_tr_b16 {vr(WF[bi][p]+2*j2,2)}, v{vWr} offset:{(s%6)*12288 + p*1024 + j2*512}")
                if p < 2:
                    for t in (2*p, 2*p+1):
                        g(f"ds_read_b128 {vr(XF[bi][t],4)}, v{vXr[s&1]} offset:{t*16384 + (s>>1)*2048}")
            g(f"ds_read_b128 {vr(XF[bi][4],4)}, v{vXr4[s&1]} offset:{(s>>1)*2048}")
            g(f"ds_read_b128 {vr(SF[bi],4)}, v{vSr[s&1]} offset:{(s>>1)*2048}")
            return g.end()
        def mfmas(s):
            g.begin(); bi = s & 1
            def mf(d, x, y): g(f"v_mfma_f32_16x16x32_bf16 {vr(d,4)}, {vr(x,4)}, {vr(y,4)}, {vr(d,4) if s else 0}")
            for t in range(5): mf(Q[t], WF[bi][0], XF[bi][t])
            for t in range(5): mf(Kc[t], WF[bi][1], XF[bi][t])
            for t in range(5): mf(Vc[t], XF[bi][t], WF[bi][2])
            mf(G0, XF[bi][0], XF[bi][0]); mf(GS, SF[bi], SF[bi]); mf(SS, ONES, SF[bi])
            return g.end()
        self.stamp()
        g.waitds(); g.waitvm("x0", "w0"); g("s_barrier")
        self.stamp()
        g.add(reads(0))
        RATE = self.opt.get("a_rate", 5)
        vN = V(2)
        for s in range(16):
            g.comment(f"A step {s}")
            g.waitds()
            if s < 15:
                g.waitvm(f"x{(s+1)//4}", f"w{s+1}"); g("s_barrier")
            fill = reads(s + 1) if s < 15 else []
            n = 0
            while jpos < len(jobs) and jobs[jpos][0] <= s and n < RATE:
                fill = fill + [("grp", jobs[jpos][1])]; jpos += 1; n += 1
            if s == 12:
                g.begin(); g(f"v_mov_b32 v{a}, 0"); g(f"buffer_load_dwordx2 {vr(vN,2)}, v{a}, {SDBG}, 0 offen sc1")
                fill = fill + [("grp", g.end())]
            z = zipstreams(mfmas(s), fill, 0, 16) if fill else mfmas(s)
            for it in z:
                if isinstance(it, tuple): g.add(it[1])
                else: g.add([it])
        assert jpos == len(jobs), (jpos, len(jobs))
        self.stamp()
        for bi in range(2):
            for r in XF[bi] + WF[bi] + [SF[bi]]: V.release(r, 4)
        for r in [vXs, vWs, vWr] + vXr + vXr4 + vSr: V.release(r)
        g("s_mov_b32 s52, 0x22222222"); g("s_mov_b32 s53, 0x22222222")
        g("s_mov_b32 s54, 0x44444444"); g("s_mov_b32 s55, 0x44444444")
        g("s_mov_b32 s56, 0x88888888"); g("s_mov_b32 s57, 0x88888888")
        def diag(dst, src):
            g(f"v_cndmask_b32 v{dst}, v{src}, v{src+1}, s[52:53]")
            g(f"v_cndmask_b32 v{dst}, v{dst}, v{src+2}, s[54:55]")
            g(f"v_cndmask_b32 v{dst}, v{dst}, v{src+3}, s[56:57]")
        T = V(4, 4); MA = [V(2), V(2)]; q1, q0, s0 = V(1), V(1), V(1)
        CSQ, CSK = V(4, 4), V(4, 4)
        for r in range(4):
            g(f"v_mov_b32_dpp v{CSQ+r}, v{Q[0]+r} row_newbcast:0 row_mask:0xf bank_mask:0xf")
            g(f"v_mov_b32_dpp v{CSK+r}, v{Kc[0]+r} row_newbcast:0 row_mask:0xf bank_mask:0xf")
        for r in range(4):
            g(f"v_mov_b32_dpp v{T+r}, v{G0+r} row_newbcast:0 row_mask:0xf bank_mask:0xf")
        diag(q0, G0); diag(s0, T); diag(q1, GS)
        g(f"s_mov_b32 s58, {f32(1/512)}")
        for (S, Qq, M) in ((s0, q0, MA[0]), (SS, q1, MA[1])):
            g(f"v_mul_f32 v{M}, s58, v{S}")
            g(f"v_mul_f32 v{Qq}, s58, v{Qq}")
            g(f"v_fma_f32 v{Qq}, -v{M}, v{M}, v{Qq}")
            g(f"v_max_f32 v{Qq}, 0, v{Qq}")
            g(f"v_add_f32 v{Qq}, {f32(1e-5)}, v{Qq}")
            g(f"v_rsq_f32 v{M+1}, v{Qq}")
        g(f"v_and_b32 v{a}, 15, v{L}"); g(f"v_lshlrev_b32 v{a}, 3, v{a}"); g(f"v_add_u32 v{a}, {TAB}, v{a}")
        g(f"s_lshl_b32 s3, {sW}, 7"); g(f"v_add_u32 v{b}, s3, v{a}")
        g(f"s_lshl_b32 s3, {sW}, 6"); g(f"s_add_u32 s3, s3, {TCSV}")
        g(f"v_and_b32 v{c}, 15, v{L}"); g(f"v_lshl_add_u32 v{c}, v{c}, 2, s3")
        g("s_mov_b32 exec_lo, 0x00f0000f"); g("s_mov_b32 exec_hi, 0xf0000f00")
        g(f"ds_write_b64 v{a}, {vr(MA[0],2)}")
        g(f"ds_write_b64 v{b}, {vr(MA[1],2)} offset:128")
        g("s_mov_b64 exec, 0xffff")
        g(f"ds_write_b32 v{c}, v{Vc[0]}")
        g("s_mov_b64 exec, -1")
        g(f"v_lshrrev_b32 v{b}, 4, v{L}"); g(f"v_lshlrev_b32 v{b}, 5, v{b}"); g(f"v_add_u32 v{b}, {TAB}, v{b}")
        g.waitds(); g("s_barrier")
        self.hookA_lds_free()
        V.release(T, 4); V.release(MA[0], 2); V.release(MA[1], 2); V.release(q1); V.release(q0); V.release(s0)
        V.release(G0, 4); V.release(GS, 4); V.release(SS, 4)
        M1 = [V(2) for t in range(5)]; M2 = [V(8, 4) for t in range(5)]; CSV = V(1)
        g(f"ds_read_b32 v{CSV}, v{c}")
        for t in range(5): g(f"ds_read_b64 {vr(M1[t],2)}, v{a} offset:{t*128}")
        for t in range(5):
            g(f"ds_read_b128 {vr(M2[t],4)}, v{b} offset:{t*128}")
            g(f"ds_read_b128 {vr(M2[t]+4,4)}, v{b} offset:{t*128+16}")
        BC, BP, BP1 = V(4, 4), V(4, 4), V(4, 4)
        NEG = f32(-1e30)
        g(f"v_and_b32 v{a}, 15, v{L}"); g(f"v_lshrrev_b32 v{b}, 4, v{L}"); g(f"v_lshlrev_b32 v{b}, 2, v{b}")
        g(f"v_sub_u32 v{a}, v{a}, v{b}")
        g(f"v_mov_b32 v{c}, {NEG}")
        g(f"s_cmp_eq_u32 {sRB}, 0"); g("s_cselect_b64 s[58:59], 0, -1")
        for r in range(4):
            g(f"v_subrev_u32 v{b}, {r}, v{a}")
            g(f"v_and_b32 v{b}, 0x80000001, v{b}")
            g(f"v_cmp_eq_u32 vcc, 0, v{b}")
            g(f"v_cndmask_b32 v{BC+r}, v{c}, 0, vcc")
            g(f"v_cmp_eq_u32 vcc, 0x80000000, v{b}")
            g(f"v_cndmask_b32 v{BP+r}, v{c}, 0, vcc")
            g(f"v_cndmask_b32 v{BP1+r}, v{c}, v{BP+r}, s[58:59]")
        Lback = g.newlabel("L_nb")
        g(f"v_readfirstlane_b32 s50, v{vN}"); g(f"v_readfirstlane_b32 s51, v{vN+1}")
        g("s_cmp_eq_u32 s50, 0")
        g.branch("s_cbranch_scc1 L_getnonce", keep=True)
        g.label(Lback, keep=True)
        g.begin()
        g.label("L_getnonce", keep=True)
        g("s_mov_b32 s52, 0"); g(f"v_mov_b32 v{self.vNON}, 0")
        g.label("L_getnonce2", keep=True)
        g(f"buffer_load_dwordx2 {vr(vN,2)}, v{self.vNON}, {SDBG}, 0 offen sc1")
        g("s_waitcnt vmcnt(0)")
        g(f"v_readfirstlane_b32 s50, v{vN}"); g(f"v_readfirstlane_b32 s51, v{vN+1}")
        g("s_add_u32 s52, s52, 1"); g(f"s_cmp_gt_u32 s52, {POLL_LIMIT}")
        g.branch(f"s_cbranch_scc1 {Lback}", keep=True)
        g("s_cmp_eq_u32 s50, 0")
        g.branch("s_cbranch_scc1 L_getnonce2", keep=True)
        g.branch(f"s_branch {Lback}", keep=True)
        self.tail.append(g.end())
        g(f"v_mov_b32 v{self.vNON}, s50"); g(f"v_mov_b32 v{self.vNON+1}, s51")
        V.release(vN, 2)
        QB = [None] + [V(2) for t in range(4)]; KB = [V(2) for t in range(5)]; VB = V(10, 2)
        for t in range(5):
            for r in range(4):
                if t: g(f"v_fma_f32 v{Q[t]+r}, -v{M1[t]}, v{CSQ+r}, v{Q[t]+r}")
                g(f"v_fma_f32 v{Kc[t]+r}, -v{M1[t]}, v{CSK+r}, v{Kc[t]+r}")
            for r in range(4): g(f"v_mul_f32 v{Kc[t]+r}, v{M1[t]+1}, v{Kc[t]+r}")
            if t:
                for h in range(2): g(f"v_cvt_pk_bf16_f32 v{QB[t]+h}, v{Q[t]+2*h}, v{Q[t]+2*h+1}")
            for h in range(2): g(f"v_cvt_pk_bf16_f32 v{KB[t]+h}, v{Kc[t]+2*h}, v{Kc[t]+2*h+1}")
        SP = {t: Q[t] for t in range(1, 5)}; SC = {t: Kc[t] for t in range(1, 5)}
        for t in range(1, 5):
            g(f"v_mfma_f32_16x16x16_bf16 {vr(SP[t],4)}, {vr(KB[t-1],2)}, {vr(QB[t],2)}, {vr(BP1 if t == 1 else BP,4)}")
            g(f"v_mfma_f32_16x16x16_bf16 {vr(SC[t],4)}, {vr(KB[t],2)}, {vr(QB[t],2)}, {vr(BC,4)}")
        for t in range(5):
            for r in range(4): g(f"v_fma_f32 v{Vc[t]+r}, -v{M2[t]+2*r}, v{CSV}, v{Vc[t]+r}")
            for r in range(4): g(f"v_mul_f32 v{Vc[t]+r}, v{M2[t]+2*r+1}, v{Vc[t]+r}")
            for h in range(2): g(f"v_cvt_pk_bf16_f32 v{VB+2*t+h}, v{Vc[t]+2*h}, v{Vc[t]+2*h+1}")
        MX = {t: V(1) for t in range(1, 5)}; TX = {t: V(1) for t in range(1, 5)}; AQ = {t: V(1) for t in range(1, 5)}
        R4 = range(1, 5)
        g(f"s_mov_b32 s58, {f32(0.25*LOG2E)}")
        for t in R4: g(f"v_mul_f32 v{AQ[t]}, s58, v{M1[t]+1}")
        for t in R4: g(f"v_max3_f32 v{MX[t]}, v{SP[t]}, v{SP[t]+1}, v{SP[t]+2}")
        for t in R4: g(f"v_max3_f32 v{TX[t]}, v{SC[t]}, v{SC[t]+1}, v{SC[t]+2}")
        for t in R4: g(f"v_max3_f32 v{MX[t]}, v{MX[t]}, v{SP[t]+3}, v{SC[t]+3}")
        for t in R4: g(f"v_max_f32 v{MX[t]}, v{MX[t]}, v{TX[t]}")
        for sw in ("v_permlane16_swap_b32", "v_permlane32_swap_b32"):
            for t in R4: g(f"v_mov_b32 v{TX[t]}, v{MX[t]}")
            for t in R4: g(f"{sw} v{MX[t]}, v{TX[t]}")
            for t in R4: g(f"v_max_f32 v{MX[t]}, v{MX[t]}, v{TX[t]}")
        for t in R4: g(f"v_mul_f32 v{MX[t]}, v{MX[t]}, v{AQ[t]}")
        PB = {t: V(4, 4) for t in R4}
        for t in R4:
            for S in (SP[t], SC[t]):
                for r in range(4): g(f"v_fma_f32 v{S+r}, v{S+r}, v{AQ[t]}, -v{MX[t]}")
            for S in (SP[t], SC[t]):
                for r in range(4): g(f"v_exp_f32 v{S+r}, v{S+r}")
        for t in R4:
            for i, S in enumerate((SP[t], SC[t])):
                for h in range(2): g(f"v_cvt_pk_bf16_f32 v{PB[t]+2*i+h}, v{S+2*h}, v{S+2*h+1}")
        for t in R4:
            g(f"v_mfma_f32_16x16x32_bf16 {vr(SP[t],4)}, {vr(ONES,4)}, {vr(PB[t],4)}, 0")
            g(f"v_mfma_f32_16x16x32_bf16 {vr(SC[t],4)}, {vr(VB+2*(t-1),4)}, {vr(PB[t],4)}, 0")
        g(f"s_lshl_b32 s3, {sRB}, 6"); g(f"s_lshl_b32 s6, {sCB}, 2"); g("s_add_u32 s3, s3, s6"); g(f"s_add_u32 s3, s3, {sW}")
        g("s_lshl_b32 s3, s3, 10"); g(f"s_add_u32 s6, s3, {32*1024}")
        g(f"s_lshl_b32 s7, {sRB}, 5"); g(f"s_lshl_b32 s4, {sCB}, 2"); g("s_add_u32 s7, s7, s4"); g(f"s_add_u32 s7, s7, {sW}")
        g("s_lshl_b32 s7, s7, 7"); g(f"s_add_u32 s7, s7, {WS_F1}")
        for t in R4: g(f"v_rcp_f32 v{MX[t]}, v{SP[t]}")
        for t in R4:
            for r in range(4): g(f"v_mul_f32 v{SC[t]+r}, v{MX[t]}, v{SC[t]+r}")
        OB = [PB[1], PB[3]]
        for pr in range(2):
            tx, ty = 1 + 2*pr, 2 + 2*pr
            for h in range(2):
                g(f"v_cvt_pk_bf16_f32 v{OB[pr]+h}, v{SC[tx]+2*h}, v{SC[tx]+2*h+1}")
                g(f"v_cvt_pk_bf16_f32 v{OB[pr]+2+h}, v{SC[ty]+2*h}, v{SC[ty]+2*h+1}")
        for pr in range(2):
            for h in range(2): g(f"v_permlane16_swap_b32 v{OB[pr]+h}, v{OB[pr]+2+h}")
        g(f"buffer_store_dwordx4 {vr(OB[0],4)}, v{self.vL16}, {SWS}, s3 offen sc1", tag="ost")
        g(f"buffer_store_dwordx4 {vr(OB[1],4)}, v{self.vL16}, {SWS}, s6 offen sc1", tag="ost")
        self.stamp()
        self.hookA_after_store()
        g.waitvm("ost")
        self.flag("s7")
        self.stamp()
        for t in range(5):
            V.release(Q[t], 4); V.release(Kc[t], 4); V.release(Vc[t], 4); V.release(M1[t], 2); V.release(M2[t], 8); V.release(KB[t], 2)
        for t in R4:
            V.release(QB[t], 2); V.release(MX[t]); V.release(TX[t]); V.release(AQ[t]); V.release(PB[t], 4)
        V.release(VB, 10); V.release(CSV); V.release(CSQ, 4); V.release(CSK, 4); V.release(BC, 4); V.release(BP, 4); V.release(BP1, 4)
        V.release(ONES, 4); V.release(a); V.release(b); V.release(c)

    def flag_addrs(self, a, b, c):
        g, V, L = self.g, self.V, self.vL
        self.vP1, self.vP2, self.vP3 = V(1), V(1), V(1)
        g(f"s_lshl_b32 s3, {sRB}, 5"); g(f"s_lshl_b32 s6, {sW}, 3"); g("s_add_u32 s3, s3, s6"); g("s_lshl_b32 s3, s3, 7"); g(f"s_add_u32 s3, s3, {WS_F1}")
        g(f"v_and_b32 v{a}, 7, v{L}"); g(f"v_lshl_add_u32 v{self.vP1}, v{a}, 7, s3")
        g(f"s_lshl_b32 s3, {sR128}, 2"); g(f"s_add_u32 s3, s3, {sW}"); g("s_lshl_b32 s3, s3, 11"); g(f"s_add_u32 s3, s3, {WS_F2}")
        g(f"v_and_b32 v{a}, 15, v{L}"); g(f"v_lshl_add_u32 v{self.vP2}, v{a}, 7, s3")
        g(f"s_lshl_b32 s3, {sRB}, 12"); g(f"s_add_u32 s3, s3, {WS_F3}")
        g(f"v_min_u32 v{a}, 14, v{a}"); g(f"v_and_b32 v{b}, 16, v{L}"); g(f"v_or_b32 v{a}, v{a}, v{b}")
        g(f"v_lshl_add_u32 v{self.vP3}, v{a}, 7, s3")
        g("s_mov_b32 s6, 0"); g("s_mov_b32 s7, 0x0000ffff")
        g(f"v_cndmask_b32 v{a}, v{self.vP3}, v{self.vP2}, s[6:7]")
        g("s_mov_b32 s7, 0xffff0000")
        g(f"v_cndmask_b32 v{a}, v{a}, v{self.vP1}, s[6:7]")
        g(f"buffer_load_dword v{self.vJunk}, v{a}, {SWS}, 0 offen sc1")

    def hookA_lds_free(self): pass
    def hookA_after_store(self): pass

    def ksplit_consts(self):
        g, V, L = self.g, self.V, self.vL
        a, b = V(1), V(1)
        self.vKs = V(1); self.vKr = [V(1), V(1)]
        g(f"v_bfe_u32 v{a}, v{L}, 4, 1"); g(f"v_lshlrev_b32 v{a}, 2, v{a}")
        g(f"v_and_b32 v{b}, 7, v{L}"); g(f"v_xor_b32 v{a}, v{a}, v{b}"); g(f"v_lshlrev_b32 v{a}, 4, v{a}")
        g(f"v_lshrrev_b32 v{b}, 3, v{L}"); g(f"v_lshl_add_u32 v{a}, v{b}, 10, v{a}")
        g(f"s_lshl_b32 s3, {sCB}, 7"); g(f"v_add_u32 v{self.vKs}, s3, v{a}")
        g(f"v_lshrrev_b32 v{a}, 5, v{L}"); g(f"v_lshlrev_b32 v{a}, 10, v{a}")
        g(f"v_bfe_u32 v{b}, v{L}, 2, 2"); g(f"v_lshl_add_u32 v{a}, v{b}, 7, v{a}")
        g(f"v_bfe_u32 v{b}, v{L}, 3, 1"); g(f"s_and_b32 s3, {sW}, 1"); g(f"v_xor_b32 v{b}, s3, v{b}"); g(f"v_lshl_add_u32 v{a}, v{b}, 6, v{a}")
        g(f"v_bfe_u32 v{b}, v{L}, 4, 1"); g(f"v_lshl_add_u32 v{a}, v{b}, 5, v{a}")
        self.pi8(a, b)
        g(f"v_mov_b32 v{self.vKr[0]}, v{a}"); g(f"v_xor_b32 v{self.vKr[1]}, 64, v{a}")
        V.release(a); V.release(b)
    def pi8(self, acc, t):
        g, L = self.g, self.vL
        g(f"v_and_b32 v{t}, 1, v{L}"); g(f"v_lshl_add_u32 v{acc}, v{t}, 4, v{acc}")
        g(f"v_bfe_u32 v{t}, v{L}, 1, 1"); g(f"v_lshl_add_u32 v{acc}, v{t}, 3, v{acc}")
    def reduce4(self, ACC, RED, T):
        g, V = self.g, self.V
        vw = V(1); vrd = V(1)
        for a in (1, 2, 3):
            g(f"s_xor_b32 s3, {sW}, {a}"); g("s_mul_i32 s3, s3, 12288"); g(f"s_add_u32 s3, s3, {RED + (a-1)*4096}")
            g(f"v_add_u32 v{vw}, s3, v{self.vL16}")
            for j in range(4): g(f"ds_write_b128 v{vw}, {vr(ACC[a]+4*j,4)} offset:{j*1024}")
        g(f"s_mul_i32 s3, {sW}, 12288"); g(f"s_add_u32 s3, s3, {RED}"); g(f"v_add_u32 v{vrd}, s3, v{self.vL16}")
        g.waitds(); g("s_barrier")
        for i in range(12): g(f"ds_read_b128 {vr(T+4*i,4)}, v{vrd} offset:{i*1024}")
        for a in range(3):
            for j in range(8): g(f"v_pk_add_f32 {vr(ACC[0]+2*j,2)}, {vr(ACC[0]+2*j,2)}, {vr(T+16*a+2*j,2)}")
        V.release(vw); V.release(vrd)
    def rowmajor_off(self):
        g, V, L = self.g, self.V, self.vL
        r = V(1); t = V(1)
        g(f"v_and_b32 v{t}, 31, v{L}"); g(f"v_lshlrev_b32 v{r}, 10, v{t}")
        g(f"v_lshrrev_b32 v{t}, 5, v{L}"); g(f"v_lshl_add_u32 v{r}, v{t}, 4, v{r}")
        g(f"s_lshl_b32 s3, {sRB}, 1"); g(f"s_lshr_b32 s6, {sW}, 1"); g("s_add_u32 s3, s3, s6"); g("s_lshl_b32 s3, s3, 15")
        g(f"s_lshl_b32 s6, {sCB}, 1"); g(f"s_and_b32 s7, {sW}, 1"); g("s_add_u32 s6, s6, s7"); g("s_lshl_b32 s6, s6, 6")
        g("s_add_u32 s3, s3, s6"); g(f"v_add_u32 v{r}, s3, v{r}")
        V.release(t)
        return r

    def phaseB(self):
        g, V = self.g, self.V
        STG = 65536; RED = 65536
        self.ksplit_consts()
        self.vRM = self.rowmajor_off()
        XR = V(8, 4)
        g(f"buffer_load_dwordx4 {vr(XR,4)}, v{self.vRM}, {SX}, 0 offen")
        g(f"buffer_load_dwordx4 {vr(XR+4,4)}, v{self.vRM}, {SX}, 0 offen offset:32")
        g(f"s_lshl_b32 s6, {sW}, 14"); g(f"s_add_u32 s6, s6, {STG}"); g(f"s_lshl_b32 s7, {sW}, 17")
        for i in range(16):
            g(f"s_add_u32 m0, s6, {i*1024}"); g(f"s_add_u32 s3, s7, {i*8192}")
            g(f"buffer_load_dwordx4 v{self.vKs}, {SWO}, s3 offen lds", tag="wb")
        WB = V(64, 4); OF = V(64, 4); ACC = [V(16, 4) for _ in range(4)]
        rd = [V(1), V(1)]
        for i in range(2): g(f"v_add_u32 v{rd[i]}, s6, v{self.vKr[i]}")
        for j in range(8):
            g(f"v_lshlrev_b32 v{ACC[0]+2*j}, 16, v{XR+j}"); g(f"v_and_b32 v{ACC[0]+2*j+1}, 0xffff0000, v{XR+j}")
        g.waitvm("wb")
        for ks in range(8):
            for ct in range(2):
                for j2 in range(2):
                    g(f"ds_read_b64_tr_b16 {vr(WB+(ks*2+ct)*4+2*j2,2)}, v{rd[ct]} offset:{ks*2048+j2*512}")
        for rt in range(2):
            g(f"s_lshr_b32 s3, {sW}, 1"); g(f"s_xor_b32 s3, s3, {rt}"); g(f"s_lshl_b32 s6, {sRB}, 1"); g("s_add_u32 s3, s3, s6")
            g("s_lshl_b32 s3, s3, 5"); g(f"s_lshl_b32 s6, {sW}, 3"); g("s_add_u32 s3, s3, s6"); g(f"s_lshl_b32 s{54+2*rt}, s3, 10")
            g(f"s_add_u32 s{55+2*rt}, s{54+2*rt}, 4096")
        g.waitds()
        self.stamp()
        t2 = V(2)
        self.poll(self.vP1, t2)
        self.stamp()
        for ks in range(8):
            for rt in range(2):
                g(f"buffer_load_dwordx4 {vr(OF+(ks*2+rt)*4,4)}, v{self.vL16}, {SWS}, s{54+2*rt+ks//4} offen offset:{(ks%4)*1024} sc1")
        g("s_barrier")
        for ks in range(8):
            for rt in range(2):
                for ct in range(2):
                    a = 2*rt + ct
                    c = vr(ACC[a],16) if (ks or a == 0) else "0"
                    g(f"v_mfma_f32_32x32x16_bf16 {vr(ACC[a],16)}, {vr(WB+(ks*2+ct)*4,4)}, {vr(OF+(ks*2+rt)*4,4)}, {c}")
        self.stamp()
        self.reduce4(ACC, RED, WB)
        H = ACC[0]
        for j in range(8): g(f"v_cvt_pk_bf16_f32 v{self.vHP+j}, v{H+2*j}, v{H+2*j+1}")
        g(f"s_lshl_b32 s3, {sRB}, 1"); g(f"s_lshr_b32 s6, {sW}, 1"); g("s_add_u32 s3, s3, s6"); g("s_lshl_b32 s3, s3, 4")
        g(f"s_lshl_b32 s6, {sCB}, 1"); g(f"s_and_b32 s7, {sW}, 1"); g("s_add_u32 s6, s6, s7"); g("s_add_u32 s3, s3, s6")
        g("s_lshl_b32 s6, s3, 11"); g(f"s_add_u32 s6, s6, {WS_H}")
        g(f"buffer_store_dwordx4 {vr(self.vHP,4)}, v{self.vL16}, {SWS}, s6 offen sc1", tag="hst")
        g(f"buffer_store_dwordx4 {vr(self.vHP+4,4)}, v{self.vL16}, {SWS}, s6 offen offset:1024 sc1", tag="hst")
        S2, Q2 = ACC[1], ACC[1] + 2
        g(f"v_pk_add_f32 {vr(S2,2)}, {vr(H,2)}, {vr(H+2,2)}"); g(f"v_pk_mul_f32 {vr(Q2,2)}, {vr(H,2)}, {vr(H,2)}")
        g(f"v_pk_fma_f32 {vr(Q2,2)}, {vr(H+2,2)}, {vr(H+2,2)}, {vr(Q2,2)}")
        for j in range(2, 8):
            g(f"v_pk_add_f32 {vr(S2,2)}, {vr(S2,2)}, {vr(H+2*j,2)}")
            g(f"v_pk_fma_f32 {vr(Q2,2)}, {vr(H+2*j,2)}, {vr(H+2*j,2)}, {vr(Q2,2)}")
        g(f"v_add_f32 v{S2}, v{S2}, v{S2+1}"); g(f"v_add_f32 v{Q2}, v{Q2}, v{Q2+1}")
        g(f"v_permlane32_swap_b32 v{S2}, v{Q2}")
        g(f"v_add_f32 v{S2}, v{S2}, v{Q2}")
        g(f"v_lshlrev_b32 v{Q2}, 2, v{self.vL}")
        g("s_lshl_b32 s6, s3, 8"); g(f"s_add_u32 s6, s6, {WS_HST}")
        g(f"buffer_store_dword v{S2}, v{Q2}, {SWS}, s6 offen sc1", tag="hst")
        g("s_lshl_b32 s7, s3, 7"); g(f"s_add_u32 s7, s7, {WS_F2}")
        g.waitvm("hst")
        self.flag("s7")
        self.stamp()
        V.release(XR, 8); V.release(WB, 64); V.release(OF, 64); V.release(t2, 2)
        for x in ACC: V.release(x, 16)
        for x in rd: V.release(x)

    def c_consts(self):
        g, V, L = self.g, self.V, self.vL
        a, b = V(1), V(1)
        self.vCs = [V(1), V(1)]; self.vCr = [[V(1), V(1)], [V(1), V(1)]]
        g(f"v_lshrrev_b32 v{a}, 2, v{L}"); g(f"v_mul_u32_u24 v{a}, 2752, v{a}")
        g(f"v_and_b32 v{b}, 3, v{L}"); g(f"v_lshl_add_u32 v{a}, v{b}, 4, v{a}")
        g(f"s_mul_i32 s3, {sCGX}, 192"); g(f"s_mul_i32 s6, {sW}, {4*16*2752}"); g("s_add_u32 s3, s3, s6")
        g(f"v_add_u32 v{self.vCs[0]}, s3, v{a}")
        g(f"v_xor_b32 v{a}, 32, v{a}")
        g(f"v_add_u32 v{self.vCs[1]}, s3, v{a}")
        g(f"v_bfe_u32 v{b}, v{L}, 4, 1"); g(f"v_mul_u32_u24 v{a}, {1024+32}, v{b}")
        g(f"v_lshrrev_b32 v{b}, 5, v{L}"); g(f"v_lshl_add_u32 v{a}, v{b}, 9, v{a}")
        g(f"v_bfe_u32 v{b}, v{L}, 2, 2"); g(f"v_lshl_add_u32 v{a}, v{b}, 6, v{a}")
        self.pi8(a, b)
        g(f"v_mov_b32 v{self.vCr[0][0]}, v{a}"); g(f"v_xor_b32 v{self.vCr[0][1]}, 32, v{a}")
        for e in range(2): g(f"v_add_u32 v{self.vCr[1][e]}, 0x10000, v{self.vCr[0][e]}")
        g(f"s_lshl_b32 s60, {sW}, 13")
        V.release(a); V.release(b)
    def c_dma(self, c):
        g = self.g; out = []
        p, hk = c // 2, c % 2
        for i in range(4):
            for mat in range(2):
                g.begin()
                g(f"s_add_u32 m0, s60, {(p%2)*65536 + hk*32768 + i*2048 + mat*1024}")
                g(f"s_mov_b32 s3, {p*64 + (hk*16+i)*16*2752}")
                g(f"buffer_load_dwordx4 v{self.vCs[mat]}, {SWU if mat else SWG}, s3 offen lds", tag=f"wc{c}")
                out.append(g.end())
        return out
    def c_read(self, dst, p, e, ks):
        g = self.g
        base = self.vCr[p % 2][e]
        for j2 in range(2): g(f"ds_read_b64_tr_b16 {vr(dst+2*j2,2)}, v{base} offset:{ks*2048 + j2*256}")

    def phaseC(self):
        g, V, A = self.g, self.V, self.A
        self.c_consts()
        g("s_barrier")
        for c in range(4):
            for grp in self.c_dma(c): g.add(grp)
        g(f"s_cmp_eq_u32 {sISCS}, 1")
        g.branch("s_cbranch_scc1 L_cs", keep=True)
        t2 = V(2)
        HF = A(128, 4); ST = V(16, 4)
        g(f"s_lshl_b32 s3, {sR128}, 2"); g(f"s_add_u32 s3, s3, {sW}")
        g("s_lshl_b32 s54, s3, 15"); g(f"s_add_u32 s54, s54, {WS_H}")
        g("s_lshl_b32 s55, s3, 12"); g(f"s_add_u32 s55, s55, {WS_HST}")
        g(f"s_mul_i32 s56, s3, {HHP}"); g(f"s_mul_i32 s6, {sCGX}, 6"); g("s_add_u32 s56, s56, s6"); g("s_lshl_b32 s56, s56, 10"); g(f"s_add_u32 s56, s56, {WS_HH}")
        g("s_add_u32 s57, s56, 4096")
        g("s_lshl_b32 s58, s3, 4"); g(f"s_add_u32 s58, s58, {sCGX}"); g("s_lshl_b32 s58, s58, 7"); g(f"s_add_u32 s58, s58, {WS_F3}")
        g(f"s_mul_i32 s59, {sCGX}, {6*512}"); g(f"s_add_u32 s59, s59, {WS_CS}")
        vL4 = V(1); vPC = V(1)
        g(f"v_lshlrev_b32 v{vL4}, 2, v{self.vL}")
        g(f"s_lshl_b32 s6, {sCGX}, 9"); g(f"s_add_u32 s6, s6, {WS_FC}")
        g(f"v_and_b32 v{vPC}, 3, v{self.vL}"); g(f"v_lshl_add_u32 v{vPC}, v{vPC}, 7, s6")
        self.stamp()
        self.poll(self.vP2, t2)
        self.stamp()
        for ks in range(32):
            if ks % 4 == 0 and ks: g("s_add_u32 s54, s54, 4096")
            g(f"buffer_load_dwordx4 {ar(HF+4*ks,4)}, v{self.vL16}, {SWS}, s54 offen offset:{(ks%4)*1024} sc1")
        for i in range(16): g(f"buffer_load_dword v{ST+i}, v{vL4}, {SWS}, s55 offen offset:{i*256} sc1")
        g("s_barrier")
        ACC = [V(16, 4) for _ in range(4)]
        NF = 6; FR = [V(4, 4) for _ in range(NF)]
        CSF = [V(4, 4) for _ in range(6)]; MF = V(4, 4); A0, A1, VV = V(1), V(1), V(1)
        T = V(8, 4); OUT = [V(4, 4), V(4, 4)]
        g.begin()
        for st in (8, 4, 2, 1):
            for i in range(st): g(f"v_add_f32 v{ST+i}, v{ST+i}, v{ST+i+st}")
        g(f"v_mov_b32 v{ST+1}, v{ST}")
        g(f"s_mov_b32 s6, {f32(1/512)}")
        g(f"v_permlane32_swap_b32 v{ST}, v{ST+1}")
        g(f"v_mul_f32 v{ST}, s6, v{ST}"); g(f"v_mul_f32 v{ST+1}, s6, v{ST+1}")
        g(f"v_fma_f32 v{ST+1}, -v{ST}, v{ST}, v{ST+1}"); g(f"v_max_f32 v{ST+1}, 0, v{ST+1}")
        g(f"v_add_f32 v{VV}, {f32(1e-5)}, v{ST+1}")
        g(f"v_rsq_f32 v{ST+2}, v{VV}")
        c0 = -2.0 * 0.7978845608028654 * LOG2E
        g(f"v_cvt_pk_bf16_f32 v{MF}, -v{ST}, -v{ST}")
        g(f"v_mul_f32 v{A0}, {f32(c0)}, v{ST+2}")
        g(f"v_mul_f32 v{ST+3}, v{ST+2}, v{ST+2}")
        g(f"v_mul_f32 v{A1}, {f32(0.044715)}, v{A0}"); g(f"v_mul_f32 v{A1}, v{ST+3}, v{A1}")
        g(f"v_and_b32 v{ST+4}, 0xffff0000, v{MF}")
        g(f"v_sub_f32 v{ST+4}, -v{ST}, v{ST+4}")
        g(f"v_cvt_pk_bf16_f32 v{MF+1}, v{ST+4}, 0")
        g(f"v_mov_b32 v{MF+2}, 0"); g(f"v_mov_b32 v{MF+3}, 0")
        for u in range(6): g(f"v_mov_b32 v{CSF[u]+2}, 0"); g(f"v_mov_b32 v{CSF[u]+3}, 0")
        stats = g.end()
        def epi(u, acc):
            g.begin(); G, U, O = acc, acc + 8, OUT[u % 2]
            for i in range(8): g(f"v_mul_f32 v{T+i}, v{G+i}, v{G+i}")
            for i in range(8): g(f"v_fma_f32 v{T+i}, v{T+i}, v{A1}, v{A0}")
            for i in range(8): g(f"v_mul_f32 v{T+i}, v{G+i}, v{T+i}")
            for i in range(8):
                g(f"v_exp_f32 v{T+i}, v{T+i}"); g(f"v_mul_f32 v{U+i}, v{G+i}, v{U+i}")
            for i in range(8): g(f"v_fma_f32 v{T+i}, v{T+i}, v{VV}, v{VV}")
            for i in range(8): g(f"v_rcp_f32 v{T+i}, v{T+i}")
            for i in range(8): g(f"v_mul_f32 v{U+i}, v{U+i}, v{T+i}")
            for i in range(4): g(f"v_cvt_pk_bf16_f32 v{O+i}, v{U+2*i}, v{U+2*i+1}")
            g(f"buffer_store_dwordx4 {vr(O,4)}, v{self.vL16}, {SWS}, s{56 + u//4} offen offset:{(u%4)*1024} sc1", tag="hhst")
            return g.end()
        seq = []
        for ks in range(32): seq += [(0, ks), (1, ks)]
        seq += [(0, 32), (1, 32)]
        for u in range(2, 6): seq += [(u, ks) for ks in range(33)]
        accof = {0: 0, 1: 1, 2: 2, 3: 3, 4: 0, 5: 1}
        rseq = [x for x in seq if x[1] < 32]
        RA = NF - 1
        fpos = 0
        def emit_read():
            nonlocal fpos
            if fpos >= len(rseq): return
            u, ks = rseq[fpos]
            if u == 4 and ks == 0:
                g.waitvm("wc4", "wc5"); g("s_barrier")
            self.c_read(FR[fpos % NF], u // 2, u % 2, ks); fpos += 1
        for _ in range(RA): emit_read()
        queue = []
        used = 0
        RATE = self.opt.get("c_rate", 3)
        for idx, (u, ks) in enumerate(seq):
            acc = ACC[accof[u]]
            if (u, ks) == (0, 20): queue += stats
            if (u, ks) == (0, 32):
                for it in queue: g.add([it])
                queue = []
                self.poll(vPC, t2)
                for uu in range(6): g(f"buffer_load_dwordx2 {vr(CSF[uu],2)}, v{self.vL8}, {SWS}, s59 offen offset:{uu*512} sc1")
            if (u, ks) == (2, 0):
                g("s_barrier")
                for c in (4, 5):
                    for grp in self.c_dma(c): queue.append(("grp", grp))
                queue += epi(0, ACC[0]) + epi(1, ACC[1])
            if ks == 0 and u >= 3: queue += epi(u - 1, ACC[accof[u - 1]])
            if ks == 0 and u >= 4:
                pass
            if ks < 32:
                c = vr(acc, 16) if ks else "0"
                g(f"v_mfma_f32_32x32x16_bf16 {vr(acc,16)}, {vr(FR[used % NF],4)}, {ar(HF+4*ks,4)}, {c}"); used += 1
                emit_read()
            else:
                g(f"v_mfma_f32_32x32x16_bf16 {vr(acc,16)}, {vr(CSF[u],4)}, {vr(MF,4)}, {vr(acc,16)}")
            n = 0
            while queue and n < RATE:
                it = queue.pop(0)
                if isinstance(it, tuple): g.add(it[1]); n += 3
                else: g.add([it]); n += 2 if it.kind == "trans" else 1
            if ks == 32 and u in (3, 4):
                tgt = set(range(ACC[accof[u+1]], ACC[accof[u+1]] + 16))
                last = -1
                for qi, it in enumerate(queue):
                    if not isinstance(it, tuple) and any(r[0] == "v" and r[1] in tgt for r in it.rd + it.wr): last = qi
                for it in queue[:last+1]:
                    if isinstance(it, tuple): g.add(it[1])
                    else: g.add([it])
                queue = queue[last+1:]
        self.stamp()
        for it in queue:
            if isinstance(it, tuple): g.add(it[1])
            else: g.add([it])
        g.add(epi(5, ACC[accof[5]]))
        g.waitvm("hhst")
        self.flag("s58")
        g.label("L_cdone")
        self.stamp()
        g.begin()
        g.label("L_cs", keep=True)
        ON = ACC[2]; base = [ST, ST + 1]
        for i in range(4): g(f"v_mov_b32 v{ON+i}, 0x3f803f80")
        g(f"s_and_b32 s3, {sW}, 1"); g("s_lshl_b32 s3, s3, 5"); g(f"s_lshr_b32 s6, {sW}, 1"); g("s_lshl_b32 s6, s6, 15")
        for sl in range(2):
            g(f"v_xor_b32 v{base[sl]}, s3, v{self.vCr[sl][0]}"); g(f"v_add_u32 v{base[sl]}, s6, v{base[sl]}")
        g(f"s_mul_i32 s54, {sCGX}, {6*512}"); g(f"s_and_b32 s3, {sW}, 1"); g("s_lshl_b32 s3, s3, 9"); g("s_add_u32 s54, s54, s3")
        g(f"s_lshr_b32 s3, {sW}, 1"); g("s_lshl_b32 s3, s3, 8"); g("s_add_u32 s54, s54, s3"); g(f"s_add_u32 s54, s54, {WS_CS}")
        g(f"s_lshl_b32 s58, {sCGX}, 2"); g(f"s_add_u32 s58, s58, {sW}"); g("s_lshl_b32 s58, s58, 7"); g(f"s_add_u32 s58, s58, {WS_FC}")
        for p in range(3):
            g("s_waitcnt vmcnt(0)"); g("s_barrier")
            if p == 1:
                for c in (4, 5):
                    for grp in self.c_dma(c): g.add(grp)
            acc = ACC[p % 2]
            for ks in range(16):
                f = FR[ks % NF]
                for j2 in range(2): g(f"ds_read_b64_tr_b16 {vr(f+2*j2,2)}, v{base[p%2]} offset:{ks*2048 + j2*256}")
                if ks >= 4:
                    k = ks - 4; g(f"v_mfma_f32_32x32x16_bf16 {vr(acc,16)}, {vr(ON,4)}, {vr(FR[k % NF],4)}, {vr(acc,16) if k else 0}")
            for k in range(12, 16): g(f"v_mfma_f32_32x32x16_bf16 {vr(acc,16)}, {vr(ON,4)}, {vr(FR[k % NF],4)}, {vr(acc,16)}")
            O = OUT[p % 2]
            g(f"v_cvt_pk_bf16_f32 v{O+1}, v{acc}, 0")
            g(f"v_lshlrev_b32 v{T}, 16, v{O+1}"); g(f"v_sub_f32 v{T}, v{acc}, v{T}")
            g(f"v_cvt_pk_bf16_f32 v{O}, v{acc}, v{T}")
            g("s_mov_b32 exec_hi, 0")
            g(f"buffer_store_dwordx2 {vr(O,2)}, v{self.vL8}, {SWS}, s54 offen offset:{p*1024} sc1")
            g("s_mov_b64 exec, -1")
        g("s_waitcnt vmcnt(0)")
        self.flag("s58")
        g.branch("s_branch L_cdone")
        self.tail.append(g.end())
        V.release(t2, 2); A.release(HF, 128); V.release(ST, 16); V.release(vL4); V.release(vPC)
        for x in ACC: V.release(x, 16)
        for x in FR + CSF + OUT + [MF]: V.release(x, 4)
        for x in [A0, A1, VV] + self.vCs + self.vCr[0] + self.vCr[1]: V.release(x)
        V.release(T, 8)

    def phaseD(self):
        g, V, A = self.g, self.V, self.A
        RED = 0; NK = 22
        g("s_barrier")
        g(f"s_mul_i32 s6, {sW}, 40960"); g(f"s_mul_i32 s7, {sW}, {NK*16*1024}")
        g(f"s_cmp_eq_u32 {sW}, 3"); g(f"s_cselect_b32 s61, 0, {2*16384}"); g("s_add_u32 s61, s61, s7"); g(f"s_add_u32 s61, s61, {18*16384}")
        def wdma(ks, slot):
            for h in range(2):
                g(f"s_add_u32 m0, s6, {slot*2048 + h*1024}")
                if ks < 20: g(f"s_add_u32 s3, s7, {ks*16384 + h*8192}")
                else: g(f"s_add_u32 s3, s61, {(ks-20)*16384 + h*8192}")
                g(f"buffer_load_dwordx4 v{self.vKs}, {SWD}, s3 offen lds", tag=f"wd{ks}")
        for ks in range(20): wdma(ks, ks)
        WD = A(NK*8, 4)
        rd = [V(1), V(1)]
        for i in range(2): g(f"v_add_u32 v{rd[i]}, s6, v{self.vKr[i]}")
        def wread(ks, slot):
            g.waitvm(f"wd{ks}")
            for ct in range(2):
                for j2 in range(2):
                    g(f"ds_read_b64_tr_b16 {ar(WD+(ks*2+ct)*4+2*j2,2)}, v{rd[ct]} offset:{slot*2048+j2*512}")
        wread(0, 0); wread(1, 1); g.waitds()
        wdma(20, 0); wdma(21, 1)
        for ks in range(2, 20): wread(ks, ks)
        wread(20, 0); wread(21, 1)
        ACC = [V(16, 4) for _ in range(4)]
        for j in range(8):
            g(f"v_lshlrev_b32 v{ACC[0]+2*j}, 16, v{self.vHP+j}"); g(f"v_and_b32 v{ACC[0]+2*j+1}, 0xffff0000, v{self.vHP+j}")
        vZ = V(1)
        g(f"s_cmp_eq_u32 {sW}, 3"); g("s_cselect_b32 s3, 0x80000000, 0"); g(f"v_or_b32 v{vZ}, s3, v{self.vL16}")
        for rt in range(2):
            g(f"s_lshr_b32 s3, {sW}, 1"); g(f"s_xor_b32 s3, s3, {rt}"); g(f"s_lshl_b32 s6, {sRB}, 1"); g("s_add_u32 s3, s3, s6")
            g(f"s_mul_i32 s3, s3, {HHP}"); g(f"s_mul_i32 s6, {sW}, {NK}"); g("s_add_u32 s3, s3, s6"); g("s_lshl_b32 s3, s3, 10")
            g(f"s_add_u32 s{54+rt}, s3, {WS_HH}")
        FRG = []
        for i in range(NK*2):
            try: FRG.append(("a", A(4, 4)))
            except RuntimeError: FRG.append(("v", V(4, 4)))
        TT = V(48, 4)
        g.waitds()
        self.stamp()
        t2 = V(2)
        self.poll(self.vP3, t2)
        self.stamp()
        for ks in range(NK):
            if ks % 4 == 0 and ks:
                g("s_add_u32 s54, s54, 4096"); g("s_add_u32 s55, s55, 4096")
            for rt in range(2):
                k, r = FRG[ks*2+rt]
                g(f"buffer_load_dwordx4 {vr(r,4,k)}, v{vZ if ks >= 20 else self.vL16}, {SWS}, s{54+rt} offen offset:{(ks%4)*1024} sc1")
        g("s_barrier")
        for ks in range(NK):
            for rt in range(2):
                for ct in range(2):
                    a = 2*rt + ct; k, r = FRG[ks*2+rt]
                    c = vr(ACC[a],16) if (ks or a == 0) else "0"
                    g(f"v_mfma_f32_32x32x16_bf16 {vr(ACC[a],16)}, {ar(WD+(ks*2+ct)*4,4)}, {vr(r,4,k)}, {c}")
        self.stamp()
        self.reduce4(ACC, RED, TT)
        H = ACC[0]
        for j in range(8): g(f"v_cvt_pk_bf16_f32 v{self.vHP+j}, v{H+2*j}, v{H+2*j+1}")
        g(f"buffer_store_dwordx4 {vr(self.vHP,4)}, v{self.vRM}, {SOUT}, 0 offen")
        g(f"buffer_store_dwordx4 {vr(self.vHP+4,4)}, v{self.vRM}, {SOUT}, 0 offen offset:32")

    def finish(self):
        g, V = self.g, self.V
        if self.stamps:
            self.stamp()
            b = V(1)
            g(f"s_lshl_b32 s3, s2, 2"); g(f"s_add_u32 s3, s3, {sW}"); g("s_lshl_b32 s3, s3, 8"); g(f"s_add_u32 s3, s3, {WS_STAMP}")
            g(f"v_lshlrev_b32 v{b}, 2, v{self.vL}")
            g(f"buffer_store_dword v{self.vST}, v{b}, {SWS}, s3 offen")
        g.label("L_end", keep=True)
        g("s_endpgm")
        for st in self.tail: g.add(st)
        g.raw("L_codeend:")
        body = g.finalize()
        hdr = open(f"cdna_kernels/{NAME}.s.ref").read().split("; Override launch geometry")[0]
        nv = 512
        s = hdr + "; @launch grid=(256,1,1) block=(256,1,1) lds=163840\n"
        s += '.amdgcn_target "amdgcn-amd-amdhsa--gfx950"\n.text\n'
        s += f".globl {NAME}_kernel\n.p2align 8\n.type {NAME}_kernel,@function\n{NAME}_kernel:\n"
        s += body
        s += "    s_endpgm\n"
        s += f'.section .rodata,"a"\n.p2align 6\n.amdhsa_kernel {NAME}_kernel\n'
        s += f"  .amdhsa_next_free_vgpr {nv}\n  .amdhsa_next_free_sgpr 102\n  .amdhsa_accum_offset 256\n"
        s += "  .amdhsa_group_segment_fixed_size 0\n  .amdhsa_kernarg_size 80\n  .amdhsa_user_sgpr_count 2\n"
        s += "  .amdhsa_user_sgpr_kernarg_segment_ptr 1\n  .amdhsa_system_sgpr_workgroup_id_x 1\n"
        s += "  .amdhsa_float_denorm_mode_32 3\n"
        s += ".end_amdhsa_kernel\n"
        return s

def build(stamps=False, upto="D", opt=None):
    k = K(stamps, upto, opt)
    k.prologue(); k.phaseA()
    if upto >= "B": k.phaseB()
    if upto >= "C": k.phaseC()
    if upto >= "D": k.phaseD()
    s = k.finish()
    return s, k

if __name__ == "__main__":
    import argparse
    ap = argparse.ArgumentParser()
    ap.add_argument("-o", default="k.s"); ap.add_argument("--stamps", action="store_true"); ap.add_argument("--upto", default="D")
    ap.add_argument("--opt", default="")
    a = ap.parse_args()
    opt = {kv.split("=")[0]: int(kv.split("=")[1]) for kv in a.opt.split(",") if kv}
    s, k = build(a.stamps, a.upto, opt)
    open(a.o, "w").write(s)
    print("ins", k.g.stats, "vgpr hi", k.V.hi, "agpr hi", k.A.hi, "nstamp", k.nstamp)
```

```python
import re

TRANS = ("v_exp_f32", "v_rcp_f32", "v_rsq_f32", "v_log_f32", "v_sqrt_f32", "v_rcp_iflag_f32")
REG_RE = re.compile(r"^(-|\|)?(abs\()?([vas])(\d+|\[(\d+):(\d+)\])\)?\|?$")

def regs_of(tok):
    tok = tok.strip()
    if tok in ("vcc", "vcc_lo", "vcc_hi"): return [("s", "vcc")]
    if tok in ("exec", "exec_lo", "exec_hi"): return [("s", "exec")]
    if tok == "m0": return [("s", "m0")]
    m = REG_RE.match(tok)
    if not m: return []
    k = m.group(3)
    if m.group(5) is not None:
        return [(k, i) for i in range(int(m.group(5)), int(m.group(6)) + 1)]
    return [(k, int(m.group(4)))]

def split_ops(s):
    out, depth, cur = [], 0, ""
    for ch in s:
        if ch in "[(": depth += 1
        if ch in "])": depth -= 1
        if ch == "," and depth == 0:
            out.append(cur.strip()); cur = ""
        else: cur += ch
    if cur.strip(): out.append(cur.strip())
    return out

class Ins:
    __slots__ = ("text", "op", "rd", "wr", "kind", "passes", "tag", "srcc", "ab", "data", "dpp", "arg", "wide")
    def __init__(self, text, tag=None):
        self.text = text; self.tag = tag; self.passes = 0; self.srcc = []; self.ab = []; self.data = []
        self.dpp = False; self.arg = None; self.wide = False
        parts = text.split(None, 1)
        op = self.op = parts[0]
        rest = parts[1] if len(parts) > 1 else ""
        ops = split_ops(rest)
        mods = ""
        if ops:
            last = ops[-1].split(None, 1)
            ops[-1] = last[0]
            mods = last[1] if len(last) > 1 else ""
        R = [regs_of(o) for o in ops]
        flat = lambda l: [x for y in l for x in y]
        self.rd, self.wr = [], []
        if op.startswith("v_mfma"):
            self.kind = "mfma"; self.wr = R[0]; self.ab = R[1] + R[2]; self.srcc = R[3]; self.rd = self.ab + self.srcc
            self.passes = 8 if "32x32" in op else 4
        elif op.startswith("v_"):
            self.kind = "trans" if op.split("_e")[0] in TRANS or op in TRANS else "valu"
            self.dpp = ("_dpp" in op) or ("row_" in mods) or ("quad_perm" in mods)
            if "swap" in op:
                self.wr = R[0] + R[1]; self.rd = R[0] + R[1]; self.kind = "perm"
            elif op.startswith(("v_add_co", "v_sub_co", "v_addc_co", "v_subb_co")):
                self.wr = R[0] + R[1]; self.rd = flat(R[2:])
            else:
                self.wr = R[0]; self.rd = flat(R[1:])
                if op.startswith(("v_fmac", "v_dot2c", "v_writelane", "v_pk_fmac")) or self.dpp: self.rd = self.rd + R[0]
            if op.startswith(("v_readlane", "v_readfirstlane")): self.kind = "rdlane"
        elif op.startswith("ds_"):
            self.kind = "ds"
            if op.startswith(("ds_read", "ds_bpermute", "ds_permute", "ds_swizzle")): self.wr = R[0]; self.rd = flat(R[1:])
            else: self.rd = flat(R)
        elif op.startswith(("buffer_", "global_")):
            self.kind = "vmem"
            if op in ("buffer_inv", "buffer_wbl2"): pass
            elif "load" in op:
                if re.search(r"\blds\b", mods) or "load_lds" in op:
                    self.rd = flat(R) + [("s", "m0")]; self.arg = "dma"
                else:
                    self.wr = R[0]; self.rd = flat(R[1:])
            else:
                self.rd = flat(R)
                self.data = R[0] if op.startswith("buffer_") else R[1]
                self.wide = op.endswith(("x3", "x4"))
                if "atomic" in op and re.search(r"\bsc0\b", mods): self.wr = self.data
        elif op.startswith("s_"):
            if op.startswith(("s_load", "s_memtime", "s_memrealtime", "s_buffer_load")):
                self.kind = "smem"; self.wr = R[0]; self.rd = flat(R[1:])
            elif op in ("s_waitcnt", "s_nop", "s_barrier", "s_sleep", "s_setprio", "s_endpgm"):
                self.kind = "ctl"; self.arg = rest
            elif op.startswith(("s_branch", "s_cbranch")):
                self.kind = "branch"
                if "vcc" in op: self.rd = [("s", "vcc")]
            elif op.startswith("s_cmp") or op.startswith("s_bitcmp"):
                self.kind = "salu"; self.rd = flat(R)
            else:
                self.kind = "salu"; self.wr = R[0]; self.rd = flat(R[1:])
                if "saveexec" in op: self.wr = self.wr + [("s", "exec")]
        else:
            raise ValueError("unknown op " + text)

class Pseudo:
    def __init__(self, kind, arg=None, keep=False):
        self.kind = kind; self.arg = arg; self.keep = keep

VALUISH = ("valu", "trans", "perm", "rdlane")

def need(p, c):
    n = 0
    pw = set(p.wr)
    if p.kind in VALUISH:
        vw = {r for r in pw if r[0] in "va"}
        sw = {r for r in pw if r[0] == "s"}
        if vw:
            hit = vw & set(c.rd)
            if hit:
                if c.kind == "mfma": n = max(n, 2)
                if c.kind == "perm" or c.dpp: n = max(n, 2)
                if c.kind == "rdlane": n = max(n, 1)
                if p.kind == "trans" and c.kind in ("valu", "perm", "rdlane", "mfma", "vmem", "ds"): n = max(n, 1)
        if sw:
            hit = sw & set(c.rd)
            if hit:
                if c.kind == "vmem": n = max(n, 5)
                elif c.kind in VALUISH: n = max(n, 4 if c.op.startswith(("v_readlane", "v_writelane")) else 2)
                elif c.kind in ("salu", "branch", "smem"): n = max(n, 1)
            if ("s", "exec") in sw: n = max(n, 5)
    elif p.kind == "mfma":
        big = {4: 8, 8: 12}[p.passes]
        if c.kind == "mfma":
            if pw & set(c.ab): n = max(n, big)
            ov = pw & set(c.srcc)
            if ov and not (list(p.wr) == list(c.srcc) and p.passes == c.passes): n = max(n, big - 2)
            if (pw & set(c.wr)) and not ov: n = max(n, big)
        elif c.kind in VALUISH or c.kind in ("vmem", "ds"):
            if pw & (set(c.rd) | set(c.wr)): n = max(n, big)
            if set(p.srcc) & set(c.wr): n = max(n, {4: 3, 8: 7}[p.passes])
    elif p.kind == "salu":
        if ("s", "m0") in pw and c.kind == "vmem" and c.arg == "dma": n = max(n, 1)
    elif p.kind == "vmem":
        if p.wide and set(p.data) & set(c.wr): n = max(n, 2)
    return n

def maxneed(p):
    if p.kind == "mfma": return {4: 8, 8: 12}[p.passes]
    if p.kind in VALUISH: return 5 if any(r[0] == "s" for r in p.wr) else 2
    if p.kind == "salu": return 1
    if p.kind == "vmem" and p.wide: return 2
    return 0

class Gen:
    def __init__(self):
        self.items = []
        self.stack = []
        self.uid = 0
    def __call__(self, text, tag=None):
        for line in text.strip().split("\n"):
            line = line.split(";")[0].strip()
            if line: self.items.append(Ins(line, tag))
    def label(self, name, keep=False): self.items.append(Pseudo("label", name, keep))
    def branch(self, text, keep=False):
        self.items.append(Pseudo("flush", None, keep)); self.items.append(Ins(text))
    def waitvm(self, *tags): self.items.append(Pseudo("waitvm", tags))
    def waitds(self): self.items.append(Pseudo("waitds"))
    def raw(self, text): self.items.append(Pseudo("raw", text))
    def needs(self, *toks):
        self.items.append(Pseudo("needs", [r for t in toks for r in regs_of(t)]))
    def comment(self, text): self.items.append(Pseudo("raw", "; " + text))
    def newlabel(self, base="L"):
        self.uid += 1; return f"{base}_{self.uid}"
    def begin(self): self.stack.append(self.items); self.items = []
    def end(self):
        s = self.items; self.items = self.stack.pop(); return s
    def add(self, stream): self.items.extend(stream)
    def finalize(self):
        out = []
        recent = []
        vm = []
        lg = []
        smem = []
        stats = {"nops": 0, "ins": 0}
        def push(ins):
            st = 1
            if ins.op == "s_nop": st = int(ins.arg) + 1
            for i in range(len(recent)): recent[i][1] += st
            while recent and recent[0][1] > 16: recent.pop(0)
            recent.append([ins, 0])
            out.append("    " + ins.text); stats["ins"] += 1
        def pad(n):
            while n > 0:
                k = min(n, 16); push(Ins(f"s_nop {k-1}")); stats["nops"] += k; n -= k
        def wait(vn=None, ln=None):
            nonlocal vm, lg, smem
            t = "s_waitcnt"
            if vn is not None:
                vn = min(vn, 63); t += f" vmcnt({vn})"; vm = vm[len(vm) - vn:] if vn else []
            if ln is not None:
                if smem: ln = 0
                ln = min(ln, 15); t += f" lgkmcnt({ln})"; lg = lg[len(lg) - ln:] if ln else []
                if ln == 0: smem = []
            push(Ins(t))
        def flushhaz():
            n = 0
            for p, d in recent: n = max(n, maxneed(p) - d)
            pad(n)
        for it in self.items:
            if isinstance(it, Pseudo):
                if it.kind == "raw": out.append(it.arg)
                elif it.kind in ("label", "flush"):
                    if not it.keep and (vm or lg or smem): wait(0 if vm else None, 0 if (lg or smem) else None)
                    flushhaz()
                    if it.kind == "label": out.append(it.arg + ":")
                elif it.kind == "waitvm":
                    idx = -1
                    for i, o in enumerate(vm):
                        if o.tag in it.arg or not it.arg: idx = i
                    if idx >= 0: wait(vn=len(vm) - 1 - idx)
                elif it.kind == "waitds":
                    if lg or smem: wait(ln=0)
                elif it.kind == "needs":
                    tt = set(it.arg); vn = ln = None
                    for i, o in enumerate(vm):
                        if set(o.wr) & tt: vn = len(vm) - 1 - i
                    for i, o in enumerate(lg):
                        if set(o.wr) & tt: ln = len(lg) - 1 - i
                    if vn is not None or ln is not None: wait(vn, ln)
                continue
            ins = it
            touched = set(ins.rd) | set(ins.wr)
            vn = ln = None
            for i, o in enumerate(vm):
                if set(o.wr) & touched: vn = len(vm) - 1 - i
            for i, o in enumerate(lg):
                if set(o.wr) & touched: ln = len(lg) - 1 - i
            for o in smem:
                if set(o.wr) & touched: ln = 0
            if vn is not None or ln is not None: wait(vn, ln)
            n = 0
            for p, d in recent: n = max(n, need(p, ins) - d)
            pad(n)
            if ins.op == "s_waitcnt":
                m = re.search(r"vmcnt\((\d+)\)", ins.arg)
                if m: k = int(m.group(1)); vm = vm[max(0, len(vm) - k):] if k else []
                m = re.search(r"lgkmcnt\((\d+)\)", ins.arg)
                if m:
                    k = int(m.group(1)); lg = lg[max(0, len(lg) - k):] if k else []
                    if k == 0: smem = []
            push(ins)
            if ins.kind == "vmem": vm.append(ins)
            elif ins.kind == "ds": lg.append(ins)
            elif ins.kind == "smem": smem.append(ins)
            if ins.op in ("s_branch", "s_endpgm"):
                vm, lg, smem = [], [], []
        self.stats = stats
        return "\n".join(out) + "\n"

def zipstreams(main, filler, start=0, end=None):
    end = len(main) if end is None else end
    n = end - start
    out = list(main[:start])
    fi = 0
    for i in range(n):
        out.append(main[start + i])
        tgt = (len(filler) * (i + 1) + n - 1) // n
        while fi < tgt: out.append(filler[fi]); fi += 1
    out.extend(main[end:])
    return out

def vr(i, n=1, k="v"):
    return f"{k}{i}" if n == 1 else f"{k}[{i}:{i+n-1}]"
def ar(i, n=1): return vr(i, n, "a")
def sr(i, n=1): return vr(i, n, "s")

class Alloc:
    def __init__(self, lo, hi): self.free = list(range(lo, hi)); self.hi = lo
    def __call__(self, n=1, align=None):
        align = align or (2 if n > 1 else 1)
        fs = set(self.free)
        for b in self.free:
            if b % align == 0 and all((b + i) in fs for i in range(n)):
                for i in range(n): self.free.remove(b + i)
                self.hi = max(self.hi, b + n)
                return b
        raise RuntimeError(f"out of regs for {n}")
    def release(self, b, n=1):
        for i in range(n):
            assert (b + i) not in self.free, f"double free {b+i}"
            self.free.append(b + i)
        self.free.sort()

class Weave:
    def __init__(self, main, cap):
        self.main = main; self.cap = cap
        self.gaps = [[] for _ in main]; self.load = [0] * len(main)
        self.pre = [[] for _ in main]
    @staticmethod
    def cost(grp):
        c = 0
        for it in grp:
            if isinstance(it, Pseudo): c += 1 if it.kind in ("waitvm", "waitds", "needs") else 0
            else: c += 2 if it.kind in ("trans", "perm") else 1
        return c
    def before(self, idx, grp): self.pre[idx].extend(grp); self.load[max(idx - 1, 0)] += self.cost(grp)
    def at(self, idx, grp): self.gaps[idx].extend(grp); self.load[idx] += self.cost(grp)
    def even(self, groups, lo, hi):
        n = len(groups)
        for k, grp in enumerate(groups): self.at(lo + (k * (hi - lo)) // n, grp)
    def fill(self, groups, lo, hi=None, cap=None):
        hi = len(self.main) if hi is None else hi
        cap = self.cap if cap is None else cap
        p = lo; k = 0
        while k < len(groups) and p < hi:
            c = self.cost(groups[k])
            if self.load[p] + c <= cap or (self.load[p] == 0): self.at(p, groups[k]); k += 1
            else: p += 1
        return groups[k:], p
    def out(self):
        o = []
        for i, m in enumerate(self.main):
            o.extend(self.pre[i]); o.append(m); o.extend(self.gaps[i])
        return o

def singles(stream): return [[it] for it in stream]
```

```python
import sys, struct
sys.path.insert(0, "gen")
from asmgen import *

NAME = "sequential_preLN__sliding_local_dilated__glu_gated_geglu__prompt"
WS_O, WS_H, WS_HH, WS_HST, WS_CS = 0x000000, 0x200000, 0x400000, 0xA00000, 0xA40000
WS_F1, WS_F2, WS_F3, WS_FC, WS_STAMP = 0xB00000, 0xB20000, 0xB40000, 0xB60000, 0xC00000
WS_SIZE = 0x1000000
HHP = 96
SX, SWQ, SWO, SWG, SWU, SWD, SOUT, SDBG, SWS = [f"s[{b}:{b+3}]" for b in range(8, 44, 4)]
sW, sRB, sCB, sR128, sCGX, sISCS = "s44", "s45", "s46", "s47", "s68", "s69"
sNON = "s[70:71]"
POLL_LIMIT = 1 << 16
LOG2E = 1.4426950408889634
K1 = 1024
RING = 80*K1; TAB = 152*K1; SYNC = 159*K1; CST = 155*K1
(K_WB, K_B2, K_B3, K_B4, K_C01, K_C23, K_P0, K_C45, K_U3, K_U5, K_D1, K_D2, K_D3, K_D4, K_DS, K_AE, K_TB, K_PZ) = range(18)
K_CS = 18; K_A = 21; K_F = 30
DPART = [(0, 3, 128*K1, 6*K1), (3, 8, 64*K1, 16*K1), (11, 8, 0, 16*K1), (19, 3, 128*K1, 6*K1)]
def f32(x): return "0x%08x" % struct.unpack("<I", struct.pack("<f", x))[0]

class K:
    def __init__(self, stamps=False, opt=None):
        self.g = Gen(); self.V = Alloc(0, 256); self.S = Alloc(74, 100)
        self.stamps = stamps; self.nstamp = 0; self.tail = []; self.opt = opt or {}; self.snames = []; self.hnames = []
    def stamp(self, name="", helper=False):
        if not self.stamps: return
        names = self.hnames if helper else self.snames
        i = len(names); names.append(name)
        self.g("s_memtime s[72:73]" if self.opt.get("cyc", 0) else "s_memrealtime s[72:73]"); self.g("s_waitcnt lgkmcnt(0)"); self.g(f"v_writelane_b32 v{self.vST}, s72, {i}")
    def s(self): return f"s{self.S(1)}"
    def grp(self, *lines, tag=None):
        g = self.g; g.begin()
        for l in lines: g(l, tag)
        return g.end()

    def poll(self, vaddr, tmp):
        g = self.g; L = g.newlabel("L_poll"); Lgo = g.newlabel("L_go")
        g("s_mov_b32 s52, 0")
        g.label(L, keep=True)
        g(f"buffer_load_dwordx2 {vr(tmp,2)}, {vr(vaddr)}, {SWS}, 0 offen sc1")
        g("s_add_u32 s52, s52, 1"); g(f"s_cmp_gt_u32 s52, {POLL_LIMIT}"); g(f"s_cbranch_scc1 {Lgo}")
        g("s_waitcnt vmcnt(0)")
        g(f"v_cmp_ne_u64 vcc, {sNON}, {vr(tmp,2)}")
        g(f"s_cbranch_vccnz {L}")
        g.label(Lgo, keep=True)
    def apoll_issue(self, vaddr, tmp, off=0):
        return self.grp(f"buffer_load_dwordx2 {vr(tmp,2)}, {vr(vaddr)}, {SWS}, 0 offen offset:{off} sc1")
    def apoll_check(self, vaddr, tmp, off=0):
        g = self.g; Ls = g.newlabel("L_slow"); Lb = g.newlabel("L_back"); L2 = g.newlabel("L_sl")
        g.begin()
        g(f"v_cmp_ne_u64 vcc, {sNON}, {vr(tmp,2)}"); g(f"s_cbranch_vccnz {Ls}"); g.raw(Lb + ":")
        main = g.end()
        g.begin()
        g.label(Ls, keep=True); g("s_mov_b32 s53, 0")
        g.label(L2, keep=True)
        g(f"buffer_load_dwordx2 {vr(tmp,2)}, {vr(vaddr)}, {SWS}, 0 offen offset:{off} sc1")
        g("s_add_u32 s53, s53, 1"); g("s_waitcnt vmcnt(0)")
        g(f"s_cmp_gt_u32 s53, {POLL_LIMIT}"); g(f"s_cbranch_scc1 {Lb}")
        g(f"v_cmp_ne_u64 vcc, {sNON}, {vr(tmp,2)}"); g(f"s_cbranch_vccnz {L2}")
        g.branch(f"s_branch {Lb}", keep=True)
        self.tail.append(g.end())
        return main
    def flag(self, soff, off=0, full=True):
        g = self.g
        g(f"s_mov_b64 exec, {'0xffff' if full else '1'}")
        g(f"buffer_store_dwordx2 {vr(self.vNON,2)}, {vr(self.vL8)}, {SWS}, {soff} offen offset:{off} sc1", tag="flag")
        g("s_mov_b64 exec, -1")
    def sig(self, k): return self.grp(f"ds_write_b32 v{self.vSig}, v{self.vSig} offset:{16*k}")
    def lchk_issue(self, k, tmp, own=False):
        return self.grp(f"ds_read_b32 v{tmp}, v{self.vOwn if own else self.vAll} offset:{16*k}")
    def lchk_check(self, k, tmp, own=False):
        g = self.g; Ls = g.newlabel("L_ls"); Lb = g.newlabel("L_lb"); L2 = g.newlabel("L_ll")
        g.begin()
        g(f"v_cmp_eq_u32 vcc, 0, v{tmp}"); g(f"s_cbranch_vccnz {Ls}"); g.raw(Lb + ":")
        main = g.end()
        g.begin()
        g.label(Ls, keep=True); g("s_mov_b32 s53, 0")
        g.label(L2, keep=True)
        g(f"ds_read_b32 v{tmp}, v{self.vOwn if own else self.vAll} offset:{16*k}")
        g("s_add_u32 s53, s53, 1"); g("s_waitcnt lgkmcnt(0)")
        g(f"s_cmp_gt_u32 s53, {POLL_LIMIT*16}"); g(f"s_cbranch_scc1 {Lb}")
        g(f"v_cmp_eq_u32 vcc, 0, v{tmp}"); g(f"s_cbranch_vccnz {L2}")
        g.branch(f"s_branch {Lb}", keep=True)
        self.tail.append(g.end())
        return main
    def lwait(self, k, tmp, own=False, sleep=0):
        g = self.g; L = g.newlabel("L_lw"); Lgo = g.newlabel("L_lg")
        g("s_mov_b32 s53, 0")
        g.label(L, keep=True)
        g(f"ds_read_b32 v{tmp}, v{self.vOwn if own else self.vAll} offset:{16*k}")
        g("s_add_u32 s53, s53, 1"); g(f"s_cmp_gt_u32 s53, {POLL_LIMIT*16}"); g(f"s_cbranch_scc1 {Lgo}")
        if sleep: g(f"s_sleep {sleep}")
        g("s_waitcnt lgkmcnt(0)")
        g(f"v_cmp_eq_u32 vcc, 0, v{tmp}"); g(f"s_cbranch_vccnz {L}")
        g.label(Lgo, keep=True)
    def pause(self, on):
        if on: return self.sig(K_PZ)
        return self.grp(f"ds_write_b32 v{self.vSig}, v{self.vZero} offset:{16*K_PZ}")
    def pz_check(self, tmp):
        g = self.g; Ls = g.newlabel("L_ps"); Lb = g.newlabel("L_pb"); L2 = g.newlabel("L_pl")
        g(f"v_cmp_ne_u32 vcc, 0, v{tmp}"); g(f"s_cbranch_vccnz {Ls}"); g.raw(Lb + ":")
        g.begin()
        g.label(Ls, keep=True); g("s_mov_b32 s53, 0")
        g.label(L2, keep=True)
        g(f"ds_read_b32 v{tmp}, v{self.vAll} offset:{16*K_PZ}")
        g("s_add_u32 s53, s53, 1"); g("s_sleep 1"); g("s_waitcnt lgkmcnt(0)")
        g(f"s_cmp_gt_u32 s53, {POLL_LIMIT*16}"); g(f"s_cbranch_scc1 {Lb}")
        g(f"v_cmp_ne_u32 vcc, 0, v{tmp}"); g(f"s_cbranch_vccnz {L2}")
        g.branch(f"s_branch {Lb}", keep=True)
        self.tail.append(g.end())
    def cr0(self, dst, b):
        g, L = self.g, self.vL
        g(f"v_bfe_u32 v{b}, v{L}, 4, 1"); g(f"v_mul_u32_u24 v{dst}, {1024+32}, v{b}")
        g(f"v_lshrrev_b32 v{b}, 5, v{L}"); g(f"v_lshl_add_u32 v{dst}, v{b}, 9, v{dst}")
        g(f"v_bfe_u32 v{b}, v{L}, 2, 2"); g(f"v_lshl_add_u32 v{dst}, v{b}, 6, v{dst}")
        self.pi8(dst, b)
    def sync_consts(self, a):
        g, V, L = self.g, self.V, self.vL
        self.vSig, self.vOwn, self.vAll = V(1), V(1), V(1)
        g(f"s_lshl_b32 s4, {sW}, 2"); g(f"s_add_u32 s4, s4, {SYNC}")
        g(f"v_mov_b32 v{self.vOwn}, s4")
        g(f"v_mov_b32 v{a}, 0x40000"); g(f"v_cmp_eq_u32 vcc, 0, v{L}"); g(f"v_cndmask_b32 v{self.vSig}, v{a}, v{self.vOwn}, vcc")
        g(f"v_and_b32 v{a}, 3, v{L}"); g(f"v_lshlrev_b32 v{a}, 2, v{a}"); g(f"v_add_u32 v{self.vAll}, {SYNC}, v{a}")

    def srd(self, base, ptr, size):
        g = self.g
        g(f"s_mov_b32 s{base}, s{ptr}"); g(f"s_and_b32 s{base+1}, s{ptr+1}, 0xffff")
        g(f"s_mov_b32 s{base+2}, {size}"); g(f"s_mov_b32 s{base+3}, 0x20000")
    def pi8(self, acc, t):
        g, L = self.g, self.vL
        g(f"v_and_b32 v{t}, 1, v{L}"); g(f"v_lshl_add_u32 v{acc}, v{t}, 4, v{acc}")
        g(f"v_bfe_u32 v{t}, v{L}, 1, 1"); g(f"v_lshl_add_u32 v{acc}, v{t}, 3, v{acc}")

    def prologue(self):
        g, V = self.g, self.V
        g("s_cmp_ge_u32 s2, 256"); g("s_cbranch_scc1 L_end")
        g("s_load_dwordx16 s[48:63], s[0:1], 0"); g("s_load_dwordx4 s[64:67], s[0:1], 64"); g("s_memrealtime s[100:101]")
        assert V(1) == 0
        self.vL = V(1); self.vL16 = V(1); self.vST = V(1); t = V(1)
        g(f"v_lshrrev_b32 v{t}, 6, v0"); g(f"v_and_b32 v{self.vL}, 63, v0"); g(f"v_readfirstlane_b32 s3, v{t}")
        g("s_and_b32 s4, s2, 7"); g("s_lshr_b32 s5, s2, 3")
        g("s_lshl_b32 s6, s4, 2"); g("s_lshr_b32 s7, s5, 3"); g(f"s_add_u32 {sRB}, s6, s7"); g(f"s_and_b32 {sCB}, s5, 7")
        g(f"s_and_b32 {sW}, s3, 3")
        if self.stamps: g(f"v_mov_b32 v{self.vST}, 0")
        g(f"v_lshlrev_b32 v{self.vL16}, 4, v{self.vL}")
        V.release(t)
        g("s_cmp_ge_u32 s3, 4")
        g.branch("s_cbranch_scc1 L_helper", keep=True)
    def cmap(self):
        g = self.g; out = []
        if self.opt.get("cmap", 0) == 0:
            out += singles(self.grp("s_and_b32 s4, s2, 7", "s_lshl_b32 s4, s4, 1", "s_lshr_b32 s6, s2, 7", f"s_add_u32 {sR128}, s4, s6",
                                    "s_lshr_b32 s4, s2, 3", "s_and_b32 s4, s4, 15"))
        else:
            out += singles(self.grp("s_and_b32 s4, s2, 6", "s_lshl_b32 s4, s4, 1", "s_lshr_b32 s6, s2, 6", f"s_add_u32 {sR128}, s4, s6",
                                    "s_lshr_b32 s4, s2, 3", "s_and_b32 s4, s4, 7", "s_and_b32 s6, s2, 1", "s_lshl_b32 s6, s6, 3", "s_add_u32 s4, s4, s6"))
        out.append(self.grp(f"s_mov_b32 {sCGX}, s4"))
        return out

    def helper(self):
        g = self.g; V = Alloc(4, 256); L = self.vL
        saveV = self.V; self.V = V
        g.label("L_helper", keep=True)
        a, b, c = V(1), V(1), V(1); vXs, vWs, vWw = V(1), V(1), V(1)
        ROT = self.opt.get("rot", 1)
        g(f"s_and_b32 s3, {sW}, 1"); g("s_lshl_b32 s6, s3, 3")
        g(f"v_lshrrev_b32 v{a}, 3, v{L}"); g(f"v_add_u32 v{b}, s6, v{a}"); g(f"v_bfe_u32 v{c}, v{b}, 1, 3")
        g(f"v_and_b32 v{vXs}, 7, v{L}"); g(f"v_xor_b32 v{c}, v{c}, v{vXs}"); g(f"v_lshlrev_b32 v{b}, 10, v{b}")
        g(f"v_lshl_add_u32 v{vXs}, v{c}, 4, v{b}")
        g(f"v_bfe_u32 v{b}, v{L}, 4, 1"); g("s_lshl_b32 s6, s3, 1"); g(f"v_or_b32 v{b}, s6, v{b}")
        g(f"v_bfe_u32 v{c}, v{L}, 1, 2"); g(f"v_xor_b32 v{b}, v{b}, v{c}")
        g(f"v_and_b32 v{c}, 1, v{L}"); g(f"v_lshlrev_b32 v{c}, 4, v{c}"); g(f"v_lshl_add_u32 v{b}, v{b}, 5, v{c}")
        g(f"v_mul_u32_u24 v{a}, 3072, v{a}")
        g(f"s_mul_i32 s6, {sW}, {8*3072}"); g(f"s_lshl_b32 s7, {sCB}, 7"); g("s_add_u32 s6, s6, s7")
        g(f"v_add3_u32 v{vWs}, v{a}, v{b}, s6")
        sXb, sX0, sXm, sWm, sEx, sRk, sR2, sKq = "s74", "s75", "s76", "s77", "s78", "s79", "s80", "s81"
        g(f"s_lshl_b32 {sXb}, {sRB}, 16"); g(f"s_sub_u32 {sXb}, {sXb}, 16384"); g(f"s_max_i32 {sX0}, {sXb}, 0")
        g(f"s_lshl_b32 {sXm}, {sW}, 10")
        g(f"s_mul_i32 {sWm}, {sW}, 3072"); g(f"s_add_u32 {sWm}, {sWm}, {RING}")
        g("s_cmp_eq_u32 s3, 0"); g(f"s_cselect_b32 {sEx}, 0xffffff00, -1")
        if ROT: g(f"s_add_u32 s6, s4, {sCB}"); g("s_and_b32 s6, s6, 7")
        else: g("s_mov_b32 s6, 0")
        if self.opt.get("rot3", 1):
            g(f"s_lshl_b32 s7, {sRB}, 1"); g(f"s_cmp_eq_u32 {sCB}, 3"); g("s_cselect_b32 s7, s7, 0"); g("s_add_u32 s6, s6, s7"); g("s_and_b32 s6, s6, 7")
        g(f"s_lshl_b32 {sR2}, s6, 1"); g(f"s_lshr_b32 s7, {sW}, 1"); g(f"s_add_u32 {sRk}, s6, s7")
        g("s_mov_b32 s10, %d" % (2048*512*2)); g("s_mov_b32 s11, 0x20000"); g("s_mov_b32 s14, %d" % (512*1536*2)); g("s_mov_b32 s15, 0x20000")
        g("s_waitcnt lgkmcnt(0)")
        g("s_mov_b32 s8, s48"); g("s_and_b32 s9, s49, 0xffff"); g("s_mov_b32 s12, s50"); g("s_and_b32 s13, s51, 0xffff")
        if self.stamps: g(f"v_writelane_b32 v{self.vST}, s100, 0"); self.hnames.append("start")
        vKs, vCs, vCw, vDw = V(1), [V(1), V(1)], V(1), [V(1) for _ in range(3)]
        STG = V(192, 4)
        CA = V(16, 4); CF = [V(4, 4) for _ in range(5)]; ON = V(4, 4)
        def xjob(q, t):
            l = []
            if t == 0: l += [f"s_add_u32 {sKq}, {sRk}, {2*q}", f"s_and_b32 {sKq}, {sKq}, 7", f"s_lshl_b32 {sKq}, {sKq}, 7"]
            l += [f"s_add_u32 m0, {sXm}, {t*16384 + q*4096}"]
            if t == 0: l += [f"s_add_u32 s3, {sX0}, {sKq}", f"s_mov_b32 exec_lo, {sEx}"]
            else: l += [f"s_add_u32 s3, {sXb}, {t*16384}", f"s_add_u32 s3, s3, {sKq}"]
            l += [f"buffer_load_dwordx4 v{vXs}, {SX}, s3 offen lds"]
            if t == 0: l += ["s_mov_b32 exec_lo, -1"]
            return self.grp(*l, tag=f"x{q}")
        qa = lambda s, p: STG + ((s-6)*3 + p)*4
        def wjob(s, p):
            l = []
            if p == 0:
                l += [f"s_add_u32 s3, {sR2}, {s}", "s_and_b32 s3, s3, 15", f"s_mul_i32 s3, s3, {32*3072}"]
                if s < 6: l += [f"s_add_u32 m0, {sWm}, {s*12288}", "s_nop 0"]
            if s < 6: l += [f"buffer_load_dwordx4 v{vWs}, {SWQ}, s3 offen offset:{p*K1} lds"]
            else: l += [f"buffer_load_dwordx4 {vr(qa(s,p),4)}, v{vWs}, {SWQ}, s3 offen offset:{p*K1}"]
            return self.grp(*l, tag=f"w{s}")
        order = ["x0", 0, 1, 2, 3, "x1", 4, 5, "x2", 6, 7, "x3", 8, 9, 10, 11, 12, 13, 14, 15]
        jobs = []; last = {}
        for o in order:
            if isinstance(o, str): jobs += [xjob(int(o[1]), t) for t in range(5)]; last[o] = len(jobs)
            else: jobs += [wjob(o, p) for p in range(3)]; last[f"w{o}"] = len(jobs)
        sBm, sBs, sCm, sD0, sD1, sD14 = "s82", "s83", "s84", "s85", "s86", "s87"
        g.begin()
        g(f"v_add_u32 v{vWw}, {sWm}, v{self.vL16}")
        self.srd(16, 52, 512*512*2); self.srd(20, 56, 512*1376*2); self.srd(24, 58, 512*1376*2); self.srd(28, 60, 1376*512*2)
        if self.stamps: self.srd(40, 66, WS_SIZE)
        for grp in self.cmap(): g.add(grp)
        self.sync_consts(a)
        g(f"v_bfe_u32 v{a}, v{L}, 4, 1"); g(f"v_lshlrev_b32 v{a}, 2, v{a}")
        g(f"v_and_b32 v{b}, 7, v{L}"); g(f"v_xor_b32 v{a}, v{a}, v{b}"); g(f"v_lshlrev_b32 v{a}, 4, v{a}")
        g(f"v_lshrrev_b32 v{b}, 3, v{L}"); g(f"v_lshl_add_u32 v{a}, v{b}, 10, v{a}")
        g(f"s_lshl_b32 s4, {sCB}, 7"); g(f"v_add_u32 v{vKs}, s4, v{a}")
        g(f"s_lshl_b32 s6, {sW}, 14"); g(f"s_add_u32 {sBm}, s6, {64*K1}"); g(f"s_lshl_b32 {sBs}, {sW}, 17")
        g(f"v_lshrrev_b32 v{a}, 2, v{L}"); g(f"v_mul_u32_u24 v{a}, 2752, v{a}")
        g(f"v_and_b32 v{b}, 3, v{L}"); g(f"v_lshl_add_u32 v{a}, v{b}, 4, v{a}")
        g(f"s_mul_i32 s4, {sCGX}, 192"); g(f"s_mul_i32 s6, {sW}, {4*16*2752}"); g("s_add_u32 s4, s4, s6")
        g(f"v_add_u32 v{vCs[0]}, s4, v{a}"); g(f"v_xor_b32 v{a}, 32, v{a}"); g(f"v_add_u32 v{vCs[1]}, s4, v{a}")
        g(f"s_lshl_b32 {sCm}, {sW}, 13"); g(f"v_add_u32 v{vCw}, {sCm}, v{self.vL16}")
        for i in range(3):
            g(f"s_mul_i32 s4, {sW}, {DPART[i][3]}"); g(f"s_add_u32 s4, s4, {DPART[i][2]}"); g(f"v_add_u32 v{vDw[i]}, s4, v{self.vL16}")
        g(f"s_lshl_b32 {sD0}, {sW}, 14"); g(f"s_and_b32 {sD14}, {sD0}, 0x4000")
        g(f"s_lshr_b32 s4, {sW}, 1"); g("s_mul_i32 s4, s4, 6"); g(f"s_and_b32 s7, {sW}, 1"); g("s_add_u32 s4, s4, s7"); g("s_add_u32 s4, s4, 4")
        g(f"s_lshl_b32 {sD1}, s4, 14")
        g(f"s_mul_i32 s88, {sW}, {DPART[0][3]}"); g(f"s_add_u32 s88, s88, {DPART[0][2]}")
        setup = g.end()
        qC = {2: STG, 3: STG + 8*4, 4: STG + 16*4, 5: STG + 24*4}
        def csweep():
            out = []
            for hk in range(2):
                for i in range(4):
                    for mat in range(2):
                        srd = SWU if mat else SWG
                        for p in range(3):
                            l = [f"s_mov_b32 s3, {p*64 + (hk*16+i)*16*2752}"]
                            if p == 0:
                                l = [f"s_add_u32 m0, {sCm}, {hk*32768 + i*2048 + mat*K1}"] + l + [f"buffer_load_dwordx4 v{vCs[mat]}, {srd}, s3 offen lds"]
                            else: l.append(f"buffer_load_dwordx4 {vr(qC[2*p+hk]+(2*i+mat)*4,4)}, v{vCs[mat]}, {srd}, s3 offen")
                            out.append(self.grp(*l, tag="wc"))
            return out
        def cwrite(cn):
            p, hk = cn // 2, cn % 2
            if p % 2: g(f"v_add_u32 v{a}, 0x10000, v{vCw}")
            for j in range(8): g(f"ds_write_b128 v{a if p % 2 else vCw}, {vr(qC[cn]+4*j,4)} offset:{hk*32768 + j*K1}")
        dq = [None]*3 + list(range(32, 48, 2)) + list(range(0, 16, 2)) + [16, 18, 20]
        qD = [None if x is None else STG + 4*x for x in dq]
        def djob(i):
            sb, off = (sD0, i*6*16384) if i < 14 else ((sD14, 14*6*16384) if i == 14 else (sD1, (i-15)*12*16384))
            if i < 3:
                return [self.grp(f"s_add_u32 m0, s88, {i*2048 + h*K1}", f"s_add_u32 s3, {sb}, {off + h*8192}", f"buffer_load_dwordx4 v{vKs}, {SWD}, s3 offen lds", tag="wd0") for h in range(2)]
            return [self.grp(f"s_add_u32 s3, {sb}, {off + h*8192}", f"buffer_load_dwordx4 {vr(qD[i]+4*h,4)}, v{vKs}, {SWD}, s3 offen") for h in range(2)]
        def dwrite(part, sk):
            f, n, _, _ = DPART[part]
            for i in range(n):
                for h in range(2): g(f"ds_write_b128 v{vDw[part % 3]}, {vr(qD[f+i]+4*h,4)} offset:{i*2048 + h*K1}")
            g.add(self.sig(sk))
        def colsum(p):
            if p == 0:
                self.cr0(vXs, b)
                g(f"s_and_b32 s4, {sW}, 1"); g("s_lshl_b32 s6, s4, 5"); g(f"v_xor_b32 v{vXs}, s6, v{vXs}")
                g(f"s_lshr_b32 s6, {sW}, 1"); g("s_lshl_b32 s7, s6, 15"); g(f"v_add_u32 v{vXs}, s7, v{vXs}")
                g("s_lshl_b32 s4, s4, 9"); g("s_lshl_b32 s6, s6, 8"); g("s_add_u32 s4, s4, s6"); g(f"s_add_u32 s4, s4, {CST}")
                g(f"v_and_b32 v{b}, 31, v{L}"); g(f"v_lshl_add_u32 v{vWs}, v{b}, 3, s4")
                for i in range(4): g(f"v_mov_b32 v{ON+i}, 0x3f803f80")
            base = vXs
            if p % 2: g(f"v_add_u32 v{a}, 0x10000, v{vXs}"); base = a
            for ks in range(20):
                if ks < 16:
                    for j2 in range(2): g(f"ds_read_b64_tr_b16 {vr(CF[ks%5]+2*j2,2)}, v{base} offset:{ks*2048 + j2*256}")
                if ks >= 4:
                    k = ks - 4; g(f"v_mfma_f32_32x32x16_bf16 {vr(CA,16)}, {vr(ON,4)}, {vr(CF[k%5],4)}, {vr(CA,16) if k else 0}")
            g(f"v_cvt_pk_bf16_f32 v{CA+3}, v{CA}, 0")
            g(f"v_lshlrev_b32 v{CA+1}, 16, v{CA+3}"); g(f"v_sub_f32 v{CA+1}, v{CA}, v{CA+1}")
            g(f"v_cvt_pk_bf16_f32 v{CA+2}, v{CA}, v{CA+1}")
            g(f"ds_write_b64 v{vWs}, {vr(CA+2,2)} offset:{p*K1}")
            g.add(self.sig(K_CS + p))
        LA = self.opt.get("h_la", 8); PZ = self.opt.get("pause", 1)
        events = {}
        def after(n, fn): events.setdefault(n, []).append(fn)
        def run(loads, pz_from=None):
            pend = False
            for n in range(len(loads) + 1):
                for fn in events.pop(n, []): fn(); pend = False
                if n == len(loads): break
                if PZ and pz_from is not None and n >= pz_from and (n - pz_from) % 2 == 0:
                    if not pend: g(f"ds_read_b32 v{vWw}, v{self.vAll} offset:{16*K_PZ}")
                    self.pz_check(vWw)
                    g.add(loads[n]); g(f"ds_read_b32 v{vWw}, v{self.vAll} offset:{16*K_PZ}"); pend = True
                else: g.add(loads[n])
            for n in sorted(events):
                for fn in events.pop(n): fn()
        stages = [(["x0", "w0"], []), (["w1"], []), (["w2", "w3"], []), (["x1", "w4", "w5"], []), (["x2"], [6, 7]), (["x3"], [8, 9]),
                  ([], [10, 11]), ([], [12, 13]), ([], [14, 15])]
        def stage_fn(k, tags, wr):
            def fn():
                if wr: self.lwait(K_F + wr[0]//2 - 3, c)
                if tags: g.waitvm(*tags)
                for s_ in wr:
                    for p in range(3): g(f"ds_write_b128 v{vWw}, {vr(qa(s_,p),4)} offset:{(s_%6)*12288 + p*K1}")
                g.add(self.sig(K_A + k))
                if k == 8: self.stamp("A8", True)
            return fn
        after(last["w0"] + 3, lambda: (g.add(setup), g("s_barrier")))
        for k, (tags, wr) in enumerate(stages):
            n = max([last[t] for t in tags] + [last[f"w{s_}"] for s_ in wr])
            after(n + LA, stage_fn(k, tags, wr))
        gap = [x for i in range(3, 11) for x in djob(i)]
        NG = max(self.opt.get("h_gap", 12), LA)
        loads = jobs + gap[:NG]
        after(len(loads), lambda: (self.lwait(K_AE, c), self.stamp("AE", True)))
        loads += [self.grp(f"s_add_u32 m0, {sBm}, {i*K1}", f"s_add_u32 s3, {sBs}, {i*8192}", f"buffer_load_dwordx4 v{vKs}, {SWO}, s3 offen lds", tag="wb") for i in range(16)]
        after(len(loads) + LA, lambda: (g.waitvm("wb"), g.add(self.sig(K_WB)), self.stamp("WB", True)))
        pz_from = len(loads) + LA
        loads += csweep()
        after(len(loads) + LA, lambda: (g.waitvm("wc"), g.add(self.sig(K_C01)), self.stamp("C01", True)))
        loads += [x for i in range(3) for x in djob(i)] + gap[NG:]
        run(loads, pz_from)
        self.lwait(K_C01, c); colsum(0)
        g.waitvm("wd0"); g.add(self.sig(K_D1))
        self.stamp("cs0", True)
        self.lwait(K_B4, c, sleep=1)
        cwrite(2); cwrite(3); g.add(self.sig(K_C23)); g.waitds()
        self.stamp("C23", True)
        l2 = [x for i in range(11, 19) for x in djob(i)]
        after(LA, lambda: (self.lwait(K_C23, c), colsum(1)))
        run(l2, 0)
        self.stamp("n2", True)
        self.lwait(K_P0, c, sleep=1)
        cwrite(4); cwrite(5); g.add(self.sig(K_C45)); g.waitds()
        self.stamp("C45", True)
        run([x for i in range(19, 22) for x in djob(i)])
        self.lwait(K_C45, c); colsum(2)
        self.lwait(K_U3, c, sleep=1); dwrite(1, K_D2)
        self.stamp("D2", True)
        self.lwait(K_U5, c, sleep=1); dwrite(2, K_D3)
        self.lwait(K_DS, c, own=True, sleep=1); dwrite(3, K_D4)
        self.stamp("D4", True)
        if self.stamps:
            g(f"s_lshl_b32 s3, s2, 2"); g(f"s_add_u32 s3, s3, {sW}"); g("s_lshl_b32 s3, s3, 8"); g(f"s_add_u32 s3, s3, {WS_STAMP + 0x40000}")
            g(f"v_lshlrev_b32 v{a}, 2, v{L}")
            g(f"buffer_store_dword v{self.vST}, v{a}, {SWS}, s3 offen")
        g("s_endpgm")
        self.V = saveV

    def consts(self, a, b):
        g, V, L = self.g, self.V, self.vL
        self.sO0, self.sO1, self.sF1 = self.s(), self.s(), self.s()
        g(f"s_lshl_b32 s4, {sCB}, 2"); g(f"s_add_u32 s4, s4, {sW}")
        g(f"s_lshl_b32 s6, {sRB}, 6"); g("s_add_u32 s6, s6, s4"); g(f"s_lshl_b32 {self.sO0}, s6, 10"); g(f"s_add_u32 {self.sO1}, {self.sO0}, {32*K1}")
        g(f"s_lshl_b32 s6, {sRB}, 5"); g("s_add_u32 s6, s6, s4"); g("s_lshl_b32 s6, s6, 7"); g(f"s_add_u32 {self.sF1}, s6, {WS_F1}")
        self.sOF = [[self.s(), self.s()], [self.s(), self.s()]]; self.sHF = [[self.s(), self.s()], [self.s(), self.s()]]
        g(f"s_lshr_b32 s4, {sW}, 1"); g("s_mul_i32 s4, s4, 6"); g(f"s_and_b32 s7, {sW}, 1"); g("s_add_u32 s4, s4, s7"); g("s_add_u32 s5, s4, 4")
        for rt in range(2):
            g(f"s_lshr_b32 s4, {sW}, 1"); g(f"s_xor_b32 s4, s4, {rt}"); g(f"s_lshl_b32 s6, {sRB}, 1"); g("s_add_u32 s4, s4, s6")
            g("s_lshl_b32 s6, s4, 5"); g(f"s_lshl_b32 s7, {sW}, 3"); g("s_add_u32 s6, s6, s7"); g(f"s_lshl_b32 {self.sOF[rt][0]}, s6, 10")
            g(f"s_add_u32 {self.sOF[rt][1]}, {self.sOF[rt][0]}, 4096")
            g(f"s_mul_i32 s6, s4, {HHP}"); g(f"s_add_u32 s6, s6, {WS_HH//K1}")
            g(f"s_add_u32 s7, s6, {sW}"); g(f"s_lshl_b32 {self.sHF[rt][0]}, s7, 10")
            g("s_add_u32 s7, s6, s5"); g(f"s_lshl_b32 {self.sHF[rt][1]}, s7, 10")
        self.sHs, self.sHt, self.sF2 = self.s(), self.s(), self.s()
        g(f"s_lshl_b32 s4, {sRB}, 1"); g(f"s_lshr_b32 s6, {sW}, 1"); g("s_add_u32 s4, s4, s6")
        g(f"s_lshl_b32 s6, {sCB}, 1"); g(f"s_and_b32 s7, {sW}, 1"); g("s_add_u32 s6, s6, s7")
        self.vRM = V(1)
        g(f"v_and_b32 v{a}, 31, v{L}"); g(f"v_lshlrev_b32 v{a}, 10, v{a}"); g(f"v_lshrrev_b32 v{b}, 5, v{L}"); g(f"v_lshl_add_u32 v{a}, v{b}, 4, v{a}")
        g("s_lshl_b32 s7, s4, 15"); g(f"v_add_u32 v{a}, s7, v{a}"); g("s_lshl_b32 s7, s6, 6"); g(f"v_add_u32 v{self.vRM}, s7, v{a}")
        g("s_lshl_b32 s4, s4, 4"); g("s_add_u32 s4, s4, s6")
        g("s_lshl_b32 s6, s4, 11"); g(f"s_add_u32 {self.sHs}, s6, {WS_H}")
        g("s_lshl_b32 s6, s4, 8"); g(f"s_add_u32 {self.sHt}, s6, {WS_HST}")
        g("s_lshl_b32 s6, s4, 7"); g(f"s_add_u32 {self.sF2}, s6, {WS_F2}")
        self.vKr = V(1)
        g(f"v_lshrrev_b32 v{a}, 5, v{L}"); g(f"v_lshlrev_b32 v{a}, 10, v{a}")
        g(f"v_bfe_u32 v{b}, v{L}, 2, 2"); g(f"v_lshl_add_u32 v{a}, v{b}, 7, v{a}")
        g(f"v_bfe_u32 v{b}, v{L}, 3, 1"); g(f"s_and_b32 s4, {sW}, 1"); g(f"v_xor_b32 v{b}, s4, v{b}"); g(f"v_lshl_add_u32 v{a}, v{b}, 6, v{a}")
        g(f"v_bfe_u32 v{b}, v{L}, 4, 1"); g(f"v_lshl_add_u32 v{a}, v{b}, 5, v{a}")
        self.pi8(a, b); g(f"v_mov_b32 v{self.vKr}, v{a}")
        self.vCr0 = V(1); self.cr0(self.vCr0, b)
        self.sCh, self.sCt, self.sCo, self.sF3 = self.s(), self.s(), self.s(), self.s()
        g(f"s_lshl_b32 s4, {sR128}, 2"); g(f"s_add_u32 s4, s4, {sW}")
        g("s_lshl_b32 s6, s4, 15"); g(f"s_add_u32 {self.sCh}, s6, {WS_H}")
        g("s_lshl_b32 s6, s4, 12"); g(f"s_add_u32 {self.sCt}, s6, {WS_HST}")
        g(f"s_mul_i32 s6, s4, {HHP}"); g(f"s_mul_i32 s7, {sCGX}, 6"); g("s_add_u32 s6, s6, s7"); g("s_lshl_b32 s6, s6, 10"); g(f"s_add_u32 {self.sCo}, s6, {WS_HH}")
        g("s_lshl_b32 s6, s4, 4"); g(f"s_add_u32 s6, s6, {sCGX}"); g("s_lshl_b32 s6, s6, 7"); g(f"s_add_u32 {self.sF3}, s6, {WS_F3}")
        self.vP1, self.vP2, self.vP3, self.vP4 = V(1), V(1), V(1), V(1)
        g(f"s_lshl_b32 s4, {sRB}, 5"); g(f"s_lshl_b32 s6, {sW}, 3"); g("s_add_u32 s4, s4, s6"); g("s_lshl_b32 s4, s4, 7"); g(f"s_add_u32 s4, s4, {WS_F1}")
        g(f"v_and_b32 v{a}, 7, v{L}"); g(f"v_lshl_add_u32 v{self.vP1}, v{a}, 7, s4")
        g(f"s_lshl_b32 s4, {sR128}, 2"); g(f"s_add_u32 s4, s4, {sW}"); g("s_lshl_b32 s4, s4, 11"); g(f"s_add_u32 s4, s4, {WS_F2}")
        g(f"v_and_b32 v{a}, 15, v{L}"); g(f"v_lshl_add_u32 v{self.vP2}, v{a}, 7, s4")
        g(f"s_lshl_b32 s4, {sRB}, 12"); g(f"s_add_u32 s4, s4, {WS_F3}"); g(f"s_lshl_b32 s6, {sW}, 4"); g("s_add_u32 s6, s6, s4")
        g(f"v_min_u32 v{a}, 14, v{a}"); g(f"v_and_b32 v{b}, 16, v{L}"); g(f"v_or_b32 v{a}, v{a}, v{b}")
        g(f"v_lshl_add_u32 v{self.vP3}, v{a}, 7, s6")
        g(f"v_and_b32 v{a}, 7, v{L}"); g(f"v_min_u32 v{a}, 6, v{a}"); g(f"v_lshl_add_u32 v{a}, v{a}, 1, v{b}")
        g(f"s_lshr_b32 s6, {sW}, 1"); g("s_lshl_b32 s6, s6, 7"); g("s_add_u32 s4, s4, s6")
        g(f"s_and_b32 s6, {sW}, 1"); g("s_lshl_b32 s6, s6, 4"); g("s_add_u32 s4, s4, s6"); g("s_add_u32 s4, s4, 64")
        g(f"v_lshl_add_u32 v{self.vP4}, v{a}, 7, s4")

    def phaseA(self):
        g, V, L = self.g, self.V, self.vL
        self.vL8 = V(1); self.vL4 = V(1); self.vNON = V(2); self.vHP = V(8, 4); self.vJunk = V(1)
        a, b, c = V(1), V(1), V(1)
        if self.opt.get("prio", 1): g(f"s_setprio {self.opt.get('prio', 1)}")
        g("s_getpc_b64 s[6:7]"); g.raw("L_pc:")
        g(f"v_lshrrev_b32 v{a}, 4, v0"); g(f"v_lshl_add_u32 v{a}, s5, 4, v{a}"); g(f"v_lshlrev_b32 v{a}, 7, v{a}")
        g(f"v_min_u32 v{a}, L_codeend-L_pc-4, v{a}")
        g(f"global_load_dword v{self.vJunk}, v{a}, s[6:7]")
        g(f"v_lshlrev_b32 v{self.vL8}, 3, v{L}"); g(f"v_lshlrev_b32 v{self.vL4}, 2, v{L}")
        ONES = V(4, 4)
        for i in range(4): g(f"v_mov_b32 v{ONES+i}, 0x3f803f80")
        g(f"v_lshrrev_b32 v{a}, 3, v{L}"); g(f"v_and_b32 v{b}, 7, v{L}"); g(f"v_lshlrev_b32 v{a}, 11, v{a}"); g(f"v_lshl_add_u32 v{a}, v{b}, 4, v{a}")
        g(f"ds_write_b128 v{a}, {vr(ONES,4)}")
        Z4 = self.vHP
        for i in range(4): g(f"v_mov_b32 v{Z4+i}, 0")
        self.vZero = V(1); g(f"v_mov_b32 v{self.vZero}, 0")
        g(f"v_mov_b32 v{b}, 0"); g(f"v_add_u32 v{a}, {SYNC}, v{self.vL16}"); g(f"ds_write_b128 v{a}, {vr(Z4,4)}")
        g(f"s_or_b32 s3, s2, {sW}")
        g("s_waitcnt lgkmcnt(0)")
        if self.stamps: g(f"v_writelane_b32 v{self.vST}, s100, 0"); self.snames.append("start")
        self.srd(36, 64, 256)
        g("s_cmp_eq_u32 s3, 0")
        g.branch("s_cbranch_scc1 L_pubnonce", keep=True)
        g.label("L_pubdone", keep=True)
        g.begin()
        g.label("L_pubnonce", keep=True)
        g("s_or_b32 s100, s100, 1")
        g(f"v_mov_b32 v{self.vNON}, s100"); g(f"v_mov_b32 v{self.vNON+1}, s101")
        g("s_mov_b64 exec, 1")
        g(f"buffer_store_dwordx2 {vr(self.vNON,2)}, v{b}, {SDBG}, 0 offen sc1")
        g("s_mov_b64 exec, -1")
        g.branch("s_branch L_pubdone", keep=True)
        self.tail.append(g.end())
        self.srd(8, 48, 2048*512*2); self.srd(32, 62, 2048*512*2); self.srd(40, 66, WS_SIZE)
        g("s_barrier")
        for grp in self.cmap(): g.add(grp)
        vTch = V(1)
        g(f"s_cmp_eq_u32 {sW}, 1"); g("s_cselect_b64 s[6:7], s[56:57], s[52:53]")
        g(f"s_cmp_eq_u32 {sW}, 2"); g("s_cselect_b64 s[6:7], s[58:59], s[6:7]")
        g(f"s_cmp_eq_u32 {sW}, 3"); g("s_cselect_b64 s[6:7], s[60:61], s[6:7]")
        g("s_mov_b32 s12, s6"); g("s_and_b32 s13, s7, 0xffff"); g("s_mov_b32 s15, 0x20000")
        g(f"s_cmp_eq_u32 {sW}, 0"); g(f"s_cselect_b32 s4, 16, 43"); g("s_lshl_b32 s14, s4, 15")
        g("s_mul_i32 s6, s4, s2"); g(f"v_add_u32 v{a}, s6, v{L}"); g(f"v_lshlrev_b32 v{a}, 7, v{a}")
        g(f"v_mov_b32 v{b}, 0x80000000"); g(f"v_cmp_gt_u32 vcc, s4, v{L}"); g(f"v_cndmask_b32 v{vTch}, v{b}, v{a}, vcc")
        sGrp = self.s()
        g(f"s_lshr_b32 {sGrp}, s2, 3"); g(f"s_and_b32 {sGrp}, {sGrp}, {self.opt.get('t_mask', 7)}")
        self.sync_consts(a)
        self.consts(a, b)
        g("s_mov_b32 s6, 0"); g("s_mov_b32 s7, 0x0000ffff")
        g(f"v_cndmask_b32 v{a}, v{self.vP3}, v{self.vP2}, s[6:7]")
        g("s_mov_b32 s7, 0xffff0000"); vFw = V(1); g(f"v_cndmask_b32 v{vFw}, v{a}, v{self.vP1}, s[6:7]")
        vXr = [V(1), V(1)]; vXr4 = [V(1), V(1)]; vSr = [V(1), V(1)]; vS0 = V(1); vWr = V(1)
        g(f"v_bfe_u32 v{a}, v{L}, 1, 3"); g(f"v_lshrrev_b32 v{b}, 4, v{L}"); g(f"v_xor_b32 v{a}, v{a}, v{b}"); g(f"v_lshlrev_b32 v{a}, 4, v{a}")
        g(f"v_and_b32 v{c}, 15, v{L}"); g(f"v_lshl_add_u32 v{vXr[0]}, v{c}, 7, v{a}"); g(f"v_xor_b32 v{vXr[1]}, 64, v{vXr[0]}")
        g(f"s_add_u32 s4, {sW}, 1"); g("s_lshl_b32 s4, s4, 14")
        for i in range(2):
            g(f"v_add_u32 v{vXr4[i]}, 0x10000, v{vXr[i]}"); g(f"v_add_u32 v{vSr[i]}, s4, v{vXr[i]}")
        g(f"s_and_b32 s4, {sW}, 1"); g("s_lshl_b32 s4, s4, 6"); g(f"v_xor_b32 v{vS0}, s4, v{vXr[0]}")
        g(f"s_lshr_b32 s4, {sW}, 1"); g("s_lshl_b32 s4, s4, 11"); g(f"v_add_u32 v{vS0}, s4, v{vS0}")
        g(f"v_bfe_u32 v{a}, v{L}, 3, 2"); g(f"v_xor_b32 v{a}, {sW}, v{a}"); g(f"v_lshlrev_b32 v{a}, 5, v{a}")
        g(f"v_mul_u32_u24 v{b}, 3072, v{b}"); g(f"v_bfe_u32 v{c}, v{L}, 2, 2"); g(f"v_lshl_add_u32 v{a}, v{c}, 7, v{a}")
        g(f"v_and_b32 v{c}, 3, v{L}"); g(f"v_lshl_add_u32 v{a}, v{c}, 3, v{a}"); g(f"v_add_u32 v{a}, {RING}, v{a}"); g(f"v_add_u32 v{vWr}, v{a}, v{b}")
        BC, BP, BP1, MK = V(4, 4), V(4, 4), V(4, 4), V(4, 4)
        vT1, vT2, vTo, vTp, vTq = V(1), V(1), V(1), V(1), V(1)
        g(f"v_and_b32 v{a}, 15, v{L}"); g(f"v_lshrrev_b32 v{b}, 4, v{L}")
        g(f"v_lshlrev_b32 v{vT1}, 2, v{a}"); g(f"v_add_u32 v{vT1}, {TAB}, v{vT1}")
        g(f"v_lshlrev_b32 v{vT2}, 4, v{b}"); g(f"v_add_u32 v{vT2}, {TAB}, v{vT2}")
        g(f"s_lshl_b32 s4, {sW}, 6"); g(f"v_add_u32 v{vTo}, s4, v{vT1}")
        g(f"s_lshl_b32 s4, {sW}, 7"); g(f"v_add_u32 v{vTp}, s4, v{vT1}"); g(f"v_add_u32 v{vTq}, s4, v{vT2}")
        g(f"v_lshlrev_b32 v{b}, 2, v{b}"); g(f"v_sub_u32 v{a}, v{a}, v{b}"); g(f"v_mov_b32 v{c}, {f32(-1e30)}")
        g(f"s_cmp_eq_u32 {sRB}, 0"); g("s_cselect_b64 s[58:59], 0, -1")
        for r in range(4):
            g(f"v_subrev_u32 v{b}, {r}, v{a}"); g(f"v_and_b32 v{b}, 0x80000001, v{b}")
            g(f"v_cmp_eq_u32 vcc, 0, v{b}"); g(f"v_cndmask_b32 v{BC+r}, v{c}, 0, vcc")
            g(f"v_cmp_eq_u32 vcc, 0x80000000, v{b}"); g(f"v_cndmask_b32 v{BP+r}, v{c}, 0, vcc")
            g(f"v_cndmask_b32 v{BP1+r}, v{c}, v{BP+r}, s[58:59]")
        for i, B in enumerate((BP, BC)):
            for h in range(2):
                g(f"v_ashrrev_i32 v{a}, 31, v{B+2*h}"); g(f"v_ashrrev_i32 v{b}, 31, v{B+2*h+1}")
                g(f"v_and_b32 v{a}, 0xffff, v{a}"); g(f"v_and_b32 v{b}, 0xffff0000, v{b}"); g(f"v_or_b32 v{a}, v{a}, v{b}"); g(f"v_not_b32 v{MK+2*i+h}, v{a}")
        for i, m in enumerate((0x22222222, 0x44444444, 0x88888888)): g(f"s_mov_b32 s{54+2*i}, {m:#x}"); g(f"s_mov_b32 s{55+2*i}, {m:#x}")
        g(f"s_mov_b32 s60, {f32(1/512)}"); g(f"s_mov_b32 s61, {f32(0.25*LOG2E)}")
        FB = [V(40, 4), V(40, 4)]
        XF = [[FB[i] + 4*t for t in range(5)] for i in range(2)]
        WF = [[FB[i] + 20 + 4*p for p in range(3)] for i in range(2)]
        SF = [[FB[i] + 32, FB[i] + 36] for i in range(2)]
        Q = [V(4, 4) for t in range(5)]; Kc = [V(4, 4) for t in range(5)]; Vc = [V(4, 4) for t in range(5)]
        G0, S0, GS, SS = V(4, 4), V(4, 4), V(4, 4), V(4, 4)
        blocks = []
        for q in range(4): blocks += [("own", 4*q + i) for i in range(4)] + [("t0", q)]
        def stat_blocks(s): return [(j, blocks[j]) for j in (2*(s-2), 2*(s-2)+1) if 0 <= j < 20] if s >= 2 else []
        def reads(s):
            g.begin(); bi = s & 1
            for p in range(3):
                for j2 in range(2): g(f"ds_read_b64_tr_b16 {vr(WF[bi][p]+2*j2,2)}, v{vWr} offset:{(s%6)*12288 + p*K1 + j2*512}")
                if p == 0:
                    for t in range(4): g(f"ds_read_b128 {vr(XF[bi][t],4)}, v{vXr[s&1]} offset:{t*16384 + (s>>1)*2048}")
                    g(f"ds_read_b128 {vr(XF[bi][4],4)}, v{vXr4[s&1]} offset:{(s>>1)*2048}")
            for j, (kind, x) in stat_blocks(s):
                if kind == "own": g(f"ds_read_b128 {vr(SF[bi][j&1],4)}, v{vSr[x&1]} offset:{(x>>1)*2048}")
                else: g(f"ds_read_b128 {vr(SF[bi][j&1],4)}, v{vS0} offset:{x*4096}")
            return g.end()
        def mfmas(s):
            g.begin(); bi = s & 1
            def mf(d, x, y, first): g(f"v_mfma_f32_16x16x32_bf16 {vr(d,4)}, {vr(x,4)}, {vr(y,4)}, {0 if first else vr(d,4)}")
            for t in range(5): mf(Q[t], WF[bi][0], XF[bi][t], s == 0)
            for t in range(5): mf(Kc[t], WF[bi][1], XF[bi][t], s == 0)
            for t in range(5): mf(Vc[t], XF[bi][t], WF[bi][2], s == 0)
            for j, (kind, x) in stat_blocks(s):
                f = SF[bi][j&1]; G, S = (GS, SS) if kind == "own" else (G0, S0)
                mf(G, f, f, x == 0); mf(S, ONES, f, x == 0)
            return g.end()
        def diag(dst, src):
            g(f"v_cndmask_b32 v{dst}, v{src}, v{src+1}, s[54:55]"); g(f"v_cndmask_b32 v{dst}, v{dst}, v{src+2}, s[56:57]")
            g(f"v_cndmask_b32 v{dst}, v{dst}, v{src+3}, s[58:59]")
        def meanrstd(S, Qq, M, R):
            g(f"v_mul_f32 v{M}, s60, v{S}"); g(f"v_mul_f32 v{Qq}, s60, v{Qq}"); g(f"v_fma_f32 v{Qq}, -v{M}, v{M}, v{Qq}")
            g(f"v_max_f32 v{Qq}, 0, v{Qq}"); g(f"v_add_f32 v{Qq}, {f32(1e-5)}, v{Qq}"); g(f"v_rsq_f32 v{R}, v{Qq}")
        g.begin(); diag(a, GS); diag(b, G0); meanrstd(SS, a, SS+1, SS+2); fin1 = singles(g.end())
        fin1.append(self.grp("s_mov_b32 exec_lo, 0x00f0000f", "s_mov_b32 exec_hi, 0xf0000f00",
                             f"ds_write_b32 v{vTo}, v{SS+1} offset:64", f"ds_write_b32 v{vTo}, v{SS+2} offset:{512+64}",
                             f"ds_write_b32 v{vTp}, v{S0} offset:1024", f"ds_write_b32 v{vTp}, v{b} offset:{1024+64}", "s_mov_b64 exec, -1") + self.sig(K_TB))
        M1 = V(6); R1 = V(6)
        PT = SF[1][0]
        M2 = [FB[0] + 4*t for t in range(5)]; R2 = [FB[0] + 20 + 4*t for t in range(5)]
        g.begin()
        for i in range(4):
            g(f"ds_read_b32 v{PT+i}, v{vT1} offset:{1024+128*i}"); g(f"ds_read_b32 v{PT+4+i}, v{vT1} offset:{1024+128*i+64}")
        for t in range(1, 5):
            g(f"ds_read_b32 v{M1+t}, v{vT1} offset:{t*64}"); g(f"ds_read_b32 v{R1+t}, v{vT1} offset:{512+t*64}")
        for x in (PT, PT+4):
            g(f"v_add_f32 v{x}, v{x}, v{x+1}"); g(f"v_add_f32 v{x+2}, v{x+2}, v{x+3}"); g(f"v_add_f32 v{x}, v{x}, v{x+2}")
        meanrstd(PT, PT+4, M1, R1)
        g(f"ds_write_b32 v{vTp}, v{M1} offset:2048"); g(f"ds_write_b32 v{vTp}, v{R1} offset:{2048+64}")
        fin2 = singles(g.end())
        g.begin()
        for t in range(1, 5):
            g(f"ds_read_b128 {vr(M2[t],4)}, v{vT2} offset:{t*64}"); g(f"ds_read_b128 {vr(R2[t],4)}, v{vT2} offset:{512+t*64}")
        g(f"ds_read_b128 {vr(M2[0],4)}, v{vTq} offset:2048"); g(f"ds_read_b128 {vr(R2[0],4)}, v{vTq} offset:{2048+64}")
        fin3 = singles(g.end())
        vN = V(2); XR = self.vHP
        tk = V(1)
        self.stamp("pre")
        self.lwait(K_A, tk)
        self.stamp("bar0")
        g.add(reads(0)); g.add(self.lchk_issue(K_A + 1, tk))
        T0 = self.opt.get("t_start", 2)
        stg = {0: 1, 1: 2, 3: 3, 5: 4, 7: 5, 9: 6, 11: 7, 13: 8}
        for s in range(16):
            g.comment(f"A step {s}")
            if self.opt.get("ast", 0): self.stamp(f"s{s}")
            mf = mfmas(s); W = Weave(mf, 2); n = len(mf)
            if self.opt.get("nomf", 0): mf2 = [Ins("s_nop 0") for _ in mf]; W = Weave(mf2, 2)
            if s in stg: W.at(0, self.lchk_check(K_A + stg[s], tk))
            if s < 15:
                rs = singles(reads(s + 1))
                if s % 2 == 0 and s <= 8: rs[-1] = rs[-1] + self.sig(K_F + s // 2)
                if s == 14: rs[-1] = rs[-1] + self.sig(K_AE)
                W.even(rs, 1, n - 3)
            if s + 1 in stg: W.at(n - 4, self.lchk_issue(K_A + stg[s + 1], tk))
            if self.opt.get("touch", 1) and T0 <= s < T0 + 8:
                Ls = g.newlabel("L_t")
                g.begin(); g(f"s_cmp_lg_u32 {sGrp}, {s - T0}"); g(f"s_cbranch_scc1 {Ls}")
                g.raw(f"    buffer_load_dword v{self.vJunk}, v{vTch}, s[12:15], 0 offen"); g.raw(Ls + ":")
                W.at(n - 3, g.end())
            if s == 1: W.at(n - 3, self.grp(f"buffer_load_dword v{c}, v{vFw}, {SWS}, 0 offen sc1"))
            if s == 11: W.at(n - 3, self.grp(f"v_mov_b32 v{vN}, 0", f"buffer_load_dwordx2 {vr(vN,2)}, v{vN}, {SDBG}, 0 offen sc1"))
            if s == 13:
                W.at(n - 3, self.grp(f"buffer_load_dwordx4 {vr(XR,4)}, v{self.vRM}, {SX}, 0 offen"))
                W.at(n - 2, self.grp(f"buffer_load_dwordx4 {vr(XR+4,4)}, v{self.vRM}, {SX}, 0 offen offset:32"))
            if s == 12:
                left, _ = W.fill(fin1, 1)
                for grp in left: W.at(n - 1, grp)
            if s == 13:
                W.at(2, self.lchk_issue(K_TB, a)); W.at(6, self.lchk_check(K_TB, a))
            if s in (13, 14): fin2, _ = W.fill(fin2, 7 if s == 13 else 0, cap=3)
            if s == 15:
                left, _ = W.fill(fin2 + fin3, 0)
                for grp in left: W.at(n - 1, grp)
            g.add(W.out())
        self.stamp("loop")
        for r in [vWr, vS0, vT1, vT2, vTo, vTp, vTq, vTch, vFw, tk] + vXr + vXr4 + vSr: V.release(r)
        for r in (G0, S0, GS, SS): V.release(r, 4)
        V.release(FB[1], 40)
        CSQ, CSK = V(4, 4), V(4, 4); CSV = V(2)
        for r in range(4): g(f"v_mov_b32_dpp v{CSQ+r}, v{Q[0]+r} row_newbcast:0 row_mask:0xf bank_mask:0xf")
        for r in range(4): g(f"v_mov_b32_dpp v{CSK+r}, v{Kc[0]+r} row_newbcast:0 row_mask:0xf bank_mask:0xf")
        QB = [None] + [V(2) for t in range(4)]; KB = [V(2) for t in range(5)]; VB = V(10, 2)
        bc = lambda reg: (vr(reg & ~1, 2), reg & 1)
        for t in range(5):
            mp, ms = bc(M1 + t); rp, rs = bc(R1 + t)
            for X, CS in ((Q[t], CSQ), (Kc[t], CSK)):
                if X == Q[0]: continue
                for h in range(2):
                    g(f"v_pk_fma_f32 {vr(X+2*h,2)}, {mp}, {vr(CS+2*h,2)}, {vr(X+2*h,2)} op_sel:[{ms},0,0] op_sel_hi:[{ms},1,1] neg_lo:[1,0,0] neg_hi:[1,0,0]")
            for h in range(2): g(f"v_pk_mul_f32 {vr(Kc[t]+2*h,2)}, {rp}, {vr(Kc[t]+2*h,2)} op_sel:[{rs},0] op_sel_hi:[{rs},1]")
            if t == 0: g(f"v_mov_b32 v{CSV}, v{Vc[0]}"); g(f"v_mov_b32 v{CSV+1}, v{Vc[0]}")
            if t == 1: g(f"v_permlane16_swap_b32 v{CSV}, v{CSV+1}")
            if t == 2: g(f"v_mov_b32 v{CSV+1}, v{CSV}")
            if t == 3: g(f"v_permlane32_swap_b32 v{CSV}, v{CSV+1}")
            if t:
                for h in range(2): g(f"v_cvt_pk_bf16_f32 v{QB[t]+h}, v{Q[t]+2*h}, v{Q[t]+2*h+1}")
            for h in range(2): g(f"v_cvt_pk_bf16_f32 v{KB[t]+h}, v{Kc[t]+2*h}, v{Kc[t]+2*h+1}")
        for t in range(5):
            for h in range(2):
                g(f"v_pk_fma_f32 {vr(Vc[t]+2*h,2)}, {vr(M2[t]+2*h,2)}, {vr(CSV,2)}, {vr(Vc[t]+2*h,2)} op_sel_hi:[1,0,1] neg_lo:[1,0,0] neg_hi:[1,0,0]")
            for h in range(2): g(f"v_pk_mul_f32 {vr(Vc[t]+2*h,2)}, {vr(R2[t]+2*h,2)}, {vr(Vc[t]+2*h,2)}")
        V.release(FB[0], 40)
        R4 = range(1, 5)
        SP = {t: Q[t] for t in R4}; SC = {t: Kc[t] for t in R4}
        AQ = {t: V(1) for t in R4}; U = {t: V(2) for t in R4}; MX = {t: V(1) for t in R4}; TX = {t: V(1) for t in R4}
        cv = [f"v_cvt_pk_bf16_f32 v{VB+2*t+h}, v{Vc[t]+2*h}, v{Vc[t]+2*h+1}" for t in range(5) for h in range(2)]
        cv += [f"v_mul_f32 v{AQ[t]}, s61, v{R1+t}" for t in R4] + [f"v_readfirstlane_b32 s70, v{vN}", f"v_readfirstlane_b32 s71, v{vN+1}"]
        for t in R4:
            g(f"v_mfma_f32_16x16x16_bf16 {vr(SP[t],4)}, {vr(KB[t-1],2)}, {vr(QB[t],2)}, {vr(BP1 if t == 1 else BP,4)}")
            g(cv.pop(0)); g(cv.pop(0))
            g(f"v_mfma_f32_16x16x16_bf16 {vr(SC[t],4)}, {vr(KB[t],2)}, {vr(QB[t],2)}, {vr(BC,4)}")
            g(cv.pop(0)); g(cv.pop(0))
        for t in R4:
            for h in range(2): g(f"v_max3_f32 v{U[t]+h}, v{SP[t]+2*h}, v{SP[t]+2*h+1}, v{SC[t]+2*h}")
        for t in R4:
            for h in range(2): g(f"v_max_f32 v{U[t]+h}, v{U[t]+h}, v{SC[t]+2*h+1}")
        for t in R4: g(f"v_max_f32 v{MX[t]}, v{U[t]}, v{U[t]+1}")
        for t in R4: g(f"v_max_f32 v{TX[t]}, v{U[t]}, v{U[t]+1}")
        for t in R4: g(f"v_permlane16_swap_b32 v{MX[t]}, v{TX[t]}")
        for t in R4: g(f"v_max_f32 v{MX[t]}, v{MX[t]}, v{TX[t]}")
        for t in R4: g(f"v_mov_b32 v{TX[t]}, v{MX[t]}")
        for t in R4: g(f"v_permlane32_swap_b32 v{MX[t]}, v{TX[t]}")
        for t in R4: g(f"v_max_f32 v{MX[t]}, v{MX[t]}, v{TX[t]}")
        for t in R4:
            for h in range(2): g(f"v_sub_f32 v{U[t]+h}, v{U[t]+h}, v{MX[t]}")
        for t in R4:
            for h in range(2): g(f"v_mul_f32 v{U[t]+h}, v{U[t]+h}, v{AQ[t]}")
        for t in R4:
            for h in range(2): g(f"v_exp_f32 v{U[t]+h}, v{U[t]+h}")
        PB = {t: V(4, 4) for t in R4}
        for t in R4:
            for h in range(2): g(f"v_cvt_pk_bf16_f32 v{U[t]+h}, v{U[t]+h}, v{U[t]+h}")
        for t in R4:
            for i in range(4): g(f"v_and_b32 v{PB[t]+i}, v{MK+i}, v{U[t]+(i&1)}")
            if t > 1:
                g(f"v_mfma_f32_16x16x32_bf16 {vr(SP[t-1],4)}, {vr(ONES,4)}, {vr(PB[t-1],4)}, 0")
                g(f"v_mfma_f32_16x16x32_bf16 {vr(SC[t-1],4)}, {vr(VB+2*(t-2),4)}, {vr(PB[t-1],4)}, 0")
        g(f"v_mov_b32 v{self.vNON}, s70"); g(f"v_mov_b32 v{self.vNON+1}, s71")
        g(f"v_mfma_f32_16x16x32_bf16 {vr(SP[4],4)}, {vr(ONES,4)}, {vr(PB[4],4)}, 0")
        g(f"v_mfma_f32_16x16x32_bf16 {vr(SC[4],4)}, {vr(VB+6,4)}, {vr(PB[4],4)}, 0")
        OB = [PB[1], PB[3]]
        for pr in range(2):
            for t in (1 + 2*pr, 2 + 2*pr): g(f"v_rcp_f32 v{MX[t]}, v{SP[t]}")
            for t in (1 + 2*pr, 2 + 2*pr):
                for r in range(4): g(f"v_mul_f32 v{SC[t]+r}, v{MX[t]}, v{SC[t]+r}")
            for i, t in enumerate((1 + 2*pr, 2 + 2*pr)):
                for h in range(2): g(f"v_cvt_pk_bf16_f32 v{OB[pr]+2*i+h}, v{SC[t]+2*h}, v{SC[t]+2*h+1}")
            for h in range(2): g(f"v_permlane16_swap_b32 v{OB[pr]+h}, v{OB[pr]+2+h}")
            g(f"buffer_store_dwordx4 {vr(OB[pr],4)}, v{self.vL16}, {SWS}, {self.sO1 if pr else self.sO0} offen sc1", tag="ost")
        g("s_cmp_eq_u32 s70, 0")
        g.branch("s_cbranch_scc1 L_getnonce", keep=True)
        g.label("L_nb", keep=True)
        g.begin()
        g.label("L_getnonce", keep=True)
        g("s_mov_b32 s52, 0"); g(f"v_mov_b32 v{a}, 0")
        g.label("L_getnonce2", keep=True)
        g(f"buffer_load_dwordx2 {vr(self.vNON,2)}, v{a}, {SDBG}, 0 offen sc1")
        g("s_waitcnt vmcnt(0)")
        g(f"v_readfirstlane_b32 s70, v{self.vNON}"); g(f"v_readfirstlane_b32 s71, v{self.vNON+1}")
        g("s_add_u32 s52, s52, 1"); g(f"s_cmp_gt_u32 s52, {POLL_LIMIT}")
        g.branch("s_cbranch_scc1 L_nb", keep=True)
        g("s_cmp_eq_u32 s70, 0")
        g.branch("s_cbranch_scc1 L_getnonce2", keep=True)
        g.branch("s_branch L_nb", keep=True)
        self.tail.append(g.end())
        self.stamp("Aepi")
        for t in range(5):
            V.release(Q[t], 4); V.release(Kc[t], 4); V.release(Vc[t], 4); V.release(KB[t], 2)
        for t in R4:
            V.release(QB[t], 2); V.release(MX[t]); V.release(TX[t]); V.release(AQ[t]); V.release(U[t], 2); V.release(PB[t], 4)
        V.release(M1, 6); V.release(R1, 6); V.release(VB, 10); V.release(CSV, 2); V.release(vN, 2)
        for r in (CSQ, CSK, BC, BP, BP1, MK, ONES): V.release(r, 4)
        V.release(a); V.release(b); V.release(c); V.release(0); V.release(self.vJunk)

    def red_consts(self):
        g, V = self.g, self.V
        self.vRw = [V(1), V(1), V(1)]; self.vRr = V(1)
        for i in (1, 2, 3):
            g(f"s_xor_b32 s4, {sW}, {i}"); g("s_lshl_b32 s4, s4, 14"); g(f"s_add_u32 s4, s4, {64*K1 + (i-1)*4096}")
            g(f"v_add_u32 v{self.vRw[i-1]}, s4, v{self.vL16}")
        g(f"s_lshl_b32 s4, {sW}, 14"); g(f"s_add_u32 s4, s4, {64*K1}"); g(f"v_add_u32 v{self.vRr}, s4, v{self.vL16}")
    def red_free(self):
        for x in self.vRw + [self.vRr]: self.V.release(x)
    def red_write(self, ACC, a):
        return [self.grp(f"ds_write_b128 v{self.vRw[a-1]}, {vr(ACC[a]+4*j,4)} offset:{j*K1}") for j in range(4)]
    def red_add(self, ACC, T):
        g = self.g
        for i in range(12): g(f"ds_read_b128 {vr(T+4*i,4)}, v{self.vRr} offset:{i*K1}")
        return [f"v_pk_add_f32 {vr(ACC[0]+2*j,2)}, {vr(ACC[0]+2*j,2)}, {vr(T+16*a+2*j,2)}" for a in range(3) for j in range(8)]

    def phaseB(self):
        g, V = self.g, self.V
        XR = self.vHP
        WB = V(64, 4); OF = V(64, 4); ACC = [V(16, 4) for _ in range(4)]; rd = [V(1), V(1)]; t2 = V(2); t1 = V(1)
        self.red_consts()
        g(f"v_add_u32 v{rd[0]}, s4, v{self.vKr}"); g(f"v_xor_b32 v{rd[1]}, 64, v{rd[0]}")
        for j in range(8):
            g(f"v_lshlrev_b32 v{ACC[0]+2*j}, 16, v{XR+j}"); g(f"v_and_b32 v{ACC[0]+2*j+1}, 0xffff0000, v{XR+j}")
        g.waitvm("ost"); self.flag(self.sF1)
        PZ = self.opt.get("pause", 1)
        if PZ == 2: g.add(self.pause(1))
        self.stamp("F1")
        self.lwait(K_WB, t1, own=True)
        for ks in range(8):
            for ct in range(2):
                for j2 in range(2): g(f"ds_read_b64_tr_b16 {vr(WB+(ks*2+ct)*4+2*j2,2)}, v{rd[ct]} offset:{ks*2048+j2*512}")
        g.add(self.sig(K_B2))
        self.stamp("Bpre")
        self.poll(self.vP1, t2)
        if PZ == 1: g.add(self.pause(1))
        self.stamp("P1")
        lo = [(ks, rt) for rt in (1, 0) for ks in range(8)]
        lds = [self.grp(f"buffer_load_dwordx4 {vr(OF+(ks*2+rt)*4,4)}, v{self.vL16}, {SWS}, {self.sOF[rt][ks//4]} offen offset:{(ks%4)*K1} sc1") for ks, rt in lo]
        NL0 = self.opt.get("b_l0", 8)
        for grp in lds[:NL0]: g.add(grp)
        g.begin()
        for ks, rt in lo:
            for ct in (1, 0):
                a = 2*rt + ct
                g(f"v_mfma_f32_32x32x16_bf16 {vr(ACC[a],16)}, {vr(WB+(ks*2+ct)*4,4)}, {vr(OF+(ks*2+rt)*4,4)}, {vr(ACC[a],16) if (ks or a == 0) else 0}")
        mf = g.end(); W = Weave(mf, 5)
        for i, grp in enumerate(lds[NL0:]): W.at(2*i, grp)
        if PZ: W.at(2*(len(lds) - NL0), self.pause(0))
        W.at(12, self.lchk_issue(K_B2, t1)); W.at(17, self.lchk_check(K_B2, t1))
        W.even(self.red_write(ACC, 3) + self.red_write(ACC, 2), 19, 31)
        g.add(W.out())
        self.stamp("Bmf")
        for grp in self.red_write(ACC, 1): g.add(grp)
        g.add(self.sig(K_B3))
        self.lwait(K_B3, t1)
        adds = self.red_add(ACC, WB)
        g.add(self.sig(K_B4))
        for l in adds: g(l)
        H = ACC[0]
        for j in range(8): g(f"v_cvt_pk_bf16_f32 v{self.vHP+j}, v{H+2*j}, v{H+2*j+1}")
        g(f"buffer_store_dwordx4 {vr(self.vHP,4)}, v{self.vL16}, {SWS}, {self.sHs} offen sc1", tag="hst")
        g(f"buffer_store_dwordx4 {vr(self.vHP+4,4)}, v{self.vL16}, {SWS}, {self.sHs} offen offset:1024 sc1", tag="hst")
        S2, Q2 = ACC[1], ACC[1] + 2
        g(f"v_pk_add_f32 {vr(S2,2)}, {vr(H,2)}, {vr(H+2,2)}"); g(f"v_pk_mul_f32 {vr(Q2,2)}, {vr(H,2)}, {vr(H,2)}")
        g(f"v_pk_fma_f32 {vr(Q2,2)}, {vr(H+2,2)}, {vr(H+2,2)}, {vr(Q2,2)}")
        for j in range(2, 8):
            g(f"v_pk_add_f32 {vr(S2,2)}, {vr(S2,2)}, {vr(H+2*j,2)}")
            g(f"v_pk_fma_f32 {vr(Q2,2)}, {vr(H+2*j,2)}, {vr(H+2*j,2)}, {vr(Q2,2)}")
        g(f"v_add_f32 v{S2}, v{S2}, v{S2+1}"); g(f"v_add_f32 v{Q2}, v{Q2}, v{Q2+1}")
        g(f"v_permlane32_swap_b32 v{S2}, v{Q2}")
        g(f"v_add_f32 v{S2}, v{S2}, v{Q2}")
        g(f"buffer_store_dword v{S2}, v{self.vL4}, {SWS}, {self.sHt} offen sc1", tag="hst")
        self.stamp("Bst")
        V.release(WB, 64); V.release(OF, 64); V.release(t2, 2); V.release(t1); V.release(self.vP1)
        for x in ACC: V.release(x, 16)
        for x in rd: V.release(x)
        self.red_free()

    def phaseC(self):
        g, V = self.g, self.V
        HF = V(128, 4); ACC = [V(16, 4) for _ in range(3)]; ST = ACC[2]
        NF = self.opt.get("c_nf", 6); FR = [V(4, 4) for _ in range(NF)]
        CSF = [V(4, 4) for _ in range(2)]; MF = V(4, 4); T = V(8, 4); t2 = V(2); A0, A1, VV, t1 = V(1), V(1), V(1), V(1)
        vCr = [[self.vCr0, V(1)], [V(1), V(1)]]
        g(f"v_xor_b32 v{vCr[0][1]}, 32, v{vCr[0][0]}")
        for e in range(2): g(f"v_add_u32 v{vCr[1][e]}, 0x10000, v{vCr[0][e]}")
        g(f"v_mov_b32 v{MF+2}, 0"); g(f"v_mov_b32 v{MF+3}, 0")
        for u in range(2): g(f"v_mov_b32 v{CSF[u]+2}, 0"); g(f"v_mov_b32 v{CSF[u]+3}, 0")
        g(f"s_add_u32 s54, {self.sCo}, 4096")
        vCt = V(1); g(f"v_add_u32 v{vCt}, {CST}, v{self.vL8}")
        g.waitvm("hst"); self.flag(self.sF2)
        PZ = self.opt.get("pause", 1)
        self.stamp("F2")
        self.lwait(K_C01, t1)
        if PZ == 2: g.add(self.pause(1))
        self.stamp("C01")
        seq = []
        for ks in range(32): seq += [(0, ks), (1, ks)]
        seq += [(0, 32), (1, 32)]
        for u in range(2, 6): seq += [(u, ks) for ks in range(33)]
        idx = {x: i for i, x in enumerate(seq)}
        rseq = [x for x in seq if x[1] < 32]
        RA = NF - 1
        def rd(i):
            u, ks = rseq[i]; g.begin()
            base = vCr[(u//2) % 2][u % 2]
            for j2 in range(2): g(f"ds_read_b64_tr_b16 {vr(FR[i % NF]+2*j2,2)}, v{base} offset:{ks*2048 + j2*256}")
            if (u, ks) == (1, 31): g.add(self.sig(K_P0))
            if (u, ks) == (3, 31): g.add(self.sig(K_U3))
            if (u, ks) == (5, 31): g.add(self.sig(K_U5))
            return g.end()
        for i in range(RA): g.add(rd(i))
        self.poll(self.vP2, t2)
        if PZ == 1: g.add(self.pause(1))
        self.stamp("P2")
        hl = []
        for ks in range(32):
            l = [f"s_add_u32 {self.sCh}, {self.sCh}, 4096"] if (ks % 4 == 0 and ks) else []
            l.append(f"buffer_load_dwordx4 {vr(HF+4*ks,4)}, v{self.vL16}, {SWS}, {self.sCh} offen offset:{(ks%4)*K1} sc1")
            hl.append(self.grp(*l))
        sl = [self.grp(f"buffer_load_dword v{ST+i}, v{self.vL4}, {SWS}, {self.sCt} offen offset:{i*256} sc1") for i in range(16)]
        NH0 = self.opt.get("c_h0", 8)
        for grp in hl[:NH0]: g.add(grp)
        g.begin()
        for st in (8, 4, 2, 1):
            for i in range(st): g(f"v_add_f32 v{ST+i}, v{ST+i}, v{ST+i+st}")
        g(f"v_mov_b32 v{ST+1}, v{ST}")
        g(f"v_permlane32_swap_b32 v{ST}, v{ST+1}")
        g(f"v_mul_f32 v{ST}, s60, v{ST}"); g(f"v_mul_f32 v{ST+1}, s60, v{ST+1}")
        g(f"v_fma_f32 v{ST+1}, -v{ST}, v{ST}, v{ST+1}"); g(f"v_max_f32 v{ST+1}, 0, v{ST+1}")
        g(f"v_add_f32 v{VV}, {f32(1e-5)}, v{ST+1}")
        g(f"v_rsq_f32 v{ST+2}, v{VV}")
        c0 = -2.0 * 0.7978845608028654 * LOG2E
        g(f"v_cvt_pk_bf16_f32 v{MF}, -v{ST}, -v{ST}")
        g(f"v_mul_f32 v{A0}, {f32(c0)}, v{ST+2}"); g(f"v_mul_f32 v{ST+3}, v{ST+2}, v{ST+2}")
        g(f"v_mul_f32 v{A1}, {f32(0.044715)}, v{A0}"); g(f"v_mul_f32 v{A1}, v{ST+3}, v{A1}")
        g(f"v_and_b32 v{ST+4}, 0xffff0000, v{MF}"); g(f"v_sub_f32 v{ST+4}, -v{ST}, v{ST+4}")
        g(f"v_cvt_pk_bf16_f32 v{MF+1}, v{ST+4}, 0")
        stats = singles(g.end())
        def epi(u):
            g.begin(); G = ACC[u % 3]; U = G + 8
            for i in range(8): g(f"v_mul_f32 v{T+i}, v{G+i}, v{G+i}")
            for i in range(8): g(f"v_fma_f32 v{T+i}, v{T+i}, v{A1}, v{A0}")
            for i in range(8): g(f"v_mul_f32 v{T+i}, v{G+i}, v{T+i}")
            for i in range(8):
                g(f"v_exp_f32 v{T+i}, v{T+i}"); g(f"v_mul_f32 v{U+i}, v{G+i}, v{U+i}")
            for i in range(8): g(f"v_fma_f32 v{T+i}, v{T+i}, v{VV}, v{VV}")
            for i in range(8):
                g(f"v_rcp_f32 v{T+i}, v{T+i}")
                if i: g(f"v_mul_f32 v{U+i-1}, v{U+i-1}, v{T+i-1}")
            g(f"v_mul_f32 v{U+7}, v{U+7}, v{T+7}")
            for i in range(4): g(f"v_cvt_pk_bf16_f32 v{G+i}, v{U+2*i}, v{U+2*i+1}")
            g(f"buffer_store_dwordx4 {vr(G,4)}, v{self.vL16}, {SWS}, {self.sCo if u < 4 else 's54'} offen offset:{(u%4)*K1} sc1", tag=f"hh{u}")
            return singles(g.end())
        def flg(u):
            g.begin(); g.waitvm(f"hh{u}"); self.flag(self.sF3, off=16*u, full=False); return g.end()
        g.begin(); used = 0
        for (u, ks) in seq:
            acc = ACC[u % 3]
            if ks < 32:
                g(f"v_mfma_f32_32x32x16_bf16 {vr(acc,16)}, {vr(FR[used % NF],4)}, {vr(HF+4*ks,4)}, {vr(acc,16) if ks else 0}"); used += 1
            else: g(f"v_mfma_f32_32x32x16_bf16 {vr(acc,16)}, {vr(CSF[u%2],4)}, {vr(MF,4)}, {vr(acc,16)}")
        mf = g.end(); W = Weave(mf, self.opt.get("c_cap", 5))
        for key, k in (((2, 0), K_C23), ((4, 0), K_C45)):
            at = idx[rseq[rseq.index(key) - RA]]
            W.at(at - 6, self.lchk_issue(k, t1)); W.at(at - 1, self.lchk_check(k, t1))
        for i in range(RA, len(rseq)): W.at(idx[rseq[i - RA]], rd(i))
        for i in range(0, len(rseq) - 1, 2):
            g.begin(); g.needs(vr(FR[(i + 1) % NF], 4)); W.before(idx[rseq[i]], g.end())
        pos = 0
        for grp in hl[NH0:]: W.at(pos, grp); pos += 2
        for k, grp in enumerate(sl): W.at(1 + 2*k, grp)
        if PZ: W.at(self.opt.get("c_unp", pos), self.pause(0))
        cs_ld = lambda u: self.grp(f"ds_read_b64 {vr(CSF[u%2],2)}, v{vCt} offset:{u*512}")
        def cs_seq(p, at):
            W.at(at, self.lchk_issue(K_CS + p, t2)); W.at(at + 4, self.lchk_check(K_CS + p, t2))
        cs_seq(0, 46); W.at(51, cs_ld(0)); W.at(52, cs_ld(1))
        left, _ = W.fill(stats, 48, 63, cap=6); assert not left
        cs_seq(1, idx[(2, 20)]); W.at(idx[(2, 26)], cs_ld(2)); W.at(idx[(3, 20)], cs_ld(3))
        cs_seq(2, idx[(4, 20)]); W.at(idx[(4, 26)], cs_ld(4)); W.at(idx[(5, 20)], cs_ld(5))
        if self.stamps and self.opt.get("cst", 0):
            for key in ((0, 16), (2, 0), (3, 0), (4, 0), (5, 0)):
                g.begin(); self.stamp("c%d_%d" % key); W.before(idx[key], g.end())
        p = idx[(2, 1)]; left = []; self.lateflags = []
        for u in range(5):
            start = max(p, idx[(max(u + 1, 2), 1)])
            limit = idx[(u + 3, 0)] - 1 if u < 3 else len(mf)
            rest, p = W.fill(left + epi(u), start, limit)
            if u < 3 and rest:
                W.even(rest, start, limit) if False else [W.at(limit - 1, grp) for grp in rest]
                self.overflow = getattr(self, "overflow", []) + [(u, len(rest))]
                rest = []
            left = rest
            FL = self.opt.get('c_fl', 40)
            if not rest and p + FL < len(mf): W.at(p + FL, flg(u))
            else: self.lateflags.append(u)
        g.add(W.out())
        self.stamp("Cmf")
        for grp in left: g.add(grp)
        for grp in epi(5): g.add(grp)
        self.stamp("Cepi")
        self.cflags = [flg(u) for u in self.lateflags + [5]]
        V.release(t2, 2); V.release(HF, 128); V.release(T, 8)
        for x in ACC: V.release(x, 16)
        for x in FR + CSF + [MF]: V.release(x, 4)
        for x in [A0, A1, VV, t1, vCt, self.vP2] + vCr[0] + vCr[1]: V.release(x)

    def phaseD(self):
        g, V = self.g, self.V
        NK = 22
        for grp in self.cflags: g.add(grp)
        self.stamp("F3")
        ACC = [V(16, 4) for _ in range(4)]
        NH = self.opt.get("d_nh", 28); HR = V(4*NH, 4)
        NWF = 4; WF = V(8*NWF, 4)
        rd = [[V(1), V(1)] for _ in range(3)]; t2 = V(2); t1 = V(1); vZ = V(1)
        for i in range(3):
            g(f"s_mul_i32 s4, {sW}, {DPART[i][3]}"); g(f"s_add_u32 s4, s4, {DPART[i][2]}")
            g(f"v_add_u32 v{rd[i][0]}, s4, v{self.vKr}"); g(f"v_xor_b32 v{rd[i][1]}, 64, v{rd[i][0]}")
        for j in range(8):
            g(f"v_lshlrev_b32 v{ACC[0]+2*j}, 16, v{self.vHP+j}"); g(f"v_and_b32 v{ACC[0]+2*j+1}, 0xffff0000, v{self.vHP+j}")
        g(f"s_cmp_ge_u32 {sW}, 2"); g("s_cselect_b32 s4, 0x80000000, 0"); g(f"v_or_b32 v{vZ}, s4, v{self.vL16}")
        self.red_consts()
        def part_of(i):
            for p, (f, n, _, _) in enumerate(DPART):
                if f <= i < f + n: return p, i - f
        def wread(i):
            p, j = part_of(i); out = []
            for ct in range(2):
                for j2 in range(2):
                    out.append(self.grp(f"ds_read_b64_tr_b16 {vr(WF+((i%NWF)*2+ct)*4+2*j2,2)}, v{rd[p%3][ct]} offset:{j*2048+j2*512}"))
            if i == 2: out[-1] = out[-1] + self.sig(K_DS)
            return out
        self.lwait(K_D1, t1, own=True)
        for i in range(NWF - 1):
            for grp in wread(i): g.add(grp)
        self.stamp("Dpre")
        self.poll(self.vP3, t2)
        self.stamp("P3")
        lo = [(i, rt) for i in range(NK) for rt in (1, 0)]
        lds = []
        for n, (i, rt) in enumerate(lo):
            sb, off = (self.sHF[rt][0], i*6*K1) if i < 15 else (self.sHF[rt][1], (i-15)*12*K1)
            lds.append(self.grp(f"s_add_u32 s3, {sb}, {off}", f"buffer_load_dwordx4 {vr(HR+4*(n%NH),4)}, v{vZ if i == 14 else self.vL16}, {SWS}, s3 offen sc1"))
        NL0 = self.opt.get("d_l0", 8)
        for grp in lds[:NL0]: g.add(grp)
        g.begin()
        for n, (i, rt) in enumerate(lo):
            for ct in (1, 0):
                a = 2*rt + ct
                g(f"v_mfma_f32_32x32x16_bf16 {vr(ACC[a],16)}, {vr(WF+((i%NWF)*2+ct)*4,4)}, {vr(HR+4*(n%NH),4)}, {vr(ACC[a],16) if (i or a == 0) else 0}")
        mf = g.end(); W = Weave(mf, 5)
        for p, k in ((1, K_D2), (2, K_D3), (3, K_D4)):
            at = 4*(DPART[p][0] - (NWF - 1))
            if at < 4:
                g.add(self.lchk_issue(k, t1, own=True)); g.add(self.lchk_check(k, t1, own=True))
            else:
                W.at(at - 4, self.lchk_issue(k, t1, own=True)); W.at(at - 1, self.lchk_check(k, t1, own=True))
        for i in range(NWF - 1, NK):
            for j, grp in enumerate(wread(i)): W.at(4*(i - (NWF - 1)) + j, grp)
        for n in range(NL0, len(lds)):
            at = 2*(n - NL0)
            if n == 30:
                W.at(at - 14, self.apoll_issue(self.vP4, t2)); W.at(at - 1, self.apoll_check(self.vP4, t2))
            W.at(at, lds[n])
        g.add(W.out())
        self.stamp("Dmf")
        g("s_barrier")
        for a in (3, 2, 1):
            for grp in self.red_write(ACC, a): g.add(grp)
        g.waitds(); g("s_barrier")
        for l in self.red_add(ACC, HR): g(l)
        H = ACC[0]
        for j in range(8): g(f"v_cvt_pk_bf16_f32 v{self.vHP+j}, v{H+2*j}, v{H+2*j+1}")
        g(f"buffer_store_dwordx4 {vr(self.vHP,4)}, v{self.vRM}, {SOUT}, 0 offen")
        g(f"buffer_store_dwordx4 {vr(self.vHP+4,4)}, v{self.vRM}, {SOUT}, 0 offen offset:32")

    def build(self):
        g = self.g
        self.prologue(); self.phaseA(); self.phaseB(); self.phaseC(); self.phaseD()
        if self.stamps:
            self.stamp("end")
            g(f"s_lshl_b32 s3, s2, 2"); g(f"s_add_u32 s3, s3, {sW}"); g("s_lshl_b32 s3, s3, 8"); g(f"s_add_u32 s3, s3, {WS_STAMP}")
            g(f"buffer_store_dword v{self.vST}, v{self.vL4}, {SWS}, s3 offen")
        g.label("L_end", keep=True)
        g("s_endpgm")
        self.helper()
        for st in self.tail: g.add(st)
        g.raw("L_codeend:")
        body = g.finalize()
        hdr = open("ref.txt").read().split("; Override launch geometry")[0]
        s = hdr + "; @launch grid=(256,1,1) block=(512,1,1) lds=163840\n"
        s += '.amdgcn_target "amdgcn-amd-amdhsa--gfx950"\n.text\n'
        s += f".globl {NAME}_kernel\n.p2align 8\n.type {NAME}_kernel,@function\n{NAME}_kernel:\n"
        s += body + "    s_endpgm\n"
        s += f'.section .rodata,"a"\n.p2align 6\n.amdhsa_kernel {NAME}_kernel\n'
        s += "  .amdhsa_next_free_vgpr 256\n  .amdhsa_next_free_sgpr 102\n  .amdhsa_accum_offset 256\n"
        s += "  .amdhsa_group_segment_fixed_size 0\n  .amdhsa_kernarg_size 80\n  .amdhsa_user_sgpr_count 2\n"
        s += "  .amdhsa_user_sgpr_kernarg_segment_ptr 1\n  .amdhsa_system_sgpr_workgroup_id_x 1\n"
        s += "  .amdhsa_float_denorm_mode_32 3\n.end_amdhsa_kernel\n"
        return s

if __name__ == "__main__":
    import argparse
    ap = argparse.ArgumentParser()
    ap.add_argument("-o", default="k.s"); ap.add_argument("--stamps", action="store_true"); ap.add_argument("--opt", default="")
    a = ap.parse_args()
    opt = {kv.split("=")[0]: int(kv.split("=")[1]) for kv in a.opt.split(",") if kv}
    k = K(a.stamps, opt)
    s = k.build()
    open(a.o, "w").write(s)
    if a.stamps: open(a.o + ".names", "w").write(" ".join(k.snames) + "\n" + " ".join(k.hnames))
    print("ins", k.g.stats, "vgpr hi", k.V.hi, "sgpr hi", k.S.hi, "lateflags", k.lateflags, "overflow", getattr(k, "overflow", None))
```

```python
import sys, struct
sys.path.insert(0, "gen")
from asmgen import *

NAME = "sequential_preLN__sliding_local_dilated__glu_gated_geglu__prompt"
WS_O, WS_H, WS_HH, WS_HST, WS_CS = 0x000000, 0x200000, 0x400000, 0xA00000, 0xA40000
WS_F1, WS_F2, WS_F3, WS_FC, WS_STAMP = 0xB00000, 0xB20000, 0xB40000, 0xB60000, 0xC00000
WS_WC = 0xD00000
WS_SIZE = 0x1000000
HHP = 96
SX, SWQ, SWO, SWG, SWU, SWD, SOUT, SDBG, SWS = [f"s[{b}:{b+3}]" for b in range(8, 44, 4)]
sW, sRB, sCB, sR128, sCGX, sISCS = "s44", "s45", "s46", "s47", "s68", "s69"
sNON = "s[70:71]"
POLL_LIMIT = 1 << 16
LOG2E = 1.4426950408889634
K1 = 1024
RING = 80*K1; TAB = 152*K1; SYNC = 159*K1; CST = 152*K1
(K_WB, K_B2, K_B3, K_B4, K_C01, K_C23, K_P0, K_C45, K_U3, K_U5, K_D1, K_D2, K_D3, K_D4, K_DS, K_AE, K_TB, K_PZ) = range(18)
K_CS = 18; K_A = 21; K_F = 30; K_T2 = 35; K_PP = 36
DPART = [(0, 3, 128*K1, 6*K1), (3, 8, 64*K1, 16*K1), (11, 8, 0, 16*K1), (19, 3, 128*K1, 6*K1)]
def f32(x): return "0x%08x" % struct.unpack("<I", struct.pack("<f", x))[0]

class K:
    def __init__(self, stamps=False, opt=None):
        self.g = Gen(); self.V = Alloc(0, 256); self.S = Alloc(74, 100)
        self.stamps = stamps; self.nstamp = 0; self.tail = []; self.opt = opt or {}; self.snames = []; self.hnames = []
    def stamp(self, name="", helper=False):
        if not self.stamps: return
        names = self.hnames if helper else self.snames
        i = len(names); names.append(name)
        self.g("s_memtime s[72:73]" if self.opt.get("cyc", 0) else "s_memrealtime s[72:73]"); self.g("s_waitcnt lgkmcnt(0)"); self.g(f"v_writelane_b32 v{self.vST}, s72, {i}")
    def s(self): return f"s{self.S(1)}"
    def grp(self, *lines, tag=None):
        g = self.g; g.begin()
        for l in lines: g(l, tag)
        return g.end()

    def poll(self, vaddr, tmp):
        g = self.g; L = g.newlabel("L_poll"); Lgo = g.newlabel("L_go")
        g("s_mov_b32 s52, 0")
        g.label(L, keep=True)
        g(f"buffer_load_dwordx2 {vr(tmp,2)}, {vr(vaddr)}, {SWS}, 0 offen sc1")
        g("s_add_u32 s52, s52, 1"); g(f"s_cmp_gt_u32 s52, {POLL_LIMIT}"); g(f"s_cbranch_scc1 {Lgo}")
        g("s_waitcnt vmcnt(0)")
        g(f"v_cmp_ne_u64 vcc, {sNON}, {vr(tmp,2)}")
        g(f"s_cbranch_vccnz {L}")
        g.label(Lgo, keep=True)
    def apoll_issue(self, vaddr, tmp, off=0):
        return self.grp(f"buffer_load_dwordx2 {vr(tmp,2)}, {vr(vaddr)}, {SWS}, 0 offen offset:{off} sc1")
    def apoll_check(self, vaddr, tmp, off=0):
        g = self.g; Ls = g.newlabel("L_slow"); Lb = g.newlabel("L_back"); L2 = g.newlabel("L_sl")
        g.begin()
        g(f"v_cmp_ne_u64 vcc, {sNON}, {vr(tmp,2)}"); g(f"s_cbranch_vccnz {Ls}"); g.raw(Lb + ":")
        main = g.end()
        g.begin()
        g.label(Ls, keep=True); g("s_mov_b32 s53, 0")
        g.label(L2, keep=True)
        g(f"buffer_load_dwordx2 {vr(tmp,2)}, {vr(vaddr)}, {SWS}, 0 offen offset:{off} sc1")
        g("s_add_u32 s53, s53, 1"); g("s_waitcnt vmcnt(0)")
        g(f"s_cmp_gt_u32 s53, {POLL_LIMIT}"); g(f"s_cbranch_scc1 {Lb}")
        g(f"v_cmp_ne_u64 vcc, {sNON}, {vr(tmp,2)}"); g(f"s_cbranch_vccnz {L2}")
        g.branch(f"s_branch {Lb}", keep=True)
        self.tail.append(g.end())
        return main
    def flag(self, soff, off=0, full=True):
        g = self.g
        g(f"s_mov_b64 exec, {'0xffff' if full else '1'}")
        g(f"buffer_store_dwordx2 {vr(self.vNON,2)}, {vr(self.vL8)}, {SWS}, {soff} offen offset:{off} sc1", tag="flag")
        g("s_mov_b64 exec, -1")
    def sig(self, k): return self.grp(f"ds_write_b32 v{self.vSig}, v{self.vSig} offset:{16*k}")
    def lchk_issue(self, k, tmp, own=False):
        return self.grp(f"ds_read_b32 v{tmp}, v{self.vOwn if own else self.vAll} offset:{16*k}")
    def lchk_check(self, k, tmp, own=False):
        g = self.g; Ls = g.newlabel("L_ls"); Lb = g.newlabel("L_lb"); L2 = g.newlabel("L_ll")
        g.begin()
        g(f"v_cmp_eq_u32 vcc, 0, v{tmp}"); g(f"s_cbranch_vccnz {Ls}"); g.raw(Lb + ":")
        main = g.end()
        g.begin()
        g.label(Ls, keep=True); g("s_mov_b32 s53, 0")
        g.label(L2, keep=True)
        g(f"ds_read_b32 v{tmp}, v{self.vOwn if own else self.vAll} offset:{16*k}")
        g("s_add_u32 s53, s53, 1"); g("s_waitcnt lgkmcnt(0)")
        g(f"s_cmp_gt_u32 s53, {POLL_LIMIT*16}"); g(f"s_cbranch_scc1 {Lb}")
        g(f"v_cmp_eq_u32 vcc, 0, v{tmp}"); g(f"s_cbranch_vccnz {L2}")
        g.branch(f"s_branch {Lb}", keep=True)
        self.tail.append(g.end())
        return main
    def lwait(self, k, tmp, own=False, sleep=0):
        g = self.g; L = g.newlabel("L_lw"); Lgo = g.newlabel("L_lg")
        g("s_mov_b32 s53, 0")
        g.label(L, keep=True)
        g(f"ds_read_b32 v{tmp}, v{self.vOwn if own else self.vAll} offset:{16*k}")
        g("s_add_u32 s53, s53, 1"); g(f"s_cmp_gt_u32 s53, {POLL_LIMIT*16}"); g(f"s_cbranch_scc1 {Lgo}")
        if sleep: g(f"s_sleep {sleep}")
        g("s_waitcnt lgkmcnt(0)")
        g(f"v_cmp_eq_u32 vcc, 0, v{tmp}"); g(f"s_cbranch_vccnz {L}")
        g.label(Lgo, keep=True)
    def pause(self, on):
        if on: return self.sig(K_PZ)
        return self.grp(f"ds_write_b32 v{self.vSig}, v{self.vZero} offset:{16*K_PZ}")
    def pz_check(self, tmp):
        g = self.g; Ls = g.newlabel("L_ps"); Lb = g.newlabel("L_pb"); L2 = g.newlabel("L_pl")
        g(f"v_cmp_ne_u32 vcc, 0, v{tmp}"); g(f"s_cbranch_vccnz {Ls}"); g.raw(Lb + ":")
        g.begin()
        g.label(Ls, keep=True); g("s_mov_b32 s53, 0")
        g.label(L2, keep=True)
        g(f"ds_read_b32 v{tmp}, v{self.vAll} offset:{16*K_PZ}")
        g("s_add_u32 s53, s53, 1"); g("s_sleep 1"); g("s_waitcnt lgkmcnt(0)")
        g(f"s_cmp_gt_u32 s53, {POLL_LIMIT*16}"); g(f"s_cbranch_scc1 {Lb}")
        g(f"v_cmp_ne_u32 vcc, 0, v{tmp}"); g(f"s_cbranch_vccnz {L2}")
        g.branch(f"s_branch {Lb}", keep=True)
        self.tail.append(g.end())
    def cr0(self, dst, b):
        g, L = self.g, self.vL
        g(f"v_bfe_u32 v{b}, v{L}, 4, 1"); g(f"v_mul_u32_u24 v{dst}, {1024+32}, v{b}")
        g(f"v_lshrrev_b32 v{b}, 5, v{L}"); g(f"v_lshl_add_u32 v{dst}, v{b}, 9, v{dst}")
        g(f"v_bfe_u32 v{b}, v{L}, 2, 2"); g(f"v_lshl_add_u32 v{dst}, v{b}, 6, v{dst}")
        self.pi8(dst, b)
    def nonce_slow(self, tag, a):
        g = self.g
        g("s_cmp_eq_u32 s70, 0")
        g.branch(f"s_cbranch_scc1 L_gn{tag}", keep=True)
        g.label(f"L_nb{tag}", keep=True)
        g.begin()
        g.label(f"L_gn{tag}", keep=True)
        g("s_mov_b32 s52, 0"); g(f"v_mov_b32 v{a}, 0")
        g.label(f"L_gn2{tag}", keep=True)
        g(f"buffer_load_dwordx2 {vr(self.vNON,2)}, v{a}, {SDBG}, 0 offen sc1")
        g("s_waitcnt vmcnt(0)")
        g(f"v_readfirstlane_b32 s70, v{self.vNON}"); g(f"v_readfirstlane_b32 s71, v{self.vNON+1}")
        g("s_add_u32 s52, s52, 1"); g(f"s_cmp_gt_u32 s52, {POLL_LIMIT}")
        g.branch(f"s_cbranch_scc1 L_nb{tag}", keep=True)
        g("s_cmp_eq_u32 s70, 0")
        g.branch(f"s_cbranch_scc1 L_gn2{tag}", keep=True)
        g.branch(f"s_branch L_nb{tag}", keep=True)
        self.tail.append(g.end())
    def sync_consts(self, a):
        g, V, L = self.g, self.V, self.vL
        self.vSig, self.vOwn, self.vAll = V(1), V(1), V(1)
        g(f"s_lshl_b32 s4, {sW}, 2"); g(f"s_add_u32 s4, s4, {SYNC}")
        g(f"v_mov_b32 v{self.vOwn}, s4")
        g(f"v_mov_b32 v{a}, 0x40000"); g(f"v_cmp_eq_u32 vcc, 0, v{L}"); g(f"v_cndmask_b32 v{self.vSig}, v{a}, v{self.vOwn}, vcc")
        g(f"v_and_b32 v{a}, 3, v{L}"); g(f"v_lshlrev_b32 v{a}, 2, v{a}"); g(f"v_add_u32 v{self.vAll}, {SYNC}, v{a}")

    def srd(self, base, ptr, size):
        g = self.g
        g(f"s_mov_b32 s{base}, s{ptr}"); g(f"s_and_b32 s{base+1}, s{ptr+1}, 0xffff")
        g(f"s_mov_b32 s{base+2}, {size}"); g(f"s_mov_b32 s{base+3}, 0x20000")
    def pi8(self, acc, t):
        g, L = self.g, self.vL
        g(f"v_and_b32 v{t}, 1, v{L}"); g(f"v_lshl_add_u32 v{acc}, v{t}, 4, v{acc}")
        g(f"v_bfe_u32 v{t}, v{L}, 1, 1"); g(f"v_lshl_add_u32 v{acc}, v{t}, 3, v{acc}")

    def prologue(self):
        g, V = self.g, self.V
        g("s_cmp_ge_u32 s2, 256"); g("s_cbranch_scc1 L_end")
        g("s_load_dwordx16 s[48:63], s[0:1], 0"); g("s_load_dwordx4 s[64:67], s[0:1], 64"); g("s_memrealtime s[100:101]")
        assert V(1) == 0
        self.vL = V(1); self.vL16 = V(1); self.vST = V(1); t = V(1)
        g(f"v_lshrrev_b32 v{t}, 6, v0"); g(f"v_and_b32 v{self.vL}, 63, v0"); g(f"v_readfirstlane_b32 s3, v{t}")
        g("s_and_b32 s4, s2, 7"); g("s_lshr_b32 s5, s2, 3")
        g("s_lshl_b32 s6, s4, 2"); g("s_lshr_b32 s7, s5, 3"); g(f"s_add_u32 {sRB}, s6, s7"); g(f"s_and_b32 {sCB}, s5, 7")
        g(f"s_and_b32 {sW}, s3, 3")
        if self.stamps: g(f"v_mov_b32 v{self.vST}, 0")
        g(f"v_lshlrev_b32 v{self.vL16}, 4, v{self.vL}")
        V.release(t)
        g("s_cmp_ge_u32 s3, 4")
        g.branch("s_cbranch_scc1 L_helper", keep=True)
    def cmap(self):
        g = self.g; out = []
        if self.opt.get("cmap", 0) == 0:
            out += singles(self.grp("s_and_b32 s4, s2, 7", "s_lshl_b32 s4, s4, 1", "s_lshr_b32 s6, s2, 7", f"s_add_u32 {sR128}, s4, s6",
                                    "s_lshr_b32 s4, s2, 3", "s_and_b32 s4, s4, 15"))
        else:
            out += singles(self.grp("s_and_b32 s4, s2, 6", "s_lshl_b32 s4, s4, 1", "s_lshr_b32 s6, s2, 6", f"s_add_u32 {sR128}, s4, s6",
                                    "s_lshr_b32 s4, s2, 3", "s_and_b32 s4, s4, 7", "s_and_b32 s6, s2, 1", "s_lshl_b32 s6, s6, 3", "s_add_u32 s4, s4, s6"))
        out.append(self.grp(f"s_mov_b32 {sCGX}, s4"))
        return out

    def helper(self):
        g = self.g; V = Alloc(4, 256); L = self.vL
        saveV = self.V; self.V = V
        g.label("L_helper", keep=True)
        if self.opt.get("hprio", 2): g(f"s_setprio {self.opt.get('hprio', 2)}")
        a, b, c = V(1), V(1), V(1); vXs, vWs, vWw = V(1), V(1), V(1)
        ROT = self.opt.get("rot", 1)
        g(f"s_and_b32 s3, {sW}, 1"); g("s_lshl_b32 s6, s3, 3")
        g(f"v_lshrrev_b32 v{a}, 3, v{L}"); g(f"v_add_u32 v{b}, s6, v{a}"); g(f"v_bfe_u32 v{c}, v{b}, 1, 3")
        g(f"v_and_b32 v{vXs}, 7, v{L}"); g(f"v_xor_b32 v{c}, v{c}, v{vXs}"); g(f"v_lshlrev_b32 v{b}, 10, v{b}")
        g(f"v_lshl_add_u32 v{vXs}, v{c}, 4, v{b}")
        g(f"v_bfe_u32 v{b}, v{L}, 4, 1"); g("s_lshl_b32 s6, s3, 1"); g(f"v_or_b32 v{b}, s6, v{b}")
        g(f"v_bfe_u32 v{c}, v{L}, 1, 2"); g(f"v_xor_b32 v{b}, v{b}, v{c}")
        g(f"v_and_b32 v{c}, 1, v{L}"); g(f"v_lshlrev_b32 v{c}, 4, v{c}"); g(f"v_lshl_add_u32 v{b}, v{b}, 5, v{c}")
        g(f"v_mul_u32_u24 v{a}, 3072, v{a}")
        g(f"s_mul_i32 s6, {sW}, {8*3072}"); g(f"s_lshl_b32 s7, {sCB}, 7"); g("s_add_u32 s6, s6, s7")
        g(f"v_add3_u32 v{vWs}, v{a}, v{b}, s6")
        sXb, sX0, sXm, sWm, sEx, sRk, sR2, sKq = "s74", "s75", "s76", "s77", "s78", "s79", "s80", "s81"
        g(f"s_lshr_b32 s7, {sW}, 1"); g(f"s_mul_i32 s6, s7, {3*16384}")
        g(f"s_lshl_b32 {sXb}, {sRB}, 16"); g(f"s_sub_u32 {sXb}, {sXb}, 16384"); g(f"s_add_u32 {sXb}, {sXb}, s6"); g(f"s_max_i32 {sX0}, {sXb}, 0")
        g(f"s_lshl_b32 {sXm}, s3, 10"); g(f"s_add_u32 {sXm}, {sXm}, s6")
        g(f"s_add_u32 s93, {sXm}, 32768"); g("s_cmp_eq_u32 s7, 0"); g("s_cselect_b32 s93, s93, 0x30000"); g("s_cselect_b32 s6, 0, 0x80000000")
        vX2 = vWw; g(f"v_or_b32 v{vX2}, s6, v{vXs}")
        g(f"s_mul_i32 {sWm}, {sW}, 3072"); g(f"s_add_u32 {sWm}, {sWm}, {RING}")
        g(f"s_cmp_eq_u32 {sW}, 0"); g(f"s_cselect_b32 {sEx}, 0xffffff00, -1")
        if ROT: g(f"s_add_u32 s6, s4, {sCB}"); g("s_and_b32 s6, s6, 7")
        else: g("s_mov_b32 s6, 0")
        if self.opt.get("rot3", 1):
            g(f"s_lshl_b32 s7, {sRB}, 1"); g(f"s_cmp_eq_u32 {sCB}, 3"); g("s_cselect_b32 s7, s7, 0"); g("s_add_u32 s6, s6, s7"); g("s_and_b32 s6, s6, 7")
        g(f"s_lshl_b32 {sR2}, s6, 1"); g(f"s_mov_b32 {sRk}, s6")
        g("s_mov_b32 s10, %d" % (2048*512*2)); g("s_mov_b32 s11, 0x20000"); g("s_mov_b32 s14, %d" % (512*1536*2)); g("s_mov_b32 s15, 0x20000")
        g("s_waitcnt lgkmcnt(0)")
        g("s_mov_b32 s8, s48"); g("s_and_b32 s9, s49, 0xffff"); g("s_mov_b32 s12, s50"); g("s_and_b32 s13, s51, 0xffff")
        if self.stamps: g(f"v_writelane_b32 v{self.vST}, s100, 0"); self.hnames.append("start")
        self.stamp("ka", True)
        vKs, vCs, vCw, vDw = V(1), V(1), V(1), [V(1) for _ in range(3)]
        self.vNON = V(2); self.vL8 = V(1); t2 = V(2); vPW = V(1)
        STG = V(208, 4)
        CA = V(16, 4); ON = V(4, 4)
        Qd = lambda i: STG + 4*i
        def xjob(kp, i):
            l = []
            if i == 0: l += [f"s_add_u32 {sKq}, {sRk}, {kp}", f"s_and_b32 {sKq}, {sKq}, 7", f"s_lshl_b32 {sKq}, {sKq}, 7"]
            l += [f"s_add_u32 m0, {sXm if i < 2 else 's93'}, {(i*16384 if i < 2 else 0) + kp*2048}"]
            if i == 0: l += [f"s_add_u32 s3, {sX0}, {sKq}", f"s_mov_b32 exec_lo, {sEx}"]
            else: l += [f"s_add_u32 s3, {sXb}, {i*16384}", f"s_add_u32 s3, s3, {sKq}"]
            l += [f"buffer_load_dwordx4 v{vXs if i < 2 else vX2}, {SX}, s3 offen lds"]
            if i == 0: l += ["s_mov_b32 exec_lo, -1"]
            return self.grp(*l, tag=f"x{kp}")
        def wjob(s, p):
            l = []
            if p == 0: l += [f"s_add_u32 m0, {sWm}, {(s%6)*12288}", f"s_add_u32 s3, {sR2}, {s}", "s_and_b32 s3, s3, 15", f"s_mul_i32 s3, s3, {32*3072}"]
            l += [f"buffer_load_dwordx4 v{vWs}, {SWQ}, s3 offen offset:{p*K1} lds"]
            return self.grp(*l, tag=f"w{s}")
        order = ["x0", 0, 1, "x1", 2, 3, "x2", "x3", 4, 5, "x4", "x5", 6, 7, "x6", "x7", 8, 9, 10, 11, 12, 13, 14, 15]
        jobs = []; last = {}
        for o in order:
            if isinstance(o, str): jobs += [xjob(int(o[1]), t) for t in range(3)]; last[o] = len(jobs)
            else: jobs += [wjob(o, p) for p in range(3)]; last[f"w{o}"] = len(jobs)
        sBm, sBs, sCm, sD0, sD1, sD14 = "s82", "s83", "s84", "s85", "s86", "s87"
        g.begin(); self.sync_consts(a); setup0 = g.end()
        g.begin()
        self.srd(16, 52, 512*512*2); self.srd(20, 56, 512*1376*2); self.srd(24, 58, 512*1376*2); self.srd(28, 60, 1376*512*2)
        self.srd(40, 66, WS_SIZE); self.srd(36, 64, 256)
        for grp in self.cmap(): g.add(grp)
        g(f"v_bfe_u32 v{a}, v{L}, 4, 1"); g(f"v_lshlrev_b32 v{a}, 2, v{a}")
        g(f"v_and_b32 v{b}, 7, v{L}"); g(f"v_xor_b32 v{a}, v{a}, v{b}"); g(f"v_lshlrev_b32 v{a}, 4, v{a}")
        g(f"v_lshrrev_b32 v{b}, 3, v{L}"); g(f"v_lshl_add_u32 v{a}, v{b}, 10, v{a}")
        g(f"s_lshl_b32 s4, {sCB}, 7"); g(f"v_add_u32 v{vKs}, s4, v{a}")
        g(f"s_lshl_b32 s6, {sW}, 14"); g(f"s_add_u32 {sBm}, s6, {64*K1}"); g(f"s_lshl_b32 {sBs}, {sW}, 17")
        g(f"s_lshl_b32 s6, {sW}, 13"); g(f"v_add_u32 v{vCw}, s6, v{self.vL16}")
        g(f"s_mul_i32 s4, {sCGX}, {6*32*K1}"); g("s_add_u32 s4, s4, s6"); g(f"s_add_u32 {sCm}, s4, {WS_WC}")
        g(f"s_cmp_eq_u32 {sCGX}, 15"); g("s_cselect_b32 s4, 0x80000000, 0"); g(f"s_cselect_b32 s6, 0, {sCGX}"); g(f"v_or_b32 v{vCs}, s4, v{self.vL16}")
        g("s_lshl_b32 s6, s6, 2"); g(f"s_add_u32 s6, s6, {sW}"); g("s_lshl_b32 s6, s6, 10"); g(f"s_add_u32 s6, s6, {WS_FC}")
        g(f"v_and_b32 v{a}, 7, v{L}"); g(f"v_lshl_add_u32 v{vPW}, v{a}, 7, s6")
        g(f"v_lshlrev_b32 v{self.vL8}, 3, v{L}")
        PV = [CA, CA + 1, CA + 2]; vPr, vPs = CA + 3, CA + 4
        g(f"s_lshl_b32 s4, s2, 1"); g(f"s_add_u32 s4, s4, {sW}")
        g(f"s_cmp_lt_u32 {sW}, 2"); g("s_cselect_b32 s4, s4, 511"); g("s_cmp_lt_u32 s4, 480"); g("s_cselect_b32 s89, 0, 0x80000000")
        g("s_lshr_b32 s6, s4, 5"); g("s_and_b32 s7, s4, 31")
        g("s_lshl_b32 s90, s4, 7"); g(f"s_add_u32 s90, s90, {WS_FC}")
        g(f"s_mul_i32 s91, s6, {6*32*K1}"); g("s_lshl_b32 s4, s7, 10"); g("s_add_u32 s91, s91, s4"); g(f"s_add_u32 s91, s91, {WS_WC}")
        g("s_mul_i32 s6, s6, 192"); g(f"s_mul_i32 s7, s7, {16*2752}"); g("s_add_u32 s6, s6, s7"); g("s_or_b32 s6, s6, s89")
        for i in range(3):
            g(f"v_add_u32 v{a}, {64*i}, v{L}"); g(f"v_mul_u32_u24 v{b}, 5462, v{a}"); g(f"v_lshrrev_b32 v{b}, 16, v{b}")
            g(f"v_mul_u32_u24 v{c}, 12, v{b}"); g(f"v_sub_u32 v{c}, v{a}, v{c}"); g(f"v_mul_u32_u24 v{b}, 2752, v{b}"); g(f"v_lshl_add_u32 v{b}, v{c}, 4, v{b}")
            g(f"v_add_u32 v{PV[i]}, s6, v{b}")
        g(f"v_bfe_u32 v{b}, v{L}, 4, 1"); g(f"v_lshlrev_b32 v{a}, 14, v{b}")
        g(f"v_lshrrev_b32 v{b}, 5, v{L}"); g(f"v_mul_u32_u24 v{b}, {8*192}, v{b}"); g(f"v_add_u32 v{a}, v{a}, v{b}")
        g(f"v_bfe_u32 v{b}, v{L}, 2, 2"); g(f"v_mul_u32_u24 v{b}, 192, v{b}"); g(f"v_add_u32 v{a}, v{a}, v{b}")
        self.pi8(a, b); g(f"s_and_b32 s92, {sW}, 1"); g("s_lshl_b32 s92, s92, 15"); g(f"v_add_u32 v{vPr}, s92, v{a}")
        g(f"s_cmp_lt_u32 {sW}, 2"); g("s_cselect_b32 s92, s92, 0x30000")
        g(f"v_or_b32 v{vPs}, s89, v{self.vL16}"); g(f"v_or_b32 v{self.vL8}, s89, v{self.vL8}")
        for i in range(3):
            g(f"s_mul_i32 s4, {sW}, {DPART[i][3]}"); g(f"s_add_u32 s4, s4, {DPART[i][2]}"); g(f"v_add_u32 v{vDw[i]}, s4, v{self.vL16}")
        g(f"s_lshl_b32 {sD0}, {sW}, 14"); g(f"s_and_b32 {sD14}, {sD0}, 0x4000")
        g(f"s_lshr_b32 s4, {sW}, 1"); g("s_mul_i32 s4, s4, 6"); g(f"s_and_b32 s7, {sW}, 1"); g("s_add_u32 s4, s4, s7"); g("s_add_u32 s4, s4, 4")
        g(f"s_lshl_b32 {sD1}, s4, 14")
        g(f"s_mul_i32 s88, {sW}, {DPART[0][3]}"); g(f"s_add_u32 s88, s88, {DPART[0][2]}")
        setup = g.end()
        qU = lambda u: Qd((0, 8, 16, 24, 0, 8)[u])
        def ujob(u):
            return [self.grp(*([f"s_add_u32 s3, {sCm}, {u*32*K1 + (j//4)*4096}"] + [f"buffer_load_dwordx4 {vr(qU(u)+4*j,4)}, v{vCs}, {SWS}, s3 offen offset:{(j%4)*K1} sc1"])) for j in range(8)]
        def uwrite(u):
            hi = (u // 2) % 2
            if hi: g(f"v_add_u32 v{a}, 0x10000, v{vCw}")
            for j in range(8): g(f"ds_write_b128 v{a if hi else vCw}, {vr(qU(u)+4*j,4)} offset:{(u%2)*32768 + j*K1}")
        dq = [None]*3 + list(range(32, 52, 2)) + list(range(16, 32, 2)) + [0]
        qD = [None if x is None else STG + 4*x for x in dq]
        def djob(i):
            sb, off = (sD0, i*6*16384) if i < 14 else ((sD14, 14*6*16384) if i == 14 else (sD1, (i-15)*12*16384))
            if i < 3:
                return [self.grp(f"s_add_u32 m0, s88, {i*2048 + h*K1}", f"s_add_u32 s3, {sb}, {off + h*8192}", f"buffer_load_dwordx4 v{vKs}, {SWD}, s3 offen lds", tag="wd0") for h in range(2)]
            return [self.grp(f"s_add_u32 s3, {sb}, {off + h*8192}", f"buffer_load_dwordx4 {vr(qD[i]+4*h,4)}, v{vKs}, {SWD}, s3 offen") for h in range(2)]
        def dwrite(part, sk):
            f, n, _, _ = DPART[part]
            for i in range(n):
                for h in range(2): g(f"ds_write_b128 v{vDw[part % 3]}, {vr(qD[f+i]+4*h,4)} offset:{i*2048 + h*K1}")
            g.add(self.sig(sk))
        def unit_ev(u):
            def fn():
                if u == 0:
                    g(f"s_lshr_b32 s4, {sW}, 1"); g("s_lshl_b32 s4, s4, 9"); g(f"s_and_b32 s6, {sW}, 1"); g("s_lshl_b32 s6, s6, 3"); g("s_add_u32 s4, s4, s6"); g(f"s_add_u32 s4, s4, {CST}")
                    g(f"v_and_b32 v{b}, 31, v{L}"); g(f"v_lshl_add_u32 v{vWs}, v{b}, 4, s4")
                    for i in range(4): g(f"v_mov_b32 v{ON+i}, 0x3f803f80")
                    self.lwait(K_T2, c); self.lwait(K_PP, c)
                for j in range(8): g(f"v_mfma_f32_32x32x16_bf16 {vr(CA,16)}, {vr(ON,4)}, {vr(qU(u)+4*j,4)}, {vr(CA,16) if j else 0}")
                if u < 2: uwrite(u)
                if u == 1: g.add(self.sig(K_C01)); self.stamp("C01", True)
                g(f"v_cvt_pk_bf16_f32 v{CA+3}, v{CA}, 0")
                g(f"v_lshlrev_b32 v{CA+1}, 16, v{CA+3}"); g(f"v_sub_f32 v{CA+1}, v{CA}, v{CA+1}")
                g(f"v_cvt_pk_bf16_f32 v{CA+2}, v{CA}, v{CA+1}")
                g(f"ds_write_b64 v{vWs}, {vr(CA+2,2)} offset:{u*K1}")
                if u % 2: g.add(self.sig(K_CS + u // 2))
                if u < 2: g.waitds()
            return fn
        LA = self.opt.get("h_la", 8); PZ = self.opt.get("pause", 1)
        events = {}
        def after(n, fn): events.setdefault(n, []).append(fn)
        def run(loads, pz_from=None):
            pend = False
            for n in range(len(loads) + 1):
                for fn in events.pop(n, []): fn(); pend = False
                if n == len(loads): break
                if PZ and pz_from is not None and n >= pz_from and (n - pz_from) % 2 == 0:
                    if not pend: g(f"ds_read_b32 v{vWw}, v{self.vAll} offset:{16*K_PZ}")
                    self.pz_check(vWw)
                    g.add(loads[n]); g(f"ds_read_b32 v{vWw}, v{self.vAll} offset:{16*K_PZ}"); pend = True
                else: g.add(loads[n])
            for n in sorted(events):
                for fn in events.pop(n): fn()
        stages = [["w0"], ["w1"], ["w3"], ["w5"], ["w7"], ["w9"], ["w11"], ["w13"], ["w15"]]
        def patch_proc():
            g.waitvm("pl")
            for u in range(6):
                for j2 in range(2): g(f"ds_read_b64_tr_b16 {vr(Qd(u)+2*j2,2)}, v{vPr} offset:{u*32 + j2*768}")
            for u in range(6):
                g(f"s_add_u32 s4, s91, {u*32*K1}"); g(f"buffer_store_dwordx4 {vr(Qd(u),4)}, v{vPs}, {SWS}, s4 offen sc1", tag="pst")
            g.add(self.sig(K_PP))
        def patch_flag():
            g(f"v_readfirstlane_b32 s70, v{self.vNON}"); g(f"v_readfirstlane_b32 s71, v{self.vNON+1}")
            self.nonce_slow("H", b)
            g.waitvm("pst"); self.flag("s90")
            self.stamp("PF", True)
        PAT = last[f"w{self.opt.get('p_after', 15)}"]; assert self.opt.get("p_after", 15) >= 10
        pl = [self.grp(f"s_add_u32 m0, s92, {m*16384 + i*K1}", "s_nop 0", f"buffer_load_dwordx4 v{PV[i]}, {(SWG, SWU)[m]}, 0 offen lds", tag="pl") for m in range(2) for i in range(3)]
        pl.append(self.grp(f"v_mov_b32 v{b}, 0", f"buffer_load_dwordx2 {vr(self.vNON,2)}, v{b}, {SDBG}, 0 offen sc1"))
        jobs = jobs[:PAT] + pl + jobs[PAT:]
        for t in last:
            if last[t] > PAT: last[t] += len(pl)
        after(self.opt.get("h_first", 9), lambda: (g.add(setup0), g("s_barrier")))
        chunks = []; cur = []
        for it in setup:
            if len(cur) >= 10 and not it.op.startswith("s_cselect") and not cur[-1].op.startswith("s_cmp"): chunks.append(cur); cur = []
            cur.append(it)
        chunks.append(cur)
        for i, ch in enumerate(chunks): after(self.opt.get("h_first", 9) + 1 + i, (lambda ch=ch: g.add(ch)))
        assert self.opt.get("h_first", 9) + 1 + len(chunks) < last["w6"] - 6, len(chunks)
        def stage_fn(k, tags):
            def fn():
                g.waitvm(*tags); g.add(self.sig(K_A + k))
                if k == 8: self.stamp("A8", True)
            return fn
        SL = self.opt.get("h_sl", 6)
        for k, tags in enumerate(stages):
            n = max(last[t] for t in tags) + SL
            if k == 8 and PAT == last["w15"]: n = min(n, PAT + 3)
            after(max(n, self.opt.get("h_first", 9)), stage_fn(k, tags))
        for P in range(3, 8):
            n = last[f"w{2*P}"] - 3
            after(n - 2, (lambda P=P: g.add(self.lchk_issue(K_F + P - 3, c))))
            after(n, (lambda P=P: g.add(self.lchk_check(K_F + P - 3, c))))
        after(PAT + len(pl) + self.opt.get("p_la", 4), patch_proc)
        after(PAT + len(pl) + self.opt.get("p_la", 4) + self.opt.get("p_fl", 4), patch_flag)
        gap = [x for i in range(12, 2, -1) for x in djob(i)]
        NG = self.opt.get("h_gap", 8)
        loads = jobs + gap[:NG]
        after(len(loads), lambda: (self.lwait(K_AE, c, sleep=1), self.stamp("AE", True)))
        loads += [self.grp(f"s_add_u32 m0, {sBm}, {i*K1}", f"s_add_u32 s3, {sBs}, {i*8192}", f"buffer_load_dwordx4 v{vKs}, {SWO}, s3 offen lds", tag="wb") for i in range(16)]
        fill2 = [x for i in range(3) for x in djob(i)] + gap[NG:]
        NF2 = self.opt.get("h_f2", 6)
        after(len(loads), lambda: g.add(self.apoll_issue(vPW, t2)))
        loads += fill2[:NF2]
        after(len(loads), lambda: (g.waitvm("wb"), g.add(self.sig(K_WB)), self.stamp("WB", True), g.add(self.apoll_check(vPW, t2)), self.stamp("PW", True)))
        assert PAT + len(pl) + self.opt.get("p_la", 4) + self.opt.get("p_fl", 4) <= len(loads) - NF2
        pz_from = len(loads)
        for u in range(6):
            loads += ujob(u); after(len(loads) + LA, unit_ev(u))
        loads += fill2[NF2:]
        run(loads, pz_from)
        g.waitvm("wd0"); g.add(self.sig(K_D1))
        self.stamp("n1", True)
        self.lwait(K_B4, c, sleep=1)
        uwrite(2); uwrite(3); g.add(self.sig(K_C23)); g.waitds()
        self.stamp("C23", True)
        run([x for i in range(13, 21) for x in djob(i)], 0)
        self.stamp("n2", True)
        self.lwait(K_P0, c, sleep=2)
        uwrite(4); uwrite(5); g.add(self.sig(K_C45)); g.waitds()
        self.stamp("C45", True)
        run(djob(21))
        self.lwait(K_U3, c, sleep=2); dwrite(1, K_D2)
        self.stamp("D2", True)
        self.lwait(K_U5, c, sleep=1); dwrite(2, K_D3)
        self.lwait(K_DS, c, own=True, sleep=1); dwrite(3, K_D4)
        self.stamp("D4", True)
        if self.stamps:
            g(f"s_lshl_b32 s3, s2, 2"); g(f"s_add_u32 s3, s3, {sW}"); g("s_lshl_b32 s3, s3, 8"); g(f"s_add_u32 s3, s3, {WS_STAMP + 0x40000}")
            g(f"v_lshlrev_b32 v{a}, 2, v{L}")
            g(f"buffer_store_dword v{self.vST}, v{a}, {SWS}, s3 offen")
        g("s_endpgm")
        self.V = saveV

    def consts(self, a, b):
        g, V, L = self.g, self.V, self.vL
        self.sO0, self.sO1, self.sF1 = self.s(), self.s(), self.s()
        g(f"s_lshl_b32 s4, {sCB}, 2"); g(f"s_add_u32 s4, s4, {sW}")
        g(f"s_lshl_b32 s6, {sRB}, 6"); g("s_add_u32 s6, s6, s4"); g(f"s_lshl_b32 {self.sO0}, s6, 10"); g(f"s_add_u32 {self.sO1}, {self.sO0}, {32*K1}")
        g(f"s_lshl_b32 s6, {sRB}, 5"); g("s_add_u32 s6, s6, s4"); g("s_lshl_b32 s6, s6, 7"); g(f"s_add_u32 {self.sF1}, s6, {WS_F1}")
        self.sOF = [[self.s(), self.s()], [self.s(), self.s()]]; self.sHF = [[self.s(), self.s()], [self.s(), self.s()]]
        g(f"s_lshr_b32 s4, {sW}, 1"); g("s_mul_i32 s4, s4, 6"); g(f"s_and_b32 s7, {sW}, 1"); g("s_add_u32 s4, s4, s7"); g("s_add_u32 s5, s4, 4")
        for rt in range(2):
            g(f"s_lshr_b32 s4, {sW}, 1"); g(f"s_xor_b32 s4, s4, {rt}"); g(f"s_lshl_b32 s6, {sRB}, 1"); g("s_add_u32 s4, s4, s6")
            g("s_lshl_b32 s6, s4, 5"); g(f"s_lshl_b32 s7, {sW}, 3"); g("s_add_u32 s6, s6, s7"); g(f"s_lshl_b32 {self.sOF[rt][0]}, s6, 10")
            g(f"s_add_u32 {self.sOF[rt][1]}, {self.sOF[rt][0]}, 4096")
            g(f"s_mul_i32 s6, s4, {HHP}"); g(f"s_add_u32 s6, s6, {WS_HH//K1}")
            g(f"s_add_u32 s7, s6, {sW}"); g(f"s_lshl_b32 {self.sHF[rt][0]}, s7, 10")
            g("s_add_u32 s7, s6, s5"); g(f"s_lshl_b32 {self.sHF[rt][1]}, s7, 10")
        self.sHs, self.sHt, self.sF2 = self.s(), self.s(), self.s()
        g(f"s_lshl_b32 s4, {sRB}, 1"); g(f"s_lshr_b32 s6, {sW}, 1"); g("s_add_u32 s4, s4, s6")
        g(f"s_lshl_b32 s6, {sCB}, 1"); g(f"s_and_b32 s7, {sW}, 1"); g("s_add_u32 s6, s6, s7")
        self.vRM = V(1)
        g(f"v_and_b32 v{a}, 31, v{L}"); g(f"v_lshlrev_b32 v{a}, 10, v{a}"); g(f"v_lshrrev_b32 v{b}, 5, v{L}"); g(f"v_lshl_add_u32 v{a}, v{b}, 4, v{a}")
        g("s_lshl_b32 s7, s4, 15"); g(f"v_add_u32 v{a}, s7, v{a}"); g("s_lshl_b32 s7, s6, 6"); g(f"v_add_u32 v{self.vRM}, s7, v{a}")
        g("s_lshl_b32 s4, s4, 4"); g("s_add_u32 s4, s4, s6")
        g("s_lshl_b32 s6, s4, 11"); g(f"s_add_u32 {self.sHs}, s6, {WS_H}")
        g("s_lshl_b32 s6, s4, 8"); g(f"s_add_u32 {self.sHt}, s6, {WS_HST}")
        g("s_lshl_b32 s6, s4, 7"); g(f"s_add_u32 {self.sF2}, s6, {WS_F2}")
        self.vKr = V(1)
        g(f"v_lshrrev_b32 v{a}, 5, v{L}"); g(f"v_lshlrev_b32 v{a}, 10, v{a}")
        g(f"v_bfe_u32 v{b}, v{L}, 2, 2"); g(f"v_lshl_add_u32 v{a}, v{b}, 7, v{a}")
        g(f"v_bfe_u32 v{b}, v{L}, 3, 1"); g(f"s_and_b32 s4, {sW}, 1"); g(f"v_xor_b32 v{b}, s4, v{b}"); g(f"v_lshl_add_u32 v{a}, v{b}, 6, v{a}")
        g(f"v_bfe_u32 v{b}, v{L}, 4, 1"); g(f"v_lshl_add_u32 v{a}, v{b}, 5, v{a}")
        self.pi8(a, b); g(f"v_mov_b32 v{self.vKr}, v{a}")
        self.sCh, self.sCt, self.sCo, self.sF3 = self.s(), self.s(), self.s(), self.s()
        g(f"s_lshl_b32 s4, {sR128}, 2"); g(f"s_add_u32 s4, s4, {sW}")
        g("s_lshl_b32 s6, s4, 15"); g(f"s_add_u32 {self.sCh}, s6, {WS_H}")
        g("s_lshl_b32 s6, s4, 12"); g(f"s_add_u32 {self.sCt}, s6, {WS_HST}")
        g(f"s_mul_i32 s6, s4, {HHP}"); g(f"s_mul_i32 s7, {sCGX}, 6"); g("s_add_u32 s6, s6, s7"); g("s_lshl_b32 s6, s6, 10"); g(f"s_add_u32 {self.sCo}, s6, {WS_HH}")
        g("s_lshl_b32 s6, s4, 4"); g(f"s_add_u32 s6, s6, {sCGX}"); g("s_lshl_b32 s6, s6, 7"); g(f"s_add_u32 {self.sF3}, s6, {WS_F3}")
        self.vP1, self.vP2, self.vP3, self.vP4 = V(1), V(1), V(1), V(1)
        g(f"s_lshl_b32 s4, {sRB}, 5"); g(f"s_lshl_b32 s6, {sW}, 3"); g("s_add_u32 s4, s4, s6"); g("s_lshl_b32 s4, s4, 7"); g(f"s_add_u32 s4, s4, {WS_F1}")
        g(f"v_and_b32 v{a}, 7, v{L}"); g(f"v_lshl_add_u32 v{self.vP1}, v{a}, 7, s4")
        g(f"s_lshl_b32 s4, {sR128}, 2"); g(f"s_add_u32 s4, s4, {sW}"); g("s_lshl_b32 s4, s4, 11"); g(f"s_add_u32 s4, s4, {WS_F2}")
        g(f"v_and_b32 v{a}, 15, v{L}"); g(f"v_lshl_add_u32 v{self.vP2}, v{a}, 7, s4")
        g(f"s_lshl_b32 s4, {sRB}, 12"); g(f"s_add_u32 s4, s4, {WS_F3}"); g(f"s_lshl_b32 s6, {sW}, 4"); g("s_add_u32 s6, s6, s4")
        g(f"v_min_u32 v{a}, 14, v{a}"); g(f"v_and_b32 v{b}, 16, v{L}"); g(f"v_or_b32 v{a}, v{a}, v{b}")
        g(f"v_lshl_add_u32 v{self.vP3}, v{a}, 7, s6")
        g(f"v_and_b32 v{a}, 7, v{L}"); g(f"v_min_u32 v{a}, 6, v{a}"); g(f"v_lshl_add_u32 v{a}, v{a}, 1, v{b}")
        g(f"s_lshr_b32 s6, {sW}, 1"); g("s_lshl_b32 s6, s6, 7"); g("s_add_u32 s4, s4, s6")
        g(f"s_and_b32 s6, {sW}, 1"); g("s_lshl_b32 s6, s6, 4"); g("s_add_u32 s4, s4, s6"); g("s_add_u32 s4, s4, 64")
        g(f"v_lshl_add_u32 v{self.vP4}, v{a}, 7, s4")

    def phaseA(self):
        g, V, L = self.g, self.V, self.vL
        self.vL8 = V(1); self.vL4 = V(1); self.vNON = V(2); self.vHP = V(8, 4); self.vJunk = V(1)
        a, b, c = V(1), V(1), V(1)
        if self.opt.get("prio", 1): g(f"s_setprio {self.opt.get('prio', 1)}")
        g("s_getpc_b64 s[6:7]"); g.raw("L_pc:")
        g(f"v_lshrrev_b32 v{a}, 4, v0"); g(f"v_lshl_add_u32 v{a}, s5, 4, v{a}"); g(f"v_lshlrev_b32 v{a}, 7, v{a}")
        g(f"v_min_u32 v{a}, L_codeend-L_pc-4, v{a}")
        g(f"global_load_dword v{self.vJunk}, v{a}, s[6:7]")
        g(f"v_lshlrev_b32 v{self.vL8}, 3, v{L}"); g(f"v_lshlrev_b32 v{self.vL4}, 2, v{L}")
        ONES = V(4, 4)
        for i in range(4): g(f"v_mov_b32 v{ONES+i}, 0x3f803f80")
        g(f"v_lshrrev_b32 v{a}, 3, v{L}"); g(f"v_and_b32 v{b}, 7, v{L}"); g(f"v_lshlrev_b32 v{a}, 11, v{a}"); g(f"v_lshl_add_u32 v{a}, v{b}, 4, v{a}")
        g(f"ds_write_b128 v{a}, {vr(ONES,4)}")
        Z4 = self.vHP
        for i in range(4): g(f"v_mov_b32 v{Z4+i}, 0")
        self.vZero = V(1); g(f"v_mov_b32 v{self.vZero}, 0")
        g(f"v_mov_b32 v{b}, 0"); g(f"v_add_u32 v{a}, {SYNC}, v{self.vL16}"); g(f"ds_write_b128 v{a}, {vr(Z4,4)}")
        g(f"s_or_b32 s3, s2, {sW}")
        g("s_waitcnt lgkmcnt(0)")
        if self.stamps: g(f"v_writelane_b32 v{self.vST}, s100, 0"); self.snames.append("start")
        self.srd(36, 64, 256)
        g("s_cmp_eq_u32 s3, 0")
        g.branch("s_cbranch_scc1 L_pubnonce", keep=True)
        g.label("L_pubdone", keep=True)
        g.begin()
        g.label("L_pubnonce", keep=True)
        g("s_or_b32 s100, s100, 1")
        g(f"v_mov_b32 v{self.vNON}, s100"); g(f"v_mov_b32 v{self.vNON+1}, s101")
        g("s_mov_b64 exec, 1")
        g(f"buffer_store_dwordx2 {vr(self.vNON,2)}, v{b}, {SDBG}, 0 offen sc1")
        g("s_mov_b64 exec, -1")
        g.branch("s_branch L_pubdone", keep=True)
        self.tail.append(g.end())
        self.srd(8, 48, 2048*512*2); self.srd(32, 62, 2048*512*2); self.srd(40, 66, WS_SIZE)
        g("s_barrier")
        for grp in self.cmap(): g.add(grp)
        vTch = V(1)
        g(f"s_cmp_eq_u32 {sW}, 0"); g("s_cselect_b64 s[6:7], s[52:53], s[60:61]"); g(f"s_cselect_b32 s4, 16, 43")
        g("s_mov_b32 s12, s6"); g("s_and_b32 s13, s7, 0xffff"); g("s_mov_b32 s15, 0x20000"); g("s_lshl_b32 s14, s4, 15")
        g("s_mul_i32 s6, s4, s2"); g(f"v_add_u32 v{a}, s6, v{L}"); g(f"v_lshlrev_b32 v{a}, 7, v{a}")
        g(f"s_cmp_lt_u32 {sW}, 2"); g("s_cselect_b32 s4, s4, 0")
        g(f"v_mov_b32 v{b}, 0x80000000"); g(f"v_cmp_gt_u32 vcc, s4, v{L}"); g(f"v_cndmask_b32 v{vTch}, v{b}, v{a}, vcc")
        sGrp = self.s()
        g(f"s_lshr_b32 {sGrp}, s2, 3"); g(f"s_and_b32 {sGrp}, {sGrp}, {self.opt.get('t_mask', 7)}")
        self.sync_consts(a)
        self.consts(a, b)
        g("s_mov_b32 s6, 0"); g("s_mov_b32 s7, 0x0000ffff")
        g(f"v_cndmask_b32 v{a}, v{self.vP3}, v{self.vP2}, s[6:7]")
        g("s_mov_b32 s7, 0xffff0000"); vFw = V(1); g(f"v_cndmask_b32 v{vFw}, v{a}, v{self.vP1}, s[6:7]")
        vXr = [V(1), V(1)]; vXr4 = [V(1), V(1)]; vSr = [V(1), V(1)]; vS0 = V(1); vWr = V(1)
        g(f"v_bfe_u32 v{a}, v{L}, 1, 3"); g(f"v_lshrrev_b32 v{b}, 4, v{L}"); g(f"v_xor_b32 v{a}, v{a}, v{b}"); g(f"v_lshlrev_b32 v{a}, 4, v{a}")
        g(f"v_and_b32 v{c}, 15, v{L}"); g(f"v_lshl_add_u32 v{vXr[0]}, v{c}, 7, v{a}"); g(f"v_xor_b32 v{vXr[1]}, 64, v{vXr[0]}")
        g(f"s_add_u32 s4, {sW}, 1"); g("s_lshl_b32 s4, s4, 14")
        for i in range(2):
            g(f"v_add_u32 v{vXr4[i]}, 0x10000, v{vXr[i]}"); g(f"v_add_u32 v{vSr[i]}, s4, v{vXr[i]}")
        g(f"s_and_b32 s4, {sW}, 1"); g("s_lshl_b32 s4, s4, 6"); g(f"v_xor_b32 v{vS0}, s4, v{vXr[0]}")
        g(f"s_lshr_b32 s4, {sW}, 1"); g("s_lshl_b32 s4, s4, 11"); g(f"v_add_u32 v{vS0}, s4, v{vS0}")
        g(f"v_bfe_u32 v{a}, v{L}, 3, 2"); g(f"v_xor_b32 v{a}, {sW}, v{a}"); g(f"v_lshlrev_b32 v{a}, 5, v{a}")
        g(f"v_mul_u32_u24 v{b}, 3072, v{b}"); g(f"v_bfe_u32 v{c}, v{L}, 2, 2"); g(f"v_lshl_add_u32 v{a}, v{c}, 7, v{a}")
        g(f"v_and_b32 v{c}, 3, v{L}"); g(f"v_lshl_add_u32 v{a}, v{c}, 3, v{a}"); g(f"v_add_u32 v{a}, {RING}, v{a}"); g(f"v_add_u32 v{vWr}, v{a}, v{b}")
        BC, BP, BP1, MK = V(4, 4), V(4, 4), V(4, 4), V(4, 4)
        vT1, vT2, vTo, vTp, vTq = V(1), V(1), V(1), V(1), V(1)
        g(f"v_and_b32 v{a}, 15, v{L}"); g(f"v_lshrrev_b32 v{b}, 4, v{L}")
        g(f"v_lshlrev_b32 v{vT1}, 2, v{a}"); g(f"v_add_u32 v{vT1}, {TAB}, v{vT1}")
        g(f"v_lshlrev_b32 v{vT2}, 4, v{b}"); g(f"v_add_u32 v{vT2}, {TAB}, v{vT2}")
        g(f"s_lshl_b32 s4, {sW}, 6"); g(f"v_add_u32 v{vTo}, s4, v{vT1}")
        g(f"s_lshl_b32 s4, {sW}, 7"); g(f"v_add_u32 v{vTp}, s4, v{vT1}"); g(f"v_add_u32 v{vTq}, s4, v{vT2}")
        g(f"v_lshlrev_b32 v{b}, 2, v{b}"); g(f"v_sub_u32 v{a}, v{a}, v{b}"); g(f"v_mov_b32 v{c}, {f32(-1e30)}")
        g(f"s_cmp_eq_u32 {sRB}, 0"); g("s_cselect_b64 s[58:59], 0, -1")
        for r in range(4):
            g(f"v_subrev_u32 v{b}, {r}, v{a}"); g(f"v_and_b32 v{b}, 0x80000001, v{b}")
            g(f"v_cmp_eq_u32 vcc, 0, v{b}"); g(f"v_cndmask_b32 v{BC+r}, v{c}, 0, vcc")
            g(f"v_cmp_eq_u32 vcc, 0x80000000, v{b}"); g(f"v_cndmask_b32 v{BP+r}, v{c}, 0, vcc")
            g(f"v_cndmask_b32 v{BP1+r}, v{c}, v{BP+r}, s[58:59]")
        for i, B in enumerate((BP, BC)):
            for h in range(2):
                g(f"v_ashrrev_i32 v{a}, 31, v{B+2*h}"); g(f"v_ashrrev_i32 v{b}, 31, v{B+2*h+1}")
                g(f"v_and_b32 v{a}, 0xffff, v{a}"); g(f"v_and_b32 v{b}, 0xffff0000, v{b}"); g(f"v_or_b32 v{a}, v{a}, v{b}"); g(f"v_not_b32 v{MK+2*i+h}, v{a}")
        for i, m in enumerate((0x22222222, 0x44444444, 0x88888888)): g(f"s_mov_b32 s{54+2*i}, {m:#x}"); g(f"s_mov_b32 s{55+2*i}, {m:#x}")
        g(f"s_mov_b32 s60, {f32(1/512)}"); g(f"s_mov_b32 s61, {f32(0.25*LOG2E)}")
        FB = [V(40, 4), V(40, 4)]
        XF = [[FB[i] + 4*t for t in range(5)] for i in range(2)]
        WF = [[FB[i] + 20 + 4*p for p in range(3)] for i in range(2)]
        SF = [[FB[i] + 32, FB[i] + 36] for i in range(2)]
        Q = [V(4, 4) for t in range(5)]; Kc = [V(4, 4) for t in range(5)]; Vc = [V(4, 4) for t in range(5)]
        G0, S0, GS, SS = V(4, 4), V(4, 4), V(4, 4), V(4, 4)
        blocks = []
        for q in range(4): blocks += [("own", 4*q + i) for i in range(4)] + [("t0", q)]
        def stat_blocks(s): return [(j, blocks[j]) for j in (2*(s-2), 2*(s-2)+1) if 0 <= j < 20] if s >= 2 else []
        def reads(s):
            g.begin(); bi = s & 1
            for p in range(3):
                for j2 in range(2): g(f"ds_read_b64_tr_b16 {vr(WF[bi][p]+2*j2,2)}, v{vWr} offset:{(s%6)*12288 + p*K1 + j2*512}")
                if p == 0:
                    for t in range(4): g(f"ds_read_b128 {vr(XF[bi][t],4)}, v{vXr[s&1]} offset:{t*16384 + (s>>1)*2048}")
                    g(f"ds_read_b128 {vr(XF[bi][4],4)}, v{vXr4[s&1]} offset:{(s>>1)*2048}")
            for j, (kind, x) in stat_blocks(s):
                if kind == "own": g(f"ds_read_b128 {vr(SF[bi][j&1],4)}, v{vSr[x&1]} offset:{(x>>1)*2048}")
                else: g(f"ds_read_b128 {vr(SF[bi][j&1],4)}, v{vS0} offset:{x*4096}")
            return g.end()
        def mfmas(s):
            g.begin(); bi = s & 1
            def mf(d, x, y, first): g(f"v_mfma_f32_16x16x32_bf16 {vr(d,4)}, {vr(x,4)}, {vr(y,4)}, {0 if first else vr(d,4)}")
            for t in range(5): mf(Q[t], WF[bi][0], XF[bi][t], s == 0)
            for t in range(5): mf(Kc[t], WF[bi][1], XF[bi][t], s == 0)
            for t in range(5): mf(Vc[t], XF[bi][t], WF[bi][2], s == 0)
            for j, (kind, x) in stat_blocks(s):
                f = SF[bi][j&1]; G, S = (GS, SS) if kind == "own" else (G0, S0)
                mf(G, f, f, x == 0); mf(S, ONES, f, x == 0)
            return g.end()
        def diag(dst, src):
            g(f"v_cndmask_b32 v{dst}, v{src}, v{src+1}, s[54:55]"); g(f"v_cndmask_b32 v{dst}, v{dst}, v{src+2}, s[56:57]")
            g(f"v_cndmask_b32 v{dst}, v{dst}, v{src+3}, s[58:59]")
        def meanrstd(S, Qq, M, R):
            g(f"v_mul_f32 v{M}, s60, v{S}"); g(f"v_mul_f32 v{Qq}, s60, v{Qq}"); g(f"v_fma_f32 v{Qq}, -v{M}, v{M}, v{Qq}")
            g(f"v_max_f32 v{Qq}, 0, v{Qq}"); g(f"v_add_f32 v{Qq}, {f32(1e-5)}, v{Qq}"); g(f"v_rsq_f32 v{R}, v{Qq}")
        g.begin(); diag(a, GS); diag(b, G0); meanrstd(SS, a, SS+1, SS+2); fin1 = singles(g.end())
        fin1.append(self.grp("s_mov_b32 exec_lo, 0x00f0000f", "s_mov_b32 exec_hi, 0xf0000f00",
                             f"ds_write_b32 v{vTo}, v{SS+1} offset:64", f"ds_write_b32 v{vTo}, v{SS+2} offset:{512+64}",
                             f"ds_write_b32 v{vTp}, v{S0} offset:1024", f"ds_write_b32 v{vTp}, v{b} offset:{1024+64}", "s_mov_b64 exec, -1") + self.sig(K_TB))
        M1 = V(6); R1 = V(6)
        PT = SF[1][0]
        M2 = [FB[0] + 4*t for t in range(5)]; R2 = [FB[0] + 20 + 4*t for t in range(5)]
        g.begin()
        for i in range(4):
            g(f"ds_read_b32 v{PT+i}, v{vT1} offset:{1024+128*i}"); g(f"ds_read_b32 v{PT+4+i}, v{vT1} offset:{1024+128*i+64}")
        for t in range(1, 5):
            g(f"ds_read_b32 v{M1+t}, v{vT1} offset:{t*64}"); g(f"ds_read_b32 v{R1+t}, v{vT1} offset:{512+t*64}")
        for x in (PT, PT+4):
            g(f"v_add_f32 v{x}, v{x}, v{x+1}"); g(f"v_add_f32 v{x+2}, v{x+2}, v{x+3}"); g(f"v_add_f32 v{x}, v{x}, v{x+2}")
        meanrstd(PT, PT+4, M1, R1)
        g(f"ds_write_b32 v{vTp}, v{M1} offset:2048"); g(f"ds_write_b32 v{vTp}, v{R1} offset:{2048+64}")
        fin2 = singles(g.end())
        g.begin()
        for t in range(1, 5):
            g(f"ds_read_b128 {vr(M2[t],4)}, v{vT2} offset:{t*64}"); g(f"ds_read_b128 {vr(R2[t],4)}, v{vT2} offset:{512+t*64}")
        g(f"ds_read_b128 {vr(M2[0],4)}, v{vTq} offset:2048"); g(f"ds_read_b128 {vr(R2[0],4)}, v{vTq} offset:{2048+64}")
        fin3 = singles(g.end()) + [self.sig(K_T2)]
        vN = V(2); XR = self.vHP
        tk = V(1)
        self.stamp("pre")
        self.lwait(K_A, tk)
        self.stamp("bar0")
        g.add(reads(0)); g.add(self.lchk_issue(K_A + 1, tk))
        T0 = self.opt.get("t_start", 2)
        stg = {0: 1, 1: 2, 3: 3, 5: 4, 7: 5, 9: 6, 11: 7, 13: 8}
        for s in range(16):
            g.comment(f"A step {s}")
            if self.opt.get("ast", 0): self.stamp(f"s{s}")
            mf = mfmas(s); W = Weave(mf, 2); n = len(mf)
            if self.opt.get("nomf", 0): mf2 = [Ins("s_nop 0") for _ in mf]; W = Weave(mf2, 2)
            if s in stg: W.at(0, self.lchk_check(K_A + stg[s], tk))
            if s < 15:
                rs = singles(reads(s + 1))
                if s % 2 == 0 and s <= 8: rs[-1] = rs[-1] + self.sig(K_F + s // 2)
                if s == 14: rs[-1] = rs[-1] + self.sig(K_AE)
                W.even(rs, 1, n - 3)
            if s + 1 in stg: W.at(n - 4, self.lchk_issue(K_A + stg[s + 1], tk))
            if self.opt.get("touch", 1) and T0 <= s < T0 + 8:
                Ls = g.newlabel("L_t")
                g.begin(); g(f"s_cmp_lg_u32 {sGrp}, {s - T0}"); g(f"s_cbranch_scc1 {Ls}")
                g.raw(f"    buffer_load_dword v{self.vJunk}, v{vTch}, s[12:15], 0 offen"); g.raw(Ls + ":")
                W.at(n - 3, g.end())
            if s == 1: W.at(n - 3, self.grp(f"buffer_load_dword v{c}, v{vFw}, {SWS}, 0 offen sc1"))
            if s == 11: W.at(n - 3, self.grp(f"v_mov_b32 v{vN}, 0", f"buffer_load_dwordx2 {vr(vN,2)}, v{vN}, {SDBG}, 0 offen sc1"))
            if s == 13:
                W.at(n - 3, self.grp(f"buffer_load_dwordx4 {vr(XR,4)}, v{self.vRM}, {SX}, 0 offen"))
                W.at(n - 2, self.grp(f"buffer_load_dwordx4 {vr(XR+4,4)}, v{self.vRM}, {SX}, 0 offen offset:32"))
            if s == 12:
                left, _ = W.fill(fin1, 1)
                for grp in left: W.at(n - 1, grp)
            if s == 13:
                W.at(2, self.lchk_issue(K_TB, a)); W.at(6, self.lchk_check(K_TB, a))
            if s in (13, 14): fin2, _ = W.fill(fin2, 7 if s == 13 else 0, cap=3)
            if s == 15:
                left, _ = W.fill(fin2 + fin3, 0)
                for grp in left: W.at(n - 1, grp)
            g.add(W.out())
        self.stamp("loop")
        for r in [vWr, vS0, vT1, vT2, vTo, vTp, vTq, vTch, vFw, tk] + vXr + vXr4 + vSr: V.release(r)
        for r in (G0, S0, GS, SS): V.release(r, 4)
        V.release(FB[1], 40)
        CSQ, CSK = V(4, 4), V(4, 4); CSV = V(2)
        for r in range(4): g(f"v_mov_b32_dpp v{CSQ+r}, v{Q[0]+r} row_newbcast:0 row_mask:0xf bank_mask:0xf")
        for r in range(4): g(f"v_mov_b32_dpp v{CSK+r}, v{Kc[0]+r} row_newbcast:0 row_mask:0xf bank_mask:0xf")
        QB = [None] + [V(2) for t in range(4)]; KB = [V(2) for t in range(5)]; VB = V(10, 2)
        bc = lambda reg: (vr(reg & ~1, 2), reg & 1)
        for t in range(5):
            mp, ms = bc(M1 + t); rp, rs = bc(R1 + t)
            for X, CS in ((Q[t], CSQ), (Kc[t], CSK)):
                if X == Q[0]: continue
                for h in range(2):
                    g(f"v_pk_fma_f32 {vr(X+2*h,2)}, {mp}, {vr(CS+2*h,2)}, {vr(X+2*h,2)} op_sel:[{ms},0,0] op_sel_hi:[{ms},1,1] neg_lo:[1,0,0] neg_hi:[1,0,0]")
            for h in range(2): g(f"v_pk_mul_f32 {vr(Kc[t]+2*h,2)}, {rp}, {vr(Kc[t]+2*h,2)} op_sel:[{rs},0] op_sel_hi:[{rs},1]")
            if t == 0: g(f"v_mov_b32 v{CSV}, v{Vc[0]}"); g(f"v_mov_b32 v{CSV+1}, v{Vc[0]}")
            if t == 1: g(f"v_permlane16_swap_b32 v{CSV}, v{CSV+1}")
            if t == 2: g(f"v_mov_b32 v{CSV+1}, v{CSV}")
            if t == 3: g(f"v_permlane32_swap_b32 v{CSV}, v{CSV+1}")
            if t:
                for h in range(2): g(f"v_cvt_pk_bf16_f32 v{QB[t]+h}, v{Q[t]+2*h}, v{Q[t]+2*h+1}")
            for h in range(2): g(f"v_cvt_pk_bf16_f32 v{KB[t]+h}, v{Kc[t]+2*h}, v{Kc[t]+2*h+1}")
        for t in range(5):
            for h in range(2):
                g(f"v_pk_fma_f32 {vr(Vc[t]+2*h,2)}, {vr(M2[t]+2*h,2)}, {vr(CSV,2)}, {vr(Vc[t]+2*h,2)} op_sel_hi:[1,0,1] neg_lo:[1,0,0] neg_hi:[1,0,0]")
            for h in range(2): g(f"v_pk_mul_f32 {vr(Vc[t]+2*h,2)}, {vr(R2[t]+2*h,2)}, {vr(Vc[t]+2*h,2)}")
        V.release(FB[0], 40)
        R4 = range(1, 5)
        SP = {t: Q[t] for t in R4}; SC = {t: Kc[t] for t in R4}
        AQ = {t: V(1) for t in R4}; U = {t: V(2) for t in R4}; MX = {t: V(1) for t in R4}; TX = {t: V(1) for t in R4}
        cv = [f"v_cvt_pk_bf16_f32 v{VB+2*t+h}, v{Vc[t]+2*h}, v{Vc[t]+2*h+1}" for t in range(5) for h in range(2)]
        cv += [f"v_mul_f32 v{AQ[t]}, s61, v{R1+t}" for t in R4] + [f"v_readfirstlane_b32 s70, v{vN}", f"v_readfirstlane_b32 s71, v{vN+1}"]
        for t in R4:
            g(f"v_mfma_f32_16x16x16_bf16 {vr(SP[t],4)}, {vr(KB[t-1],2)}, {vr(QB[t],2)}, {vr(BP1 if t == 1 else BP,4)}")
            g(cv.pop(0)); g(cv.pop(0))
            g(f"v_mfma_f32_16x16x16_bf16 {vr(SC[t],4)}, {vr(KB[t],2)}, {vr(QB[t],2)}, {vr(BC,4)}")
            g(cv.pop(0)); g(cv.pop(0))
        for t in R4:
            for h in range(2): g(f"v_max3_f32 v{U[t]+h}, v{SP[t]+2*h}, v{SP[t]+2*h+1}, v{SC[t]+2*h}")
        for t in R4:
            for h in range(2): g(f"v_max_f32 v{U[t]+h}, v{U[t]+h}, v{SC[t]+2*h+1}")
        for t in R4: g(f"v_max_f32 v{MX[t]}, v{U[t]}, v{U[t]+1}")
        for t in R4: g(f"v_max_f32 v{TX[t]}, v{U[t]}, v{U[t]+1}")
        for t in R4: g(f"v_permlane16_swap_b32 v{MX[t]}, v{TX[t]}")
        for t in R4: g(f"v_max_f32 v{MX[t]}, v{MX[t]}, v{TX[t]}")
        for t in R4: g(f"v_mov_b32 v{TX[t]}, v{MX[t]}")
        for t in R4: g(f"v_permlane32_swap_b32 v{MX[t]}, v{TX[t]}")
        for t in R4: g(f"v_max_f32 v{MX[t]}, v{MX[t]}, v{TX[t]}")
        for t in R4:
            for h in range(2): g(f"v_sub_f32 v{U[t]+h}, v{U[t]+h}, v{MX[t]}")
        for t in R4:
            for h in range(2): g(f"v_mul_f32 v{U[t]+h}, v{U[t]+h}, v{AQ[t]}")
        for t in R4:
            for h in range(2): g(f"v_exp_f32 v{U[t]+h}, v{U[t]+h}")
        PB = {t: V(4, 4) for t in R4}
        for t in R4:
            for h in range(2): g(f"v_cvt_pk_bf16_f32 v{U[t]+h}, v{U[t]+h}, v{U[t]+h}")
        for t in R4:
            for i in range(4): g(f"v_and_b32 v{PB[t]+i}, v{MK+i}, v{U[t]+(i&1)}")
            if t > 1:
                g(f"v_mfma_f32_16x16x32_bf16 {vr(SP[t-1],4)}, {vr(ONES,4)}, {vr(PB[t-1],4)}, 0")
                g(f"v_mfma_f32_16x16x32_bf16 {vr(SC[t-1],4)}, {vr(VB+2*(t-2),4)}, {vr(PB[t-1],4)}, 0")
        g(f"v_mov_b32 v{self.vNON}, s70"); g(f"v_mov_b32 v{self.vNON+1}, s71")
        g(f"v_mfma_f32_16x16x32_bf16 {vr(SP[4],4)}, {vr(ONES,4)}, {vr(PB[4],4)}, 0")
        g(f"v_mfma_f32_16x16x32_bf16 {vr(SC[4],4)}, {vr(VB+6,4)}, {vr(PB[4],4)}, 0")
        OB = [PB[1], PB[3]]
        for pr in range(2):
            for t in (1 + 2*pr, 2 + 2*pr): g(f"v_rcp_f32 v{MX[t]}, v{SP[t]}")
            for t in (1 + 2*pr, 2 + 2*pr):
                for r in range(4): g(f"v_mul_f32 v{SC[t]+r}, v{MX[t]}, v{SC[t]+r}")
            for i, t in enumerate((1 + 2*pr, 2 + 2*pr)):
                for h in range(2): g(f"v_cvt_pk_bf16_f32 v{OB[pr]+2*i+h}, v{SC[t]+2*h}, v{SC[t]+2*h+1}")
            for h in range(2): g(f"v_permlane16_swap_b32 v{OB[pr]+h}, v{OB[pr]+2+h}")
            g(f"buffer_store_dwordx4 {vr(OB[pr],4)}, v{self.vL16}, {SWS}, {self.sO1 if pr else self.sO0} offen sc1", tag="ost")
        self.nonce_slow("C", a)
        self.stamp("Aepi")
        for t in range(5):
            V.release(Q[t], 4); V.release(Kc[t], 4); V.release(Vc[t], 4); V.release(KB[t], 2)
        for t in R4:
            V.release(QB[t], 2); V.release(MX[t]); V.release(TX[t]); V.release(AQ[t]); V.release(U[t], 2); V.release(PB[t], 4)
        V.release(M1, 6); V.release(R1, 6); V.release(VB, 10); V.release(CSV, 2); V.release(vN, 2)
        for r in (CSQ, CSK, BC, BP, BP1, MK, ONES): V.release(r, 4)
        V.release(a); V.release(b); V.release(c); V.release(0); V.release(self.vJunk)

    def red_consts(self):
        g, V = self.g, self.V
        self.vRw = [V(1), V(1), V(1)]; self.vRr = V(1)
        for i in (1, 2, 3):
            g(f"s_xor_b32 s4, {sW}, {i}"); g("s_lshl_b32 s4, s4, 14"); g(f"s_add_u32 s4, s4, {64*K1 + (i-1)*4096}")
            g(f"v_add_u32 v{self.vRw[i-1]}, s4, v{self.vL16}")
        g(f"s_lshl_b32 s4, {sW}, 14"); g(f"s_add_u32 s4, s4, {64*K1}"); g(f"v_add_u32 v{self.vRr}, s4, v{self.vL16}")
    def red_free(self):
        for x in self.vRw + [self.vRr]: self.V.release(x)
    def red_write(self, ACC, a):
        return [self.grp(f"ds_write_b128 v{self.vRw[a-1]}, {vr(ACC[a]+4*j,4)} offset:{j*K1}") for j in range(4)]
    def red_add(self, ACC, T):
        g = self.g
        for i in range(12): g(f"ds_read_b128 {vr(T+4*i,4)}, v{self.vRr} offset:{i*K1}")
        return [f"v_pk_add_f32 {vr(ACC[0]+2*j,2)}, {vr(ACC[0]+2*j,2)}, {vr(T+16*a+2*j,2)}" for a in range(3) for j in range(8)]

    def phaseB(self):
        g, V = self.g, self.V
        XR = self.vHP
        WB = V(64, 4); OF = V(64, 4); ACC = [V(16, 4) for _ in range(4)]; rd = [V(1), V(1)]; t2 = V(2); t1 = V(1)
        self.red_consts()
        g(f"v_add_u32 v{rd[0]}, s4, v{self.vKr}"); g(f"v_xor_b32 v{rd[1]}, 64, v{rd[0]}")
        for j in range(8):
            g(f"v_lshlrev_b32 v{ACC[0]+2*j}, 16, v{XR+j}"); g(f"v_and_b32 v{ACC[0]+2*j+1}, 0xffff0000, v{XR+j}")
        g.waitvm("ost"); self.flag(self.sF1)
        PZ = self.opt.get("pause", 1)
        if PZ == 2: g.add(self.pause(1))
        self.stamp("F1")
        self.lwait(K_WB, t1, own=True)
        for ks in range(8):
            for ct in range(2):
                for j2 in range(2): g(f"ds_read_b64_tr_b16 {vr(WB+(ks*2+ct)*4+2*j2,2)}, v{rd[ct]} offset:{ks*2048+j2*512}")
        g.add(self.sig(K_B2))
        self.stamp("Bpre")
        self.poll(self.vP1, t2)
        if PZ == 1: g.add(self.pause(1))
        self.stamp("P1")
        lo = [(ks, rt) for rt in (1, 0) for ks in range(8)]
        lds = [self.grp(f"buffer_load_dwordx4 {vr(OF+(ks*2+rt)*4,4)}, v{self.vL16}, {SWS}, {self.sOF[rt][ks//4]} offen offset:{(ks%4)*K1} sc1") for ks, rt in lo]
        NL0 = self.opt.get("b_l0", 8)
        for grp in lds[:NL0]: g.add(grp)
        g.begin()
        for ks, rt in lo:
            for ct in (1, 0):
                a = 2*rt + ct
                g(f"v_mfma_f32_32x32x16_bf16 {vr(ACC[a],16)}, {vr(WB+(ks*2+ct)*4,4)}, {vr(OF+(ks*2+rt)*4,4)}, {vr(ACC[a],16) if (ks or a == 0) else 0}")
        mf = g.end(); W = Weave(mf, 5)
        for i, grp in enumerate(lds[NL0:]): W.at(2*i, grp)
        if PZ: W.at(2*(len(lds) - NL0), self.pause(0))
        W.at(12, self.lchk_issue(K_B2, t1)); W.at(17, self.lchk_check(K_B2, t1))
        W.even(self.red_write(ACC, 3) + self.red_write(ACC, 2), 19, 31)
        g.add(W.out())
        self.stamp("Bmf")
        for grp in self.red_write(ACC, 1): g.add(grp)
        g.add(self.sig(K_B3))
        self.lwait(K_B3, t1)
        adds = self.red_add(ACC, WB)
        g.add(self.sig(K_B4))
        for l in adds: g(l)
        H = ACC[0]
        for j in range(8): g(f"v_cvt_pk_bf16_f32 v{self.vHP+j}, v{H+2*j}, v{H+2*j+1}")
        g(f"buffer_store_dwordx4 {vr(self.vHP,4)}, v{self.vL16}, {SWS}, {self.sHs} offen sc1", tag="hst")
        g(f"buffer_store_dwordx4 {vr(self.vHP+4,4)}, v{self.vL16}, {SWS}, {self.sHs} offen offset:1024 sc1", tag="hst")
        S2, Q2 = ACC[1], ACC[1] + 2
        g(f"v_pk_add_f32 {vr(S2,2)}, {vr(H,2)}, {vr(H+2,2)}"); g(f"v_pk_mul_f32 {vr(Q2,2)}, {vr(H,2)}, {vr(H,2)}")
        g(f"v_pk_fma_f32 {vr(Q2,2)}, {vr(H+2,2)}, {vr(H+2,2)}, {vr(Q2,2)}")
        for j in range(2, 8):
            g(f"v_pk_add_f32 {vr(S2,2)}, {vr(S2,2)}, {vr(H+2*j,2)}")
            g(f"v_pk_fma_f32 {vr(Q2,2)}, {vr(H+2*j,2)}, {vr(H+2*j,2)}, {vr(Q2,2)}")
        g(f"v_add_f32 v{S2}, v{S2}, v{S2+1}"); g(f"v_add_f32 v{Q2}, v{Q2}, v{Q2+1}")
        g(f"v_permlane32_swap_b32 v{S2}, v{Q2}")
        g(f"v_add_f32 v{S2}, v{S2}, v{Q2}")
        g(f"buffer_store_dword v{S2}, v{self.vL4}, {SWS}, {self.sHt} offen sc1", tag="hst")
        self.stamp("Bst")
        V.release(WB, 64); V.release(OF, 64); V.release(t2, 2); V.release(t1); V.release(self.vP1)
        for x in ACC: V.release(x, 16)
        for x in rd: V.release(x)
        self.red_free()

    def phaseC(self):
        g, V = self.g, self.V
        HF = V(128, 4); ACC = [V(16, 4) for _ in range(4)]; ST = ACC[2]
        NF = self.opt.get("c_nf", 5); FR = [V(4, 4) for _ in range(NF)]
        MF = V(4, 4); T = V(8, 4); t2 = V(2); AA = V(2); VV, t1, vHi, vCt = V(1), V(1), V(1), V(1)
        A0, A1 = AA, AA + 1
        g(f"v_add_u32 v{vHi}, 0x10000, v{self.vL16}"); g(f"v_add_u32 v{vCt}, {CST}, v{self.vL16}")
        g(f"s_add_u32 s54, {self.sCo}, 4096")
        g.waitvm("hst"); self.flag(self.sF2)
        PZ = self.opt.get("pause", 1)
        self.stamp("F2")
        g(f"s_cmp_eq_u32 {sCGX}, 15")
        g.branch("s_cbranch_scc1 L_skipC", keep=True)
        g.begin(); g.label("L_skipC", keep=True)
        for kw, k in ((K_C01, K_P0), (K_C23, K_U3), (K_C45, K_U5)): self.lwait(kw, t1, sleep=2); g.add(self.sig(k))
        g.branch("s_branch L_cdone"); self.tail.append(g.end())
        self.lwait(K_C01, t1, sleep=1)
        if PZ == 2: g.add(self.pause(1))
        self.stamp("C01")
        seq = [(2*p + e, ks) for p in range(3) for ks in range(33) for e in range(2)]
        idx = {x: i for i, x in enumerate(seq)}
        RA = NF - 1
        def rd(i):
            u, ks = seq[i]; g.begin()
            if ks < 32: g(f"ds_read_b128 {vr(FR[i % NF],4)}, v{vHi if (u//2) % 2 else self.vL16} offset:{(u%2)*32768 + ks*K1}")
            else: g(f"ds_read_b128 {vr(FR[i % NF],4)}, v{vCt} offset:{u*K1}")
            if ks == 31 and u % 2: g.add(self.sig((K_P0, K_U3, K_U5)[u // 2]))
            return g.end()
        for i in range(RA): g.add(rd(i))
        self.poll(self.vP2, t2)
        if PZ == 1: g.add(self.pause(1))
        self.stamp("P2")
        hl = []
        for ks in range(32):
            l = [f"s_add_u32 {self.sCh}, {self.sCh}, 4096"] if (ks % 4 == 0 and ks) else []
            l.append(f"buffer_load_dwordx4 {vr(HF+4*ks,4)}, v{self.vL16}, {SWS}, {self.sCh} offen offset:{(ks%4)*K1} sc1")
            hl.append(self.grp(*l))
        sl = [self.grp(f"buffer_load_dword v{ST+i}, v{self.vL4}, {SWS}, {self.sCt} offen offset:{i*256} sc1") for i in range(16)]
        NH0 = self.opt.get("c_h0", 8)
        for grp in hl[:NH0]: g.add(grp)
        g.begin()
        for st in (8, 4, 2, 1):
            for i in range(st): g(f"v_add_f32 v{ST+i}, v{ST+i}, v{ST+i+st}")
        g(f"v_mov_b32 v{ST+1}, v{ST}")
        g(f"v_permlane32_swap_b32 v{ST}, v{ST+1}")
        g(f"v_mul_f32 v{ST}, s60, v{ST}"); g(f"v_mul_f32 v{ST+1}, s60, v{ST+1}")
        g(f"v_fma_f32 v{ST+1}, -v{ST}, v{ST}, v{ST+1}"); g(f"v_max_f32 v{ST+1}, 0, v{ST+1}")
        g(f"v_add_f32 v{VV}, {f32(1e-5)}, v{ST+1}")
        g(f"v_rsq_f32 v{ST+2}, v{VV}")
        c0 = -2.0 * 0.7978845608028654 * LOG2E
        g(f"v_cvt_pk_bf16_f32 v{MF}, -v{ST}, -v{ST}")
        g(f"v_mul_f32 v{A0}, {f32(c0)}, v{ST+2}"); g(f"v_mul_f32 v{ST+3}, v{ST+2}, v{ST+2}")
        g(f"v_mul_f32 v{A1}, {f32(0.044715)}, v{A0}"); g(f"v_mul_f32 v{A1}, v{ST+3}, v{A1}")
        g(f"v_and_b32 v{ST+4}, 0xffff0000, v{MF}"); g(f"v_sub_f32 v{ST+4}, -v{ST}, v{ST+4}")
        g(f"v_cvt_pk_bf16_f32 v{MF+1}, v{ST+4}, 0")
        g(f"v_mov_b32 v{MF+2}, v{MF}"); g(f"v_mov_b32 v{MF+3}, v{MF+1}")
        stats = singles(g.end())
        def store(u, G): g(f"buffer_store_dwordx4 {vr(G,4)}, v{self.vL16}, {SWS}, {self.sCo if u < 4 else 's54'} offen offset:{(u%4)*K1} sc1", tag=f"hh{u}")
        def epi(u):
            g.begin(); G = ACC[u % 4]; U = G + 8
            for i in range(8): g(f"v_mul_f32 v{T+i}, v{G+i}, v{G+i}")
            for i in range(8): g(f"v_fma_f32 v{T+i}, v{T+i}, v{A1}, v{A0}")
            for i in range(8): g(f"v_mul_f32 v{T+i}, v{G+i}, v{T+i}")
            for i in range(8):
                g(f"v_exp_f32 v{T+i}, v{T+i}"); g(f"v_mul_f32 v{U+i}, v{G+i}, v{U+i}")
            for i in range(8): g(f"v_fma_f32 v{T+i}, v{T+i}, v{VV}, v{VV}")
            for i in range(8):
                g(f"v_rcp_f32 v{T+i}, v{T+i}")
                if i: g(f"v_mul_f32 v{U+i-1}, v{U+i-1}, v{T+i-1}")
            g(f"v_mul_f32 v{U+7}, v{U+7}, v{T+7}")
            for i in range(4): g(f"v_cvt_pk_bf16_f32 v{G+i}, v{U+2*i}, v{U+2*i+1}")
            store(u, G)
            return singles(g.end())
        def epi_pk(u, T):
            G = ACC[u % 4]; U = G + 8; P = lambda x, i: vr(x + 2*i, 2)
            vv = (vr(VV & ~1, 2), VV & 1)
            for i in range(4): g(f"v_pk_mul_f32 {P(T,i)}, {P(G,i)}, {P(G,i)}")
            for i in range(4): g(f"v_pk_fma_f32 {P(T,i)}, {P(T,i)}, {vr(AA,2)}, {vr(AA,2)} op_sel:[0,1,0] op_sel_hi:[1,1,0]")
            for i in range(4): g(f"v_pk_mul_f32 {P(T,i)}, {P(G,i)}, {P(T,i)}")
            for i in range(8): g(f"v_exp_f32 v{T+i}, v{T+i}")
            for i in range(4): g(f"v_pk_mul_f32 {P(U,i)}, {P(G,i)}, {P(U,i)}")
            for i in range(4): g(f"v_pk_fma_f32 {P(T,i)}, {P(T,i)}, {vv[0]}, {vv[0]} op_sel:[0,{vv[1]},{vv[1]}] op_sel_hi:[1,{vv[1]},{vv[1]}]")
            for i in range(8): g(f"v_rcp_f32 v{T+i}, v{T+i}")
            for i in range(4): g(f"v_pk_mul_f32 {P(U,i)}, {P(U,i)}, {P(T,i)}")
            for i in range(4): g(f"v_cvt_pk_bf16_f32 v{G+i}, v{U+2*i}, v{U+2*i+1}")
            store(u, G)
        def flg(u):
            g.begin(); g.waitvm(f"hh{u}"); self.flag(self.sF3, off=16*u, full=False); return g.end()
        g.begin()
        for i, (u, ks) in enumerate(seq):
            acc = ACC[u % 4]
            g(f"v_mfma_f32_32x32x16_bf16 {vr(acc,16)}, {vr(FR[i % NF],4)}, {vr(HF+4*ks,4) if ks < 32 else vr(MF,4)}, {vr(acc,16) if ks else 0}")
        mf = g.end(); W = Weave(mf, self.opt.get("c_cap", 5))
        for key, k in (((2, 0), K_C23), ((4, 0), K_C45), ((0, 30), K_CS), ((2, 30), K_CS + 1), ((4, 30), K_CS + 2)):
            at = idx[key] - RA; tk = t1 if key[1] == 0 else t2
            W.at(at - 5, self.lchk_issue(k, tk)); W.at(at - 1, self.lchk_check(k, tk))
        for i in range(RA, len(seq)): W.at(i - RA, rd(i))
        for i in range(0, len(seq) - 1, 2):
            g.begin(); g.needs(vr(FR[(i + 1) % NF], 4)); W.before(i, g.end())
        pos = 0
        for grp in hl[NH0:]: W.at(pos, grp); pos += 2
        for k, grp in enumerate(sl): W.at(1 + 2*k, grp)
        if PZ: W.at(self.opt.get("c_unp", pos), self.pause(0))
        left, _ = W.fill(stats, 46, 63); assert not left
        if self.stamps and self.opt.get("cst", 0):
            for key in ((0, 16), (2, 0), (2, 16), (4, 0), (4, 16)):
                g.begin(); self.stamp("c%d_%d" % key); W.before(idx[key], g.end())
        self.lateflags = []; FL = self.opt.get("c_fl", 36)
        for p in range(2):
            pos = idx[(2*p + 2, 1)]; limit = idx[(2*p + 2, 32)]
            for u in (2*p, 2*p + 1):
                rest, pos = W.fill(epi(u), pos, limit, cap=self.opt.get("e_cap", 5)); assert not rest, (u, len(rest))
                if pos + FL < len(mf): W.at(pos + FL, flg(u))
                else: self.lateflags.append(u)
        g.add(W.out())
        self.stamp("Cmf")
        epi_pk(4, T)
        for u in self.lateflags: g.add(flg(u))
        epi_pk(5, T)
        self.stamp("Cepi")
        self.cflags = [flg(4), flg(5)]
        V.release(t2, 2); V.release(HF, 128); V.release(T, 8); V.release(AA, 2)
        for x in ACC: V.release(x, 16)
        for x in FR + [MF]: V.release(x, 4)
        for x in [VV, t1, vCt, vHi, self.vP2]: V.release(x)

    def phaseD(self):
        g, V = self.g, self.V
        NK = 22
        for grp in self.cflags: g.add(grp)
        g.label("L_cdone", keep=True)
        self.stamp("F3")
        ACC = [V(16, 4) for _ in range(4)]
        NH = self.opt.get("d_nh", 28); HR = V(4*NH, 4)
        NWF = 4; WF = V(8*NWF, 4)
        rd = [[V(1), V(1)] for _ in range(3)]; t2 = V(2); t1 = V(1); vZ = V(1)
        for i in range(3):
            g(f"s_mul_i32 s4, {sW}, {DPART[i][3]}"); g(f"s_add_u32 s4, s4, {DPART[i][2]}")
            g(f"v_add_u32 v{rd[i][0]}, s4, v{self.vKr}"); g(f"v_xor_b32 v{rd[i][1]}, 64, v{rd[i][0]}")
        for j in range(8):
            g(f"v_lshlrev_b32 v{ACC[0]+2*j}, 16, v{self.vHP+j}"); g(f"v_and_b32 v{ACC[0]+2*j+1}, 0xffff0000, v{self.vHP+j}")
        g(f"s_cmp_ge_u32 {sW}, 2"); g("s_cselect_b32 s4, 0x80000000, 0"); g(f"v_or_b32 v{vZ}, s4, v{self.vL16}")
        self.red_consts()
        def part_of(i):
            for p, (f, n, _, _) in enumerate(DPART):
                if f <= i < f + n: return p, i - f
        def wread(i):
            p, j = part_of(i); out = []
            for ct in range(2):
                for j2 in range(2):
                    out.append(self.grp(f"ds_read_b64_tr_b16 {vr(WF+((i%NWF)*2+ct)*4+2*j2,2)}, v{rd[p%3][ct]} offset:{j*2048+j2*512}"))
            if i == 2: out[-1] = out[-1] + self.sig(K_DS)
            return out
        self.lwait(K_D1, t1, own=True)
        for i in range(NWF - 1):
            for grp in wread(i): g.add(grp)
        self.stamp("Dpre")
        self.poll(self.vP3, t2)
        self.stamp("P3")
        lo = [(i, rt) for i in range(NK) for rt in (1, 0)]
        lds = []
        for n, (i, rt) in enumerate(lo):
            sb, off = (self.sHF[rt][0], i*6*K1) if i < 15 else (self.sHF[rt][1], (i-15)*12*K1)
            lds.append(self.grp(f"s_add_u32 s3, {sb}, {off}", f"buffer_load_dwordx4 {vr(HR+4*(n%NH),4)}, v{vZ if i == 14 else self.vL16}, {SWS}, s3 offen sc1"))
        NL0 = self.opt.get("d_l0", 8)
        for grp in lds[:NL0]: g.add(grp)
        g.begin()
        for n, (i, rt) in enumerate(lo):
            for ct in (1, 0):
                a = 2*rt + ct
                g(f"v_mfma_f32_32x32x16_bf16 {vr(ACC[a],16)}, {vr(WF+((i%NWF)*2+ct)*4,4)}, {vr(HR+4*(n%NH),4)}, {vr(ACC[a],16) if (i or a == 0) else 0}")
        mf = g.end(); W = Weave(mf, 5)
        for p, k in ((1, K_D2), (2, K_D3), (3, K_D4)):
            at = 4*(DPART[p][0] - (NWF - 1))
            if at < 4:
                g.add(self.lchk_issue(k, t1, own=True)); g.add(self.lchk_check(k, t1, own=True))
            else:
                W.at(at - 4, self.lchk_issue(k, t1, own=True)); W.at(at - 1, self.lchk_check(k, t1, own=True))
        for i in range(NWF - 1, NK):
            for j, grp in enumerate(wread(i)): W.at(4*(i - (NWF - 1)) + j, grp)
        for n in range(NL0, len(lds)):
            at = 2*(n - NL0)
            if n == 30:
                W.at(at - 14, self.apoll_issue(self.vP4, t2)); W.at(at - 1, self.apoll_check(self.vP4, t2))
            W.at(at, lds[n])
        g.add(W.out())
        self.stamp("Dmf")
        g("s_barrier")
        for a in (3, 2, 1):
            for grp in self.red_write(ACC, a): g.add(grp)
        g.waitds(); g("s_barrier")
        for l in self.red_add(ACC, HR): g(l)
        H = ACC[0]
        for j in range(8): g(f"v_cvt_pk_bf16_f32 v{self.vHP+j}, v{H+2*j}, v{H+2*j+1}")
        g(f"buffer_store_dwordx4 {vr(self.vHP,4)}, v{self.vRM}, {SOUT}, 0 offen")
        g(f"buffer_store_dwordx4 {vr(self.vHP+4,4)}, v{self.vRM}, {SOUT}, 0 offen offset:32")

    def build(self):
        g = self.g
        self.prologue(); self.phaseA(); self.phaseB(); self.phaseC(); self.phaseD()
        if self.stamps:
            self.stamp("end")
            g(f"s_lshl_b32 s3, s2, 2"); g(f"s_add_u32 s3, s3, {sW}"); g("s_lshl_b32 s3, s3, 8"); g(f"s_add_u32 s3, s3, {WS_STAMP}")
            g(f"buffer_store_dword v{self.vST}, v{self.vL4}, {SWS}, s3 offen")
            if self.opt.get("dbg", 0):
                t = self.V(1); pick = [self.snames.index(n) for n in ("start", "bar0", "loop", "F1", "P1", "F2", "P2", "Cmf", "F3", "P3", "Dmf", "end")]
                g(f"v_mov_b32 v{t}, 0")
                g(f"v_readlane_b32 s4, v{self.vST}, 0"); g("s_not_b32 s4, s4"); g(f"v_writelane_b32 v{t}, s4, 2")
                for i, p in enumerate(pick):
                    g(f"v_readlane_b32 s4, v{self.vST}, {p}"); g("s_nop 3"); g(f"v_writelane_b32 v{t}, s4, {3+i}")
                g("s_mov_b64 exec, 0x7ffc")
                g(f"buffer_atomic_umax v{t}, v{self.vL4}, {SDBG}, 0 offen")
        g.label("L_end", keep=True)
        g("s_endpgm")
        self.helper()
        for st in self.tail: g.add(st)
        g.raw("L_codeend:")
        body = g.finalize()
        hdr = open("ref.txt").read().split("; Override launch geometry")[0]
        s = hdr + "; @launch grid=(256,1,1) block=(512,1,1) lds=163840\n"
        s += '.amdgcn_target "amdgcn-amd-amdhsa--gfx950"\n.text\n'
        s += f".globl {NAME}_kernel\n.p2align 8\n.type {NAME}_kernel,@function\n{NAME}_kernel:\n"
        s += body + "    s_endpgm\n"
        s += f'.section .rodata,"a"\n.p2align 6\n.amdhsa_kernel {NAME}_kernel\n'
        s += "  .amdhsa_next_free_vgpr 256\n  .amdhsa_next_free_sgpr 102\n  .amdhsa_accum_offset 256\n"
        s += "  .amdhsa_group_segment_fixed_size 0\n  .amdhsa_kernarg_size 80\n  .amdhsa_user_sgpr_count 2\n"
        s += "  .amdhsa_user_sgpr_kernarg_segment_ptr 1\n  .amdhsa_system_sgpr_workgroup_id_x 1\n"
        s += "  .amdhsa_float_denorm_mode_32 3\n.end_amdhsa_kernel\n"
        return s

if __name__ == "__main__":
    import argparse
    ap = argparse.ArgumentParser()
    ap.add_argument("-o", default="k.s"); ap.add_argument("--stamps", action="store_true"); ap.add_argument("--opt", default="")
    a = ap.parse_args()
    opt = {kv.split("=")[0]: int(kv.split("=")[1]) for kv in a.opt.split(",") if kv}
    k = K(a.stamps, opt)
    s = k.build()
    open(a.o, "w").write(s)
    if a.stamps: open(a.o + ".names", "w").write(" ".join(k.snames) + "\n" + " ".join(k.hnames))
    print("ins", k.g.stats, "vgpr hi", k.V.hi, "sgpr hi", k.S.hi, "lateflags", k.lateflags, "overflow", getattr(k, "overflow", None))
```

```python
import sys, struct
sys.path.insert(0, "gen")
from asmgen import *

NAME = "sequential_preLN__sliding_local_dilated__glu_gated_geglu__prompt"
WS_O, WS_H, WS_HH, WS_HST, WS_CS = 0x000000, 0x200000, 0x400000, 0xA00000, 0xA40000
WS_F1, WS_F2, WS_F3, WS_FC, WS_STAMP = 0xB00000, 0xB20000, 0xB40000, 0xB60000, 0xC00000
WS_WC = 0xD00000
WS_SIZE = 0x1000000
HHP = 96
SX, SWQ, SWO, SWG, SWU, SWD, SOUT, SDBG, SWS = [f"s[{b}:{b+3}]" for b in range(8, 44, 4)]
sW, sRB, sCB, sR128, sCGX, sISCS = "s44", "s45", "s46", "s47", "s68", "s69"
sNON = "s[70:71]"
POLL_LIMIT = 1 << 16
LOG2E = 1.4426950408889634
K1 = 1024
RING = 80*K1; TAB = 152*K1; SYNC = 159*K1; CST = 152*K1
(K_WB, K_B2, K_B3, K_B4, K_C01, K_C23, K_P0, K_C45, K_U3, K_U5, K_D1, K_D2, K_D3, K_D4, K_DS, K_AE, K_TB, K_PZ) = range(18)
K_CS = 18; K_A = 21; K_F = 30; K_T2 = 35; K_PP = 36
DPART = [(0, 3, 128*K1, 6*K1), (3, 8, 64*K1, 16*K1), (11, 8, 0, 16*K1), (19, 3, 128*K1, 6*K1)]
def f32(x): return "0x%08x" % struct.unpack("<I", struct.pack("<f", x))[0]

class K:
    def __init__(self, stamps=False, opt=None):
        self.g = Gen(); self.V = Alloc(0, 256); self.S = Alloc(74, 100)
        self.stamps = stamps; self.nstamp = 0; self.tail = []; self.opt = opt or {}; self.snames = []; self.hnames = []
    def stamp(self, name="", helper=False):
        if not self.stamps: return
        names = self.hnames if helper else self.snames
        i = len(names); names.append(name)
        self.g("s_memtime s[72:73]" if self.opt.get("cyc", 0) else "s_memrealtime s[72:73]"); self.g("s_waitcnt lgkmcnt(0)"); self.g(f"v_writelane_b32 v{self.vST}, s72, {i}")
    def s(self): return f"s{self.S(1)}"
    def grp(self, *lines, tag=None):
        g = self.g; g.begin()
        for l in lines: g(l, tag)
        return g.end()

    def poll(self, vaddr, tmp):
        g = self.g; L = g.newlabel("L_poll"); Lgo = g.newlabel("L_go")
        g("s_mov_b32 s52, 0")
        g.label(L, keep=True)
        g(f"buffer_load_dwordx2 {vr(tmp,2)}, {vr(vaddr)}, {SWS}, 0 offen sc1")
        g("s_add_u32 s52, s52, 1"); g(f"s_cmp_gt_u32 s52, {POLL_LIMIT}"); g(f"s_cbranch_scc1 {Lgo}")
        g("s_waitcnt vmcnt(0)")
        g(f"v_cmp_ne_u64 vcc, {sNON}, {vr(tmp,2)}")
        g(f"s_cbranch_vccnz {L}")
        g.label(Lgo, keep=True)
    def apoll_issue(self, vaddr, tmp, off=0):
        return self.grp(f"buffer_load_dwordx2 {vr(tmp,2)}, {vr(vaddr)}, {SWS}, 0 offen offset:{off} sc1")
    def apoll_check(self, vaddr, tmp, off=0):
        g = self.g; Ls = g.newlabel("L_slow"); Lb = g.newlabel("L_back"); L2 = g.newlabel("L_sl")
        g.begin()
        g(f"v_cmp_ne_u64 vcc, {sNON}, {vr(tmp,2)}"); g(f"s_cbranch_vccnz {Ls}"); g.raw(Lb + ":")
        main = g.end()
        g.begin()
        g.label(Ls, keep=True); g("s_mov_b32 s53, 0")
        g.label(L2, keep=True)
        g(f"buffer_load_dwordx2 {vr(tmp,2)}, {vr(vaddr)}, {SWS}, 0 offen offset:{off} sc1")
        g("s_add_u32 s53, s53, 1"); g("s_waitcnt vmcnt(0)")
        g(f"s_cmp_gt_u32 s53, {POLL_LIMIT}"); g(f"s_cbranch_scc1 {Lb}")
        g(f"v_cmp_ne_u64 vcc, {sNON}, {vr(tmp,2)}"); g(f"s_cbranch_vccnz {L2}")
        g.branch(f"s_branch {Lb}", keep=True)
        self.tail.append(g.end())
        return main
    def flag(self, soff, off=0, full=True):
        g = self.g
        g(f"s_mov_b64 exec, {'0xffff' if full else '1'}")
        g(f"buffer_store_dwordx2 {vr(self.vNON,2)}, {vr(self.vL8)}, {SWS}, {soff} offen offset:{off} sc1", tag="flag")
        g("s_mov_b64 exec, -1")
    def sig(self, k): return self.grp(f"ds_write_b32 v{self.vSig}, v{self.vSig} offset:{16*k}")
    def lchk_issue(self, k, tmp, own=False):
        return self.grp(f"ds_read_b32 v{tmp}, v{self.vOwn if own else self.vAll} offset:{16*k}")
    def lchk_check(self, k, tmp, own=False):
        g = self.g; Ls = g.newlabel("L_ls"); Lb = g.newlabel("L_lb"); L2 = g.newlabel("L_ll")
        g.begin()
        g(f"v_cmp_eq_u32 vcc, 0, v{tmp}"); g(f"s_cbranch_vccnz {Ls}"); g.raw(Lb + ":")
        main = g.end()
        g.begin()
        g.label(Ls, keep=True); g("s_mov_b32 s53, 0")
        g.label(L2, keep=True)
        g(f"ds_read_b32 v{tmp}, v{self.vOwn if own else self.vAll} offset:{16*k}")
        g("s_add_u32 s53, s53, 1"); g("s_waitcnt lgkmcnt(0)")
        g(f"s_cmp_gt_u32 s53, {POLL_LIMIT*16}"); g(f"s_cbranch_scc1 {Lb}")
        g(f"v_cmp_eq_u32 vcc, 0, v{tmp}"); g(f"s_cbranch_vccnz {L2}")
        g.branch(f"s_branch {Lb}", keep=True)
        self.tail.append(g.end())
        return main
    def lwait(self, k, tmp, own=False, sleep=0):
        g = self.g; L = g.newlabel("L_lw"); Lgo = g.newlabel("L_lg")
        g("s_mov_b32 s53, 0")
        g.label(L, keep=True)
        g(f"ds_read_b32 v{tmp}, v{self.vOwn if own else self.vAll} offset:{16*k}")
        g("s_add_u32 s53, s53, 1"); g(f"s_cmp_gt_u32 s53, {POLL_LIMIT*16}"); g(f"s_cbranch_scc1 {Lgo}")
        if sleep: g(f"s_sleep {sleep}")
        g("s_waitcnt lgkmcnt(0)")
        g(f"v_cmp_eq_u32 vcc, 0, v{tmp}"); g(f"s_cbranch_vccnz {L}")
        g.label(Lgo, keep=True)
    def pause(self, on):
        if on: return self.sig(K_PZ)
        return self.grp(f"ds_write_b32 v{self.vSig}, v{self.vZero} offset:{16*K_PZ}")
    def pz_check(self, tmp):
        g = self.g; Ls = g.newlabel("L_ps"); Lb = g.newlabel("L_pb"); L2 = g.newlabel("L_pl")
        g(f"v_cmp_ne_u32 vcc, 0, v{tmp}"); g(f"s_cbranch_vccnz {Ls}"); g.raw(Lb + ":")
        g.begin()
        g.label(Ls, keep=True); g("s_mov_b32 s53, 0")
        g.label(L2, keep=True)
        g(f"ds_read_b32 v{tmp}, v{self.vAll} offset:{16*K_PZ}")
        g("s_add_u32 s53, s53, 1"); g("s_sleep 1"); g("s_waitcnt lgkmcnt(0)")
        g(f"s_cmp_gt_u32 s53, {POLL_LIMIT*16}"); g(f"s_cbranch_scc1 {Lb}")
        g(f"v_cmp_ne_u32 vcc, 0, v{tmp}"); g(f"s_cbranch_vccnz {L2}")
        g.branch(f"s_branch {Lb}", keep=True)
        self.tail.append(g.end())
    def cr0(self, dst, b):
        g, L = self.g, self.vL
        g(f"v_bfe_u32 v{b}, v{L}, 4, 1"); g(f"v_mul_u32_u24 v{dst}, {1024+32}, v{b}")
        g(f"v_lshrrev_b32 v{b}, 5, v{L}"); g(f"v_lshl_add_u32 v{dst}, v{b}, 9, v{dst}")
        g(f"v_bfe_u32 v{b}, v{L}, 2, 2"); g(f"v_lshl_add_u32 v{dst}, v{b}, 6, v{dst}")
        self.pi8(dst, b)
    def nonce_slow(self, tag, a):
        g = self.g
        g("s_cmp_eq_u32 s70, 0")
        g.branch(f"s_cbranch_scc1 L_gn{tag}", keep=True)
        g.label(f"L_nb{tag}", keep=True)
        g.begin()
        g.label(f"L_gn{tag}", keep=True)
        g("s_mov_b32 s52, 0"); g(f"v_mov_b32 v{a}, 0")
        g.label(f"L_gn2{tag}", keep=True)
        g(f"buffer_load_dwordx2 {vr(self.vNON,2)}, v{a}, {SDBG}, 0 offen sc1")
        g("s_waitcnt vmcnt(0)")
        g(f"v_readfirstlane_b32 s70, v{self.vNON}"); g(f"v_readfirstlane_b32 s71, v{self.vNON+1}")
        g("s_add_u32 s52, s52, 1"); g(f"s_cmp_gt_u32 s52, {POLL_LIMIT}")
        g.branch(f"s_cbranch_scc1 L_nb{tag}", keep=True)
        g("s_cmp_eq_u32 s70, 0")
        g.branch(f"s_cbranch_scc1 L_gn2{tag}", keep=True)
        g.branch(f"s_branch L_nb{tag}", keep=True)
        self.tail.append(g.end())
    def sync_consts(self, a):
        g, V, L = self.g, self.V, self.vL
        self.vSig, self.vOwn, self.vAll = V(1), V(1), V(1)
        g(f"s_lshl_b32 s4, {sW}, 2"); g(f"s_add_u32 s4, s4, {SYNC}")
        g(f"v_mov_b32 v{self.vOwn}, s4")
        g(f"v_mov_b32 v{a}, 0x40000"); g(f"v_cmp_eq_u32 vcc, 0, v{L}"); g(f"v_cndmask_b32 v{self.vSig}, v{a}, v{self.vOwn}, vcc")
        g(f"v_and_b32 v{a}, 3, v{L}"); g(f"v_lshlrev_b32 v{a}, 2, v{a}"); g(f"v_add_u32 v{self.vAll}, {SYNC}, v{a}")

    def srd(self, base, ptr, size):
        g = self.g
        g(f"s_mov_b32 s{base}, s{ptr}"); g(f"s_and_b32 s{base+1}, s{ptr+1}, 0xffff")
        g(f"s_mov_b32 s{base+2}, {size}"); g(f"s_mov_b32 s{base+3}, 0x20000")
    def pi8(self, acc, t):
        g, L = self.g, self.vL
        g(f"v_and_b32 v{t}, 1, v{L}"); g(f"v_lshl_add_u32 v{acc}, v{t}, 4, v{acc}")
        g(f"v_bfe_u32 v{t}, v{L}, 1, 1"); g(f"v_lshl_add_u32 v{acc}, v{t}, 3, v{acc}")

    def prologue(self):
        g, V = self.g, self.V
        g("s_cmp_ge_u32 s2, 256"); g("s_cbranch_scc1 L_end")
        g("s_load_dwordx16 s[48:63], s[0:1], 0"); g("s_load_dwordx4 s[64:67], s[0:1], 64"); g("s_memrealtime s[100:101]")
        assert V(1) == 0
        self.vL = V(1); self.vL16 = V(1); self.vST = V(1); t = V(1)
        g(f"v_lshrrev_b32 v{t}, 6, v0"); g(f"v_and_b32 v{self.vL}, 63, v0"); g(f"v_readfirstlane_b32 s3, v{t}")
        g("s_and_b32 s4, s2, 7"); g("s_lshr_b32 s5, s2, 3")
        g("s_lshl_b32 s6, s4, 2"); g("s_lshr_b32 s7, s5, 3"); g(f"s_add_u32 {sRB}, s6, s7"); g(f"s_and_b32 {sCB}, s5, 7")
        g(f"s_and_b32 {sW}, s3, 3")
        if self.stamps: g(f"v_mov_b32 v{self.vST}, 0")
        g(f"v_lshlrev_b32 v{self.vL16}, 4, v{self.vL}")
        V.release(t)
        g("s_cmp_ge_u32 s3, 4")
        g.branch("s_cbranch_scc1 L_helper", keep=True)
    def cmap(self):
        g = self.g; out = []
        if self.opt.get("cmap", 0) == 0:
            out += singles(self.grp("s_and_b32 s4, s2, 7", "s_lshl_b32 s4, s4, 1", "s_lshr_b32 s6, s2, 7", f"s_add_u32 {sR128}, s4, s6",
                                    "s_lshr_b32 s4, s2, 3", "s_and_b32 s4, s4, 15"))
        else:
            out += singles(self.grp("s_and_b32 s4, s2, 6", "s_lshl_b32 s4, s4, 1", "s_lshr_b32 s6, s2, 6", f"s_add_u32 {sR128}, s4, s6",
                                    "s_lshr_b32 s4, s2, 3", "s_and_b32 s4, s4, 7", "s_and_b32 s6, s2, 1", "s_lshl_b32 s6, s6, 3", "s_add_u32 s4, s4, s6"))
        out.append(self.grp(f"s_mov_b32 {sCGX}, s4"))
        return out

    def helper(self):
        g = self.g; V = Alloc(4, 256); L = self.vL
        saveV = self.V; self.V = V
        g.label("L_helper", keep=True)
        if self.opt.get("hprio", 2): g(f"s_setprio {self.opt.get('hprio', 2)}")
        a, b, c = V(1), V(1), V(1); vXs, vWs, vWw = V(1), V(1), V(1)
        ROT = self.opt.get("rot", 1)
        g(f"s_and_b32 s3, {sW}, 1"); g("s_lshl_b32 s6, s3, 3")
        g(f"v_lshrrev_b32 v{a}, 3, v{L}"); g(f"v_add_u32 v{b}, s6, v{a}"); g(f"v_bfe_u32 v{c}, v{b}, 1, 3")
        g(f"v_and_b32 v{vXs}, 7, v{L}"); g(f"v_xor_b32 v{c}, v{c}, v{vXs}"); g(f"v_lshlrev_b32 v{b}, 10, v{b}")
        g(f"v_lshl_add_u32 v{vXs}, v{c}, 4, v{b}")
        g(f"v_bfe_u32 v{b}, v{L}, 4, 1"); g("s_lshl_b32 s6, s3, 1"); g(f"v_or_b32 v{b}, s6, v{b}")
        g(f"v_bfe_u32 v{c}, v{L}, 1, 2"); g(f"v_xor_b32 v{b}, v{b}, v{c}")
        g(f"v_and_b32 v{c}, 1, v{L}"); g(f"v_lshlrev_b32 v{c}, 4, v{c}"); g(f"v_lshl_add_u32 v{b}, v{b}, 5, v{c}")
        g(f"v_mul_u32_u24 v{a}, 3072, v{a}")
        g(f"s_mul_i32 s6, {sW}, {8*3072}"); g(f"s_lshl_b32 s7, {sCB}, 7"); g("s_add_u32 s6, s6, s7")
        g(f"v_add3_u32 v{vWs}, v{a}, v{b}, s6")
        sXb, sX0, sXm, sWm, sEx, sRk, sR2, sKq = "s74", "s75", "s76", "s77", "s78", "s79", "s80", "s81"
        g(f"s_lshr_b32 s7, {sW}, 1"); g(f"s_mul_i32 s6, s7, {3*16384}")
        g(f"s_lshl_b32 {sXb}, {sRB}, 16"); g(f"s_sub_u32 {sXb}, {sXb}, 16384"); g(f"s_add_u32 {sXb}, {sXb}, s6"); g(f"s_max_i32 {sX0}, {sXb}, 0")
        g(f"s_lshl_b32 {sXm}, s3, 10"); g(f"s_add_u32 {sXm}, {sXm}, s6")
        g(f"s_add_u32 s93, {sXm}, 32768"); g("s_cmp_eq_u32 s7, 0"); g("s_cselect_b32 s93, s93, 0x30000"); g("s_cselect_b32 s6, 0, 0x80000000")
        vX2 = vWw; g(f"v_or_b32 v{vX2}, s6, v{vXs}")
        g(f"s_mul_i32 {sWm}, {sW}, 3072"); g(f"s_add_u32 {sWm}, {sWm}, {RING}")
        g(f"s_cmp_eq_u32 {sW}, 0"); g(f"s_cselect_b32 {sEx}, 0xffffff00, -1")
        if ROT: g(f"s_add_u32 s6, s4, {sCB}"); g("s_and_b32 s6, s6, 7")
        else: g("s_mov_b32 s6, 0")
        if self.opt.get("rot3", 1):
            g(f"s_lshl_b32 s7, {sRB}, 1"); g(f"s_cmp_eq_u32 {sCB}, 3"); g("s_cselect_b32 s7, s7, 0"); g("s_add_u32 s6, s6, s7"); g("s_and_b32 s6, s6, 7")
        g(f"s_lshl_b32 {sR2}, s6, 1"); g(f"s_mov_b32 {sRk}, s6")
        g("s_mov_b32 s10, %d" % (2048*512*2)); g("s_mov_b32 s11, 0x20000"); g("s_mov_b32 s14, %d" % (512*1536*2)); g("s_mov_b32 s15, 0x20000")
        g("s_waitcnt lgkmcnt(0)")
        g("s_mov_b32 s8, s48"); g("s_and_b32 s9, s49, 0xffff"); g("s_mov_b32 s12, s50"); g("s_and_b32 s13, s51, 0xffff")
        if self.stamps: g(f"v_writelane_b32 v{self.vST}, s100, 0"); self.hnames.append("start")
        self.stamp("ka", True)
        vKs, vCs, vCw, vDw = V(1), V(1), V(1), [V(1) for _ in range(3)]
        self.vNON = V(2); self.vL8 = V(1); t2 = V(2); vPW = V(1)
        STG = V(208, 4)
        CA = V(16, 4); ON = V(4, 4)
        Qd = lambda i: STG + 4*i
        def xjob(kp, i):
            l = []
            if i == 0: l += [f"s_add_u32 {sKq}, {sRk}, {kp}", f"s_and_b32 {sKq}, {sKq}, 7", f"s_lshl_b32 {sKq}, {sKq}, 7"]
            l += [f"s_add_u32 m0, {sXm if i < 2 else 's93'}, {(i*16384 if i < 2 else 0) + kp*2048}"]
            if i == 0: l += [f"s_add_u32 s3, {sX0}, {sKq}", f"s_mov_b32 exec_lo, {sEx}"]
            else: l += [f"s_add_u32 s3, {sXb}, {i*16384}", f"s_add_u32 s3, s3, {sKq}"]
            l += [f"buffer_load_dwordx4 v{vXs if i < 2 else vX2}, {SX}, s3 offen lds"]
            if i == 0: l += ["s_mov_b32 exec_lo, -1"]
            return self.grp(*l, tag=f"x{kp}")
        def wjob(s, p):
            l = []
            if p == 0: l += [f"s_add_u32 m0, {sWm}, {(s%6)*12288}", f"s_add_u32 s3, {sR2}, {s}", "s_and_b32 s3, s3, 15", f"s_mul_i32 s3, s3, {32*3072}"]
            l += [f"buffer_load_dwordx4 v{vWs}, {SWQ}, s3 offen offset:{p*K1} lds"]
            return self.grp(*l, tag=f"w{s}")
        order = ["x0", 0, 1, "x1", 2, 3, "x2", "x3", 4, 5, "x4", "x5", 6, 7, "x6", "x7", 8, 9, 10, 11, 12, 13, 14, 15]
        jobs = []; last = {}
        for o in order:
            if isinstance(o, str): jobs += [xjob(int(o[1]), t) for t in range(3)]; last[o] = len(jobs)
            else: jobs += [wjob(o, p) for p in range(3)]; last[f"w{o}"] = len(jobs)
        sBm, sBs, sCm, sD0, sD1, sD14 = "s82", "s83", "s84", "s85", "s86", "s87"
        g.begin(); self.sync_consts(a); setup0 = g.end()
        g.begin()
        self.srd(16, 52, 512*512*2); self.srd(20, 56, 512*1376*2); self.srd(24, 58, 512*1376*2); self.srd(28, 60, 1376*512*2)
        self.srd(40, 66, WS_SIZE); self.srd(36, 64, 256)
        for grp in self.cmap(): g.add(grp)
        g(f"v_bfe_u32 v{a}, v{L}, 4, 1"); g(f"v_lshlrev_b32 v{a}, 2, v{a}")
        g(f"v_and_b32 v{b}, 7, v{L}"); g(f"v_xor_b32 v{a}, v{a}, v{b}"); g(f"v_lshlrev_b32 v{a}, 4, v{a}")
        g(f"v_lshrrev_b32 v{b}, 3, v{L}"); g(f"v_lshl_add_u32 v{a}, v{b}, 10, v{a}")
        g(f"s_lshl_b32 s4, {sCB}, 7"); g(f"v_add_u32 v{vKs}, s4, v{a}")
        g(f"s_lshl_b32 s6, {sW}, 14"); g(f"s_add_u32 {sBm}, s6, {64*K1}"); g(f"s_lshl_b32 {sBs}, {sW}, 17")
        g(f"s_lshl_b32 s6, {sW}, 13"); g(f"v_add_u32 v{vCw}, s6, v{self.vL16}")
        g(f"s_mul_i32 s4, {sCGX}, {6*32*K1}"); g("s_add_u32 s4, s4, s6"); g(f"s_add_u32 {sCm}, s4, {WS_WC}")
        g(f"s_cmp_eq_u32 {sCGX}, 15"); g("s_cselect_b32 s4, 0x80000000, 0"); g(f"s_cselect_b32 s6, 0, {sCGX}"); g(f"v_or_b32 v{vCs}, s4, v{self.vL16}")
        g("s_lshl_b32 s6, s6, 2"); g(f"s_add_u32 s6, s6, {sW}"); g("s_lshl_b32 s6, s6, 10"); g(f"s_add_u32 s6, s6, {WS_FC}")
        g(f"v_and_b32 v{a}, 7, v{L}"); g(f"v_lshl_add_u32 v{vPW}, v{a}, 7, s6")
        g(f"v_lshlrev_b32 v{self.vL8}, 3, v{L}")
        PV = [CA, CA + 1, CA + 2]; vPr, vPs = CA + 3, CA + 4
        g(f"s_lshl_b32 s4, s2, 1"); g(f"s_add_u32 s4, s4, {sW}")
        g(f"s_cmp_lt_u32 {sW}, 2"); g("s_cselect_b32 s4, s4, 511"); g("s_cmp_lt_u32 s4, 480"); g("s_cselect_b32 s89, 0, 0x80000000")
        g("s_lshr_b32 s6, s4, 5"); g("s_and_b32 s7, s4, 31")
        g("s_lshl_b32 s90, s4, 7"); g(f"s_add_u32 s90, s90, {WS_FC}")
        g(f"s_mul_i32 s91, s6, {6*32*K1}"); g("s_lshl_b32 s4, s7, 10"); g("s_add_u32 s91, s91, s4"); g(f"s_add_u32 s91, s91, {WS_WC}")
        g("s_mul_i32 s6, s6, 192"); g(f"s_mul_i32 s7, s7, {16*2752}"); g("s_add_u32 s6, s6, s7"); g("s_or_b32 s6, s6, s89")
        for i in range(3):
            g(f"v_add_u32 v{a}, {64*i}, v{L}"); g(f"v_mul_u32_u24 v{b}, 5462, v{a}"); g(f"v_lshrrev_b32 v{b}, 16, v{b}")
            g(f"v_mul_u32_u24 v{c}, 12, v{b}"); g(f"v_sub_u32 v{c}, v{a}, v{c}"); g(f"v_mul_u32_u24 v{b}, 2752, v{b}"); g(f"v_lshl_add_u32 v{b}, v{c}, 4, v{b}")
            g(f"v_add_u32 v{PV[i]}, s6, v{b}")
        g(f"v_bfe_u32 v{b}, v{L}, 4, 1"); g(f"v_lshlrev_b32 v{a}, 14, v{b}")
        g(f"v_lshrrev_b32 v{b}, 5, v{L}"); g(f"v_mul_u32_u24 v{b}, {8*192}, v{b}"); g(f"v_add_u32 v{a}, v{a}, v{b}")
        g(f"v_bfe_u32 v{b}, v{L}, 2, 2"); g(f"v_mul_u32_u24 v{b}, 192, v{b}"); g(f"v_add_u32 v{a}, v{a}, v{b}")
        self.pi8(a, b); g(f"s_and_b32 s92, {sW}, 1"); g("s_lshl_b32 s92, s92, 15"); g(f"v_add_u32 v{vPr}, s92, v{a}")
        g(f"s_cmp_lt_u32 {sW}, 2"); g("s_cselect_b32 s92, s92, 0x30000")
        g(f"v_or_b32 v{vPs}, s89, v{self.vL16}"); g(f"v_or_b32 v{self.vL8}, s89, v{self.vL8}")
        for i in range(3):
            g(f"s_mul_i32 s4, {sW}, {DPART[i][3]}"); g(f"s_add_u32 s4, s4, {DPART[i][2]}"); g(f"v_add_u32 v{vDw[i]}, s4, v{self.vL16}")
        g(f"s_lshl_b32 {sD0}, {sW}, 14"); g(f"s_and_b32 {sD14}, {sD0}, 0x4000")
        g(f"s_lshr_b32 s4, {sW}, 1"); g("s_mul_i32 s4, s4, 6"); g(f"s_and_b32 s7, {sW}, 1"); g("s_add_u32 s4, s4, s7"); g("s_add_u32 s4, s4, 4")
        g(f"s_lshl_b32 {sD1}, s4, 14")
        g(f"s_mul_i32 s88, {sW}, {DPART[0][3]}"); g(f"s_add_u32 s88, s88, {DPART[0][2]}")
        setup = g.end()
        qU = lambda u: Qd((0, 8, 16, 24, 0, 8)[u])
        def ujob(u):
            return [self.grp(*([f"s_add_u32 s3, {sCm}, {u*32*K1 + (j//4)*4096}"] + [f"buffer_load_dwordx4 {vr(qU(u)+4*j,4)}, v{vCs}, {SWS}, s3 offen offset:{(j%4)*K1} sc1"])) for j in range(8)]
        def uwrite(u):
            hi = (u // 2) % 2
            if hi: g(f"v_add_u32 v{a}, 0x10000, v{vCw}")
            for j in range(8): g(f"ds_write_b128 v{a if hi else vCw}, {vr(qU(u)+4*j,4)} offset:{(u%2)*32768 + j*K1}")
        dq = [None]*3 + list(range(32, 52, 2)) + list(range(16, 32, 2)) + [0]
        qD = [None if x is None else STG + 4*x for x in dq]
        def djob(i):
            sb, off = (sD0, i*6*16384) if i < 14 else ((sD14, 14*6*16384) if i == 14 else (sD1, (i-15)*12*16384))
            if i < 3:
                return [self.grp(f"s_add_u32 m0, s88, {i*2048 + h*K1}", f"s_add_u32 s3, {sb}, {off + h*8192}", f"buffer_load_dwordx4 v{vKs}, {SWD}, s3 offen lds", tag="wd0") for h in range(2)]
            return [self.grp(f"s_add_u32 s3, {sb}, {off + h*8192}", f"buffer_load_dwordx4 {vr(qD[i]+4*h,4)}, v{vKs}, {SWD}, s3 offen") for h in range(2)]
        def dwrite(part, sk):
            f, n, _, _ = DPART[part]
            for i in range(n):
                for h in range(2): g(f"ds_write_b128 v{vDw[part % 3]}, {vr(qD[f+i]+4*h,4)} offset:{i*2048 + h*K1}")
            g.add(self.sig(sk))
        def unit_ev(u):
            def fn():
                if u == 0:
                    g(f"s_lshr_b32 s4, {sW}, 1"); g("s_lshl_b32 s4, s4, 9"); g(f"s_and_b32 s6, {sW}, 1"); g("s_lshl_b32 s6, s6, 3"); g("s_add_u32 s4, s4, s6"); g(f"s_add_u32 s4, s4, {CST}")
                    g(f"v_and_b32 v{b}, 31, v{L}"); g(f"v_lshl_add_u32 v{vWs}, v{b}, 4, s4")
                    for i in range(4): g(f"v_mov_b32 v{ON+i}, 0x3f803f80")
                    self.lwait(K_T2, c); self.lwait(K_PP, c)
                for j in range(8): g(f"v_mfma_f32_32x32x16_bf16 {vr(CA,16)}, {vr(ON,4)}, {vr(qU(u)+4*j,4)}, {vr(CA,16) if j else 0}")
                if u < 2: uwrite(u)
                if u == 1: g.add(self.sig(K_C01)); self.stamp("C01", True)
                g(f"v_cvt_pk_bf16_f32 v{CA+3}, v{CA}, 0")
                g(f"v_lshlrev_b32 v{CA+1}, 16, v{CA+3}"); g(f"v_sub_f32 v{CA+1}, v{CA}, v{CA+1}")
                g(f"v_cvt_pk_bf16_f32 v{CA+2}, v{CA}, v{CA+1}")
                g(f"ds_write_b64 v{vWs}, {vr(CA+2,2)} offset:{u*K1}")
                if u % 2: g.add(self.sig(K_CS + u // 2))
                if u < 2: g.waitds()
            return fn
        LA = self.opt.get("h_la", 8); PZ = self.opt.get("pause", 1)
        events = {}
        def after(n, fn): events.setdefault(n, []).append(fn)
        def run(loads, pz_from=None):
            pend = False
            for n in range(len(loads) + 1):
                for fn in events.pop(n, []): fn(); pend = False
                if n == len(loads): break
                if PZ and pz_from is not None and n >= pz_from and (n - pz_from) % 2 == 0:
                    if not pend: g(f"ds_read_b32 v{vWw}, v{self.vAll} offset:{16*K_PZ}")
                    self.pz_check(vWw)
                    g.add(loads[n]); g(f"ds_read_b32 v{vWw}, v{self.vAll} offset:{16*K_PZ}"); pend = True
                else: g.add(loads[n])
            for n in sorted(events):
                for fn in events.pop(n): fn()
        stages = [["w0"], ["w1"], ["w3"], ["w5"], ["w7"], ["w9"], ["w11"], ["w13"], ["w15"]]
        def patch_proc():
            g.waitvm("pl")
            for u in range(6):
                for j2 in range(2): g(f"ds_read_b64_tr_b16 {vr(Qd(u)+2*j2,2)}, v{vPr} offset:{u*32 + j2*768}")
            for u in range(6):
                g(f"s_add_u32 s4, s91, {u*32*K1}"); g(f"buffer_store_dwordx4 {vr(Qd(u),4)}, v{vPs}, {SWS}, s4 offen sc1", tag="pst")
            g.add(self.sig(K_PP))
        def patch_flag():
            g(f"v_readfirstlane_b32 s70, v{self.vNON}"); g(f"v_readfirstlane_b32 s71, v{self.vNON+1}")
            self.nonce_slow("H", b)
            g.waitvm("pst"); self.flag("s90")
            self.stamp("PF", True)
        PAT = last[f"w{self.opt.get('p_after', 15)}"]; assert self.opt.get("p_after", 15) >= 10
        pl = [self.grp(f"s_add_u32 m0, s92, {m*16384 + i*K1}", "s_nop 0", f"buffer_load_dwordx4 v{PV[i]}, {(SWG, SWU)[m]}, 0 offen lds", tag="pl") for m in range(2) for i in range(3)]
        pl.append(self.grp(f"v_mov_b32 v{b}, 0", f"buffer_load_dwordx2 {vr(self.vNON,2)}, v{b}, {SDBG}, 0 offen sc1"))
        jobs = jobs[:PAT] + pl + jobs[PAT:]
        for t in last:
            if last[t] > PAT: last[t] += len(pl)
        after(self.opt.get("h_first", 9), lambda: (g.add(setup0), g("s_barrier")))
        chunks = []; cur = []
        for it in setup:
            if len(cur) >= 10 and not it.op.startswith("s_cselect") and not cur[-1].op.startswith("s_cmp"): chunks.append(cur); cur = []
            cur.append(it)
        chunks.append(cur)
        for i, ch in enumerate(chunks): after(self.opt.get("h_first", 9) + 1 + i, (lambda ch=ch: g.add(ch)))
        assert self.opt.get("h_first", 9) + 1 + len(chunks) < last["w6"] - 6, len(chunks)
        def stage_fn(k, tags):
            def fn():
                g.waitvm(*tags); g.add(self.sig(K_A + k))
                if k == 8: self.stamp("A8", True)
            return fn
        SL = self.opt.get("h_sl", 6)
        for k, tags in enumerate(stages):
            n = max(last[t] for t in tags) + SL
            if k == 8 and PAT == last["w15"]: n = min(n, PAT + 3)
            after(max(n, self.opt.get("h_first", 9)), stage_fn(k, tags))
        for P in range(3, 8):
            n = last[f"w{2*P}"] - 3
            after(n - 2, (lambda P=P: g.add(self.lchk_issue(K_F + P - 3, c))))
            after(n, (lambda P=P: g.add(self.lchk_check(K_F + P - 3, c))))
        after(PAT + len(pl) + self.opt.get("p_la", 4), patch_proc)
        after(PAT + len(pl) + self.opt.get("p_la", 4) + self.opt.get("p_fl", 4), patch_flag)
        gap = [x for i in range(12, 2, -1) for x in djob(i)]
        NG = self.opt.get("h_gap", 8)
        loads = jobs + gap[:NG]
        after(len(loads), lambda: (self.lwait(K_AE, c, sleep=1), self.stamp("AE", True)))
        loads += [self.grp(f"s_add_u32 m0, {sBm}, {i*K1}", f"s_add_u32 s3, {sBs}, {i*8192}", f"buffer_load_dwordx4 v{vKs}, {SWO}, s3 offen lds", tag="wb") for i in range(16)]
        fill2 = [x for i in range(3) for x in djob(i)] + gap[NG:]
        NF2 = self.opt.get("h_f2", 6)
        after(len(loads), lambda: g.add(self.apoll_issue(vPW, t2)))
        loads += fill2[:NF2]
        after(len(loads), lambda: (g.waitvm("wb"), g.add(self.sig(K_WB)), self.stamp("WB", True), g.add(self.apoll_check(vPW, t2)), self.stamp("PW", True)))
        assert PAT + len(pl) + self.opt.get("p_la", 4) + self.opt.get("p_fl", 4) <= len(loads) - NF2
        pz_from = len(loads)
        for u in range(6):
            loads += ujob(u); after(len(loads) + LA, unit_ev(u))
        loads += fill2[NF2:]
        run(loads, pz_from)
        g.waitvm("wd0"); g.add(self.sig(K_D1))
        self.stamp("n1", True)
        self.lwait(K_B4, c, sleep=1)
        uwrite(2); uwrite(3); g.add(self.sig(K_C23)); g.waitds()
        self.stamp("C23", True)
        run([x for i in range(13, 21) for x in djob(i)], 0)
        self.stamp("n2", True)
        self.lwait(K_P0, c, sleep=2)
        uwrite(4); uwrite(5); g.add(self.sig(K_C45)); g.waitds()
        self.stamp("C45", True)
        run(djob(21))
        self.lwait(K_U3, c, sleep=2); dwrite(1, K_D2)
        self.stamp("D2", True)
        self.lwait(K_U5, c, sleep=1); dwrite(2, K_D3)
        self.lwait(K_DS, c, own=True, sleep=1); dwrite(3, K_D4)
        self.stamp("D4", True)
        if self.stamps:
            g(f"s_lshl_b32 s3, s2, 2"); g(f"s_add_u32 s3, s3, {sW}"); g("s_lshl_b32 s3, s3, 8"); g(f"s_add_u32 s3, s3, {WS_STAMP + 0x40000}")
            g(f"v_lshlrev_b32 v{a}, 2, v{L}")
            g(f"buffer_store_dword v{self.vST}, v{a}, {SWS}, s3 offen")
        g("s_endpgm")
        self.V = saveV

    def consts(self, a, b):
        g, V, L = self.g, self.V, self.vL
        self.sO0, self.sO1, self.sF1 = self.s(), self.s(), self.s()
        g(f"s_lshl_b32 s4, {sCB}, 2"); g(f"s_add_u32 s4, s4, {sW}")
        g(f"s_lshl_b32 s6, {sRB}, 6"); g("s_add_u32 s6, s6, s4"); g(f"s_lshl_b32 {self.sO0}, s6, 10"); g(f"s_add_u32 {self.sO1}, {self.sO0}, {32*K1}")
        g(f"s_lshl_b32 s6, {sRB}, 5"); g("s_add_u32 s6, s6, s4"); g("s_lshl_b32 s6, s6, 7"); g(f"s_add_u32 {self.sF1}, s6, {WS_F1}")
        self.sOF = [[self.s(), self.s()], [self.s(), self.s()]]; self.sHF = [[self.s(), self.s()], [self.s(), self.s()]]
        g(f"s_lshr_b32 s4, {sW}, 1"); g("s_mul_i32 s4, s4, 6"); g(f"s_and_b32 s7, {sW}, 1"); g("s_add_u32 s4, s4, s7"); g("s_add_u32 s5, s4, 4")
        for rt in range(2):
            g(f"s_lshr_b32 s4, {sW}, 1"); g(f"s_xor_b32 s4, s4, {rt}"); g(f"s_lshl_b32 s6, {sRB}, 1"); g("s_add_u32 s4, s4, s6")
            g("s_lshl_b32 s6, s4, 5"); g(f"s_lshl_b32 s7, {sW}, 3"); g("s_add_u32 s6, s6, s7"); g(f"s_lshl_b32 {self.sOF[rt][0]}, s6, 10")
            g(f"s_add_u32 {self.sOF[rt][1]}, {self.sOF[rt][0]}, 4096")
            g(f"s_mul_i32 s6, s4, {HHP}"); g(f"s_add_u32 s6, s6, {WS_HH//K1}")
            g(f"s_add_u32 s7, s6, {sW}"); g(f"s_lshl_b32 {self.sHF[rt][0]}, s7, 10")
            g("s_add_u32 s7, s6, s5"); g(f"s_lshl_b32 {self.sHF[rt][1]}, s7, 10")
        self.sHs, self.sHt, self.sF2 = self.s(), self.s(), self.s()
        g(f"s_lshl_b32 s4, {sRB}, 1"); g(f"s_lshr_b32 s6, {sW}, 1"); g("s_add_u32 s4, s4, s6")
        g(f"s_lshl_b32 s6, {sCB}, 1"); g(f"s_and_b32 s7, {sW}, 1"); g("s_add_u32 s6, s6, s7")
        self.vRM = V(1)
        g(f"v_and_b32 v{a}, 31, v{L}"); g(f"v_lshlrev_b32 v{a}, 10, v{a}"); g(f"v_lshrrev_b32 v{b}, 5, v{L}"); g(f"v_lshl_add_u32 v{a}, v{b}, 4, v{a}")
        g("s_lshl_b32 s7, s4, 15"); g(f"v_add_u32 v{a}, s7, v{a}"); g("s_lshl_b32 s7, s6, 6"); g(f"v_add_u32 v{self.vRM}, s7, v{a}")
        g("s_lshl_b32 s4, s4, 4"); g("s_add_u32 s4, s4, s6")
        g("s_lshl_b32 s6, s4, 11"); g(f"s_add_u32 {self.sHs}, s6, {WS_H}")
        g("s_lshl_b32 s6, s4, 8"); g(f"s_add_u32 {self.sHt}, s6, {WS_HST}")
        g("s_lshl_b32 s6, s4, 7"); g(f"s_add_u32 {self.sF2}, s6, {WS_F2}")
        self.vKr = V(1)
        g(f"v_lshrrev_b32 v{a}, 5, v{L}"); g(f"v_lshlrev_b32 v{a}, 10, v{a}")
        g(f"v_bfe_u32 v{b}, v{L}, 2, 2"); g(f"v_lshl_add_u32 v{a}, v{b}, 7, v{a}")
        g(f"v_bfe_u32 v{b}, v{L}, 3, 1"); g(f"s_and_b32 s4, {sW}, 1"); g(f"v_xor_b32 v{b}, s4, v{b}"); g(f"v_lshl_add_u32 v{a}, v{b}, 6, v{a}")
        g(f"v_bfe_u32 v{b}, v{L}, 4, 1"); g(f"v_lshl_add_u32 v{a}, v{b}, 5, v{a}")
        self.pi8(a, b); g(f"v_mov_b32 v{self.vKr}, v{a}")
        self.sCh, self.sCt, self.sCo, self.sF3 = self.s(), self.s(), self.s(), self.s()
        g(f"s_lshl_b32 s4, {sR128}, 2"); g(f"s_add_u32 s4, s4, {sW}")
        g("s_lshl_b32 s6, s4, 15"); g(f"s_add_u32 {self.sCh}, s6, {WS_H}")
        g("s_lshl_b32 s6, s4, 12"); g(f"s_add_u32 {self.sCt}, s6, {WS_HST}")
        g(f"s_mul_i32 s6, s4, {HHP}"); g(f"s_mul_i32 s7, {sCGX}, 6"); g("s_add_u32 s6, s6, s7"); g("s_lshl_b32 s6, s6, 10"); g(f"s_add_u32 {self.sCo}, s6, {WS_HH}")
        g("s_lshl_b32 s6, s4, 4"); g(f"s_add_u32 s6, s6, {sCGX}"); g("s_lshl_b32 s6, s6, 7"); g(f"s_add_u32 {self.sF3}, s6, {WS_F3}")
        self.vP1, self.vP2, self.vP3, self.vP4 = V(1), V(1), V(1), V(1)
        g(f"s_lshl_b32 s4, {sRB}, 5"); g(f"s_lshl_b32 s6, {sW}, 3"); g("s_add_u32 s4, s4, s6"); g("s_lshl_b32 s4, s4, 7"); g(f"s_add_u32 s4, s4, {WS_F1}")
        g(f"v_and_b32 v{a}, 7, v{L}"); g(f"v_lshl_add_u32 v{self.vP1}, v{a}, 7, s4")
        g(f"s_lshl_b32 s4, {sR128}, 2"); g(f"s_add_u32 s4, s4, {sW}"); g("s_lshl_b32 s4, s4, 11"); g(f"s_add_u32 s4, s4, {WS_F2}")
        g(f"v_and_b32 v{a}, 15, v{L}"); g(f"v_lshl_add_u32 v{self.vP2}, v{a}, 7, s4")
        g(f"s_lshl_b32 s4, {sRB}, 12"); g(f"s_add_u32 s4, s4, {WS_F3}"); g(f"s_lshl_b32 s6, {sW}, 4"); g("s_add_u32 s6, s6, s4")
        g(f"v_min_u32 v{a}, 14, v{a}"); g(f"v_and_b32 v{b}, 16, v{L}"); g(f"v_or_b32 v{a}, v{a}, v{b}")
        g(f"v_lshl_add_u32 v{self.vP3}, v{a}, 7, s6")
        g(f"v_and_b32 v{a}, 7, v{L}"); g(f"v_min_u32 v{a}, 6, v{a}"); g(f"v_lshl_add_u32 v{a}, v{a}, 1, v{b}")
        g(f"s_lshr_b32 s6, {sW}, 1"); g("s_lshl_b32 s6, s6, 7"); g("s_add_u32 s4, s4, s6")
        g(f"s_and_b32 s6, {sW}, 1"); g("s_lshl_b32 s6, s6, 4"); g("s_add_u32 s4, s4, s6"); g("s_add_u32 s4, s4, 64")
        g(f"v_lshl_add_u32 v{self.vP4}, v{a}, 7, s4")

    def phaseA(self):
        g, V, L = self.g, self.V, self.vL
        self.vL8 = V(1); self.vL4 = V(1); self.vNON = V(2); self.vHP = V(8, 4); self.vJunk = V(1)
        a, b, c = V(1), V(1), V(1)
        if self.opt.get("prio", 1): g(f"s_setprio {self.opt.get('prio', 1)}")
        g("s_getpc_b64 s[6:7]"); g.raw("L_pc:")
        g(f"v_lshrrev_b32 v{a}, 4, v0"); g(f"v_lshl_add_u32 v{a}, s5, 4, v{a}"); g(f"v_lshlrev_b32 v{a}, 7, v{a}")
        g(f"v_min_u32 v{a}, L_codeend-L_pc-4, v{a}")
        g(f"global_load_dword v{self.vJunk}, v{a}, s[6:7]")
        g(f"v_lshlrev_b32 v{self.vL8}, 3, v{L}"); g(f"v_lshlrev_b32 v{self.vL4}, 2, v{L}")
        ONES = V(4, 4)
        for i in range(4): g(f"v_mov_b32 v{ONES+i}, 0x3f803f80")
        g(f"v_lshrrev_b32 v{a}, 3, v{L}"); g(f"v_and_b32 v{b}, 7, v{L}"); g(f"v_lshlrev_b32 v{a}, 11, v{a}"); g(f"v_lshl_add_u32 v{a}, v{b}, 4, v{a}")
        g(f"ds_write_b128 v{a}, {vr(ONES,4)}")
        Z4 = self.vHP
        for i in range(4): g(f"v_mov_b32 v{Z4+i}, 0")
        self.vZero = V(1); g(f"v_mov_b32 v{self.vZero}, 0")
        g(f"v_mov_b32 v{b}, 0"); g(f"v_add_u32 v{a}, {SYNC}, v{self.vL16}"); g(f"ds_write_b128 v{a}, {vr(Z4,4)}")
        g(f"s_or_b32 s3, s2, {sW}")
        g("s_waitcnt lgkmcnt(0)")
        if self.stamps: g(f"v_writelane_b32 v{self.vST}, s100, 0"); self.snames.append("start")
        self.srd(36, 64, 256)
        g("s_cmp_eq_u32 s3, 0")
        g.branch("s_cbranch_scc1 L_pubnonce", keep=True)
        g.label("L_pubdone", keep=True)
        g.begin()
        g.label("L_pubnonce", keep=True)
        g("s_or_b32 s100, s100, 1")
        g(f"v_mov_b32 v{self.vNON}, s100"); g(f"v_mov_b32 v{self.vNON+1}, s101")
        g("s_mov_b64 exec, 1")
        g(f"buffer_store_dwordx2 {vr(self.vNON,2)}, v{b}, {SDBG}, 0 offen sc1")
        g("s_mov_b64 exec, -1")
        g.branch("s_branch L_pubdone", keep=True)
        self.tail.append(g.end())
        self.srd(8, 48, 2048*512*2); self.srd(32, 62, 2048*512*2); self.srd(40, 66, WS_SIZE)
        g("s_barrier")
        for grp in self.cmap(): g.add(grp)
        vTch = V(1)
        g(f"s_cmp_eq_u32 {sW}, 0"); g("s_cselect_b64 s[6:7], s[52:53], s[60:61]"); g(f"s_cselect_b32 s4, 16, 43")
        g("s_mov_b32 s12, s6"); g("s_and_b32 s13, s7, 0xffff"); g("s_mov_b32 s15, 0x20000"); g("s_lshl_b32 s14, s4, 15")
        g("s_mul_i32 s6, s4, s2"); g(f"v_add_u32 v{a}, s6, v{L}"); g(f"v_lshlrev_b32 v{a}, 7, v{a}")
        g(f"s_cmp_lt_u32 {sW}, 2"); g("s_cselect_b32 s4, s4, 0")
        g(f"v_mov_b32 v{b}, 0x80000000"); g(f"v_cmp_gt_u32 vcc, s4, v{L}"); g(f"v_cndmask_b32 v{vTch}, v{b}, v{a}, vcc")
        sGrp = self.s()
        g(f"s_lshr_b32 {sGrp}, s2, 3"); g(f"s_and_b32 {sGrp}, {sGrp}, {self.opt.get('t_mask', 7)}")
        self.sync_consts(a)
        self.consts(a, b)
        g("s_mov_b32 s6, 0"); g("s_mov_b32 s7, 0x0000ffff")
        g(f"v_cndmask_b32 v{a}, v{self.vP3}, v{self.vP2}, s[6:7]")
        g("s_mov_b32 s7, 0xffff0000"); vFw = V(1); g(f"v_cndmask_b32 v{vFw}, v{a}, v{self.vP1}, s[6:7]")
        vXr = [V(1), V(1)]; vXr4 = [V(1), V(1)]; vSr = [V(1), V(1)]; vS0 = V(1); vWr = V(1)
        g(f"v_bfe_u32 v{a}, v{L}, 1, 3"); g(f"v_lshrrev_b32 v{b}, 4, v{L}"); g(f"v_xor_b32 v{a}, v{a}, v{b}"); g(f"v_lshlrev_b32 v{a}, 4, v{a}")
        g(f"v_and_b32 v{c}, 15, v{L}"); g(f"v_lshl_add_u32 v{vXr[0]}, v{c}, 7, v{a}"); g(f"v_xor_b32 v{vXr[1]}, 64, v{vXr[0]}")
        g(f"s_add_u32 s4, {sW}, 1"); g("s_lshl_b32 s4, s4, 14")
        for i in range(2):
            g(f"v_add_u32 v{vXr4[i]}, 0x10000, v{vXr[i]}"); g(f"v_add_u32 v{vSr[i]}, s4, v{vXr[i]}")
        g(f"s_and_b32 s4, {sW}, 1"); g("s_lshl_b32 s4, s4, 6"); g(f"v_xor_b32 v{vS0}, s4, v{vXr[0]}")
        g(f"s_lshr_b32 s4, {sW}, 1"); g("s_lshl_b32 s4, s4, 11"); g(f"v_add_u32 v{vS0}, s4, v{vS0}")
        g(f"v_bfe_u32 v{a}, v{L}, 3, 2"); g(f"v_xor_b32 v{a}, {sW}, v{a}"); g(f"v_lshlrev_b32 v{a}, 5, v{a}")
        g(f"v_mul_u32_u24 v{b}, 3072, v{b}"); g(f"v_bfe_u32 v{c}, v{L}, 2, 2"); g(f"v_lshl_add_u32 v{a}, v{c}, 7, v{a}")
        g(f"v_and_b32 v{c}, 3, v{L}"); g(f"v_lshl_add_u32 v{a}, v{c}, 3, v{a}"); g(f"v_add_u32 v{a}, {RING}, v{a}"); g(f"v_add_u32 v{vWr}, v{a}, v{b}")
        BC, BP, BP1, MK = V(4, 4), V(4, 4), V(4, 4), V(4, 4)
        vT1, vT2, vTo, vTp, vTq = V(1), V(1), V(1), V(1), V(1)
        g(f"v_and_b32 v{a}, 15, v{L}"); g(f"v_lshrrev_b32 v{b}, 4, v{L}")
        g(f"v_lshlrev_b32 v{vT1}, 2, v{a}"); g(f"v_add_u32 v{vT1}, {TAB}, v{vT1}")
        g(f"v_lshlrev_b32 v{vT2}, 4, v{b}"); g(f"v_add_u32 v{vT2}, {TAB}, v{vT2}")
        g(f"s_lshl_b32 s4, {sW}, 6"); g(f"v_add_u32 v{vTo}, s4, v{vT1}")
        g(f"s_lshl_b32 s4, {sW}, 7"); g(f"v_add_u32 v{vTp}, s4, v{vT1}"); g(f"v_add_u32 v{vTq}, s4, v{vT2}")
        g(f"v_lshlrev_b32 v{b}, 2, v{b}"); g(f"v_sub_u32 v{a}, v{a}, v{b}"); g(f"v_mov_b32 v{c}, {f32(-1e30)}")
        g(f"s_cmp_eq_u32 {sRB}, 0"); g("s_cselect_b64 s[58:59], 0, -1")
        for r in range(4):
            g(f"v_subrev_u32 v{b}, {r}, v{a}"); g(f"v_and_b32 v{b}, 0x80000001, v{b}")
            g(f"v_cmp_eq_u32 vcc, 0, v{b}"); g(f"v_cndmask_b32 v{BC+r}, v{c}, 0, vcc")
            g(f"v_cmp_eq_u32 vcc, 0x80000000, v{b}"); g(f"v_cndmask_b32 v{BP+r}, v{c}, 0, vcc")
            g(f"v_cndmask_b32 v{BP1+r}, v{c}, v{BP+r}, s[58:59]")
        for i, B in enumerate((BP, BC)):
            for h in range(2):
                g(f"v_ashrrev_i32 v{a}, 31, v{B+2*h}"); g(f"v_ashrrev_i32 v{b}, 31, v{B+2*h+1}")
                g(f"v_and_b32 v{a}, 0xffff, v{a}"); g(f"v_and_b32 v{b}, 0xffff0000, v{b}"); g(f"v_or_b32 v{a}, v{a}, v{b}"); g(f"v_not_b32 v{MK+2*i+h}, v{a}")
        for i, m in enumerate((0x22222222, 0x44444444, 0x88888888)): g(f"s_mov_b32 s{54+2*i}, {m:#x}"); g(f"s_mov_b32 s{55+2*i}, {m:#x}")
        g(f"s_mov_b32 s60, {f32(1/512)}"); g(f"s_mov_b32 s61, {f32(0.25*LOG2E)}")
        FB = [V(40, 4), V(40, 4)]
        XF = [[FB[i] + 4*t for t in range(5)] for i in range(2)]
        WF = [[FB[i] + 20 + 4*p for p in range(3)] for i in range(2)]
        SF = [[FB[i] + 32, FB[i] + 36] for i in range(2)]
        Q = [V(4, 4) for t in range(5)]; Kc = [V(4, 4) for t in range(5)]; Vc = [V(4, 4) for t in range(5)]
        G0, S0, GS, SS = V(4, 4), V(4, 4), V(4, 4), V(4, 4)
        blocks = []
        for q in range(4): blocks += [("own", 4*q + i) for i in range(4)] + [("t0", q)]
        def stat_blocks(s): return [(j, blocks[j]) for j in (2*(s-2), 2*(s-2)+1) if 0 <= j < 20] if s >= 2 else []
        def reads(s):
            g.begin(); bi = s & 1
            for p in range(3):
                for j2 in range(2): g(f"ds_read_b64_tr_b16 {vr(WF[bi][p]+2*j2,2)}, v{vWr} offset:{(s%6)*12288 + p*K1 + j2*512}")
                if p == 0:
                    for t in range(4): g(f"ds_read_b128 {vr(XF[bi][t],4)}, v{vXr[s&1]} offset:{t*16384 + (s>>1)*2048}")
                    g(f"ds_read_b128 {vr(XF[bi][4],4)}, v{vXr4[s&1]} offset:{(s>>1)*2048}")
            for j, (kind, x) in stat_blocks(s):
                if kind == "own": g(f"ds_read_b128 {vr(SF[bi][j&1],4)}, v{vSr[x&1]} offset:{(x>>1)*2048}")
                else: g(f"ds_read_b128 {vr(SF[bi][j&1],4)}, v{vS0} offset:{x*4096}")
            return g.end()
        def mfmas(s):
            g.begin(); bi = s & 1
            def mf(d, x, y, first): g(f"v_mfma_f32_16x16x32_bf16 {vr(d,4)}, {vr(x,4)}, {vr(y,4)}, {0 if first else vr(d,4)}")
            for t in range(5): mf(Q[t], WF[bi][0], XF[bi][t], s == 0)
            for t in range(5): mf(Kc[t], WF[bi][1], XF[bi][t], s == 0)
            for t in range(5): mf(Vc[t], XF[bi][t], WF[bi][2], s == 0)
            for j, (kind, x) in stat_blocks(s):
                f = SF[bi][j&1]; G, S = (GS, SS) if kind == "own" else (G0, S0)
                mf(G, f, f, x == 0); mf(S, ONES, f, x == 0)
            return g.end()
        def diag(dst, src):
            g(f"v_cndmask_b32 v{dst}, v{src}, v{src+1}, s[54:55]"); g(f"v_cndmask_b32 v{dst}, v{dst}, v{src+2}, s[56:57]")
            g(f"v_cndmask_b32 v{dst}, v{dst}, v{src+3}, s[58:59]")
        def meanrstd(S, Qq, M, R):
            g(f"v_mul_f32 v{M}, s60, v{S}"); g(f"v_mul_f32 v{Qq}, s60, v{Qq}"); g(f"v_fma_f32 v{Qq}, -v{M}, v{M}, v{Qq}")
            g(f"v_max_f32 v{Qq}, 0, v{Qq}"); g(f"v_add_f32 v{Qq}, {f32(1e-5)}, v{Qq}"); g(f"v_rsq_f32 v{R}, v{Qq}")
        g.begin(); diag(a, GS); diag(b, G0); meanrstd(SS, a, SS+1, SS+2); fin1 = singles(g.end())
        fin1.append(self.grp("s_mov_b32 exec_lo, 0x00f0000f", "s_mov_b32 exec_hi, 0xf0000f00",
                             f"ds_write_b32 v{vTo}, v{SS+1} offset:64", f"ds_write_b32 v{vTo}, v{SS+2} offset:{512+64}",
                             f"ds_write_b32 v{vTp}, v{S0} offset:1024", f"ds_write_b32 v{vTp}, v{b} offset:{1024+64}", "s_mov_b64 exec, -1") + self.sig(K_TB))
        M1 = V(6); R1 = V(6)
        PT = SF[1][0]
        M2 = [FB[0] + 4*t for t in range(5)]; R2 = [FB[0] + 20 + 4*t for t in range(5)]
        g.begin()
        for i in range(4):
            g(f"ds_read_b32 v{PT+i}, v{vT1} offset:{1024+128*i}"); g(f"ds_read_b32 v{PT+4+i}, v{vT1} offset:{1024+128*i+64}")
        for t in range(1, 5):
            g(f"ds_read_b32 v{M1+t}, v{vT1} offset:{t*64}"); g(f"ds_read_b32 v{R1+t}, v{vT1} offset:{512+t*64}")
        for x in (PT, PT+4):
            g(f"v_add_f32 v{x}, v{x}, v{x+1}"); g(f"v_add_f32 v{x+2}, v{x+2}, v{x+3}"); g(f"v_add_f32 v{x}, v{x}, v{x+2}")
        meanrstd(PT, PT+4, M1, R1)
        g(f"ds_write_b32 v{vTp}, v{M1} offset:2048"); g(f"ds_write_b32 v{vTp}, v{R1} offset:{2048+64}")
        fin2 = singles(g.end())
        g.begin()
        for t in range(1, 5):
            g(f"ds_read_b128 {vr(M2[t],4)}, v{vT2} offset:{t*64}"); g(f"ds_read_b128 {vr(R2[t],4)}, v{vT2} offset:{512+t*64}")
        g(f"ds_read_b128 {vr(M2[0],4)}, v{vTq} offset:2048"); g(f"ds_read_b128 {vr(R2[0],4)}, v{vTq} offset:{2048+64}")
        fin3 = singles(g.end()) + [self.sig(K_T2)]
        vN = V(2); XR = self.vHP
        tk = V(1)
        self.stamp("pre")
        self.lwait(K_A, tk)
        self.stamp("bar0")
        g.add(reads(0)); g.add(self.lchk_issue(K_A + 1, tk))
        T0 = self.opt.get("t_start", 2)
        stg = {0: 1, 1: 2, 3: 3, 5: 4, 7: 5, 9: 6, 11: 7, 13: 8}
        for s in range(16):
            g.comment(f"A step {s}")
            if self.opt.get("ast", 0): self.stamp(f"s{s}")
            mf = mfmas(s); W = Weave(mf, 2); n = len(mf)
            if self.opt.get("nomf", 0): mf2 = [Ins("s_nop 0") for _ in mf]; W = Weave(mf2, 2)
            if s in stg: W.at(0, self.lchk_check(K_A + stg[s], tk))
            if s < 15:
                rs = singles(reads(s + 1))
                if s % 2 == 0 and s <= 8: rs[-1] = rs[-1] + self.sig(K_F + s // 2)
                if s == 14: rs[-1] = rs[-1] + self.sig(K_AE)
                W.even(rs, 1, n - 3)
            if s + 1 in stg: W.at(n - 4, self.lchk_issue(K_A + stg[s + 1], tk))
            if self.opt.get("touch", 1) and T0 <= s < T0 + 8:
                Ls = g.newlabel("L_t")
                g.begin(); g(f"s_cmp_lg_u32 {sGrp}, {s - T0}"); g(f"s_cbranch_scc1 {Ls}")
                g.raw(f"    buffer_load_dword v{self.vJunk}, v{vTch}, s[12:15], 0 offen"); g.raw(Ls + ":")
                W.at(n - 3, g.end())
            if s == 1: W.at(n - 3, self.grp(f"buffer_load_dword v{c}, v{vFw}, {SWS}, 0 offen sc1"))
            if s == 11: W.at(n - 3, self.grp(f"v_mov_b32 v{vN}, 0", f"buffer_load_dwordx2 {vr(vN,2)}, v{vN}, {SDBG}, 0 offen sc1"))
            if s == 13:
                W.at(n - 3, self.grp(f"buffer_load_dwordx4 {vr(XR,4)}, v{self.vRM}, {SX}, 0 offen"))
                W.at(n - 2, self.grp(f"buffer_load_dwordx4 {vr(XR+4,4)}, v{self.vRM}, {SX}, 0 offen offset:32"))
            if s == 12:
                left, _ = W.fill(fin1, 1)
                for grp in left: W.at(n - 1, grp)
            if s == 13:
                W.at(2, self.lchk_issue(K_TB, a)); W.at(6, self.lchk_check(K_TB, a))
            if s in (13, 14): fin2, _ = W.fill(fin2, 7 if s == 13 else 0, cap=3)
            if s == 15:
                left, _ = W.fill(fin2 + fin3, 0)
                for grp in left: W.at(n - 1, grp)
            g.add(W.out())
        self.stamp("loop")
        for r in [vWr, vS0, vT1, vT2, vTo, vTp, vTq, vTch, vFw, tk] + vXr + vXr4 + vSr: V.release(r)
        for r in (G0, S0, GS, SS): V.release(r, 4)
        V.release(FB[1], 40)
        CSQ, CSK = V(4, 4), V(4, 4); CSV = V(2)
        for r in range(4): g(f"v_mov_b32_dpp v{CSQ+r}, v{Q[0]+r} row_newbcast:0 row_mask:0xf bank_mask:0xf")
        for r in range(4): g(f"v_mov_b32_dpp v{CSK+r}, v{Kc[0]+r} row_newbcast:0 row_mask:0xf bank_mask:0xf")
        QB = [None] + [V(2) for t in range(4)]; KB = [V(2) for t in range(5)]; VB = V(10, 2)
        bc = lambda reg: (vr(reg & ~1, 2), reg & 1)
        for t in range(5):
            mp, ms = bc(M1 + t); rp, rs = bc(R1 + t)
            for X, CS in ((Q[t], CSQ), (Kc[t], CSK)):
                if X == Q[0]: continue
                for h in range(2):
                    g(f"v_pk_fma_f32 {vr(X+2*h,2)}, {mp}, {vr(CS+2*h,2)}, {vr(X+2*h,2)} op_sel:[{ms},0,0] op_sel_hi:[{ms},1,1] neg_lo:[1,0,0] neg_hi:[1,0,0]")
            for h in range(2): g(f"v_pk_mul_f32 {vr(Kc[t]+2*h,2)}, {rp}, {vr(Kc[t]+2*h,2)} op_sel:[{rs},0] op_sel_hi:[{rs},1]")
            if t == 0: g(f"v_mov_b32 v{CSV}, v{Vc[0]}"); g(f"v_mov_b32 v{CSV+1}, v{Vc[0]}")
            if t == 1: g(f"v_permlane16_swap_b32 v{CSV}, v{CSV+1}")
            if t == 2: g(f"v_mov_b32 v{CSV+1}, v{CSV}")
            if t == 3: g(f"v_permlane32_swap_b32 v{CSV}, v{CSV+1}")
            if t:
                for h in range(2): g(f"v_cvt_pk_bf16_f32 v{QB[t]+h}, v{Q[t]+2*h}, v{Q[t]+2*h+1}")
            for h in range(2): g(f"v_cvt_pk_bf16_f32 v{KB[t]+h}, v{Kc[t]+2*h}, v{Kc[t]+2*h+1}")
        for t in range(5):
            for h in range(2):
                g(f"v_pk_fma_f32 {vr(Vc[t]+2*h,2)}, {vr(M2[t]+2*h,2)}, {vr(CSV,2)}, {vr(Vc[t]+2*h,2)} op_sel_hi:[1,0,1] neg_lo:[1,0,0] neg_hi:[1,0,0]")
            for h in range(2): g(f"v_pk_mul_f32 {vr(Vc[t]+2*h,2)}, {vr(R2[t]+2*h,2)}, {vr(Vc[t]+2*h,2)}")
        V.release(FB[0], 40)
        R4 = range(1, 5)
        SP = {t: Q[t] for t in R4}; SC = {t: Kc[t] for t in R4}
        AQ = {t: V(1) for t in R4}; U = {t: V(2) for t in R4}; MX = {t: V(1) for t in R4}; TX = {t: V(1) for t in R4}
        cv = [f"v_cvt_pk_bf16_f32 v{VB+2*t+h}, v{Vc[t]+2*h}, v{Vc[t]+2*h+1}" for t in range(5) for h in range(2)]
        cv += [f"v_mul_f32 v{AQ[t]}, s61, v{R1+t}" for t in R4] + [f"v_readfirstlane_b32 s70, v{vN}", f"v_readfirstlane_b32 s71, v{vN+1}"]
        for t in R4:
            g(f"v_mfma_f32_16x16x16_bf16 {vr(SP[t],4)}, {vr(KB[t-1],2)}, {vr(QB[t],2)}, {vr(BP1 if t == 1 else BP,4)}")
            g(cv.pop(0)); g(cv.pop(0))
            g(f"v_mfma_f32_16x16x16_bf16 {vr(SC[t],4)}, {vr(KB[t],2)}, {vr(QB[t],2)}, {vr(BC,4)}")
            g(cv.pop(0)); g(cv.pop(0))
        for t in R4:
            for h in range(2): g(f"v_max3_f32 v{U[t]+h}, v{SP[t]+2*h}, v{SP[t]+2*h+1}, v{SC[t]+2*h}")
        for t in R4:
            for h in range(2): g(f"v_max_f32 v{U[t]+h}, v{U[t]+h}, v{SC[t]+2*h+1}")
        for t in R4: g(f"v_max_f32 v{MX[t]}, v{U[t]}, v{U[t]+1}")
        for t in R4: g(f"v_max_f32 v{TX[t]}, v{U[t]}, v{U[t]+1}")
        for t in R4: g(f"v_permlane16_swap_b32 v{MX[t]}, v{TX[t]}")
        for t in R4: g(f"v_max_f32 v{MX[t]}, v{MX[t]}, v{TX[t]}")
        for t in R4: g(f"v_mov_b32 v{TX[t]}, v{MX[t]}")
        for t in R4: g(f"v_permlane32_swap_b32 v{MX[t]}, v{TX[t]}")
        for t in R4: g(f"v_max_f32 v{MX[t]}, v{MX[t]}, v{TX[t]}")
        for t in R4:
            for h in range(2): g(f"v_sub_f32 v{U[t]+h}, v{U[t]+h}, v{MX[t]}")
        for t in R4:
            for h in range(2): g(f"v_mul_f32 v{U[t]+h}, v{U[t]+h}, v{AQ[t]}")
        for t in R4:
            for h in range(2): g(f"v_exp_f32 v{U[t]+h}, v{U[t]+h}")
        PB = {t: V(4, 4) for t in R4}
        for t in R4:
            for h in range(2): g(f"v_cvt_pk_bf16_f32 v{U[t]+h}, v{U[t]+h}, v{U[t]+h}")
        for t in R4:
            for i in range(4): g(f"v_and_b32 v{PB[t]+i}, v{MK+i}, v{U[t]+(i&1)}")
            if t > 1:
                g(f"v_mfma_f32_16x16x32_bf16 {vr(SP[t-1],4)}, {vr(ONES,4)}, {vr(PB[t-1],4)}, 0")
                g(f"v_mfma_f32_16x16x32_bf16 {vr(SC[t-1],4)}, {vr(VB+2*(t-2),4)}, {vr(PB[t-1],4)}, 0")
        g(f"v_mov_b32 v{self.vNON}, s70"); g(f"v_mov_b32 v{self.vNON+1}, s71")
        g(f"v_mfma_f32_16x16x32_bf16 {vr(SP[4],4)}, {vr(ONES,4)}, {vr(PB[4],4)}, 0")
        g(f"v_mfma_f32_16x16x32_bf16 {vr(SC[4],4)}, {vr(VB+6,4)}, {vr(PB[4],4)}, 0")
        OB = [PB[1], PB[3]]
        for pr in range(2):
            for t in (1 + 2*pr, 2 + 2*pr): g(f"v_rcp_f32 v{MX[t]}, v{SP[t]}")
            for t in (1 + 2*pr, 2 + 2*pr):
                for r in range(4): g(f"v_mul_f32 v{SC[t]+r}, v{MX[t]}, v{SC[t]+r}")
            for i, t in enumerate((1 + 2*pr, 2 + 2*pr)):
                for h in range(2): g(f"v_cvt_pk_bf16_f32 v{OB[pr]+2*i+h}, v{SC[t]+2*h}, v{SC[t]+2*h+1}")
            for h in range(2): g(f"v_permlane16_swap_b32 v{OB[pr]+h}, v{OB[pr]+2+h}")
            g(f"buffer_store_dwordx4 {vr(OB[pr],4)}, v{self.vL16}, {SWS}, {self.sO1 if pr else self.sO0} offen sc1", tag="ost")
        self.nonce_slow("C", a)
        self.stamp("Aepi")
        for t in range(5):
            V.release(Q[t], 4); V.release(Kc[t], 4); V.release(Vc[t], 4); V.release(KB[t], 2)
        for t in R4:
            V.release(QB[t], 2); V.release(MX[t]); V.release(TX[t]); V.release(AQ[t]); V.release(U[t], 2); V.release(PB[t], 4)
        V.release(M1, 6); V.release(R1, 6); V.release(VB, 10); V.release(CSV, 2); V.release(vN, 2)
        for r in (CSQ, CSK, BC, BP, BP1, MK, ONES): V.release(r, 4)
        V.release(a); V.release(b); V.release(c); V.release(0); V.release(self.vJunk)

    def red_consts(self):
        g, V = self.g, self.V
        self.vRw = [V(1), V(1), V(1)]; self.vRr = V(1)
        for i in (1, 2, 3):
            g(f"s_xor_b32 s4, {sW}, {i}"); g("s_lshl_b32 s4, s4, 14"); g(f"s_add_u32 s4, s4, {64*K1 + (i-1)*4096}")
            g(f"v_add_u32 v{self.vRw[i-1]}, s4, v{self.vL16}")
        g(f"s_lshl_b32 s4, {sW}, 14"); g(f"s_add_u32 s4, s4, {64*K1}"); g(f"v_add_u32 v{self.vRr}, s4, v{self.vL16}")
    def red_free(self):
        for x in self.vRw + [self.vRr]: self.V.release(x)
    def red_write(self, ACC, a):
        return [self.grp(f"ds_write_b128 v{self.vRw[a-1]}, {vr(ACC[a]+4*j,4)} offset:{j*K1}") for j in range(4)]
    def red_add(self, ACC, T):
        g = self.g
        for i in range(12): g(f"ds_read_b128 {vr(T+4*i,4)}, v{self.vRr} offset:{i*K1}")
        return [f"v_pk_add_f32 {vr(ACC[0]+2*j,2)}, {vr(ACC[0]+2*j,2)}, {vr(T+16*a+2*j,2)}" for a in range(3) for j in range(8)]

    def phaseB(self):
        g, V = self.g, self.V
        XR = self.vHP
        WB = V(64, 4); OF = V(64, 4); ACC = [V(16, 4) for _ in range(4)]; rd = [V(1), V(1)]; t2 = V(2); t1 = V(1)
        self.red_consts()
        g(f"v_add_u32 v{rd[0]}, s4, v{self.vKr}"); g(f"v_xor_b32 v{rd[1]}, 64, v{rd[0]}")
        for j in range(8):
            g(f"v_lshlrev_b32 v{ACC[0]+2*j}, 16, v{XR+j}"); g(f"v_and_b32 v{ACC[0]+2*j+1}, 0xffff0000, v{XR+j}")
        g.waitvm("ost"); self.flag(self.sF1)
        PZ = self.opt.get("pause", 1)
        if PZ == 2: g.add(self.pause(1))
        self.stamp("F1")
        self.lwait(K_WB, t1, own=True)
        for ks in range(8):
            for ct in range(2):
                for j2 in range(2): g(f"ds_read_b64_tr_b16 {vr(WB+(ks*2+ct)*4+2*j2,2)}, v{rd[ct]} offset:{ks*2048+j2*512}")
        g.add(self.sig(K_B2))
        self.stamp("Bpre")
        self.poll(self.vP1, t2)
        if PZ == 1: g.add(self.pause(1))
        self.stamp("P1")
        lo = [(ks, rt) for rt in (1, 0) for ks in range(8)]
        lds = [self.grp(f"buffer_load_dwordx4 {vr(OF+(ks*2+rt)*4,4)}, v{self.vL16}, {SWS}, {self.sOF[rt][ks//4]} offen offset:{(ks%4)*K1} sc1") for ks, rt in lo]
        NL0 = self.opt.get("b_l0", 8)
        for grp in lds[:NL0]: g.add(grp)
        g.begin()
        for ks, rt in lo:
            for ct in (1, 0):
                a = 2*rt + ct
                g(f"v_mfma_f32_32x32x16_bf16 {vr(ACC[a],16)}, {vr(WB+(ks*2+ct)*4,4)}, {vr(OF+(ks*2+rt)*4,4)}, {vr(ACC[a],16) if (ks or a == 0) else 0}")
        mf = g.end(); W = Weave(mf, 5)
        for i, grp in enumerate(lds[NL0:]): W.at(2*i, grp)
        if PZ: W.at(2*(len(lds) - NL0), self.pause(0))
        W.at(12, self.lchk_issue(K_B2, t1)); W.at(17, self.lchk_check(K_B2, t1))
        W.even(self.red_write(ACC, 3) + self.red_write(ACC, 2), 19, 31)
        g.add(W.out())
        self.stamp("Bmf")
        for grp in self.red_write(ACC, 1): g.add(grp)
        g.add(self.sig(K_B3))
        self.lwait(K_B3, t1)
        adds = self.red_add(ACC, WB)
        g.add(self.sig(K_B4))
        for l in adds: g(l)
        H = ACC[0]
        for j in range(8): g(f"v_cvt_pk_bf16_f32 v{self.vHP+j}, v{H+2*j}, v{H+2*j+1}")
        g(f"buffer_store_dwordx4 {vr(self.vHP,4)}, v{self.vL16}, {SWS}, {self.sHs} offen sc1", tag="hst")
        g(f"buffer_store_dwordx4 {vr(self.vHP+4,4)}, v{self.vL16}, {SWS}, {self.sHs} offen offset:1024 sc1", tag="hst")
        S2, Q2 = ACC[1], ACC[1] + 2
        g(f"v_pk_add_f32 {vr(S2,2)}, {vr(H,2)}, {vr(H+2,2)}"); g(f"v_pk_mul_f32 {vr(Q2,2)}, {vr(H,2)}, {vr(H,2)}")
        g(f"v_pk_fma_f32 {vr(Q2,2)}, {vr(H+2,2)}, {vr(H+2,2)}, {vr(Q2,2)}")
        for j in range(2, 8):
            g(f"v_pk_add_f32 {vr(S2,2)}, {vr(S2,2)}, {vr(H+2*j,2)}")
            g(f"v_pk_fma_f32 {vr(Q2,2)}, {vr(H+2*j,2)}, {vr(H+2*j,2)}, {vr(Q2,2)}")
        g(f"v_add_f32 v{S2}, v{S2}, v{S2+1}"); g(f"v_add_f32 v{Q2}, v{Q2}, v{Q2+1}")
        g(f"v_permlane32_swap_b32 v{S2}, v{Q2}")
        g(f"v_add_f32 v{S2}, v{S2}, v{Q2}")
        g(f"buffer_store_dword v{S2}, v{self.vL4}, {SWS}, {self.sHt} offen sc1", tag="hst")
        self.stamp("Bst")
        V.release(WB, 64); V.release(OF, 64); V.release(t2, 2); V.release(t1); V.release(self.vP1)
        for x in ACC: V.release(x, 16)
        for x in rd: V.release(x)
        self.red_free()

    def phaseC(self):
        g, V = self.g, self.V
        HF = V(128, 4); ACC = [V(16, 4) for _ in range(4)]; ST = ACC[2]
        NF = self.opt.get("c_nf", 5); FR = [V(4, 4) for _ in range(NF)]
        MF = V(4, 4); T = V(8, 4); t2 = V(2); AA = V(2); VV, t1, vHi, vCt = V(1), V(1), V(1), V(1)
        A0, A1 = AA, AA + 1
        g(f"v_add_u32 v{vHi}, 0x10000, v{self.vL16}"); g(f"v_add_u32 v{vCt}, {CST}, v{self.vL16}")
        g(f"s_add_u32 s54, {self.sCo}, 4096")
        g.waitvm("hst"); self.flag(self.sF2)
        PZ = self.opt.get("pause", 1)
        self.stamp("F2")
        g(f"s_cmp_eq_u32 {sCGX}, 15")
        g.branch("s_cbranch_scc1 L_skipC", keep=True)
        g.begin(); g.label("L_skipC", keep=True)
        for kw, k in ((K_C01, K_P0), (K_C23, K_U3), (K_C45, K_U5)): self.lwait(kw, t1, sleep=2); g.add(self.sig(k))
        g.branch("s_branch L_cdone"); self.tail.append(g.end())
        self.lwait(K_C01, t1, sleep=1)
        if PZ == 2: g.add(self.pause(1))
        self.stamp("C01")
        seq = [(2*p + e, ks) for p in range(3) for ks in range(33) for e in range(2)]
        idx = {x: i for i, x in enumerate(seq)}
        RA = NF - 1
        def rd(i):
            u, ks = seq[i]; g.begin()
            if ks < 32: g(f"ds_read_b128 {vr(FR[i % NF],4)}, v{vHi if (u//2) % 2 else self.vL16} offset:{(u%2)*32768 + ks*K1}")
            else: g(f"ds_read_b128 {vr(FR[i % NF],4)}, v{vCt} offset:{u*K1}")
            if ks == 31 and u % 2: g.add(self.sig((K_P0, K_U3, K_U5)[u // 2]))
            return g.end()
        for i in range(RA): g.add(rd(i))
        self.poll(self.vP2, t2)
        if PZ == 1: g.add(self.pause(1))
        self.stamp("P2")
        hl = []
        for ks in range(32):
            l = [f"s_add_u32 {self.sCh}, {self.sCh}, 4096"] if (ks % 4 == 0 and ks) else []
            l.append(f"buffer_load_dwordx4 {vr(HF+4*ks,4)}, v{self.vL16}, {SWS}, {self.sCh} offen offset:{(ks%4)*K1} sc1")
            hl.append(self.grp(*l))
        sl = [self.grp(f"buffer_load_dword v{ST+i}, v{self.vL4}, {SWS}, {self.sCt} offen offset:{i*256} sc1") for i in range(16)]
        NH0 = self.opt.get("c_h0", 8)
        for grp in hl[:NH0]: g.add(grp)
        g.begin()
        for st in (8, 4, 2, 1):
            for i in range(st): g(f"v_add_f32 v{ST+i}, v{ST+i}, v{ST+i+st}")
        g(f"v_mov_b32 v{ST+1}, v{ST}")
        g(f"v_permlane32_swap_b32 v{ST}, v{ST+1}")
        g(f"v_mul_f32 v{ST}, s60, v{ST}"); g(f"v_mul_f32 v{ST+1}, s60, v{ST+1}")
        g(f"v_fma_f32 v{ST+1}, -v{ST}, v{ST}, v{ST+1}"); g(f"v_max_f32 v{ST+1}, 0, v{ST+1}")
        g(f"v_add_f32 v{VV}, {f32(1e-5)}, v{ST+1}")
        g(f"v_rsq_f32 v{ST+2}, v{VV}")
        c0 = -2.0 * 0.7978845608028654 * LOG2E
        g(f"v_cvt_pk_bf16_f32 v{MF}, -v{ST}, -v{ST}")
        g(f"v_mul_f32 v{A0}, {f32(c0)}, v{ST+2}"); g(f"v_mul_f32 v{ST+3}, v{ST+2}, v{ST+2}")
        g(f"v_mul_f32 v{A1}, {f32(0.044715)}, v{A0}"); g(f"v_mul_f32 v{A1}, v{ST+3}, v{A1}")
        g(f"v_and_b32 v{ST+4}, 0xffff0000, v{MF}"); g(f"v_sub_f32 v{ST+4}, -v{ST}, v{ST+4}")
        g(f"v_cvt_pk_bf16_f32 v{MF+1}, v{ST+4}, 0")
        g(f"v_mov_b32 v{MF+2}, v{MF}"); g(f"v_mov_b32 v{MF+3}, v{MF+1}")
        stats = singles(g.end())
        def store(u, G): g(f"buffer_store_dwordx4 {vr(G,4)}, v{self.vL16}, {SWS}, {self.sCo if u < 4 else 's54'} offen offset:{(u%4)*K1} sc1", tag=f"hh{u}")
        def epi(u):
            g.begin(); G = ACC[u % 4]; U = G + 8
            for i in range(8): g(f"v_mul_f32 v{T+i}, v{G+i}, v{G+i}")
            for i in range(8): g(f"v_fma_f32 v{T+i}, v{T+i}, v{A1}, v{A0}")
            for i in range(8): g(f"v_mul_f32 v{T+i}, v{G+i}, v{T+i}")
            for i in range(8):
                g(f"v_exp_f32 v{T+i}, v{T+i}"); g(f"v_mul_f32 v{U+i}, v{G+i}, v{U+i}")
            for i in range(8): g(f"v_fma_f32 v{T+i}, v{T+i}, v{VV}, v{VV}")
            for i in range(8):
                g(f"v_rcp_f32 v{T+i}, v{T+i}")
                if i: g(f"v_mul_f32 v{U+i-1}, v{U+i-1}, v{T+i-1}")
            g(f"v_mul_f32 v{U+7}, v{U+7}, v{T+7}")
            for i in range(4): g(f"v_cvt_pk_bf16_f32 v{G+i}, v{U+2*i}, v{U+2*i+1}")
            store(u, G)
            return singles(g.end())
        def epi_pk(u, T):
            G = ACC[u % 4]; U = G + 8; P = lambda x, i: vr(x + 2*i, 2)
            vv = (vr(VV & ~1, 2), VV & 1)
            for i in range(4): g(f"v_pk_mul_f32 {P(T,i)}, {P(G,i)}, {P(G,i)}")
            for i in range(4): g(f"v_pk_fma_f32 {P(T,i)}, {P(T,i)}, {vr(AA,2)}, {vr(AA,2)} op_sel:[0,1,0] op_sel_hi:[1,1,0]")
            for i in range(4): g(f"v_pk_mul_f32 {P(T,i)}, {P(G,i)}, {P(T,i)}")
            for i in range(8): g(f"v_exp_f32 v{T+i}, v{T+i}")
            for i in range(4): g(f"v_pk_mul_f32 {P(U,i)}, {P(G,i)}, {P(U,i)}")
            for i in range(4): g(f"v_pk_fma_f32 {P(T,i)}, {P(T,i)}, {vv[0]}, {vv[0]} op_sel:[0,{vv[1]},{vv[1]}] op_sel_hi:[1,{vv[1]},{vv[1]}]")
            for i in range(8): g(f"v_rcp_f32 v{T+i}, v{T+i}")
            for i in range(4): g(f"v_pk_mul_f32 {P(U,i)}, {P(U,i)}, {P(T,i)}")
            for i in range(4): g(f"v_cvt_pk_bf16_f32 v{G+i}, v{U+2*i}, v{U+2*i+1}")
            store(u, G)
        def flg(u):
            g.begin(); g.waitvm(f"hh{u}"); self.flag(self.sF3, off=16*u, full=False); return g.end()
        g.begin()
        for i, (u, ks) in enumerate(seq):
            acc = ACC[u % 4]
            g(f"v_mfma_f32_32x32x16_bf16 {vr(acc,16)}, {vr(FR[i % NF],4)}, {vr(HF+4*ks,4) if ks < 32 else vr(MF,4)}, {vr(acc,16) if ks else 0}")
        mf = g.end(); W = Weave(mf, self.opt.get("c_cap", 5))
        for key, k in (((2, 0), K_C23), ((4, 0), K_C45), ((0, 30), K_CS), ((2, 30), K_CS + 1), ((4, 30), K_CS + 2)):
            at = idx[key] - RA; tk = t1 if key[1] == 0 else t2
            W.at(at - 5, self.lchk_issue(k, tk)); W.at(at - 1, self.lchk_check(k, tk))
        for i in range(RA, len(seq)): W.at(i - RA, rd(i))
        for i in range(0, len(seq) - 1, 2):
            g.begin(); g.needs(vr(FR[(i + 1) % NF], 4)); W.before(i, g.end())
        pos = 0
        for grp in hl[NH0:]: W.at(pos, grp); pos += 2
        for k, grp in enumerate(sl): W.at(1 + 2*k, grp)
        if PZ: W.at(self.opt.get("c_unp", pos), self.pause(0))
        left, _ = W.fill(stats, 46, 63); assert not left
        if self.stamps and self.opt.get("cst", 0):
            for key in ((0, 16), (2, 0), (2, 16), (4, 0), (4, 16)):
                g.begin(); self.stamp("c%d_%d" % key); W.before(idx[key], g.end())
        self.lateflags = []; FL = self.opt.get("c_fl", 36)
        for p in range(2):
            pos = idx[(2*p + 2, 1)]; limit = idx[(2*p + 2, 32)]
            for u in (2*p, 2*p + 1):
                rest, pos = W.fill(epi(u), pos, limit, cap=self.opt.get("e_cap", 5)); assert not rest, (u, len(rest))
                if pos + FL < len(mf): W.at(pos + FL, flg(u))
                else: self.lateflags.append(u)
        g.add(W.out())
        self.stamp("Cmf")
        epi_pk(4, T)
        for u in self.lateflags: g.add(flg(u))
        epi_pk(5, T)
        self.stamp("Cepi")
        self.cflags = [flg(4), flg(5)]
        V.release(t2, 2); V.release(HF, 128); V.release(T, 8); V.release(AA, 2)
        for x in ACC: V.release(x, 16)
        for x in FR + [MF]: V.release(x, 4)
        for x in [VV, t1, vCt, vHi, self.vP2]: V.release(x)

    def phaseD(self):
        g, V = self.g, self.V
        NK = 22
        for grp in self.cflags: g.add(grp)
        g.label("L_cdone", keep=True)
        self.stamp("F3")
        ACC = [V(16, 4) for _ in range(4)]
        NH = self.opt.get("d_nh", 28); HR = V(4*NH, 4)
        NWF = 4; WF = V(8*NWF, 4)
        rd = [[V(1), V(1)] for _ in range(3)]; t2 = V(2); t1 = V(1); vZ = V(1)
        for i in range(3):
            g(f"s_mul_i32 s4, {sW}, {DPART[i][3]}"); g(f"s_add_u32 s4, s4, {DPART[i][2]}")
            g(f"v_add_u32 v{rd[i][0]}, s4, v{self.vKr}"); g(f"v_xor_b32 v{rd[i][1]}, 64, v{rd[i][0]}")
        for j in range(8):
            g(f"v_lshlrev_b32 v{ACC[0]+2*j}, 16, v{self.vHP+j}"); g(f"v_and_b32 v{ACC[0]+2*j+1}, 0xffff0000, v{self.vHP+j}")
        g(f"s_cmp_ge_u32 {sW}, 2"); g("s_cselect_b32 s4, 0x80000000, 0"); g(f"v_or_b32 v{vZ}, s4, v{self.vL16}")
        self.red_consts()
        def part_of(i):
            for p, (f, n, _, _) in enumerate(DPART):
                if f <= i < f + n: return p, i - f
        def wread(i):
            p, j = part_of(i); out = []
            for ct in range(2):
                for j2 in range(2):
                    out.append(self.grp(f"ds_read_b64_tr_b16 {vr(WF+((i%NWF)*2+ct)*4+2*j2,2)}, v{rd[p%3][ct]} offset:{j*2048+j2*512}"))
            if i == 2: out[-1] = out[-1] + self.sig(K_DS)
            return out
        self.lwait(K_D1, t1, own=True)
        for i in range(NWF - 1):
            for grp in wread(i): g.add(grp)
        self.stamp("Dpre")
        self.poll(self.vP3, t2)
        self.stamp("P3")
        lo = [(i, rt) for i in range(NK) for rt in (1, 0)]
        lds = []
        for n, (i, rt) in enumerate(lo):
            sb, off = (self.sHF[rt][0], i*6*K1) if i < 15 else (self.sHF[rt][1], (i-15)*12*K1)
            lds.append(self.grp(f"s_add_u32 s3, {sb}, {off}", f"buffer_load_dwordx4 {vr(HR+4*(n%NH),4)}, v{vZ if i == 14 else self.vL16}, {SWS}, s3 offen sc1"))
        NL0 = self.opt.get("d_l0", 8)
        for grp in lds[:NL0]: g.add(grp)
        g.begin()
        for n, (i, rt) in enumerate(lo):
            for ct in (1, 0):
                a = 2*rt + ct
                g(f"v_mfma_f32_32x32x16_bf16 {vr(ACC[a],16)}, {vr(WF+((i%NWF)*2+ct)*4,4)}, {vr(HR+4*(n%NH),4)}, {vr(ACC[a],16) if (i or a == 0) else 0}")
        mf = g.end(); W = Weave(mf, 5)
        for p, k in ((1, K_D2), (2, K_D3), (3, K_D4)):
            at = 4*(DPART[p][0] - (NWF - 1))
            if at < 4:
                g.add(self.lchk_issue(k, t1, own=True)); g.add(self.lchk_check(k, t1, own=True))
            else:
                W.at(at - 4, self.lchk_issue(k, t1, own=True)); W.at(at - 1, self.lchk_check(k, t1, own=True))
        for i in range(NWF - 1, NK):
            for j, grp in enumerate(wread(i)): W.at(4*(i - (NWF - 1)) + j, grp)
        for n in range(NL0, len(lds)):
            at = 2*(n - NL0)
            if n == 30:
                W.at(at - 14, self.apoll_issue(self.vP4, t2)); W.at(at - 1, self.apoll_check(self.vP4, t2))
            W.at(at, lds[n])
        g.add(W.out())
        self.stamp("Dmf")
        g("s_barrier")
        for a in (3, 2, 1):
            for grp in self.red_write(ACC, a): g.add(grp)
        g.waitds(); g("s_barrier")
        for l in self.red_add(ACC, HR): g(l)
        H = ACC[0]
        for j in range(8): g(f"v_cvt_pk_bf16_f32 v{self.vHP+j}, v{H+2*j}, v{H+2*j+1}")
        g(f"buffer_store_dwordx4 {vr(self.vHP,4)}, v{self.vRM}, {SOUT}, 0 offen")
        g(f"buffer_store_dwordx4 {vr(self.vHP+4,4)}, v{self.vRM}, {SOUT}, 0 offen offset:32")

    def build(self):
        g = self.g
        self.prologue(); self.phaseA(); self.phaseB(); self.phaseC(); self.phaseD()
        if self.stamps:
            self.stamp("end")
            g(f"s_lshl_b32 s3, s2, 2"); g(f"s_add_u32 s3, s3, {sW}"); g("s_lshl_b32 s3, s3, 8"); g(f"s_add_u32 s3, s3, {WS_STAMP}")
            g(f"buffer_store_dword v{self.vST}, v{self.vL4}, {SWS}, s3 offen")
        g.label("L_end", keep=True)
        g("s_endpgm")
        self.helper()
        for st in self.tail: g.add(st)
        g.raw("L_codeend:")
        body = g.finalize()
        hdr = open("ref.txt").read().split("; Override launch geometry")[0]
        s = hdr + "; @launch grid=(256,1,1) block=(512,1,1) lds=163840\n"
        s += '.amdgcn_target "amdgcn-amd-amdhsa--gfx950"\n.text\n'
        s += f".globl {NAME}_kernel\n.p2align 8\n.type {NAME}_kernel,@function\n{NAME}_kernel:\n"
        s += body + "    s_endpgm\n"
        s += f'.section .rodata,"a"\n.p2align 6\n.amdhsa_kernel {NAME}_kernel\n'
        s += "  .amdhsa_next_free_vgpr 256\n  .amdhsa_next_free_sgpr 102\n  .amdhsa_accum_offset 256\n"
        s += "  .amdhsa_group_segment_fixed_size 0\n  .amdhsa_kernarg_size 80\n  .amdhsa_user_sgpr_count 2\n"
        s += "  .amdhsa_user_sgpr_kernarg_segment_ptr 1\n  .amdhsa_system_sgpr_workgroup_id_x 1\n"
        s += "  .amdhsa_float_denorm_mode_32 3\n.end_amdhsa_kernel\n"
        return s

if __name__ == "__main__":
    import argparse
    ap = argparse.ArgumentParser()
    ap.add_argument("-o", default="k.s"); ap.add_argument("--stamps", action="store_true"); ap.add_argument("--opt", default="")
    a = ap.parse_args()
    opt = {kv.split("=")[0]: int(kv.split("=")[1]) for kv in a.opt.split(",") if kv}
    k = K(a.stamps, opt)
    s = k.build()
    open(a.o, "w").write(s)
    if a.stamps: open(a.o + ".names", "w").write(" ".join(k.snames) + "\n" + " ".join(k.hnames))
    print("ins", k.g.stats, "vgpr hi", k.V.hi, "sgpr hi", k.S.hi, "lateflags", k.lateflags, "overflow", getattr(k, "overflow", None))
```

```python
import sys, struct
sys.path.insert(0, "gen")
from asmgen import *

NAME = "sequential_preLN__sliding_local_dilated__glu_gated_geglu__prompt"
K1 = 1024
WS_O, WS_H, WS_HH, WS_HST, WS_CS, WS_ST = 0x001000, 0x202000, 0x403000, 0xA04000, 0xA44000, 0xAC4000
WS_FF, WS_FW, WS_FS, WS_STAMP, WS_WC = 0xAD0000, 0xAE0000, 0xB00000, 0xC00000, 0xD00000
WS_SIZE = 0x1000000
HHP = 96
HHPAD = lambda pg: WS_HH + (-(-((pg << 21) - WS_HH) // (HHP*K1)))*HHP*K1 + 94*K1
WARM = [0, 0x201000, 0x402000, HHPAD(3), HHPAD(4), 0xA03000, 0xCF0000, 0xFF0000]
assert [x >> 21 for x in WARM] == list(range(8))
SX, SWQ, SWO, SWG, SWU, SWD, SOUT, SDBG, SWS = [f"s[{b}:{b+3}]" for b in range(8, 44, 4)]
sW, sRB, sCB, sR128, sCGX = "s44", "s45", "s46", "s47", "s68"
sNON = "s[70:71]"
POLL_LIMIT = 1 << 16
LOG2E = 1.4426950408889634
SLOT = 34*K1; SCR = 136*K1; TAB = 152*K1; CST = 152*K1; SYNC = 159*K1; NONL = SYNC + 1008
(K_WB, K_B2, K_B3, K_B4, K_C01, K_C23, K_P0, K_C45, K_U3, K_U5, K_D1, K_D2, K_D3, K_D4, K_DS, K_AE, K_TB, K_PZ, K_CS, K_T2, K_PP, K_IS) = range(22)
K_A = 22; K_F = 31
DPART = [(0, 3, 128*K1, 6*K1), (3, 8, 64*K1, 16*K1), (11, 8, 0, 16*K1), (19, 3, 128*K1, 6*K1)]
DK = [(0, i) for i in range(8)] + [(1, i) for i in range(7)] + [(2, i) for i in range(7)]
def f32(x): return "0x%08x" % struct.unpack("<I", struct.pack("<f", x))[0]

class K:
    def __init__(self, stamps=False, opt=None):
        self.g = Gen(); self.V = Alloc(0, 256); self.S = Alloc(74, 100)
        self.stamps = stamps; self.tail = []; self.opt = opt or {}; self.names = {"C": [], "S": [], "J": []}; self.role = "C"
        self.SC = "" if self.opt.get("loc", 0) else "sc1"
    def o(self, k, d): return self.opt.get(k, d)
    def stamp(self, name):
        if not self.stamps: return
        roles = "SJ" if self.role == "H" else self.role
        if self.role == "H":
            n = max(len(self.names["S"]), len(self.names["J"]))
            for r in "SJ": self.names[r] += ["-"] * (n - len(self.names[r]))
        i = len(self.names[roles[0]])
        for r in roles: self.names[r].append(name)
        self.g("s_memtime s[72:73]" if self.o("cyc", 0) else "s_memrealtime s[72:73]"); self.g("s_waitcnt lgkmcnt(0)"); self.g(f"v_writelane_b32 v{self.vST}, s72, {i}")
    def s(self): return f"s{self.S(1)}"
    def grp(self, *lines, tag=None):
        g = self.g; g.begin()
        for l in lines: g(l, tag)
        return g.end()

    def flag_fast(self, sid, off=0):
        if not self.o("fast", 1): return []
        return self.grp("s_mov_b64 exec, 1", f"buffer_store_dwordx2 {vr(self.vNON,2)}, v{self.vZero}, {SWS}, {sid} offen offset:{off}", "s_mov_b64 exec, -1")
    def flag_slow(self, sid, off=0):
        return self.grp(f"s_lshl_b32 s4, {sid}, 4", f"s_add_u32 s4, s4, {(WS_FS - WS_FF*16 + off*16) & 0xffffffff}", "s_mov_b64 exec, 0xffff",
                        f"buffer_store_dwordx2 {vr(self.vNON,2)}, v{self.vL8}, {SWS}, s4 offen sc1", "s_mov_b64 exec, -1")
    def slow_loop(self, Ls, Lb, vaddr, tmp, off, pre):
        g = self.g; L2 = g.newlabel("L_sl"); x = self.vX3
        g.begin()
        g.label(Ls, keep=True)
        for grp in pre: g.add(grp)
        g("s_mov_b32 s53, 0")
        g(f"v_lshlrev_b32 v{x+2}, 4, v{vaddr}"); g(f"v_add_u32 v{x+2}, {(WS_FS - WS_FF*16 + off*16) & 0xffffffff}, v{x+2}")
        g.label(L2, keep=True)
        g(f"buffer_load_dwordx2 {vr(tmp,2)}, v{vaddr}, {SWS}, 0 offen offset:{off} sc1")
        g(f"buffer_load_dwordx2 {vr(x,2)}, v{x+2}, {SWS}, 0 offen sc1")
        g("s_add_u32 s53, s53, 1"); g("s_waitcnt vmcnt(0)")
        g(f"s_cmp_gt_u32 s53, {POLL_LIMIT}"); g(f"s_cbranch_scc1 {Lb}")
        g(f"v_cmp_ne_u64 vcc, {sNON}, {vr(tmp,2)}"); g(f"v_cmp_ne_u64 s[6:7], {sNON}, {vr(x,2)}")
        g("s_and_b64 vcc, vcc, s[6:7]"); g(f"s_cbranch_vccnz {L2}")
        g.branch(f"s_branch {Lb}", keep=True)
        self.tail.append(g.end())
    def poll(self, vaddr, tmp, off=0, pre=()):
        g = self.g; L = g.newlabel("L_poll"); Lb = g.newlabel("L_go"); Ls = g.newlabel("L_slow")
        if not self.o("fast", 1):
            g.branch(f"s_cbranch_execnz {Ls}", keep=True); g("s_waitcnt vmcnt(0)")
        else:
            g("s_mov_b32 s52, 0")
            g.label(L, keep=True)
            g(f"buffer_load_dwordx2 {vr(tmp,2)}, v{vaddr}, {SWS}, 0 offen offset:{off} sc1")
            g("s_add_u32 s52, s52, 1"); g(f"s_cmp_gt_u32 s52, {self.o('nfast', 24)}"); g(f"s_cbranch_scc1 {Ls}")
            g("s_waitcnt vmcnt(0)")
            g(f"v_cmp_ne_u64 vcc, {sNON}, {vr(tmp,2)}"); g(f"s_cbranch_vccnz {L}")
        g.label(Lb, keep=True)
        self.slow_loop(Ls, Lb, vaddr, tmp, off, pre)
    def apoll_issue(self, vaddr, tmp, off=0):
        return self.grp(f"buffer_load_dwordx2 {vr(tmp,2)}, v{vaddr}, {SWS}, 0 offen offset:{off} sc1")
    def apoll_check(self, vaddr, tmp, off=0, pre=(), plain=False):
        g = self.g; Ls = g.newlabel("L_as"); Lb = g.newlabel("L_ab")
        g.begin(); g(f"v_cmp_ne_u64 vcc, {sNON}, {vr(tmp,2)}"); g(f"s_cbranch_vccnz {Ls}"); g.raw(Lb + ":"); main = g.end()
        g.begin(); g.label(Ls, keep=True)
        if plain:
            L2 = g.newlabel("L_al"); g("s_mov_b32 s53, 0"); g.label(L2, keep=True)
            g(f"buffer_load_dwordx2 {vr(tmp,2)}, v{vaddr}, {SWS}, 0 offen offset:{off} sc1")
            g("s_add_u32 s53, s53, 1"); g("s_sleep 2"); g("s_waitcnt vmcnt(0)")
            g(f"s_cmp_gt_u32 s53, {POLL_LIMIT}"); g(f"s_cbranch_scc1 {Lb}")
            g(f"v_cmp_ne_u64 vcc, {sNON}, {vr(tmp,2)}"); g(f"s_cbranch_vccnz {L2}")
        else: self.poll(vaddr, tmp, off, pre)
        g.branch(f"s_branch {Lb}", keep=True)
        self.tail.append(g.end())
        return main
    def sig(self, k): return self.grp(f"ds_write_b32 v{self.vSig}, v{self.vSig} offset:{16*k}")
    def lchk_issue(self, k, tmp, own=False):
        return self.grp(f"ds_read_b32 v{tmp}, v{self.vOwn if own else self.vAll} offset:{16*k}")
    def lchk_check(self, k, tmp, own=False, neg=False, sleep=0):
        g = self.g; Ls = g.newlabel("L_ls"); Lb = g.newlabel("L_lb"); L2 = g.newlabel("L_ll"); cmp_ = "ne" if neg else "eq"
        g.begin(); g(f"v_cmp_{cmp_}_u32 vcc, 0, v{tmp}"); g(f"s_cbranch_vccnz {Ls}"); g.raw(Lb + ":"); main = g.end()
        g.begin()
        g.label(Ls, keep=True); g("s_mov_b32 s53, 0")
        g.label(L2, keep=True)
        g(f"ds_read_b32 v{tmp}, v{self.vOwn if own else self.vAll} offset:{16*k}")
        g("s_add_u32 s53, s53, 1")
        if sleep: g(f"s_sleep {sleep}")
        g("s_waitcnt lgkmcnt(0)")
        g(f"s_cmp_gt_u32 s53, {POLL_LIMIT*16}"); g(f"s_cbranch_scc1 {Lb}")
        g(f"v_cmp_{cmp_}_u32 vcc, 0, v{tmp}"); g(f"s_cbranch_vccnz {L2}")
        g.branch(f"s_branch {Lb}", keep=True)
        self.tail.append(g.end())
        return main
    def lwait(self, k, tmp, own=False, sleep=0, addr=None):
        g = self.g; L = g.newlabel("L_lw"); Lgo = g.newlabel("L_lg")
        g("s_mov_b32 s53, 0")
        g.label(L, keep=True)
        g(f"ds_read_b32 v{tmp}, v{addr if addr is not None else (self.vOwn if own else self.vAll)} offset:{16*k}")
        g("s_add_u32 s53, s53, 1"); g(f"s_cmp_gt_u32 s53, {POLL_LIMIT*16}"); g(f"s_cbranch_scc1 {Lgo}")
        if sleep: g(f"s_sleep {sleep}")
        g("s_waitcnt lgkmcnt(0)")
        g(f"v_cmp_eq_u32 vcc, 0, v{tmp}"); g(f"s_cbranch_vccnz {L}")
        g.label(Lgo, keep=True)
    def pause(self, on):
        return self.sig(K_PZ) if on else self.grp(f"ds_write_b32 v{self.vSig}, v{self.vZero} offset:{16*K_PZ}")
    def sync_consts(self, a):
        g, L = self.g, self.vL
        g(f"s_lshl_b32 s4, {sW}, 2"); g(f"s_add_u32 s4, s4, {SYNC}"); g(f"v_mov_b32 v{self.vOwn}, s4")
        g(f"v_mov_b32 v{a}, 0x40000"); g(f"v_cmp_eq_u32 vcc, 0, v{L}"); g(f"v_cndmask_b32 v{self.vSig}, v{a}, v{self.vOwn}, vcc")
        g(f"v_and_b32 v{a}, 3, v{L}"); g(f"v_lshlrev_b32 v{a}, 2, v{a}"); g(f"v_add_u32 v{self.vAll}, {SYNC}, v{a}")
    def get_nonce(self, a):
        return [self.grp(f"v_mov_b32 v{a}, {NONL}", f"ds_read_b64 {vr(self.vNON,2)}, v{a}"),
                self.grp(f"v_readfirstlane_b32 s70, v{self.vNON}", f"v_readfirstlane_b32 s71, v{self.vNON+1}")]
    def srd(self, base, ptr, size):
        g = self.g
        g(f"s_mov_b32 s{base}, s{ptr}"); g(f"s_and_b32 s{base+1}, s{ptr+1}, 0xffff"); g(f"s_mov_b32 s{base+2}, {size}"); g(f"s_mov_b32 s{base+3}, 0x20000")
    def pi8(self, acc, t):
        g, L = self.g, self.vL
        g(f"v_and_b32 v{t}, 1, v{L}"); g(f"v_lshl_add_u32 v{acc}, v{t}, 4, v{acc}")
        g(f"v_bfe_u32 v{t}, v{L}, 1, 1"); g(f"v_lshl_add_u32 v{acc}, v{t}, 3, v{acc}")
    def cmap(self):
        g = self.g
        if self.o("cmap", 0) == 0:
            g("s_and_b32 s4, s2, 7"); g("s_lshl_b32 s4, s4, 1"); g("s_lshr_b32 s6, s2, 7"); g(f"s_add_u32 {sR128}, s4, s6")
            g("s_lshr_b32 s4, s2, 3"); g(f"s_and_b32 {sCGX}, s4, 15")
            if self.o("cgmap", 1):
                perm = list(range(16)); perm[3], perm[14] = 14, 3; perm[11], perm[15] = 15, 11
                lo = sum(perm[i] << (4*i) for i in range(8)); hi = sum(perm[8+i] << (4*i) for i in range(8))
                g(f"s_mov_b32 s6, {lo:#x}"); g(f"s_mov_b32 s7, {hi:#x}"); g(f"s_lshl_b32 s4, {sCGX}, 2"); g("s_lshr_b64 s[6:7], s[6:7], s4"); g(f"s_and_b32 {sCGX}, s6, 15")
        else:
            g("s_and_b32 s4, s2, 6"); g("s_lshl_b32 s4, s4, 1"); g("s_lshr_b32 s6, s2, 6"); g(f"s_add_u32 {sR128}, s4, s6")
            g("s_lshr_b32 s4, s2, 3"); g("s_and_b32 s4, s4, 7"); g("s_and_b32 s6, s2, 1"); g("s_lshl_b32 s6, s6, 3"); g(f"s_add_u32 {sCGX}, s4, s6")

    def prologue(self):
        g, V = self.g, self.V
        g("s_cmp_ge_u32 s2, 256"); g("s_cbranch_scc1 L_end")
        g("s_load_dwordx16 s[48:63], s[0:1], 0"); g("s_load_dwordx4 s[64:67], s[0:1], 64"); g("s_memrealtime s[100:101]")
        assert V(1) == 0
        self.vL, self.vL16, self.vST, self.vNON, self.vSig, self.vOwn, self.vAll, self.vL8, self.vZero = V(1), V(1), V(1), V(2), V(1), V(1), V(1), V(1), V(1)
        self.NCOMMON = 11
        g(f"v_lshrrev_b32 v{self.vL16}, 6, v0"); g(f"v_and_b32 v{self.vL}, 63, v0"); g(f"v_readfirstlane_b32 s3, v{self.vL16}")
        g("s_and_b32 s4, s2, 7"); g("s_lshr_b32 s5, s2, 3")
        g("s_lshl_b32 s6, s4, 2"); g("s_lshr_b32 s7, s5, 3"); g(f"s_add_u32 {sRB}, s6, s7"); g(f"s_and_b32 {sCB}, s5, 7")
        g(f"s_and_b32 {sW}, s3, 3")
        if self.stamps: g(f"v_mov_b32 v{self.vST}, 0")
        g(f"v_lshlrev_b32 v{self.vL16}, 4, v{self.vL}")
        g("s_cmp_lt_u32 s3, 4"); g.branch("s_cbranch_scc1 L_compute", keep=True)
        g("s_cmp_ge_u32 s3, 6"); g.branch("s_cbranch_scc1 L_job", keep=True)

    def helper(self):
        g = self.g; V = Alloc(self.NCOMMON, 256); L = self.vL
        a, b, c, vXs, vWs = V(1), V(1), V(1), V(1), V(1)
        vKs, vCs, vCs2, vCw, vPW, vPC = V(1), V(1), V(1), V(1), V(1), V(1); vDw = [V(1) for _ in range(3)]; t2 = V(2)
        STG = V(208, 4); CA = V(16, 4); ON = V(4, 4)
        Qd = lambda i: STG + 4*i
        sBm, sBs, sCm, sD0, sD7, sDm, sUm, sCSr = "s82", "s83", "s84", "s85", "s86", "s87", "s88", "s89"
        def start_stamp():
            if self.stamps: g(f"v_writelane_b32 v{self.vST}, s100, 0"); self.names[self.role].append("start")
        def sym_setup():
            g.begin()
            self.srd(16, 52, 512*512*2); self.srd(28, 60, 1376*512*2); self.srd(40, 66, WS_SIZE)
            self.cmap()
            g(f"v_bfe_u32 v{a}, v{L}, 4, 1"); g(f"v_lshlrev_b32 v{a}, 2, v{a}")
            g(f"v_and_b32 v{b}, 7, v{L}"); g(f"v_xor_b32 v{a}, v{a}, v{b}"); g(f"v_lshlrev_b32 v{a}, 4, v{a}")
            g(f"v_lshrrev_b32 v{b}, 3, v{L}"); g(f"v_lshl_add_u32 v{a}, v{b}, 10, v{a}")
            g(f"s_lshl_b32 s4, {sCB}, 7"); g(f"v_add_u32 v{vKs}, s4, v{a}")
            g(f"s_lshl_b32 s6, {sW}, 14"); g(f"s_add_u32 {sBm}, s6, {64*K1}"); g(f"s_lshl_b32 {sBs}, {sW}, 17")
            g(f"s_lshl_b32 {sUm}, {sW}, 13"); g(f"v_add_u32 v{vCw}, {sUm}, v{self.vL16}"); g(f"v_add_u32 v{vCw}, 0x10000, v{vCw}")
            g(f"s_mul_i32 s4, {sCGX}, {6*32*K1}"); g(f"s_add_u32 s4, s4, {sUm}"); g(f"s_add_u32 {sCm}, s4, {WS_WC}")
            g(f"s_cmp_ge_u32 {sCGX}, 14"); g("s_cselect_b32 s4, 0x80000000, 0"); g(f"v_or_b32 v{vCs2}, s4, v{self.vL16}")
            g(f"s_cmp_eq_u32 {sCGX}, 15"); g("s_cselect_b32 s4, 0x80000000, 0"); g(f"s_cselect_b32 s6, 0, {sCGX}"); g(f"v_or_b32 v{vCs}, s4, v{self.vL16}")
            g("s_lshl_b32 s6, s6, 2"); g(f"s_add_u32 s6, s6, {sW}"); g("s_lshl_b32 s7, s6, 10"); g(f"s_add_u32 s7, s7, {WS_FW}")
            g(f"v_and_b32 v{a}, 7, v{L}"); g(f"v_lshl_add_u32 v{vPW}, v{a}, 7, s7")
            g(f"s_lshl_b32 s6, s6, 13"); g(f"s_add_u32 {sCSr}, s6, {WS_CS}"); g(f"v_mul_u32_u24 v{vPC}, 12, v{L}")
            for i in range(3):
                g(f"s_mul_i32 s4, {sW}, {DPART[i][3]}"); g(f"s_add_u32 s4, s4, {DPART[i][2]}"); g(f"v_add_u32 v{vDw[i]}, s4, v{self.vL16}")
                if i == 0: g(f"s_mov_b32 {sDm}, s4")
            g(f"s_lshr_b32 s4, {sW}, 1"); g("s_mul_i32 s4, s4, 6"); g(f"s_and_b32 s7, {sW}, 1"); g("s_add_u32 s4, s4, s7")
            g(f"s_lshl_b32 {sD0}, s4, 14"); g(f"s_lshl_b32 {sD7}, s7, 14")
            return g.end()
        events = {}
        def after(n, fn): events.setdefault(n, []).append(fn)
        PZ = self.o("pause", 1)
        def run(loads, pz_from=None):
            pend = False
            for n in range(len(loads) + 1):
                for fn in events.pop(n, []): fn(); pend = False
                if n == len(loads): break
                if PZ and pz_from is not None and n >= pz_from and (n - pz_from) % 2 == 0:
                    if not pend: g.add(self.lchk_issue(K_PZ, vXs))
                    g.add(self.lchk_check(K_PZ, vXs, neg=True, sleep=1))
                    g.add(loads[n]); g.add(self.lchk_issue(K_PZ, vXs)); pend = True
                else: g.add(loads[n])
            for n in sorted(events):
                for fn in events.pop(n): fn()

        self.role = "S"
        sXb, sX0, sXm, sWm, sEx, sRk, sKq, sWq = "s74", "s75", "s76", "s77", "s78", "s79", "s80", "s81"
        g(f"s_lshl_b32 s6, {sW}, 3")
        g(f"v_lshrrev_b32 v{a}, 3, v{L}"); g(f"v_add_u32 v{b}, s6, v{a}"); g(f"v_bfe_u32 v{c}, v{b}, 1, 3")
        g(f"v_and_b32 v{vXs}, 7, v{L}"); g(f"v_xor_b32 v{c}, v{c}, v{vXs}"); g(f"v_lshlrev_b32 v{vXs}, 10, v{b}"); g(f"v_lshl_add_u32 v{vXs}, v{c}, 4, v{vXs}")
        g(f"v_mul_u32_u24 v{a}, 3072, v{b}")
        g(f"v_bfe_u32 v{b}, v{L}, 4, 1"); g(f"s_lshl_b32 s6, {sW}, 1"); g(f"v_or_b32 v{b}, s6, v{b}")
        g(f"v_bfe_u32 v{c}, v{L}, 1, 2"); g(f"v_xor_b32 v{b}, v{b}, v{c}")
        g(f"v_and_b32 v{c}, 1, v{L}"); g(f"v_lshlrev_b32 v{c}, 4, v{c}"); g(f"v_lshl_add_u32 v{b}, v{b}, 5, v{c}")
        g(f"s_lshl_b32 s7, {sCB}, 7"); g(f"v_add3_u32 v{vWs}, v{a}, v{b}, s7")
        g(f"s_lshl_b32 {sXb}, {sRB}, 16"); g(f"s_sub_u32 {sXb}, {sXb}, 16384"); g(f"s_max_i32 {sX0}, {sXb}, 0")
        g(f"s_lshl_b32 {sXm}, {sW}, 10"); g(f"s_mul_i32 {sWm}, {sW}, 3072"); g(f"s_add_u32 {sWm}, {sWm}, {10*K1}")
        g(f"s_cmp_eq_u32 {sW}, 0"); g(f"s_cselect_b32 {sEx}, 0xffffff00, -1")
        RM = self.o("rotmask", 7)
        g(f"s_add_u32 s6, s4, {sCB}"); g(f"s_and_b32 {sRk}, s6, {RM}")
        if self.o("rot3", 1):
            g(f"s_lshl_b32 s7, {sRB}, 1"); g(f"s_cmp_eq_u32 {sCB}, 3"); g("s_cselect_b32 s7, s7, 0"); g(f"s_add_u32 {sRk}, {sRk}, s7")
        g("s_mov_b32 s10, %d" % (2048*512*2)); g("s_mov_b32 s11, 0x20000"); g("s_mov_b32 s14, %d" % (512*1536*2)); g("s_mov_b32 s15, 0x20000")
        g("s_waitcnt lgkmcnt(0)")
        g("s_mov_b32 s8, s48"); g("s_and_b32 s9, s49, 0xffff"); g("s_mov_b32 s12, s50"); g("s_and_b32 s13, s51, 0xffff")
        start_stamp(); self.stamp("ka")
        jobs = []; last = {}
        for P in range(8):
            sl = (P % 4) * SLOT
            for t in range(5):
                l = []
                if t == 0: l += [f"s_add_u32 {sKq}, {sRk}, {P}", f"s_and_b32 {sKq}, {sKq}, 7", f"s_mul_i32 {sWq}, {sKq}, {64*3072}", f"s_lshl_b32 {sKq}, {sKq}, 7"]
                l += [f"s_add_u32 m0, {sXm}, {sl + t*2048}"]
                if t == 0: l += [f"s_add_u32 s3, {sX0}, {sKq}", f"s_mov_b32 exec_lo, {sEx}"]
                else: l += [f"s_add_u32 s3, {sXb}, {t*16384}", f"s_add_u32 s3, s3, {sKq}"]
                l += [f"buffer_load_dwordx4 v{vXs}, {SX}, s3 offen lds"]
                if t == 0: l += ["s_mov_b32 exec_lo, -1"]
                jobs.append(self.grp(*l, tag=f"x{P}"))
            for h in range(2):
                for bb in range(2):
                    for p in range(3):
                        l = [f"s_add_u32 m0, {sWm}, {sl + h*12288 + bb*6144}", f"s_add_u32 s3, {sWq}, {(h*32 + bb*16)*3072}"] if p == 0 else []
                        l += [f"buffer_load_dwordx4 v{vWs}, {SWQ}, s3 offen offset:{p*K1} lds"]
                        jobs.append(self.grp(*l, tag=f"w{2*P+h}"))
                last[2*P + h] = len(jobs)
        HF1 = self.o("h_first", 14); SL = self.o("h_sl", 16)
        def first():
            self.sync_consts(a); g("s_barrier")
            for k in (K_TB, K_PP): g.add(self.sig(k))
        after(HF1, first)
        chunks = []; cur = []
        for it in sym_setup():
            if len(cur) >= 6 and not it.op.startswith("s_cselect") and not cur[-1].op.startswith("s_cmp"): chunks.append(cur); cur = []
            cur.append(it)
        chunks.append(cur)
        for i, ch in enumerate(chunks): after(36 + i, (lambda ch=ch: g.add(ch)))
        assert 36 + len(chunks) < 4*17 - 3
        def stage_fn(k, s1):
            def fn():
                g.waitvm(f"w{s1}"); g.add(self.sig(K_A + k))
                if self.o("ast", 0) or k == 8: self.stamp(f"A{k}")
            return fn
        for k, s1 in enumerate([0, 1, 3, 5, 7, 9, 11, 13, 15]):
            lim = ((last[s1] + 16) // 17) * 17
            n = last[s1] + SL
            if s1 >= 7: n = last[s1] if self.o("h_blk", 0) else n
            after(max(n, HF1), stage_fn(k, s1))
        for P in range(4, 8):
            after(17*P - 3, (lambda P=P: g.add(self.lchk_issue(K_F + P - 4, c))))
            after(17*P, (lambda P=P: g.add(self.lchk_check(K_F + P - 4, c, sleep=1))))
        after(len(jobs), lambda: (g.add(self.sig(K_IS)), self.stamp("Ais")))
        run(jobs)
        g(f"s_cmp_eq_u32 {sCB}, {3 if self.o('rotb', 1) else 9}"); g(f"s_cselect_b32 s97, {sRB}, 0")
        self.lwait(K_AE, c, sleep=1); self.stamp("AE")
        for q in range(4):
            g(f"s_add_u32 s4, s97, {q}"); g("s_and_b32 s6, s4, 1"); g("s_bfe_u32 s7, s4, 0x10001")
            g("s_lshl_b32 s4, s7, 2"); g("s_add_u32 s4, s4, s6"); g("s_lshl_b32 s6, s4, 13"); g(f"s_add_u32 s6, s6, {sBm}")
            g("s_lshl_b32 s7, s4, 16"); g(f"s_add_u32 s7, s7, {sBs}")
            for i in range(8):
                g(f"s_add_u32 m0, s6, {i*K1}"); g(f"s_add_u32 s3, s7, {i*8192}")
                g(f"buffer_load_dwordx4 v{vKs}, {SWO}, s3 offen lds", tag="wb")
        self.lwait(K_TB, c)
        for grp in self.get_nonce(a): g.add(grp)
        g.waitvm("wb"); g.add(self.sig(K_WB)); g(f"ds_write_b32 v{self.vSig}, v{self.vSig} offset:{16*K_WB + 8}")
        self.stamp("WB")
        g.label("L_sym")

        g.begin(); self.role = "J"
        g.label("L_job", keep=True)
        self.sync_consts(a)
        g(f"v_mov_b32 v{self.vZero}, 0"); g(f"v_lshlrev_b32 v{self.vL8}, 3, v{L}")
        g("s_waitcnt lgkmcnt(0)")
        start_stamp()
        g("s_barrier")
        for k in list(range(K_A, K_A + 9)) + [K_IS]: g.add(self.sig(k))
        g.add(sym_setup())
        self.srd(8, 48, 2048*512*2); self.srd(20, 56, 512*1376*2); self.srd(24, 58, 512*1376*2); self.srd(36, 64, 256)
        PV = [Qd(12), Qd(12) + 1, Qd(12) + 2]; vTc = Qd(12) + 3; vPr, vPs, vP12, vF8 = Qd(13), Qd(13) + 1, Qd(13) + 2, Qd(13) + 3
        g(f"s_and_b32 s90, {sW}, 1")
        g("s_lshl_b32 s4, s2, 1"); g("s_add_u32 s4, s4, s90"); g("s_cmp_lt_u32 s4, 480"); g("s_cselect_b32 s91, 0, 0x80000000")
        g("s_lshr_b32 s6, s4, 5"); g("s_and_b32 s7, s4, 31")
        g("s_lshl_b32 s92, s4, 7"); g(f"s_add_u32 s92, s92, {WS_FW}")
        g("s_lshl_b32 s93, s4, 10"); g(f"s_add_u32 s93, s93, {WS_CS}")
        g(f"s_mul_i32 s94, s6, {6*32*K1}"); g("s_lshl_b32 s4, s7, 10"); g("s_add_u32 s94, s94, s4"); g(f"s_add_u32 s94, s94, {WS_WC}")
        g("s_mul_i32 s6, s6, 192"); g(f"s_mul_i32 s7, s7, {16*2752}"); g("s_add_u32 s6, s6, s7"); g("s_or_b32 s6, s6, s91")
        for i in range(3):
            g(f"v_add_u32 v{a}, {64*i}, v{L}"); g(f"v_mul_u32_u24 v{b}, 5462, v{a}"); g(f"v_lshrrev_b32 v{b}, 16, v{b}")
            g(f"v_mul_u32_u24 v{c}, 12, v{b}"); g(f"v_sub_u32 v{c}, v{a}, v{c}"); g(f"v_mul_u32_u24 v{b}, 2752, v{b}"); g(f"v_lshl_add_u32 v{b}, v{c}, 4, v{b}")
            g(f"v_add_u32 v{PV[i]}, s6, v{b}")
        g(f"s_mul_i32 s95, s90, {6*K1 + 64}"); g(f"s_add_u32 s95, s95, {SCR}")
        g(f"v_bfe_u32 v{b}, v{L}, 4, 1"); g(f"v_mul_u32_u24 v{a}, {3*K1 + 32}, v{b}")
        g(f"v_lshrrev_b32 v{b}, 5, v{L}"); g(f"v_mul_u32_u24 v{b}, {8*192}, v{b}"); g(f"v_add_u32 v{a}, v{a}, v{b}")
        g(f"v_bfe_u32 v{b}, v{L}, 2, 2"); g(f"v_mul_u32_u24 v{b}, 192, v{b}"); g(f"v_add_u32 v{a}, v{a}, v{b}")
        self.pi8(a, b); g(f"v_add_u32 v{vPr}, s95, v{a}")
        g(f"v_or_b32 v{vPs}, s91, v{self.vL16}"); g(f"v_or_b32 v{vF8}, s91, v{self.vL8}"); g(f"v_or_b32 v{vP12}, s91, v{vPC}")
        vTb = Qd(14) + 2
        g("s_lshl_b32 s4, s2, 1"); g("s_add_u32 s4, s4, s90"); g("s_lshl_b32 s6, s4, 3"); g(f"v_add_u32 v{a}, s6, v{L}"); g(f"v_lshlrev_b32 v{a}, 7, v{a}")
        g(f"v_mov_b32 v{b}, 0x80000000"); g(f"v_cmp_gt_u32 vcc, 8, v{L}"); g(f"v_cndmask_b32 v{vTb}, v{b}, v{a}, vcc")
        g("s_mul_i32 s6, s4, 22"); g(f"v_add_u32 v{a}, s6, v{L}"); g(f"v_lshlrev_b32 v{a}, 7, v{a}")
        g(f"v_cmp_gt_u32 vcc, 22, v{L}"); g(f"v_cndmask_b32 v{vTc}, v{b}, v{a}, vcc")
        for i in range(4): g(f"v_mov_b32 v{ON+i}, 0x3f803f80")
        g("s_lshr_b32 s4, s2, 3"); g(f"s_and_b32 s4, s4, {self.o('b_n', 4) - 1}"); g("s_lshl_b32 s4, s4, 4"); g(f"v_add_u32 v{vWs}, s4, v{self.vAll}")
        g(f"s_lshl_b32 s96, {sRB}, 6"); g(f"s_lshl_b32 s4, {sCB}, 3"); g("s_add_u32 s96, s96, s4"); g("s_lshl_b32 s4, s90, 2"); g("s_add_u32 s96, s96, s4")
        self.stamp("set")
        self.lwait(K_A + self.o("s_at", 1), c, sleep=2)
        g("s_lshl_b32 s4, s96, 10")
        for r in range(4): g(f"buffer_load_dwordx4 {vr(Qd(16+r),4)}, v{self.vL16}, {SX}, s4 offen offset:{r*K1}")
        g(f"buffer_load_dwordx2 {vr(self.vNON,2)}, v{self.vZero}, {SDBG}, 0 offen sc1")
        if self.o("htouch", 1): g(f"buffer_load_dword v{Qd(14)}, v{vTb}, {SWO}, 0 offen")
        SQ = Qd(20); U = Qd(24)
        for r in range(4):
            for j in range(4):
                g(f"v_lshlrev_b32 v{U+2*j}, 16, v{Qd(16+r)+j}"); g(f"v_and_b32 v{U+2*j+1}, 0xffff0000, v{Qd(16+r)+j}")
            g(f"v_add_f32 v{SQ+r}, v{U}, v{U+1}"); g(f"v_mul_f32 v{SQ+4+r}, v{U}, v{U}"); g(f"v_fmac_f32 v{SQ+4+r}, v{U+1}, v{U+1}")
            for j in range(2, 8):
                g(f"v_add_f32 v{SQ+r}, v{SQ+r}, v{U+j}"); g(f"v_fmac_f32 v{SQ+4+r}, v{U+j}, v{U+j}")
        for sh in (8, 4, 2, 1):
            for i in range(8): g(f"v_add_f32_dpp v{SQ+i}, v{SQ+i}, v{SQ+i} row_ror:{sh} row_mask:0xf bank_mask:0xf")
        for sw in ("v_permlane16_swap_b32", "v_permlane32_swap_b32"):
            for i in range(8): g(f"v_mov_b32 v{U+i}, v{SQ+i}")
            for i in range(8): g(f"{sw} v{SQ+i}, v{U+i}")
            for i in range(8): g(f"v_add_f32 v{SQ+i}, v{SQ+i}, v{U+i}")
        for r in range(1, 4):
            g(f"v_cmp_eq_u32 vcc, {r}, v{L}"); g(f"v_cndmask_b32 v{SQ}, v{SQ}, v{SQ+r}, vcc"); g(f"v_cndmask_b32 v{SQ+4}, v{SQ+4}, v{SQ+4+r}, vcc")
        G = Qd(26)
        g(f"v_mul_f32 v{G}, {f32(1/512)}, v{SQ}"); g(f"v_mul_f32 v{SQ+4}, {f32(1/512)}, v{SQ+4}"); g(f"v_fma_f32 v{SQ+4}, -v{G}, v{G}, v{SQ+4}")
        g(f"v_max_f32 v{SQ+4}, 0, v{SQ+4}"); g(f"v_add_f32 v{SQ+4}, {f32(1e-5)}, v{SQ+4}"); g(f"v_rsq_f32 v{G+1}, v{SQ+4}")
        g("s_mov_b32 s52, 0")
        g.label("L_jn", keep=True)
        g(f"v_readfirstlane_b32 s70, v{self.vNON}"); g(f"v_readfirstlane_b32 s71, v{self.vNON+1}")
        g("s_cmp_lg_u32 s70, 0"); g.branch("s_cbranch_scc1 L_jn2", keep=True)
        g(f"buffer_load_dwordx2 {vr(self.vNON,2)}, v{self.vZero}, {SDBG}, 0 offen sc1")
        g("s_add_u32 s52, s52, 1"); g("s_waitcnt vmcnt(0)"); g(f"s_cmp_lt_u32 s52, {POLL_LIMIT}"); g.branch("s_cbranch_scc1 L_jn", keep=True)
        g.label("L_jn2", keep=True)
        g(f"v_mov_b32 v{G+2}, s70"); g(f"v_mov_b32 v{G+3}, s71")
        g("s_lshl_b32 s4, s96, 4"); g(f"s_add_u32 s4, s4, {WS_ST}"); g("s_mov_b64 exec, 15")
        g(f"buffer_store_dwordx4 {vr(G,4)}, v{self.vL16}, {SWS}, s4 offen sc1"); g("s_mov_b64 exec, -1")
        self.stamp("st")
        g("s_lshl_b32 s4, s90, 6"); g(f"v_add_u32 v{a}, s4, v{L}"); g(f"v_min_u32 v{a}, 79, v{a}")
        g(f"s_lshl_b32 s4, {sRB}, 6"); g("s_sub_u32 s4, s4, 16"); g(f"v_add_u32 v{b}, s4, v{a}"); g(f"v_max_i32 v{b}, 0, v{b}")
        g(f"v_lshlrev_b32 v{b}, 4, v{b}"); g(f"v_add_u32 v{b}, {WS_ST}, v{b}")
        g(f"v_lshlrev_b32 v{a}, 2, v{a}"); g(f"v_add_u32 v{a}, {TAB}, v{a}")
        def batch():
            self.lwait(K_A + self.o("b_0", 5), c, sleep=2, addr=vWs)
            self.stamp("go")
            for m in range(2):
                for i in range(3):
                    g(f"s_add_u32 m0, s95, {m*(3*K1 + 32) + i*K1}"); g("s_nop 0")
                    g(f"buffer_load_dwordx4 v{PV[i]}, {(SWG, SWU)[m]}, 0 offen lds", tag="pl")
            if self.o("htouch", 1): g(f"buffer_load_dword v{Qd(14)+1}, v{vTc}, {SWD}, 0 offen")
        def gather():
            self.lwait(K_A + self.o("g_at", 5), c, sleep=2)
            g("s_mov_b32 s52, 0")
            g.label("L_jg", keep=True)
            g(f"buffer_load_dwordx4 {vr(G,4)}, v{b}, {SWS}, 0 offen sc1")
            g("s_add_u32 s52, s52, 1"); g(f"s_cmp_gt_u32 s52, {POLL_LIMIT}"); g("s_cbranch_scc1 L_jg2")
            g("s_waitcnt vmcnt(0)")
            g(f"v_cmp_ne_u64 vcc, {sNON}, {vr(G+2,2)}"); g("s_cbranch_vccz L_jg2")
            g("s_sleep 4"); g.branch("s_branch L_jg", keep=True)
            g.label("L_jg2", keep=True)
            g(f"ds_write_b32 v{a}, v{G}"); g(f"ds_write_b32 v{a}, v{G+1} offset:512")
            g(f"v_mov_b32 v{a}, {NONL}"); g(f"ds_write_b64 v{a}, {vr(self.vNON,2)}")
            g.add(self.sig(K_TB))
            self.stamp("TB")
        def patch():
            g("s_waitcnt vmcnt(0)")
            for u in range(6):
                for j2 in range(2): g(f"ds_read_b64_tr_b16 {vr(Qd(6+u)+2*j2,2)}, v{vPr} offset:{u*32 + j2*768}")
            g.add(self.sig(K_PP))
            for u in range(6):
                g(f"s_add_u32 s4, s94, {u*32*K1}"); g(f"buffer_store_dwordx4 {vr(Qd(6+u),4)}, v{vPs}, {SWS}, s4 offen sc1")
            g("s_mov_b32 s6, 0"); g("s_mov_b32 s7, -1")
            A6 = [CA, Qd(0), Qd(16), Qd(20), Qd(28), Qd(32)]
            for u in range(6): g(f"v_mfma_f32_32x32x16_bf16 {vr(A6[u],16)}, {vr(ON,4)}, {vr(Qd(6+u),4)}, 0")
            for i in range(3): g(f"v_cndmask_b32 v{Qd(15)+i}, v{A6[2*i]}, v{A6[2*i+1]}, s[6:7]")
            g(f"buffer_store_dwordx3 {vr(Qd(15),3)}, v{vP12}, {SWS}, s93 offen sc1")
            g("s_waitcnt vmcnt(0)")
            g("s_mov_b64 exec, 0xffff"); g(f"buffer_store_dwordx2 {vr(self.vNON,2)}, v{vF8}, {SWS}, s92 offen sc1"); g("s_mov_b64 exec, -1")
            self.stamp("PF")
        if self.o("b_first", 0): batch(); patch(); gather()
        else: gather(); batch(); patch()
        self.lwait(K_AE, c, sleep=2)
        g.branch("s_branch L_sym")
        jobcode = g.end()

        self.role = "H"
        self.stamp("sym")
        qU = lambda u: Qd(8*(u % 2))
        def ujob(u, dma):
            out = []
            for j in range(8):
                l = [f"s_add_u32 s3, {sCm}, {u*32*K1 + (j//4)*4096}"]; v = vCs if u < 2 else vCs2
                if dma: l = [f"s_add_u32 m0, {sUm}, {(u%2)*32768 + (j//4)*4096}"] + l + [f"buffer_load_dwordx4 v{v}, {SWS}, s3 offen offset:{(j%4)*K1} sc1 lds"]
                else: l.append(f"buffer_load_dwordx4 {vr(qU(u)+4*j,4)}, v{v}, {SWS}, s3 offen offset:{(j%4)*K1} sc1")
                out.append(self.grp(*l, tag=f"wu{u//2}"))
            return out
        dq = [None]*3 + list(range(16, 52, 2)) + [0]
        qD = [None if x is None else Qd(x) for x in dq]
        def djob(n):
            j, i = DK[n]; sb = sD7 if (j, i) == (0, 7) else sD0; off = (12*i + 2*j)*16384
            if n < 3: return [self.grp(f"s_add_u32 m0, {sDm}, {n*2048 + h*K1}", f"s_add_u32 s3, {sb}, {off + h*8192}", f"buffer_load_dwordx4 v{vKs}, {SWD}, s3 offen lds", tag="wd0") for h in range(2)]
            return [self.grp(f"s_add_u32 s3, {sb}, {off + h*8192}", f"buffer_load_dwordx4 {vr(qD[n]+4*h,4)}, v{vKs}, {SWD}, s3 offen") for h in range(2)]
        def dwrite(part, sk):
            f, n, _, _ = DPART[part]
            for i in range(n):
                for h in range(2): g(f"ds_write_b128 v{vDw[part % 3]}, {vr(qD[f+i]+4*h,4)} offset:{i*2048 + h*K1}")
            g.add(self.sig(sk))
        gap = [x for n in range(3, 21) for x in djob(n)]
        NG = self.o("h_gap", 8); assert NG <= 28
        loads = [self.apoll_issue(vPW, t2)] + gap[:NG]
        after(len(loads), lambda: (g.add(self.apoll_check(vPW, t2, plain=True)), self.stamp("PW")))
        def cs_sum():
            for st in (4, 2, 1):
                for j in range(st):
                    for i in range(3): g(f"v_add_f32 v{Qd(44+j)+i}, v{Qd(44+j)+i}, v{Qd(44+j+st)+i}")
            g(f"s_lshr_b32 s4, {sW}, 1"); g("s_lshl_b32 s4, s4, 9"); g(f"s_and_b32 s6, {sW}, 1"); g("s_lshl_b32 s6, s6, 3"); g("s_add_u32 s4, s4, s6"); g(f"s_add_u32 s4, s4, {CST}")
            g(f"v_and_b32 v{b}, 31, v{L}"); g(f"v_lshl_add_u32 v{a}, v{b}, 4, s4"); g(f"v_lshrrev_b32 v{b}, 5, v{L}"); g(f"v_lshl_add_u32 v{a}, v{b}, 10, v{a}")
            self.lwait(K_T2, c, sleep=1)
            for i in range(3):
                x = Qd(44) + i; o = CA + 2*i
                g(f"v_cvt_pk_bf16_f32 v{o+1}, v{x}, 0"); g(f"v_lshlrev_b32 v{b}, 16, v{o+1}"); g(f"v_sub_f32 v{b}, v{x}, v{b}"); g(f"v_cvt_pk_bf16_f32 v{o}, v{x}, v{b}")
                g(f"ds_write_b64 v{a}, {vr(o,2)} offset:{2*i*K1}")
            g.add(self.sig(K_CS))
        loads += ujob(0, True) + ujob(1, True)
        after(len(loads) + 8, lambda: (g.waitvm("wu0"), g.add(self.sig(K_C01)), self.lwait(K_PP, c), self.stamp("C01")))
        loads += [self.grp(f"s_add_u32 s3, {sCSr}, {(j//4)*4096}", f"buffer_load_dwordx3 {vr(Qd(44+j),3)}, v{vPC}, {SWS}, s3 offen offset:{(j%4)*K1} sc1") for j in range(8)]
        after(len(loads) + 8, cs_sum)
        loads += ujob(2, False) + ujob(3, False)
        N3 = self.o("h_n3", 0)
        gap = [x for n in range(3) for x in djob(n)] + gap[NG:] + djob(21)
        loads += gap[:N3]
        run(loads, 0)
        self.stamp("n1")
        self.lwait(K_B4, c, sleep=1)
        for u in (2, 3):
            for j in range(8): g(f"ds_write_b128 v{vCw}, {vr(qU(u)+4*j,4)} offset:{(u%2)*32768 + j*K1}")
        g.add(self.sig(K_C23)); g.waitds()
        self.stamp("C23")
        rest = gap[N3:-2]; N4 = self.o("h_n4", 40)
        run(ujob(4, False) + ujob(5, False) + rest[:N4], 0)
        self.stamp("n2")
        self.lwait(K_P0, c, sleep=2)
        g(f"v_add_u32 v{a}, 0xffff0000, v{vCw}")
        for u in (4, 5):
            for j in range(8): g(f"ds_write_b128 v{a}, {vr(qU(u)+4*j,4)} offset:{(u%2)*32768 + j*K1}")
        g.add(self.sig(K_C45)); g.waitds(); self.stamp("C45")
        run(rest[N4:] + gap[-2:])
        g.waitvm("wd0"); g.add(self.sig(K_D1))
        self.stamp("n3")
        self.lwait(K_U3, c, sleep=2); dwrite(1, K_D2)
        self.stamp("D2")
        self.lwait(K_U5, c, sleep=1); dwrite(2, K_D3)
        self.lwait(K_DS, c, own=True, sleep=1); dwrite(3, K_D4)
        self.stamp("D4")
        if self.stamps:
            g(f"s_lshl_b32 s3, s2, 2"); g(f"s_add_u32 s3, s3, {sW}"); g("s_lshl_b32 s3, s3, 8"); g(f"s_add_u32 s3, s3, {WS_STAMP + 0x40000}")
            g(f"v_lshlrev_b32 v{a}, 2, v{L}"); g(f"buffer_store_dword v{self.vST}, v{a}, {SWS}, s3 offen")
        g("s_endpgm")
        g.add(jobcode)
        self.role = "C"

    def consts(self, a, b):
        g, V, L = self.g, self.V, self.vL
        self.sO0, self.sO1, self.sF1 = self.s(), self.s(), self.s()
        g(f"s_lshl_b32 s4, {sCB}, 2"); g(f"s_add_u32 s4, s4, {sW}")
        g(f"s_lshl_b32 s6, {sRB}, 6"); g("s_add_u32 s6, s6, s4"); g("s_lshl_b32 s6, s6, 10"); g(f"s_add_u32 {self.sO0}, s6, {WS_O}"); g(f"s_add_u32 {self.sO1}, {self.sO0}, {32*K1}")
        g(f"s_lshl_b32 s6, {sRB}, 5"); g("s_add_u32 s6, s6, s4"); g("s_lshl_b32 s6, s6, 3"); g(f"s_add_u32 {self.sF1}, s6, {WS_FF}")
        self.sOF = [[self.s(), self.s()], [self.s(), self.s()]]; self.sHF = [self.s(), self.s()]
        g(f"s_lshr_b32 s4, {sW}, 1"); g("s_mul_i32 s4, s4, 6"); g(f"s_and_b32 s7, {sW}, 1"); g("s_add_u32 s5, s4, s7")
        for rt in range(2):
            g(f"s_lshr_b32 s4, {sW}, 1"); g(f"s_xor_b32 s4, s4, {rt}"); g(f"s_lshl_b32 s6, {sRB}, 1"); g("s_add_u32 s4, s4, s6")
            g("s_lshl_b32 s6, s4, 5"); g(f"s_lshl_b32 s7, {sW}, 3"); g("s_add_u32 s6, s6, s7"); g("s_lshl_b32 s6, s6, 10"); g(f"s_add_u32 {self.sOF[rt][0]}, s6, {WS_O}")
            g(f"s_add_u32 {self.sOF[rt][1]}, {self.sOF[rt][0]}, 4096")
            g(f"s_mul_i32 s6, s4, {HHP}"); g(f"s_add_u32 s6, s6, {WS_HH//K1}"); g("s_add_u32 s7, s6, s5"); g(f"s_lshl_b32 {self.sHF[rt]}, s7, 10")
        self.sHs, self.sHt, self.sF2 = self.s(), self.s(), self.s()
        g(f"s_lshl_b32 s4, {sRB}, 1"); g(f"s_lshr_b32 s6, {sW}, 1"); g("s_add_u32 s4, s4, s6")
        g(f"s_lshl_b32 s6, {sCB}, 1"); g(f"s_and_b32 s7, {sW}, 1"); g("s_add_u32 s6, s6, s7")
        self.vRM = V(1)
        g(f"v_and_b32 v{a}, 31, v{L}"); g(f"v_lshlrev_b32 v{a}, 10, v{a}"); g(f"v_lshrrev_b32 v{b}, 5, v{L}"); g(f"v_lshl_add_u32 v{a}, v{b}, 4, v{a}")
        g("s_lshl_b32 s7, s4, 15"); g(f"v_add_u32 v{a}, s7, v{a}"); g("s_lshl_b32 s7, s6, 6"); g(f"v_add_u32 v{self.vRM}, s7, v{a}")
        g("s_lshl_b32 s4, s4, 4"); g("s_add_u32 s4, s4, s6")
        g("s_lshl_b32 s6, s4, 11"); g(f"s_add_u32 {self.sHs}, s6, {WS_H}")
        g("s_lshl_b32 s6, s4, 8"); g(f"s_add_u32 {self.sHt}, s6, {WS_HST}")
        g("s_lshl_b32 s6, s4, 3"); g(f"s_add_u32 {self.sF2}, s6, {WS_FF + 1024*8}")
        self.vKr = V(1)
        g(f"v_lshrrev_b32 v{a}, 5, v{L}"); g(f"v_lshlrev_b32 v{a}, 10, v{a}")
        g(f"v_bfe_u32 v{b}, v{L}, 2, 2"); g(f"v_lshl_add_u32 v{a}, v{b}, 7, v{a}")
        g(f"v_bfe_u32 v{b}, v{L}, 3, 1"); g(f"s_and_b32 s4, {sW}, 1"); g(f"v_xor_b32 v{b}, s4, v{b}"); g(f"v_lshl_add_u32 v{a}, v{b}, 6, v{a}")
        g(f"v_bfe_u32 v{b}, v{L}, 4, 1"); g(f"v_lshl_add_u32 v{a}, v{b}, 5, v{a}")
        self.pi8(a, b); g(f"v_mov_b32 v{self.vKr}, v{a}")
        self.sCh, self.sCt, self.sCo, self.sF3 = self.s(), self.s(), self.s(), self.s()
        g(f"s_lshl_b32 s4, {sR128}, 2"); g(f"s_add_u32 s4, s4, {sW}")
        g("s_lshl_b32 s6, s4, 15"); g(f"s_add_u32 {self.sCh}, s6, {WS_H}")
        g("s_lshl_b32 s6, s4, 12"); g(f"s_add_u32 {self.sCt}, s6, {WS_HST}")
        g(f"s_mul_i32 s6, s4, {HHP}"); g(f"s_mul_i32 s7, {sCGX}, 6"); g("s_add_u32 s6, s6, s7"); g("s_lshl_b32 s6, s6, 10"); g(f"s_add_u32 {self.sCo}, s6, {WS_HH}")
        g("s_mul_i32 s6, s4, 48"); g(f"s_add_u32 s6, s6, {sCGX}"); g("s_lshl_b32 s6, s6, 3"); g(f"s_add_u32 {self.sF3}, s6, {WS_FF + 2048*8}")
        self.vP1, self.vP2, self.vP3 = V(1), V(1), V(1)
        g("s_lshl_b32 s6, s4, 7"); g(f"s_add_u32 s6, s6, {WS_FF + 1024*8}")
        g(f"v_and_b32 v{a}, 15, v{L}"); g(f"v_lshl_add_u32 v{self.vP2}, v{a}, 3, s6")
        g(f"s_lshl_b32 s4, {sRB}, 5"); g(f"s_lshl_b32 s6, {sW}, 3"); g("s_add_u32 s4, s4, s6"); g("s_lshl_b32 s4, s4, 3"); g(f"s_add_u32 s4, s4, {WS_FF}")
        g(f"v_and_b32 v{a}, 7, v{L}"); g(f"v_lshl_add_u32 v{self.vP1}, v{a}, 3, s4")
        g(f"s_lshr_b32 s7, {sW}, 1"); g("s_sub_u32 s6, 7, s7"); g(f"v_min_u32 v{a}, s6, v{a}"); g(f"v_lshlrev_b32 v{a}, 4, v{a}")
        g(f"v_bfe_u32 v{b}, v{L}, 3, 1"); g(f"v_mul_u32_u24 v{b}, {48*8}, v{b}")
        g(f"s_mul_i32 s4, {sRB}, 96"); g("s_add_u32 s4, s4, s7"); g("s_lshl_b32 s4, s4, 3"); g(f"s_add_u32 s4, s4, {WS_FF + 2048*8}")
        g(f"v_add3_u32 v{self.vP3}, v{a}, v{b}, s4")

    def phaseA(self):
        g, V, L = self.g, self.V, self.vL
        g.label("L_compute", keep=True)
        self.vL4 = V(1); self.vHP = V(8, 4); self.vX3 = V(4)
        a, b, c = V(1), V(1), V(1); J = self.vX3
        if self.o("prio", 1): g(f"s_setprio {self.o('prio', 1)}")
        g("s_getpc_b64 s[6:7]"); g.raw("L_pc:")
        g(f"s_sub_u32 s6, s6, L_pc-{NAME}_kernel"); g("s_subb_u32 s7, s7, 0")
        g(f"v_lshrrev_b32 v{a}, 4, v0"); g(f"v_lshl_add_u32 v{a}, s5, 4, v{a}"); g(f"v_lshlrev_b32 v{a}, 7, v{a}")
        g(f"v_min_u32 v{a}, L_codeend-{NAME}_kernel-4, v{a}")
        g(f"global_load_dword v{J}, v{a}, s[6:7]")
        g(f"v_lshlrev_b32 v{self.vL8}, 3, v{L}"); g(f"v_lshlrev_b32 v{self.vL4}, 2, v{L}"); g(f"v_mov_b32 v{self.vZero}, 0")
        ONES = V(4, 4); Z4 = self.vHP
        for i in range(4): g(f"v_mov_b32 v{ONES+i}, 0x3f803f80"); g(f"v_mov_b32 v{Z4+i}, 0")
        g(f"v_bfe_u32 v{a}, v{L}, 3, 2"); g(f"v_mul_u32_u24 v{a}, {SLOT}, v{a}"); g(f"v_and_b32 v{b}, 7, v{L}"); g(f"v_lshl_add_u32 v{a}, v{b}, 4, v{a}")
        g(f"ds_write_b128 v{a}, {vr(ONES,4)}")
        g(f"v_add_u32 v{a}, {SYNC}, v{self.vL16}"); g(f"ds_write_b128 v{a}, {vr(Z4,4)}")
        g(f"v_mov_b32 v{c}, 0")
        for i, x in enumerate(WARM[1:]): g(f"s_mov_b32 s3, {x}"); g(f"v_writelane_b32 v{c}, s3, {i+1}")
        g(f"s_or_b32 s3, s2, {sW}")
        g("s_waitcnt lgkmcnt(0)")
        if self.stamps: g(f"v_writelane_b32 v{self.vST}, s100, 0"); self.names["C"].append("start")
        self.srd(36, 64, 256)
        g("s_cmp_eq_u32 s3, 0"); g.branch("s_cbranch_scc1 L_pubnonce", keep=True)
        g.label("L_pubdone", keep=True)
        g.begin(); g.label("L_pubnonce", keep=True)
        g("s_or_b32 s100, s100, 1"); g(f"v_mov_b32 v{self.vNON}, s100"); g(f"v_mov_b32 v{self.vNON+1}, s101")
        g("s_mov_b64 exec, 1"); g(f"buffer_store_dwordx2 {vr(self.vNON,2)}, v{self.vZero}, {SDBG}, 0 offen sc1"); g("s_mov_b64 exec, -1")
        g.branch("s_branch L_pubdone", keep=True); self.tail.append(g.end())
        self.srd(8, 48, 2048*512*2); self.srd(32, 62, 2048*512*2); self.srd(40, 66, WS_SIZE)
        if self.o("tlb", 1):
            g(f"s_cmp_eq_u32 {sW}, 1"); g("s_cselect_b64 s[6:7], s[56:57], s[52:53]")
            g(f"s_cmp_eq_u32 {sW}, 2"); g("s_cselect_b64 s[6:7], s[58:59], s[6:7]")
            g(f"s_cmp_eq_u32 {sW}, 3"); g("s_cselect_b64 s[6:7], s[60:61], s[6:7]")
            g("s_mov_b32 s16, s6"); g("s_and_b32 s17, s7, 0xffff"); g("s_mov_b32 s18, 4096"); g("s_mov_b32 s19, 0x20000")
            g(f"buffer_load_dword v{J+1}, v{self.vZero}, s[16:19], 0 offen")
            g(f"buffer_load_dword v{J+2}, v{c}, {SWS}, 0 offen")
            g(f"buffer_load_dword v{J+3}, v{self.vZero}, {SOUT}, 0 offen")
        g("s_barrier")
        self.cmap(); self.sync_consts(a); self.consts(a, b)
        g(f"v_lshrrev_b32 v{a}, 4, v{L}"); g(f"v_lshl_add_u32 v{a}, v{a}, 7, v{self.vP3}")
        g("s_mov_b32 s6, 0"); g("s_mov_b32 s7, 0x00ff0000"); g(f"v_cndmask_b32 v{a}, v{a}, v{self.vP2}, s[6:7]")
        g("s_mov_b32 s7, 0xff000000"); g(f"v_cndmask_b32 v{a}, v{a}, v{self.vP1}, s[6:7]")
        vFw = V(1); g(f"v_mov_b32 v{vFw}, v{a}")
        vXr = [V(1), V(1)]; vWr = V(1)
        g(f"v_bfe_u32 v{a}, v{L}, 1, 3"); g(f"v_lshrrev_b32 v{b}, 4, v{L}"); g(f"v_xor_b32 v{a}, v{a}, v{b}"); g(f"v_lshlrev_b32 v{a}, 4, v{a}")
        g(f"v_and_b32 v{c}, 15, v{L}"); g(f"v_lshl_add_u32 v{vXr[0]}, v{c}, 7, v{a}"); g(f"v_xor_b32 v{vXr[1]}, 64, v{vXr[0]}")
        g(f"v_bfe_u32 v{a}, v{L}, 3, 2"); g(f"v_xor_b32 v{a}, {sW}, v{a}"); g(f"v_lshlrev_b32 v{a}, 5, v{a}")
        g(f"v_mul_u32_u24 v{b}, 3072, v{b}"); g(f"v_bfe_u32 v{c}, v{L}, 2, 2"); g(f"v_lshl_add_u32 v{a}, v{c}, 7, v{a}")
        g(f"v_and_b32 v{c}, 3, v{L}"); g(f"v_lshl_add_u32 v{a}, v{c}, 3, v{a}"); g(f"v_add_u32 v{vWr}, v{a}, v{b}")
        BC, BP, BP1, MK = V(4, 4), V(4, 4), V(4, 4), V(4, 4); vT1, vT2 = V(1), V(1)
        g(f"v_and_b32 v{a}, 15, v{L}"); g(f"v_lshrrev_b32 v{b}, 4, v{L}")
        g(f"v_lshlrev_b32 v{vT1}, 2, v{a}"); g(f"v_add_u32 v{vT1}, {TAB}, v{vT1}")
        g(f"v_lshlrev_b32 v{vT2}, 4, v{b}"); g(f"v_add_u32 v{vT2}, {TAB}, v{vT2}")
        g(f"v_lshlrev_b32 v{b}, 2, v{b}"); g(f"v_sub_u32 v{a}, v{a}, v{b}"); g(f"v_mov_b32 v{c}, {f32(-1e30)}")
        g(f"s_cmp_eq_u32 {sRB}, 0"); g("s_cselect_b64 s[58:59], 0, -1")
        for r in range(4):
            g(f"v_subrev_u32 v{b}, {r}, v{a}"); g(f"v_and_b32 v{b}, 0x80000001, v{b}")
            g(f"v_cmp_eq_u32 vcc, 0, v{b}"); g(f"v_cndmask_b32 v{BC+r}, v{c}, 0, vcc")
            g(f"v_cmp_eq_u32 vcc, 0x80000000, v{b}"); g(f"v_cndmask_b32 v{BP+r}, v{c}, 0, vcc")
            g(f"v_cndmask_b32 v{BP1+r}, v{c}, v{BP+r}, s[58:59]")
        for i, B in enumerate((BP, BC)):
            for h in range(2):
                g(f"v_ashrrev_i32 v{a}, 31, v{B+2*h}"); g(f"v_ashrrev_i32 v{b}, 31, v{B+2*h+1}")
                g(f"v_and_b32 v{a}, 0xffff, v{a}"); g(f"v_and_b32 v{b}, 0xffff0000, v{b}"); g(f"v_or_b32 v{a}, v{a}, v{b}"); g(f"v_not_b32 v{MK+2*i+h}, v{a}")
        g(f"s_mov_b32 s60, {f32(1/512)}"); g(f"s_mov_b32 s61, {f32(0.25*LOG2E)}")
        FB = [V(32, 4), V(32, 4)]
        XF = [[FB[i] + 4*t for t in range(5)] for i in range(2)]; WF = [[FB[i] + 20 + 4*p for p in range(3)] for i in range(2)]
        Q = [V(4, 4) for t in range(5)]; Kc = [V(4, 4) for t in range(5)]; Vc = [V(4, 4) for t in range(5)]
        def reads(s):
            g.begin(); bi = s & 1
            if s and s % 2 == 0:
                d = SLOT if (s // 2) % 4 else (-3*SLOT) & 0xffffffff
                for r in (vWr, vXr[0], vXr[1]): g(f"v_add_u32 v{r}, {d}, v{r}")
            for p in range(3):
                for j2 in range(2): g(f"ds_read_b64_tr_b16 {vr(WF[bi][p]+2*j2,2)}, v{vWr} offset:{10*K1 + bi*12288 + p*K1 + j2*512}")
                if p == 0:
                    for t in range(5): g(f"ds_read_b128 {vr(XF[bi][t],4)}, v{vXr[bi]} offset:{t*2048}")
            return g.end()
        def mfmas(s):
            g.begin(); bi = s & 1
            def mf(d, x, y): g(f"v_mfma_f32_16x16x32_bf16 {vr(d,4)}, {vr(x,4)}, {vr(y,4)}, {vr(d,4) if s else 0}")
            for t in range(5): mf(Q[t], WF[bi][0], XF[bi][t])
            for t in range(5): mf(Kc[t], WF[bi][1], XF[bi][t])
            for t in range(5): mf(Vc[t], XF[bi][t], WF[bi][2])
            return g.end()
        M1 = V(6); R1 = V(6); M2 = [V(4, 4) for t in range(5)]; R2 = [V(4, 4) for t in range(5)]
        g.begin()
        for t in range(5):
            g(f"ds_read_b32 v{M1+t}, v{vT1} offset:{t*64}"); g(f"ds_read_b32 v{R1+t}, v{vT1} offset:{512+t*64}")
        for t in range(5):
            g(f"ds_read_b128 {vr(M2[t],4)}, v{vT2} offset:{t*64}"); g(f"ds_read_b128 {vr(R2[t],4)}, v{vT2} offset:{512+t*64}")
        gn = self.get_nonce(a)
        fin = singles(g.end()) + [gn[0] + self.sig(K_T2)]
        XR = self.vHP; tk = V(1)
        g(f"buffer_load_dword v{vFw}, v{vFw}, {SWS}, 0 offen sc1")
        self.stamp("pre")
        self.lwait(K_A, tk)
        self.stamp("bar0")
        g.add(reads(0)); g.add(self.lchk_issue(K_A + 1, tk))
        stg = {0: 1, 1: 2, 3: 3, 5: 4, 7: 5, 9: 6, 11: 7, 13: 8}
        for s in range(16):
            g.comment(f"A step {s}")
            if self.o("ast", 0): self.stamp(f"s{s}")
            mf = mfmas(s); W = Weave(mf, 2); n = len(mf)
            if s in stg: W.at(0, self.lchk_check(K_A + stg[s], tk))
            if s < 15:
                rs = singles(reads(s + 1))
                if s % 2 == 0 and s <= 6: rs[-1] = rs[-1] + self.sig(K_F + s // 2)
                if s == 14: rs[-1] = rs[-1] + self.sig(K_AE)
                left, _ = W.fill(rs, 0, n - 2); assert not left
            if s + 1 in stg: W.at(n - 4, self.lchk_issue(K_A + stg[s + 1], tk))
            if s == 12:
                W.at(n - 3, self.grp(f"buffer_load_dwordx4 {vr(XR,4)}, v{self.vRM}, {SX}, 0 offen"))
                W.at(n - 2, self.grp(f"buffer_load_dwordx4 {vr(XR+4,4)}, v{self.vRM}, {SX}, 0 offen offset:32"))
            if s == 14: W.at(n - 5, self.lchk_issue(K_TB, b)); W.at(n - 1, self.lchk_check(K_TB, b))
            if s == 15:
                left, _ = W.fill(fin, 0); assert not left
            g.add(W.out())
        self.stamp("loop")
        for r in [vWr, vT1, vT2, tk, vFw] + vXr: V.release(r)
        V.release(FB[0], 32); V.release(FB[1], 32)
        CSQ, CSK = V(4, 4), V(4, 4); CSV = V(2)
        for r in range(4): g(f"v_mov_b32_dpp v{CSQ+r}, v{Q[0]+r} row_newbcast:0 row_mask:0xf bank_mask:0xf")
        for r in range(4): g(f"v_mov_b32_dpp v{CSK+r}, v{Kc[0]+r} row_newbcast:0 row_mask:0xf bank_mask:0xf")
        QB = [None] + [V(2) for t in range(4)]; KB = [V(2) for t in range(5)]; VB = V(10, 2)
        bc = lambda reg: (vr(reg & ~1, 2), reg & 1)
        for t in range(5):
            mp, ms = bc(M1 + t); rp, rs = bc(R1 + t)
            for X, CS in ((Q[t], CSQ), (Kc[t], CSK)):
                if X == Q[0]: continue
                for h in range(2):
                    g(f"v_pk_fma_f32 {vr(X+2*h,2)}, {mp}, {vr(CS+2*h,2)}, {vr(X+2*h,2)} op_sel:[{ms},0,0] op_sel_hi:[{ms},1,1] neg_lo:[1,0,0] neg_hi:[1,0,0]")
            for h in range(2): g(f"v_pk_mul_f32 {vr(Kc[t]+2*h,2)}, {rp}, {vr(Kc[t]+2*h,2)} op_sel:[{rs},0] op_sel_hi:[{rs},1]")
            if t == 0: g(f"v_mov_b32 v{CSV}, v{Vc[0]}"); g(f"v_mov_b32 v{CSV+1}, v{Vc[0]}")
            if t == 1: g(f"v_permlane16_swap_b32 v{CSV}, v{CSV+1}")
            if t == 2: g(f"v_mov_b32 v{CSV+1}, v{CSV}")
            if t == 3: g(f"v_permlane32_swap_b32 v{CSV}, v{CSV+1}")
            if t:
                for h in range(2): g(f"v_cvt_pk_bf16_f32 v{QB[t]+h}, v{Q[t]+2*h}, v{Q[t]+2*h+1}")
            for h in range(2): g(f"v_cvt_pk_bf16_f32 v{KB[t]+h}, v{Kc[t]+2*h}, v{Kc[t]+2*h+1}")
        for t in range(5):
            for h in range(2):
                g(f"v_pk_fma_f32 {vr(Vc[t]+2*h,2)}, {vr(M2[t]+2*h,2)}, {vr(CSV,2)}, {vr(Vc[t]+2*h,2)} op_sel_hi:[1,0,1] neg_lo:[1,0,0] neg_hi:[1,0,0]")
            for h in range(2): g(f"v_pk_mul_f32 {vr(Vc[t]+2*h,2)}, {vr(R2[t]+2*h,2)}, {vr(Vc[t]+2*h,2)}")
        R4 = range(1, 5)
        SP = {t: Q[t] for t in R4}; SC = {t: Kc[t] for t in R4}
        AQ = {t: V(1) for t in R4}; U = {t: V(2) for t in R4}; MX = {t: V(1) for t in R4}; TX = {t: V(1) for t in R4}
        cv = [f"v_cvt_pk_bf16_f32 v{VB+2*t+h}, v{Vc[t]+2*h}, v{Vc[t]+2*h+1}" for t in range(5) for h in range(2)]
        cv += [f"v_mul_f32 v{AQ[t]}, s61, v{R1+t}" for t in R4] + [i.text for i in gn[1]]
        for t in R4:
            g(f"v_mfma_f32_16x16x16_bf16 {vr(SP[t],4)}, {vr(KB[t-1],2)}, {vr(QB[t],2)}, {vr(BP1 if t == 1 else BP,4)}")
            g(cv.pop(0)); g(cv.pop(0))
            g(f"v_mfma_f32_16x16x16_bf16 {vr(SC[t],4)}, {vr(KB[t],2)}, {vr(QB[t],2)}, {vr(BC,4)}")
            g(cv.pop(0)); g(cv.pop(0))
        for t in R4:
            for h in range(2): g(f"v_max3_f32 v{U[t]+h}, v{SP[t]+2*h}, v{SP[t]+2*h+1}, v{SC[t]+2*h}")
        for t in R4:
            for h in range(2): g(f"v_max_f32 v{U[t]+h}, v{U[t]+h}, v{SC[t]+2*h+1}")
        for t in R4: g(f"v_max_f32 v{MX[t]}, v{U[t]}, v{U[t]+1}")
        for t in R4: g(f"v_max_f32 v{TX[t]}, v{U[t]}, v{U[t]+1}")
        for t in R4: g(f"v_permlane16_swap_b32 v{MX[t]}, v{TX[t]}")
        for t in R4: g(f"v_max_f32 v{MX[t]}, v{MX[t]}, v{TX[t]}")
        for t in R4: g(f"v_mov_b32 v{TX[t]}, v{MX[t]}")
        for t in R4: g(f"v_permlane32_swap_b32 v{MX[t]}, v{TX[t]}")
        for t in R4: g(f"v_max_f32 v{MX[t]}, v{MX[t]}, v{TX[t]}")
        for t in R4:
            for h in range(2): g(f"v_sub_f32 v{U[t]+h}, v{U[t]+h}, v{MX[t]}")
        for t in R4:
            for h in range(2): g(f"v_mul_f32 v{U[t]+h}, v{U[t]+h}, v{AQ[t]}")
        for t in R4:
            for h in range(2): g(f"v_exp_f32 v{U[t]+h}, v{U[t]+h}")
        PB = {t: V(4, 4) for t in R4}
        for t in R4:
            for h in range(2): g(f"v_cvt_pk_bf16_f32 v{U[t]+h}, v{U[t]+h}, v{U[t]+h}")
        for t in R4:
            for i in range(4): g(f"v_and_b32 v{PB[t]+i}, v{MK+i}, v{U[t]+(i&1)}")
            if t > 1:
                g(f"v_mfma_f32_16x16x32_bf16 {vr(SP[t-1],4)}, {vr(ONES,4)}, {vr(PB[t-1],4)}, 0")
                g(f"v_mfma_f32_16x16x32_bf16 {vr(SC[t-1],4)}, {vr(VB+2*(t-2),4)}, {vr(PB[t-1],4)}, 0")
        if self.o("pause", 1) == 3: g.add(self.pause(1))
        g(f"v_mfma_f32_16x16x32_bf16 {vr(SP[4],4)}, {vr(ONES,4)}, {vr(PB[4],4)}, 0")
        g(f"v_mfma_f32_16x16x32_bf16 {vr(SC[4],4)}, {vr(VB+6,4)}, {vr(PB[4],4)}, 0")
        OB = [PB[1], PB[3]]
        for pr in range(2):
            for t in (1 + 2*pr, 2 + 2*pr): g(f"v_rcp_f32 v{MX[t]}, v{SP[t]}")
            for t in (1 + 2*pr, 2 + 2*pr):
                for r in range(4): g(f"v_mul_f32 v{SC[t]+r}, v{MX[t]}, v{SC[t]+r}")
            for i, t in enumerate((1 + 2*pr, 2 + 2*pr)):
                for h in range(2): g(f"v_cvt_pk_bf16_f32 v{OB[pr]+2*i+h}, v{SC[t]+2*h}, v{SC[t]+2*h+1}")
            for h in range(2): g(f"v_permlane16_swap_b32 v{OB[pr]+h}, v{OB[pr]+2+h}")
            g(f"buffer_store_dwordx4 {vr(OB[pr],4)}, v{self.vL16}, {SWS}, {self.sO1 if pr else self.sO0} offen {self.SC}", tag="ost")
        self.stamp("Aepi")
        for t in range(5):
            V.release(Q[t], 4); V.release(Kc[t], 4); V.release(Vc[t], 4); V.release(KB[t], 2); V.release(M2[t], 4); V.release(R2[t], 4)
        for t in R4:
            V.release(QB[t], 2); V.release(MX[t]); V.release(TX[t]); V.release(AQ[t]); V.release(U[t], 2); V.release(PB[t], 4)
        V.release(M1, 6); V.release(R1, 6); V.release(VB, 10); V.release(CSV, 2)
        for r in (CSQ, CSK, BC, BP, BP1, MK, ONES): V.release(r, 4)
        V.release(a); V.release(b); V.release(c); V.release(0); V.release(self.vX3, 4)

    def red_consts(self):
        g, V = self.g, self.V
        self.vRw = [V(1), V(1), V(1)]; self.vRr = V(1)
        for i in (1, 2, 3):
            g(f"s_xor_b32 s5, {sW}, {i}"); g("s_lshl_b32 s5, s5, 14"); g(f"s_add_u32 s5, s5, {64*K1 + (i-1)*4096}"); g(f"v_add_u32 v{self.vRw[i-1]}, s5, v{self.vL16}")
        g(f"s_lshl_b32 s5, {sW}, 14"); g(f"s_add_u32 s5, s5, {64*K1}"); g(f"v_add_u32 v{self.vRr}, s5, v{self.vL16}")
    def red_write(self, ACC, a):
        return [self.grp(f"ds_write_b128 v{self.vRw[a-1]}, {vr(ACC[a]+4*j,4)} offset:{j*K1}") for j in range(4)]
    def red_add(self, ACC, T):
        for i in range(12): self.g(f"ds_read_b128 {vr(T+4*i,4)}, v{self.vRr} offset:{i*K1}")
        return [f"v_pk_add_f32 {vr(ACC[0]+2*j,2)}, {vr(ACC[0]+2*j,2)}, {vr(T+16*a+2*j,2)}" for a in range(3) for j in range(8)]

    def phaseB(self):
        g, V = self.g, self.V
        XR = self.vHP; PZ = self.o("pause", 1)
        WB = V(64, 4); OF = V(64, 4); ACC = [V(16, 4) for _ in range(4)]; rd = [V(1), V(1)]; t2 = V(2); t1 = V(1); self.vX3 = V(4)
        self.red_consts()
        g(f"v_add_u32 v{rd[0]}, s5, v{self.vKr}"); g(f"v_xor_b32 v{rd[1]}, 64, v{rd[0]}")
        g.add(self.lchk_issue(K_WB, t1, own=True))
        for j in range(8):
            g(f"v_lshlrev_b32 v{ACC[0]+2*j}, 16, v{XR+j}"); g(f"v_and_b32 v{ACC[0]+2*j+1}, 0xffff0000, v{XR+j}")
        def wbreads():
            for ks in range(8):
                for ct in range(2):
                    for j2 in range(2): g(f"ds_read_b64_tr_b16 {vr(WB+(ks*2+ct)*4+2*j2,2)}, v{rd[ct]} offset:{ks*2048+j2*512}")
            g.add(self.sig(K_B2))
        if self.o("wb_early", 0): g.add(self.lchk_check(K_WB, t1, own=True)); wbreads()
        g.waitvm("ost"); g.add(self.flag_fast(self.sF1))
        if PZ == 2: g.add(self.pause(1))
        self.stamp("F1")
        if not self.o("wb_early", 0): g.add(self.lchk_check(K_WB, t1, own=True)); wbreads()
        self.poll(self.vP1, t2, pre=[self.flag_slow(self.sF1)])
        if PZ == 1: g.add(self.pause(1))
        self.stamp("P1")
        lo = [(ks, rt) for rt in (1, 0) for ks in range(8)]
        lds = [self.grp(f"buffer_load_dwordx4 {vr(OF+(ks*2+rt)*4,4)}, v{self.vL16}, {SWS}, {self.sOF[rt][ks//4]} offen offset:{(ks%4)*K1} sc1") for ks, rt in lo]
        NL0 = self.o("b_l0", 8)
        for grp in lds[:NL0]: g.add(grp)
        g.begin()
        for ks, rt in lo:
            for ct in (1, 0):
                a = 2*rt + ct
                g(f"v_mfma_f32_32x32x16_bf16 {vr(ACC[a],16)}, {vr(WB+(ks*2+ct)*4,4)}, {vr(OF+(ks*2+rt)*4,4)}, {vr(ACC[a],16) if (ks or a == 0) else 0}")
        mf = g.end(); W = Weave(mf, 5)
        for i, grp in enumerate(lds[NL0:]): W.at(2*i, grp)
        W.at(2*(len(lds) - NL0), self.flag_slow(self.sF1) + (self.pause(0) if PZ else []))
        W.at(12, self.lchk_issue(K_B2, t1)); W.at(17, self.lchk_check(K_B2, t1))
        W.even(self.red_write(ACC, 3) + self.red_write(ACC, 2), 19, 31)
        g.add(W.out())
        self.stamp("Bmf")
        for grp in self.red_write(ACC, 1): g.add(grp)
        g.add(self.sig(K_B3))
        self.lwait(K_B3, t1)
        adds = self.red_add(ACC, WB)
        g.add(self.sig(K_B4))
        for l in adds: g(l)
        H = ACC[0]
        for j in range(8): g(f"v_cvt_pk_bf16_f32 v{self.vHP+j}, v{H+2*j}, v{H+2*j+1}")
        g(f"buffer_store_dwordx4 {vr(self.vHP,4)}, v{self.vL16}, {SWS}, {self.sHs} offen {self.SC}", tag="hst")
        g(f"buffer_store_dwordx4 {vr(self.vHP+4,4)}, v{self.vL16}, {SWS}, {self.sHs} offen offset:1024 {self.SC}", tag="hst")
        S2, Q2 = ACC[1], ACC[1] + 2
        g(f"v_pk_add_f32 {vr(S2,2)}, {vr(H,2)}, {vr(H+2,2)}"); g(f"v_pk_mul_f32 {vr(Q2,2)}, {vr(H,2)}, {vr(H,2)}")
        g(f"v_pk_fma_f32 {vr(Q2,2)}, {vr(H+2,2)}, {vr(H+2,2)}, {vr(Q2,2)}")
        for j in range(2, 8):
            g(f"v_pk_add_f32 {vr(S2,2)}, {vr(S2,2)}, {vr(H+2*j,2)}"); g(f"v_pk_fma_f32 {vr(Q2,2)}, {vr(H+2*j,2)}, {vr(H+2*j,2)}, {vr(Q2,2)}")
        g(f"v_add_f32 v{S2}, v{S2}, v{S2+1}"); g(f"v_add_f32 v{Q2}, v{Q2}, v{Q2+1}")
        g(f"v_permlane32_swap_b32 v{S2}, v{Q2}"); g(f"v_add_f32 v{S2}, v{S2}, v{Q2}")
        g(f"buffer_store_dword v{S2}, v{self.vL4}, {SWS}, {self.sHt} offen {self.SC}", tag="hst")
        self.stamp("Bst")
        V.release(WB, 64); V.release(OF, 64); V.release(t2, 2); V.release(t1); V.release(self.vP1); V.release(self.vX3, 4)
        for x in ACC: V.release(x, 16)
        for x in rd + self.vRw + [self.vRr]: V.release(x)

    def phaseC(self):
        g, V = self.g, self.V
        HF = V(128, 4); ACC = [V(16, 4) for _ in range(4)]; ST = ACC[2]
        NF = self.o("c_nf", 5); FR = [V(4, 4) for _ in range(NF)]
        MF = V(4, 4); T = V(8, 4); t2 = V(2); AA = V(2); VV, t1, vHi, vCt = V(1), V(1), V(1), V(1)
        A0, A1 = AA, AA + 1; self.vX3 = T; PZ = self.o("pause", 1)
        g(f"v_add_u32 v{vHi}, 0x10000, v{self.vL16}"); g(f"v_add_u32 v{vCt}, {CST}, v{self.vL16}")
        g(f"s_add_u32 s54, {self.sCo}, 4096")
        g.add(self.lchk_issue(K_C01, t1))
        g.waitvm("hst"); g.add(self.flag_fast(self.sF2))
        self.stamp("F2")
        g(f"s_cmp_eq_u32 {sCGX}, 15"); g.branch("s_cbranch_scc1 L_skipC", keep=True)
        g.begin(); g.label("L_skipC", keep=True)
        g.add(self.flag_slow(self.sF2)); g.add(self.pause(0))
        for kw, k in ((K_C01, K_P0), (K_C23, K_U3), (K_C45, K_U5)): self.lwait(kw, t1, sleep=2); g.add(self.sig(k))
        g.branch("s_branch L_cdone"); self.tail.append(g.end())
        g.add(self.lchk_check(K_C01, t1))
        if PZ >= 2: g.add(self.pause(1))
        seq = [(2*p + e, ks) for p in range(3) for ks in range(33) for e in range(2)]
        idx = {x: i for i, x in enumerate(seq)}; RA = NF - 1
        KO = (list(range(16, 32)) + list(range(16))) if self.o('c_ko', 1) else list(range(32))
        def rd(i):
            u, ks = seq[i]; g.begin()
            if ks < 32: g(f"ds_read_b128 {vr(FR[i % NF],4)}, v{vHi if (u//2) % 2 else self.vL16} offset:{(u%2)*32768 + KO[ks]*K1}")
            else: g(f"ds_read_b128 {vr(FR[i % NF],4)}, v{vCt} offset:{u*K1}")
            if ks == 31 and u % 2: g.add(self.sig((K_P0, K_U3, K_U5)[u // 2]))
            return g.end()
        for i in range(RA): g.add(rd(i))
        if self.o("c_ko", 1):
            vPa = MF; g(f"v_or_b32 v{vPa}, 64, v{self.vP2}")
            self.poll(vPa, t2, pre=[self.flag_slow(self.sF2)])
        else: self.poll(self.vP2, t2, pre=[self.flag_slow(self.sF2)])
        if PZ == 1: g.add(self.pause(1))
        self.stamp("P2")
        hl = []
        for ks in range(32):
            l = [f"s_add_u32 s55, {self.sCh}, {KO[ks]*K1}"] if ks % 4 == 0 else []
            l.append(f"buffer_load_dwordx4 {vr(HF+4*ks,4)}, v{self.vL16}, {SWS}, s55 offen offset:{(ks%4)*K1} sc1")
            hl.append(self.grp(*l))
        sl = [self.grp(f"buffer_load_dword v{ST+i}, v{self.vL4}, {SWS}, {self.sCt} offen offset:{i*256} sc1") for i in range(16)]
        NH0 = self.o("c_h0", 8)
        for grp in hl[:NH0]: g.add(grp)
        g.begin()
        for st in (8, 4, 2, 1):
            for i in range(st): g(f"v_add_f32 v{ST+i}, v{ST+i}, v{ST+i+st}")
        g(f"v_mov_b32 v{ST+1}, v{ST}"); g(f"v_permlane32_swap_b32 v{ST}, v{ST+1}")
        g(f"v_mul_f32 v{ST}, s60, v{ST}"); g(f"v_mul_f32 v{ST+1}, s60, v{ST+1}")
        g(f"v_fma_f32 v{ST+1}, -v{ST}, v{ST}, v{ST+1}"); g(f"v_max_f32 v{ST+1}, 0, v{ST+1}")
        g(f"v_add_f32 v{VV}, {f32(1e-5)}, v{ST+1}"); g(f"v_rsq_f32 v{ST+2}, v{VV}")
        c0 = -2.0 * 0.7978845608028654 * LOG2E
        g(f"v_cvt_pk_bf16_f32 v{MF}, -v{ST}, -v{ST}")
        g(f"v_mul_f32 v{A0}, {f32(c0)}, v{ST+2}"); g(f"v_mul_f32 v{ST+3}, v{ST+2}, v{ST+2}")
        g(f"v_mul_f32 v{A1}, {f32(0.044715)}, v{A0}"); g(f"v_mul_f32 v{A1}, v{ST+3}, v{A1}")
        g(f"v_and_b32 v{ST+4}, 0xffff0000, v{MF}"); g(f"v_sub_f32 v{ST+4}, -v{ST}, v{ST+4}")
        g(f"v_cvt_pk_bf16_f32 v{MF+1}, v{ST+4}, 0"); g(f"v_mov_b32 v{MF+2}, v{MF}"); g(f"v_mov_b32 v{MF+3}, v{MF+1}")
        stats = singles(g.end())
        def store(u, G): g(f"buffer_store_dwordx4 {vr(G,4)}, v{self.vL16}, {SWS}, {self.sCo if u < 4 else 's54'} offen offset:{(u%4)*K1} {self.SC}", tag=f"hh{u//2}")
        def epi(u):
            g.begin(); G = ACC[u % 4]; U = G + 8
            for i in range(8): g(f"v_mul_f32 v{T+i}, v{G+i}, v{G+i}")
            for i in range(8): g(f"v_fma_f32 v{T+i}, v{T+i}, v{A1}, v{A0}")
            for i in range(8): g(f"v_mul_f32 v{T+i}, v{G+i}, v{T+i}")
            for i in range(8): g(f"v_exp_f32 v{T+i}, v{T+i}"); g(f"v_mul_f32 v{U+i}, v{G+i}, v{U+i}")
            for i in range(8): g(f"v_fma_f32 v{T+i}, v{T+i}, v{VV}, v{VV}")
            for i in range(8):
                g(f"v_rcp_f32 v{T+i}, v{T+i}")
                if i: g(f"v_mul_f32 v{U+i-1}, v{U+i-1}, v{T+i-1}")
            g(f"v_mul_f32 v{U+7}, v{U+7}, v{T+7}")
            for i in range(4): g(f"v_cvt_pk_bf16_f32 v{G+i}, v{U+2*i}, v{U+2*i+1}")
            store(u, G)
            return singles(g.end())
        def epi_pk(u):
            g.begin(); G = ACC[u % 4]; U = G + 8; P = lambda x, i: vr(x + 2*i, 2); vv = (vr(VV & ~1, 2), VV & 1)
            for i in range(4): g(f"v_pk_mul_f32 {P(T,i)}, {P(G,i)}, {P(G,i)}")
            for i in range(4): g(f"v_pk_fma_f32 {P(T,i)}, {P(T,i)}, {vr(AA,2)}, {vr(AA,2)} op_sel:[0,1,0] op_sel_hi:[1,1,0]")
            for i in range(4): g(f"v_pk_mul_f32 {P(T,i)}, {P(G,i)}, {P(T,i)}")
            for i in range(8): g(f"v_exp_f32 v{T+i}, v{T+i}")
            for i in range(4): g(f"v_pk_mul_f32 {P(U,i)}, {P(G,i)}, {P(U,i)}")
            for i in range(4): g(f"v_pk_fma_f32 {P(T,i)}, {P(T,i)}, {vv[0]}, {vv[0]} op_sel:[0,{vv[1]},{vv[1]}] op_sel_hi:[1,{vv[1]},{vv[1]}]")
            for i in range(8): g(f"v_rcp_f32 v{T+i}, v{T+i}")
            for i in range(4): g(f"v_pk_mul_f32 {P(U,i)}, {P(U,i)}, {P(T,i)}")
            for i in range(4): g(f"v_cvt_pk_bf16_f32 v{G+i}, v{U+2*i}, v{U+2*i+1}")
            store(u, G)
            return g.end()
        def flg(p, slow=True):
            g.begin(); g.waitvm(f"hh{p}"); g.add(self.flag_fast(self.sF3, 128*p))
            if slow: g.add(self.flag_slow(self.sF3, 128*p))
            return g.end()
        g.begin()
        for i, (u, ks) in enumerate(seq):
            acc = ACC[u % 4]
            g(f"v_mfma_f32_32x32x16_bf16 {vr(acc,16)}, {vr(FR[i % NF],4)}, {vr(HF+4*ks,4) if ks < 32 else vr(MF,4)}, {vr(acc,16) if ks else 0}")
        mf = g.end(); W = Weave(mf, 5)
        for key, k in (((2, 0), K_C23), ((4, 0), K_C45), ((0, 32), K_CS)):
            at = idx[key] - RA; tk = t1 if key[1] == 0 else t2
            W.at(at - 5, self.lchk_issue(k, tk)); W.at(at - 1, self.lchk_check(k, tk))
        for i in range(RA, len(seq)): W.at(i - RA, rd(i))
        for i in range(0, len(seq) - 1, 2):
            g.begin(); g.needs(vr(FR[(i + 1) % NF], 4)); W.before(i, g.end())
        pos = 0
        if self.o("c_ko", 1):
            at = 2*(16 - NH0); g.add(self.apoll_issue(self.vP2, t2)); W.at(at - 1, self.apoll_check(self.vP2, t2, pre=[self.flag_slow(self.sF2)]))
        else: at = 0
        for grp in hl[NH0:]: W.at(pos, grp); pos += 2
        for k, grp in enumerate(sl): W.at(at + 1 + k, grp)
        W.at(pos, self.flag_slow(self.sF2))
        if PZ: W.at(self.o("c_unp", pos), self.pause(0))
        left, _ = W.fill(stats, 50, 63, cap=6); assert not left
        if self.stamps and self.o("cst", 0):
            for key in ((0, 16), (2, 0), (2, 16), (4, 0), (4, 16)):
                g.begin(); self.stamp("c%d_%d" % key); W.before(idx[key], g.end())
        for p in range(2):
            pos = idx[(2*p + 2, 1)]; limit = idx[(2*p + 2, 32)]
            rest, pos = W.fill(epi(2*p) + epi(2*p + 1), pos, limit); assert not rest
            if p == 0: W.at(pos + self.o("c_fl", 40), flg(0))
        W.at(len(mf) - self.o("d_pl", 24), self.apoll_issue(self.vP3, t2))
        g.add(W.out())
        self.stamp("Cmf")
        self.e45 = epi_pk(4) + epi_pk(5); self.flg = flg; self.t2 = t2
        V.release(HF, 128)
        for x in ACC[2:]: V.release(x, 16)
        for x in FR + [MF]: V.release(x, 4)
        for x in [t1, vCt, vHi, self.vP2]: V.release(x)
        self.crel = lambda: (V.release(T, 8), V.release(AA, 2), V.release(VV), [V.release(x, 16) for x in ACC[:2]])

    def phaseD(self):
        g, V = self.g, self.V
        NK = 22; t2 = self.t2; flg = self.flg
        NH = self.o("d_nh", 26); HR = V(4*NH, 4); NWF = 4; WF = V(8*NWF, 4)
        rd = [[V(1), V(1)] for _ in range(3)]; t1 = V(1); vZ = V(1); self.vX3 = V(4)
        ACC = [None, None, V(16, 4), V(16, 4)]
        lo = [(n, rt) for n in range(NK) for rt in (1, 0)]
        lds = [self.grp(f"s_add_u32 s3, {self.sHF[rt]}, {(12*DK[n][1] + 2*DK[n][0])*K1}",
                        f"buffer_load_dwordx4 {vr(HR+4*(m%NH),4)}, v{vZ if DK[n] == (0, 7) else self.vL16}, {SWS}, s3 offen sc1") for m, (n, rt) in enumerate(lo)]
        NL0 = self.o("d_l0", 12); assert NL0 <= 14
        f1 = flg(1, slow=False); s12 = [self.flag_slow(self.sF3, 128)]
        g.add(f1)
        g.add(self.apoll_check(self.vP3, t2, pre=s12))
        self.stamp("P3")
        k = 0; step = max(1, len(self.e45) // NL0)
        for i, it in enumerate(self.e45):
            if i % step == 0 and k < NL0: g.add(lds[k]); k += 1
            g.add([it])
        for grp in lds[k:NL0]: g.add(grp)
        g.add(s12[0])
        self.stamp("Cepi")
        g.label("L_dgo", keep=True)
        g.begin(); g.label("L_cdone", keep=True)
        self.poll(self.vP3, t2)
        for grp in lds[:NL0]: g.add(grp)
        g.branch("s_branch L_dgo"); self.tail.append(g.end())
        self.crel()
        ACC[0], ACC[1] = V(16, 4), V(16, 4)
        g.add(self.apoll_issue(self.vP3, t2, 128))
        g.add(self.lchk_issue(K_D1, t1, own=True))
        for i in range(3):
            g(f"s_mul_i32 s5, {sW}, {DPART[i][3]}"); g(f"s_add_u32 s5, s5, {DPART[i][2]}")
            g(f"v_add_u32 v{rd[i][0]}, s5, v{self.vKr}"); g(f"v_xor_b32 v{rd[i][1]}, 64, v{rd[i][0]}")
        g(f"s_cmp_ge_u32 {sW}, 2"); g("s_cselect_b32 s5, 0x80000000, 0"); g(f"v_or_b32 v{vZ}, s5, v{self.vL16}")
        def part_of(i):
            for p, (f, n, _, _) in enumerate(DPART):
                if f <= i < f + n: return p, i - f
        def wread(i):
            p, j = part_of(i)
            out = [self.grp(f"ds_read_b64_tr_b16 {vr(WF+((i%NWF)*2+ct)*4+2*j2,2)}, v{rd[p%3][ct]} offset:{j*2048+j2*512}") for ct in range(2) for j2 in range(2)]
            if i == 2: out[-1] = out[-1] + self.sig(K_DS)
            return out
        g.add(self.lchk_check(K_D1, t1, own=True))
        for i in range(NWF - 1):
            for grp in wread(i): g.add(grp)
        g.add(self.lchk_issue(K_D2, t1, own=True))
        for j in range(8):
            g(f"v_lshlrev_b32 v{ACC[0]+2*j}, 16, v{self.vHP+j}"); g(f"v_and_b32 v{ACC[0]+2*j+1}, 0xffff0000, v{self.vHP+j}")
        g.add(self.lchk_check(K_D2, t1, own=True))
        self.stamp("Dpre")
        g.begin()
        for m, (n, rt) in enumerate(lo):
            for ct in (1, 0):
                a = 2*rt + ct
                g(f"v_mfma_f32_32x32x16_bf16 {vr(ACC[a],16)}, {vr(WF+((n%NWF)*2+ct)*4,4)}, {vr(HR+4*(m%NH),4)}, {vr(ACC[a],16) if (n or a == 0) else 0}")
        mf = g.end(); W = Weave(mf, 5)
        for p, k in ((2, K_D3), (3, K_D4)):
            at = 4*(DPART[p][0] - (NWF - 1))
            W.at(at - 4, self.lchk_issue(k, t1, own=True)); W.at(at - 1, self.lchk_check(k, t1, own=True))
        for i in range(NWF - 1, NK):
            for j, grp in enumerate(wread(i)): W.at(4*(i - (NWF - 1)) + j, grp)
        for m in range(NL0, len(lds)):
            at = 2*(m - NL0)
            if m == 16: W.at(at, flg(2) + self.apoll_check(self.vP3, t2, 128))
            if m == 30:
                W.at(at - self.o("d_p2", 12), self.apoll_issue(self.vP3, t2, 256)); W.at(at, self.apoll_check(self.vP3, t2, 256))
            W.at(at, lds[m])
        g.begin(); self.red_consts(); left, _ = W.fill(singles(g.end()), 44); assert not left
        W.at(4*(DPART[3][0] - (NWF - 1)) + 6, self.grp("s_barrier"))
        g.add(W.out())
        self.stamp("Dmf")
        for a in (3, 2, 1):
            for grp in self.red_write(ACC, a): g.add(grp)
        g.waitds(); g("s_barrier")
        for l in self.red_add(ACC, HR): g(l)
        H = ACC[0]
        for j in range(8): g(f"v_cvt_pk_bf16_f32 v{self.vHP+j}, v{H+2*j}, v{H+2*j+1}")
        g(f"buffer_store_dwordx4 {vr(self.vHP,4)}, v{self.vRM}, {SOUT}, 0 offen")
        g(f"buffer_store_dwordx4 {vr(self.vHP+4,4)}, v{self.vRM}, {SOUT}, 0 offen offset:32")

    def build(self):
        g = self.g
        self.prologue(); self.helper(); self.phaseA(); self.phaseB(); self.phaseC(); self.phaseD()
        if self.stamps:
            self.stamp("end")
            g(f"s_lshl_b32 s3, s2, 2"); g(f"s_add_u32 s3, s3, {sW}"); g("s_lshl_b32 s3, s3, 8"); g(f"s_add_u32 s3, s3, {WS_STAMP}")
            g(f"buffer_store_dword v{self.vST}, v{self.vL4}, {SWS}, s3 offen")
        g.label("L_end", keep=True)
        g("s_endpgm")
        for st in self.tail: g.add(st)
        g.raw("L_codeend:")
        body = g.finalize()
        hdr = open("ref.txt").read().split("; Override launch geometry")[0]
        s = hdr + "; @launch grid=(256,1,1) block=(512,1,1) lds=163840\n"
        s += '.amdgcn_target "amdgcn-amd-amdhsa--gfx950"\n.text\n'
        s += f".globl {NAME}_kernel\n.p2align 8\n.type {NAME}_kernel,@function\n{NAME}_kernel:\n"
        s += body + "    s_endpgm\n"
        s += f'.section .rodata,"a"\n.p2align 6\n.amdhsa_kernel {NAME}_kernel\n'
        s += "  .amdhsa_next_free_vgpr 256\n  .amdhsa_next_free_sgpr 102\n  .amdhsa_accum_offset 256\n"
        s += "  .amdhsa_group_segment_fixed_size 0\n  .amdhsa_kernarg_size 80\n  .amdhsa_user_sgpr_count 2\n"
        s += "  .amdhsa_user_sgpr_kernarg_segment_ptr 1\n  .amdhsa_system_sgpr_workgroup_id_x 1\n"
        s += "  .amdhsa_float_denorm_mode_32 3\n.end_amdhsa_kernel\n"
        return s

if __name__ == "__main__":
    import argparse
    ap = argparse.ArgumentParser()
    ap.add_argument("-o", default="k.s"); ap.add_argument("--stamps", action="store_true"); ap.add_argument("--opt", default="")
    a = ap.parse_args()
    opt = {kv.split("=")[0]: int(kv.split("=")[1]) for kv in a.opt.split(",") if kv}
    k = K(a.stamps, opt); s = k.build()
    open(a.o, "w").write(s)
    if a.stamps: open(a.o + ".names", "w").write("\n".join(" ".join(k.names[r]) for r in "CSJ"))
    print("ins", k.g.stats, "vgpr hi", k.V.hi, "sgpr hi", k.S.hi)
```

```python
import sys, struct
sys.path.insert(0, "gen")
from asmgen import *

NAME = "sequential_preLN__sliding_local_dilated__glu_gated_geglu__prompt"
K1 = 1024
WS_O, WS_H, WS_HH, WS_HST, WS_CS, WS_ST = 0x001000, 0x202000, 0x403000, 0xA04000, 0xA44000, 0xAC4000
WS_FF, WS_FW, WS_FS, WS_STAMP, WS_WC = 0xAD0000, 0xAE0000, 0xB00000, 0xC00000, 0xD00000
WS_SIZE = 0x1000000
HHP = 96
HHPAD = lambda pg: WS_HH + (-(-((pg << 21) - WS_HH) // (HHP*K1)))*HHP*K1 + 94*K1
WARM = [0, 0x201000, 0x402000, HHPAD(3), HHPAD(4), 0xA03000, 0xCF0000, 0xFF0000]
assert [x >> 21 for x in WARM] == list(range(8))
SX, SWQ, SWO, SWG, SWU, SWD, SOUT, SDBG, SWS = [f"s[{b}:{b+3}]" for b in range(8, 44, 4)]
sW, sRB, sCB, sR128, sCGX = "s44", "s45", "s46", "s47", "s68"
sNON = "s[70:71]"
POLL_LIMIT = 1 << 16
LOG2E = 1.4426950408889634
SLOT = 34*K1; SCR = 136*K1; TAB = 152*K1; CST = 152*K1; SYNC = 159*K1; NONL = SYNC + 1008
(K_WB, K_B2, K_B3, K_B4, K_C01, K_C23, K_P0, K_C45, K_U3, K_U5, K_D1, K_D2, K_D3, K_D4, K_DS, K_AE, K_TB, K_PZ, K_CS, K_T2, K_PP, K_IS) = range(22)
K_A = 22; K_F = 31; K_G1 = 35; K_G2 = 36; K_C23b = 37; K_C45b = 38
DPART = [(0, 3, 128*K1, 6*K1), (3, 8, 64*K1, 16*K1), (11, 8, 0, 16*K1), (19, 3, 128*K1, 6*K1)]
DK = [(0, i) for i in range(8)] + [(1, i) for i in range(7)] + [(2, i) for i in range(7)]
def f32(x): return "0x%08x" % struct.unpack("<I", struct.pack("<f", x))[0]

class K:
    def __init__(self, stamps=False, opt=None):
        self.g = Gen(); self.V = Alloc(0, 256); self.S = Alloc(74, 100)
        self.stamps = stamps; self.tail = []; self.opt = opt or {}; self.names = {"C": [], "S": [], "J": []}; self.role = "C"
        self.SC = "" if self.opt.get("loc", 0) else "sc1"
    def o(self, k, d): return self.opt.get(k, d)
    def stamp(self, name):
        if not self.stamps: return
        roles = "SJ" if self.role == "H" else self.role
        if self.role == "H":
            n = max(len(self.names["S"]), len(self.names["J"]))
            for r in "SJ": self.names[r] += ["-"] * (n - len(self.names[r]))
        i = len(self.names[roles[0]])
        for r in roles: self.names[r].append(name)
        self.g("s_memtime s[72:73]" if self.o("cyc", 0) else "s_memrealtime s[72:73]"); self.g("s_waitcnt lgkmcnt(0)"); self.g(f"v_writelane_b32 v{self.vST}, s72, {i}")
    def s(self): return f"s{self.S(1)}"
    def grp(self, *lines, tag=None):
        g = self.g; g.begin()
        for l in lines: g(l, tag)
        return g.end()

    def flag_fast(self, sid, off=0):
        if not self.o("fast", 1): return []
        return self.grp("s_mov_b64 exec, 1", f"buffer_store_dwordx2 {vr(self.vNON,2)}, v{self.vZero}, {SWS}, {sid} offen offset:{off}", "s_mov_b64 exec, -1")
    def flag_slow(self, sid, off=0):
        return self.grp(f"s_lshl_b32 s4, {sid}, 4", f"s_add_u32 s4, s4, {(WS_FS - WS_FF*16 + off*16) & 0xffffffff}", "s_mov_b64 exec, 0xffff",
                        f"buffer_store_dwordx2 {vr(self.vNON,2)}, v{self.vL8}, {SWS}, s4 offen sc1", "s_mov_b64 exec, -1")
    def slow_loop(self, Ls, Lb, vaddr, tmp, off, pre):
        g = self.g; L2 = g.newlabel("L_sl"); x = self.vX3
        g.begin()
        g.label(Ls, keep=True)
        for grp in pre: g.add(grp)
        g("s_mov_b32 s53, 0")
        g(f"v_lshlrev_b32 v{x+2}, 4, v{vaddr}"); g(f"v_add_u32 v{x+2}, {(WS_FS - WS_FF*16 + off*16) & 0xffffffff}, v{x+2}")
        g.label(L2, keep=True)
        g(f"buffer_load_dwordx2 {vr(tmp,2)}, v{vaddr}, {SWS}, 0 offen offset:{off} sc1")
        g(f"buffer_load_dwordx2 {vr(x,2)}, v{x+2}, {SWS}, 0 offen sc1")
        g("s_add_u32 s53, s53, 1"); g("s_waitcnt vmcnt(0)")
        g(f"s_cmp_gt_u32 s53, {POLL_LIMIT}"); g(f"s_cbranch_scc1 {Lb}")
        g(f"v_cmp_ne_u64 vcc, {sNON}, {vr(tmp,2)}"); g(f"v_cmp_ne_u64 s[6:7], {sNON}, {vr(x,2)}")
        g("s_and_b64 vcc, vcc, s[6:7]"); g(f"s_cbranch_vccnz {L2}")
        g.branch(f"s_branch {Lb}", keep=True)
        self.tail.append(g.end())
    def poll(self, vaddr, tmp, off=0, pre=()):
        g = self.g; L = g.newlabel("L_poll"); Lb = g.newlabel("L_go"); Ls = g.newlabel("L_slow")
        if not self.o("fast", 1):
            g.branch(f"s_cbranch_execnz {Ls}", keep=True); g("s_waitcnt vmcnt(0)")
        else:
            g("s_mov_b32 s52, 0")
            g.label(L, keep=True)
            g(f"buffer_load_dwordx2 {vr(tmp,2)}, v{vaddr}, {SWS}, 0 offen offset:{off} sc1")
            g("s_add_u32 s52, s52, 1"); g(f"s_cmp_gt_u32 s52, {self.o('nfast', 24)}"); g(f"s_cbranch_scc1 {Ls}")
            g("s_waitcnt vmcnt(0)")
            g(f"v_cmp_ne_u64 vcc, {sNON}, {vr(tmp,2)}"); g(f"s_cbranch_vccnz {L}")
        g.label(Lb, keep=True)
        self.slow_loop(Ls, Lb, vaddr, tmp, off, pre)
    def apoll_issue(self, vaddr, tmp, off=0):
        return self.grp(f"buffer_load_dwordx2 {vr(tmp,2)}, v{vaddr}, {SWS}, 0 offen offset:{off} sc1")
    def apoll_check(self, vaddr, tmp, off=0, pre=(), plain=False):
        g = self.g; Ls = g.newlabel("L_as"); Lb = g.newlabel("L_ab")
        g.begin(); g(f"v_cmp_ne_u64 vcc, {sNON}, {vr(tmp,2)}"); g(f"s_cbranch_vccnz {Ls}"); g.raw(Lb + ":"); main = g.end()
        g.begin(); g.label(Ls, keep=True)
        if plain:
            L2 = g.newlabel("L_al"); g("s_mov_b32 s53, 0"); g.label(L2, keep=True)
            g(f"buffer_load_dwordx2 {vr(tmp,2)}, v{vaddr}, {SWS}, 0 offen offset:{off} sc1")
            g("s_add_u32 s53, s53, 1"); g("s_waitcnt vmcnt(0)"); g(f"s_sleep {self.o('pw_slp', 6)}")
            g(f"s_cmp_gt_u32 s53, {POLL_LIMIT}"); g(f"s_cbranch_scc1 {Lb}")
            g(f"v_cmp_ne_u64 vcc, {sNON}, {vr(tmp,2)}"); g(f"s_cbranch_vccnz {L2}")
        else: self.poll(vaddr, tmp, off, pre)
        g.branch(f"s_branch {Lb}", keep=True)
        self.tail.append(g.end())
        return main
    def sig(self, k): return self.grp(f"ds_write_b32 v{self.vSig}, v{self.vSig} offset:{16*k}")
    def lchk_issue(self, k, tmp, own=False):
        return self.grp(f"ds_read_b32 v{tmp}, v{self.vOwn if own else self.vAll} offset:{16*k}")
    def lchk_check(self, k, tmp, own=False, neg=False, sleep=0):
        g = self.g; Ls = g.newlabel("L_ls"); Lb = g.newlabel("L_lb"); L2 = g.newlabel("L_ll"); cmp_ = "ne" if neg else "eq"
        g.begin(); g(f"v_cmp_{cmp_}_u32 vcc, 0, v{tmp}"); g(f"s_cbranch_vccnz {Ls}"); g.raw(Lb + ":"); main = g.end()
        g.begin()
        g.label(Ls, keep=True); g("s_mov_b32 s53, 0")
        g.label(L2, keep=True)
        g(f"ds_read_b32 v{tmp}, v{self.vOwn if own else self.vAll} offset:{16*k}")
        g("s_add_u32 s53, s53, 1")
        if sleep: g(f"s_sleep {sleep}")
        g("s_waitcnt lgkmcnt(0)")
        g(f"s_cmp_gt_u32 s53, {POLL_LIMIT*16}"); g(f"s_cbranch_scc1 {Lb}")
        g(f"v_cmp_{cmp_}_u32 vcc, 0, v{tmp}"); g(f"s_cbranch_vccnz {L2}")
        g.branch(f"s_branch {Lb}", keep=True)
        self.tail.append(g.end())
        return main
    def lwait(self, k, tmp, own=False, sleep=0, addr=None):
        g = self.g; L = g.newlabel("L_lw"); Lgo = g.newlabel("L_lg")
        g("s_mov_b32 s53, 0")
        g.label(L, keep=True)
        g(f"ds_read_b32 v{tmp}, v{addr if addr is not None else (self.vOwn if own else self.vAll)} offset:{16*k}")
        g("s_add_u32 s53, s53, 1"); g(f"s_cmp_gt_u32 s53, {POLL_LIMIT*16}"); g(f"s_cbranch_scc1 {Lgo}")
        if sleep: g(f"s_sleep {sleep}")
        g("s_waitcnt lgkmcnt(0)")
        g(f"v_cmp_eq_u32 vcc, 0, v{tmp}"); g(f"s_cbranch_vccnz {L}")
        g.label(Lgo, keep=True)
    def pause(self, on):
        return self.sig(K_PZ) if on else self.grp(f"ds_write_b32 v{self.vSig}, v{self.vZero} offset:{16*K_PZ}")
    def sync_consts(self, a):
        g, L = self.g, self.vL
        g(f"s_lshl_b32 s4, {sW}, 2"); g(f"s_add_u32 s4, s4, {SYNC}"); g(f"v_mov_b32 v{self.vOwn}, s4")
        g(f"v_mov_b32 v{a}, 0x40000"); g(f"v_cmp_eq_u32 vcc, 0, v{L}"); g(f"v_cndmask_b32 v{self.vSig}, v{a}, v{self.vOwn}, vcc")
        g(f"v_and_b32 v{a}, 3, v{L}"); g(f"v_lshlrev_b32 v{a}, 2, v{a}"); g(f"v_add_u32 v{self.vAll}, {SYNC}, v{a}")
    def get_nonce(self, a):
        return [self.grp(f"v_mov_b32 v{a}, {NONL}", f"ds_read_b64 {vr(self.vNON,2)}, v{a}"),
                self.grp(f"v_readfirstlane_b32 s70, v{self.vNON}", f"v_readfirstlane_b32 s71, v{self.vNON+1}")]
    def srd(self, base, ptr, size):
        g = self.g
        g(f"s_mov_b32 s{base}, s{ptr}"); g(f"s_and_b32 s{base+1}, s{ptr+1}, 0xffff"); g(f"s_mov_b32 s{base+2}, {size}"); g(f"s_mov_b32 s{base+3}, 0x20000")
    def pi8(self, acc, t):
        g, L = self.g, self.vL
        g(f"v_and_b32 v{t}, 1, v{L}"); g(f"v_lshl_add_u32 v{acc}, v{t}, 4, v{acc}")
        g(f"v_bfe_u32 v{t}, v{L}, 1, 1"); g(f"v_lshl_add_u32 v{acc}, v{t}, 3, v{acc}")
    def rbf(self, r):
        self.g(f"v_cvt_pk_bf16_f32 v{r}, v{r}, v{r}"); self.g(f"v_and_b32 v{r}, 0xffff0000, v{r}")
    def cmap(self):
        g = self.g
        if self.o("cmap", 0) == 0:
            g("s_and_b32 s4, s2, 7"); g("s_lshl_b32 s4, s4, 1"); g("s_lshr_b32 s6, s2, 7"); g(f"s_add_u32 {sR128}, s4, s6")
            g("s_lshr_b32 s4, s2, 3"); g(f"s_and_b32 {sCGX}, s4, 15")
            if self.o("cgmap", 1):
                perm = list(range(16)); perm[3], perm[14] = 14, 3; perm[11], perm[15] = 15, 11
                lo = sum(perm[i] << (4*i) for i in range(8)); hi = sum(perm[8+i] << (4*i) for i in range(8))
                g(f"s_mov_b32 s6, {lo:#x}"); g(f"s_mov_b32 s7, {hi:#x}"); g(f"s_lshl_b32 s4, {sCGX}, 2"); g("s_lshr_b64 s[6:7], s[6:7], s4"); g(f"s_and_b32 {sCGX}, s6, 15")
        else:
            g("s_and_b32 s4, s2, 6"); g("s_lshl_b32 s4, s4, 1"); g("s_lshr_b32 s6, s2, 6"); g(f"s_add_u32 {sR128}, s4, s6")
            g("s_lshr_b32 s4, s2, 3"); g("s_and_b32 s4, s4, 7"); g("s_and_b32 s6, s2, 1"); g("s_lshl_b32 s6, s6, 3"); g(f"s_add_u32 {sCGX}, s4, s6")

    def prologue(self):
        g, V = self.g, self.V
        g("s_cmp_ge_u32 s2, 256"); g("s_cbranch_scc1 L_end")
        g("s_load_dwordx16 s[48:63], s[0:1], 0"); g("s_load_dwordx4 s[64:67], s[0:1], 64"); g("s_memrealtime s[100:101]")
        assert V(1) == 0
        self.vL, self.vL16, self.vST, self.vNON, self.vSig, self.vOwn, self.vAll, self.vL8, self.vZero = V(1), V(1), V(1), V(2), V(1), V(1), V(1), V(1), V(1)
        self.NCOMMON = 11
        g(f"v_lshrrev_b32 v{self.vL16}, 6, v0"); g(f"v_and_b32 v{self.vL}, 63, v0"); g(f"v_readfirstlane_b32 s3, v{self.vL16}")
        g("s_and_b32 s4, s2, 7"); g("s_lshr_b32 s5, s2, 3")
        g("s_lshl_b32 s6, s4, 2"); g("s_lshr_b32 s7, s5, 3"); g(f"s_add_u32 {sRB}, s6, s7"); g(f"s_and_b32 {sCB}, s5, 7")
        g(f"s_and_b32 {sW}, s3, 3")
        if self.stamps: g(f"v_mov_b32 v{self.vST}, 0")
        g(f"v_lshlrev_b32 v{self.vL16}, 4, v{self.vL}")
        g("s_cmp_lt_u32 s3, 4"); g.branch("s_cbranch_scc1 L_compute", keep=True)
        g("s_cmp_ge_u32 s3, 6"); g.branch("s_cbranch_scc1 L_job", keep=True)

    def helper(self):
        g = self.g; V = Alloc(self.NCOMMON, 256); L = self.vL
        a, b, c, vXs, vWs = V(1), V(1), V(1), V(1), V(1)
        vKs, vCs, vCs2, vCw, vPW, vPC = V(1), V(1), V(1), V(1), V(1), V(1); vDw = [V(1) for _ in range(3)]; t2 = V(2)
        STG = V(208, 4); CA = V(16, 4); ON = V(4, 4)
        Qd = lambda i: STG + 4*i
        sBm, sBs, sCm, sD0, sD7, sDm, sUm, sCSr = "s82", "s83", "s84", "s85", "s86", "s87", "s88", "s89"
        def start_stamp():
            if self.stamps: g(f"v_writelane_b32 v{self.vST}, s100, 0"); self.names[self.role].append("start")
        def sym_setup():
            g.begin()
            self.srd(16, 52, 512*512*2); self.srd(28, 60, 1376*512*2); self.srd(40, 66, WS_SIZE)
            self.cmap()
            g(f"v_bfe_u32 v{a}, v{L}, 4, 1"); g(f"v_lshlrev_b32 v{a}, 2, v{a}")
            g(f"v_and_b32 v{b}, 7, v{L}"); g(f"v_xor_b32 v{a}, v{a}, v{b}"); g(f"v_lshlrev_b32 v{a}, 4, v{a}")
            g(f"v_lshrrev_b32 v{b}, 3, v{L}"); g(f"v_lshl_add_u32 v{a}, v{b}, 10, v{a}")
            g(f"s_lshl_b32 s4, {sCB}, 7"); g(f"v_add_u32 v{vKs}, s4, v{a}")
            g(f"s_lshl_b32 s6, {sW}, 14"); g(f"s_add_u32 {sBm}, s6, {64*K1}"); g(f"s_lshl_b32 {sBs}, {sW}, 17")
            g(f"s_lshl_b32 {sUm}, {sW}, 12")
            g(f"s_mul_i32 s4, {sCGX}, {6*32*K1}"); g(f"s_add_u32 s4, s4, {sUm}"); g(f"s_add_u32 {sCm}, s4, {WS_WC}")
            g(f"s_cmp_ge_u32 {sCGX}, 14"); g("s_cselect_b32 s4, 0x80000000, 0"); g(f"v_or_b32 v{vCs2}, s4, v{self.vL16}")
            g(f"s_cmp_eq_u32 {sCGX}, 15"); g("s_cselect_b32 s4, 0x80000000, 0"); g(f"s_cselect_b32 s6, 0, {sCGX}"); g(f"v_or_b32 v{vCs}, s4, v{self.vL16}")
            g("s_lshl_b32 s6, s6, 3"); g(f"s_add_u32 s6, s6, {sW}"); g("s_lshl_b32 s7, s6, 9"); g(f"s_add_u32 s7, s7, {WS_FW}")
            g(f"v_and_b32 v{a}, 3, v{L}"); g(f"v_bfe_u32 v{b}, v{L}, 2, 1"); g(f"v_lshl_add_u32 v{a}, v{b}, 4, v{a}"); g(f"v_lshl_add_u32 v{vPW}, v{a}, 7, s7")
            g(f"s_lshl_b32 s6, s6, 12"); g(f"s_add_u32 {sCSr}, s6, {WS_CS}"); g(f"v_mul_u32_u24 v{vPC}, 12, v{L}")
            for i in range(3):
                g(f"s_mul_i32 s4, {sW}, {DPART[i][3]}"); g(f"s_add_u32 s4, s4, {DPART[i][2]}"); g(f"v_add_u32 v{vDw[i]}, s4, v{self.vL16}")
                if i == 0: g(f"s_mov_b32 {sDm}, s4")
            g(f"s_lshr_b32 s4, {sW}, 1"); g("s_mul_i32 s4, s4, 6"); g(f"s_and_b32 s7, {sW}, 1"); g("s_add_u32 s4, s4, s7")
            g(f"s_lshl_b32 {sD0}, s4, 14"); g(f"s_lshl_b32 {sD7}, s7, 14")
            return g.end()
        events = {}
        def after(n, fn): events.setdefault(n, []).append(fn)
        PZ = self.o("pause", 1)
        def run(loads, pz_from=None):
            pend = False
            for n in range(len(loads) + 1):
                for fn in events.pop(n, []): fn(); pend = False
                if n == len(loads): break
                if PZ and pz_from is not None and n >= pz_from and (n - pz_from) % 2 == 0:
                    if not pend: g.add(self.lchk_issue(K_PZ, vXs))
                    g.add(self.lchk_check(K_PZ, vXs, neg=True, sleep=1))
                    g.add(loads[n]); g.add(self.lchk_issue(K_PZ, vXs)); pend = True
                else: g.add(loads[n])
            for n in sorted(events):
                for fn in events.pop(n): fn()

        self.role = "S"
        if self.o("sprio", 0): g(f"s_setprio {self.o('sprio', 2)}")
        sXb, sX0, sXm, sWm, sEx, sRk, sKq, sWq = "s74", "s75", "s76", "s77", "s78", "s79", "s80", "s81"
        g(f"s_lshl_b32 s6, {sW}, 3")
        g(f"v_lshrrev_b32 v{a}, 3, v{L}"); g(f"v_add_u32 v{b}, s6, v{a}"); g(f"v_bfe_u32 v{c}, v{b}, 1, 3")
        g(f"v_and_b32 v{vXs}, 7, v{L}"); g(f"v_xor_b32 v{c}, v{c}, v{vXs}"); g(f"v_lshlrev_b32 v{vXs}, 10, v{b}"); g(f"v_lshl_add_u32 v{vXs}, v{c}, 4, v{vXs}")
        g(f"v_mul_u32_u24 v{a}, 3072, v{b}")
        g(f"v_bfe_u32 v{b}, v{L}, 4, 1"); g(f"s_lshl_b32 s6, {sW}, 1"); g(f"v_or_b32 v{b}, s6, v{b}")
        g(f"v_bfe_u32 v{c}, v{L}, 1, 2"); g(f"v_xor_b32 v{b}, v{b}, v{c}")
        g(f"v_and_b32 v{c}, 1, v{L}"); g(f"v_lshlrev_b32 v{c}, 4, v{c}"); g(f"v_lshl_add_u32 v{b}, v{b}, 5, v{c}")
        g(f"s_lshl_b32 s7, {sCB}, 7"); g(f"v_add3_u32 v{vWs}, v{a}, v{b}, s7")
        g(f"s_lshl_b32 {sXb}, {sRB}, 16"); g(f"s_sub_u32 {sX0}, {sXb}, 16384"); g(f"s_max_i32 {sX0}, {sX0}, 0")
        g(f"s_lshl_b32 {sXm}, {sW}, 10"); g(f"s_mul_i32 {sWm}, {sW}, 3072"); g(f"s_add_u32 {sWm}, {sWm}, {10*K1}")
        g(f"s_cmp_eq_u32 {sW}, 0"); g(f"s_cselect_b32 {sEx}, 0xffffff00, -1")
        RM = self.o("rotmask", 6)
        g(f"s_add_u32 s6, s4, {sCB}"); g(f"s_and_b32 {sRk}, s6, {RM}")
        if self.o("rot3", 0):
            g(f"s_lshl_b32 s7, {sRB}, 1"); g(f"s_cmp_eq_u32 {sCB}, 3"); g("s_cselect_b32 s7, s7, 0"); g(f"s_add_u32 {sRk}, {sRk}, s7")
        g("s_mov_b32 s10, %d" % (2048*512*2)); g("s_mov_b32 s11, 0x20000"); g("s_mov_b32 s14, %d" % (512*1536*2)); g("s_mov_b32 s15, 0x20000")
        g("s_waitcnt lgkmcnt(0)")
        g("s_mov_b32 s8, s48"); g("s_and_b32 s9, s49, 0xffff"); g("s_mov_b32 s12, s50"); g("s_and_b32 s13, s51, 0xffff")
        start_stamp(); self.stamp("ka")
        jobs = []; last = {}
        for P in range(8):
            sl = (P % 4) * SLOT
            for t in range(5):
                l = []
                if t == 0: l += [f"s_add_u32 {sKq}, {sRk}, {P}", f"s_and_b32 {sKq}, {sKq}, 7", f"s_mul_i32 {sWq}, {sKq}, {64*3072}", f"s_lshl_b32 {sKq}, {sKq}, 7"]
                l += [f"s_add_u32 m0, {sXm}, {sl + t*2048}"]
                if t == 0: l += [f"s_add_u32 s3, {sX0}, {sKq}", f"s_mov_b32 exec_lo, {sEx}"]
                elif t == 1: l += [f"s_add_u32 s3, {sXb}, {sKq}"]
                else: l += ["s_add_u32 s3, s3, 16384"]
                l += [f"buffer_load_dwordx4 v{vXs}, {SX}, s3 offen lds"]
                if t == 0: l += ["s_mov_b32 exec_lo, -1"]
                jobs.append(self.grp(*l, tag=f"x{P}"))
            for h in range(2):
                for bb in range(2):
                    for p in range(3):
                        l = [f"s_add_u32 m0, {sWm}, {sl + h*12288 + bb*6144}", f"s_add_u32 s3, {sWq}, {(h*32 + bb*16)*3072}"] if p == 0 else []
                        l += [f"buffer_load_dwordx4 v{vWs}, {SWQ}, s3 offen offset:{p*K1} lds"]
                        jobs.append(self.grp(*l, tag=f"w{2*P+h}"))
                last[2*P + h] = len(jobs)
        HF1 = self.o("h_first", 17); SL = self.o("h_sl", 16)
        def first():
            self.sync_consts(a); g("s_barrier")
            for k in (K_TB, K_PP): g.add(self.sig(k))
        after(HF1, first)
        chunks = []; cur = []
        for it in sym_setup():
            if len(cur) >= 6 and not it.op.startswith("s_cselect") and not cur[-1].op.startswith("s_cmp"): chunks.append(cur); cur = []
            cur.append(it)
        chunks.append(cur)
        for i, ch in enumerate(chunks): after(36 + i, (lambda ch=ch: g.add(ch)))
        assert 36 + len(chunks) < 4*17 - 3
        def stage_fn(k, s1):
            def fn():
                g.waitvm(f"w{s1}"); g.add(self.sig(K_A + k))
                if self.o("ast", 0) or k == 8: self.stamp(f"A{k}")
            return fn
        for k, s1 in enumerate([0, 1, 3, 5, 7, 9, 11, 13, 15]):
            lim = ((last[s1] + 16) // 17) * 17
            n = last[s1] + SL
            if s1 >= 7: n = last[s1] if self.o("h_blk", 0) else n
            after(max(n, HF1), stage_fn(k, s1))
        for P in range(4, 8):
            after(17*P - 3, (lambda P=P: g.add(self.lchk_issue(K_F + P - 4, c))))
            after(17*P, (lambda P=P: g.add(self.lchk_check(K_F + P - 4, c, sleep=1))))
        WBR = self.o("wb_reg", 0)
        after(len(jobs), lambda: self.stamp("Ais"))
        if WBR:
            jobs += [self.grp(f"s_add_u32 s3, {sBs}, {(i//16)*256*K1 + (i%16)*8192}", f"buffer_load_dwordx4 {vr(Qd(i),4)}, v{vKs}, {SWO}, s3 offen") for i in range(32)]
        after(len(jobs) - self.o("is_early", 0), lambda: g.add(self.sig(K_IS)))
        run(jobs)
        g(f"v_add_u32 v{a}, {sBm}, v{self.vL16}")
        self.lwait(K_AE, c, sleep=1); self.stamp("AE")
        if WBR:
            for i in range(32):
                g(f"ds_write_b128 v{a}, {vr(Qd(i),4)} offset:{(i//16)*32*K1 + (i%16)*K1}")
                if i == 15: g.add(self.sig(K_WB))
        else:
            for i in range(32):
                g(f"s_add_u32 m0, {sBm}, {(i//16)*32*K1 + (i%16)*K1}"); g(f"s_add_u32 s3, {sBs}, {(i//16)*256*K1 + (i%16)*8192}")
                g(f"buffer_load_dwordx4 v{vKs}, {SWO}, s3 offen lds", tag="wb")
            g.waitvm("wb"); g.add(self.sig(K_WB))
        g(f"ds_write_b32 v{self.vSig}, v{self.vSig} offset:{16*K_WB + 8}")
        self.lwait(K_TB, c)
        for grp in self.get_nonce(a): g.add(grp)
        self.stamp("WB")
        g.label("L_sym")
        g(f"s_setprio {self.o('hprio', 0)}")

        g.begin(); self.role = "J"
        g.label("L_job", keep=True)
        PV = [Qd(12), Qd(12) + 1, Qd(12) + 2]; vTc = Qd(12) + 3; vPr, vPs, vP12, vF8 = Qd(13), Qd(13) + 1, Qd(13) + 2, Qd(13) + 3
        vTb, vT3 = Qd(14) + 2, Qd(14) + 3
        g(f"s_and_b32 s90, {sW}, 1")
        g("s_lshl_b32 s4, s2, 1"); g("s_add_u32 s98, s4, s90"); g("s_cmp_lt_u32 s98, 480"); g("s_cselect_b32 s91, 0, 0x80000000")
        g("s_mul_i32 s7, s98, 4370"); g("s_lshr_b32 s7, s7, 16"); g("s_mul_i32 s6, s7, 15"); g("s_sub_u32 s6, s98, s6"); g("s_and_b32 s7, s7, 31")
        g("s_lshl_b32 s92, s6, 5"); g("s_add_u32 s92, s92, s7")
        g(f"s_mul_i32 s94, s6, {6*32*K1}"); g("s_lshl_b32 s4, s7, 10"); g("s_add_u32 s94, s94, s4"); g(f"s_add_u32 s94, s94, {WS_WC}")
        g("s_mul_i32 s6, s6, 192"); g(f"s_mul_i32 s7, s7, {16*2752}"); g("s_add_u32 s6, s6, s7"); g("s_or_b32 s6, s6, s91")
        for i in range(3):
            g(f"v_add_u32 v{a}, {64*i}, v{L}"); g(f"v_mul_u32_u24 v{b}, 5462, v{a}"); g(f"v_lshrrev_b32 v{b}, 16, v{b}")
            g(f"v_mul_u32_u24 v{b}, {2752 - 192}, v{b}"); g(f"v_lshl_add_u32 v{b}, v{a}, 4, v{b}"); g(f"v_add_u32 v{PV[i]}, s6, v{b}")
        g(f"s_mul_i32 s95, s90, {6*K1 + 64}"); g(f"s_add_u32 s95, s95, {SCR}")
        g("s_lshl_b32 s6, s5, 1"); g("s_add_u32 s99, s6, s90"); g(f"v_mov_b32 v{b}, 0x80000000")
        g("s_mul_i32 s6, s99, 24"); g(f"v_add_u32 v{a}, s6, v{L}"); g(f"v_lshlrev_b32 v{a}, 10, v{a}"); g(f"v_cmp_gt_u32 vcc, 24, v{L}"); g(f"v_cndmask_b32 v{vT3}, v{b}, v{a}, vcc")
        g("s_mul_i32 s6, s98, 22"); g(f"v_add_u32 v{a}, s6, v{L}"); g(f"v_lshlrev_b32 v{a}, 7, v{a}"); g(f"v_cmp_gt_u32 vcc, 22, v{L}"); g(f"v_cndmask_b32 v{vTc}, v{b}, v{a}, vcc")
        g("s_lshl_b32 s6, s98, 3"); g(f"v_add_u32 v{a}, s6, v{L}"); g(f"v_lshlrev_b32 v{a}, 7, v{a}"); g(f"v_cmp_gt_u32 vcc, 8, v{L}"); g(f"v_cndmask_b32 v{vTb}, v{b}, v{a}, vcc")
        if self.o("t3b", 1):
            g("s_lshl_b32 s6, s99, 3"); g("s_sub_u32 s6, s6, 8"); g(f"v_add_u32 v{a}, s6, v{L}"); g(f"v_lshlrev_b32 v{a}, 10, v{a}"); g(f"v_add_u32 v{a}, 384, v{a}")
            g("s_mov_b32 s6, 0xff00"); g("s_mov_b32 s7, 0"); g(f"v_cndmask_b32 v{vTb}, v{vTb}, v{a}, s[6:7]")
        g("s_waitcnt lgkmcnt(0)")
        start_stamp()
        self.srd(12, 50, 512*1536*2); self.srd(20, 56, 512*1376*2); self.srd(24, 58, 512*1376*2); self.srd(16, 52, 512*512*2); self.srd(28, 60, 1376*512*2)
        if self.o("t3", 1): g(f"buffer_load_dword v{vT3}, v{vT3}, {SWQ}, 0 offen offset:384")
        def batch_loads():
            for m in range(2):
                for i in range(3):
                    g(f"s_add_u32 m0, s95, {m*(3*K1 + 32) + i*K1}"); g("s_nop 0")
                    g(f"buffer_load_dwordx4 v{PV[i]}, {(SWG, SWU)[m]}, 0 offen lds", tag="pl")
            g(f"buffer_load_dword v{Qd(14)+1}, v{vTc}, {SWD}, 0 offen")
        EARLY = self.o("early", 0)
        self.sync_consts(a)
        g("s_barrier")
        for k in list(range(K_A, K_A + 9)) + [K_IS]: g.add(self.sig(k))
        if EARLY:
            g(f"buffer_load_dword v{Qd(14)}, v{vTb}, {SWO}, 0 offen"); batch_loads(); self.stamp("go")
        g(f"v_mov_b32 v{self.vZero}, 0"); g(f"v_lshlrev_b32 v{self.vL8}, 3, v{L}")
        g.add(sym_setup())
        self.srd(8, 48, 2048*512*2); self.srd(36, 64, 256)
        g("s_lshl_b32 s93, s92, 10"); g(f"s_add_u32 s93, s93, {WS_CS}"); g("s_lshl_b32 s92, s92, 7"); g(f"s_add_u32 s92, s92, {WS_FW}")
        g(f"v_bfe_u32 v{b}, v{L}, 4, 1"); g(f"v_mul_u32_u24 v{a}, {3*K1 + 32}, v{b}")
        g(f"v_lshrrev_b32 v{b}, 5, v{L}"); g(f"v_mul_u32_u24 v{b}, {8*192}, v{b}"); g(f"v_add_u32 v{a}, v{a}, v{b}")
        g(f"v_bfe_u32 v{b}, v{L}, 2, 2"); g(f"v_mul_u32_u24 v{b}, 192, v{b}"); g(f"v_add_u32 v{a}, v{a}, v{b}")
        self.pi8(a, b); g(f"v_add_u32 v{vPr}, s95, v{a}")
        g(f"v_or_b32 v{vPs}, s91, v{self.vL16}"); g(f"v_or_b32 v{vF8}, s91, v{self.vL8}"); g(f"v_or_b32 v{vP12}, s91, v{vPC}")
        for i in range(4): g(f"v_mov_b32 v{ON+i}, 0x3f803f80")
        g(f"s_lshr_b32 s4, s2, {self.o('b_sh', 6)}"); g(f"s_and_b32 s4, s4, {self.o('b_n', 4) - 1}"); g("s_lshl_b32 s4, s4, 4"); g(f"v_add_u32 v{vWs}, s4, v{self.vAll}")
        g(f"s_lshl_b32 s96, {sRB}, 6"); g(f"s_lshl_b32 s4, {sCB}, 3"); g("s_add_u32 s96, s96, s4"); g("s_lshl_b32 s4, s90, 2"); g("s_add_u32 s96, s96, s4")
        self.stamp("set")
        self.lwait(K_A + self.o("s_at", 1), c, sleep=2)
        g("s_lshl_b32 s4, s96, 10")
        for r in range(4): g(f"buffer_load_dwordx4 {vr(Qd(16+r),4)}, v{self.vL16}, {SX}, s4 offen offset:{r*K1}")
        g(f"buffer_load_dwordx2 {vr(self.vNON,2)}, v{self.vZero}, {SDBG}, 0 offen sc1")
        if not EARLY: g(f"buffer_load_dword v{Qd(14)}, v{vTb}, {SWO}, 0 offen")
        SQ = Qd(20); U = Qd(24)
        for r in range(4):
            for j in range(4):
                g(f"v_lshlrev_b32 v{U+2*j}, 16, v{Qd(16+r)+j}"); g(f"v_and_b32 v{U+2*j+1}, 0xffff0000, v{Qd(16+r)+j}")
            g(f"v_add_f32 v{SQ+r}, v{U}, v{U+1}"); g(f"v_mul_f32 v{SQ+4+r}, v{U}, v{U}"); g(f"v_fmac_f32 v{SQ+4+r}, v{U+1}, v{U+1}")
            for j in range(2, 8):
                g(f"v_add_f32 v{SQ+r}, v{SQ+r}, v{U+j}"); g(f"v_fmac_f32 v{SQ+4+r}, v{U+j}, v{U+j}")
        for sh in (8, 4, 2, 1):
            for i in range(8): g(f"v_add_f32_dpp v{SQ+i}, v{SQ+i}, v{SQ+i} row_ror:{sh} row_mask:0xf bank_mask:0xf")
        for sw in ("v_permlane16_swap_b32", "v_permlane32_swap_b32"):
            for i in range(8): g(f"v_mov_b32 v{U+i}, v{SQ+i}")
            for i in range(8): g(f"{sw} v{SQ+i}, v{U+i}")
            for i in range(8): g(f"v_add_f32 v{SQ+i}, v{SQ+i}, v{U+i}")
        for r in range(1, 4):
            g(f"v_cmp_eq_u32 vcc, {r}, v{L}"); g(f"v_cndmask_b32 v{SQ}, v{SQ}, v{SQ+r}, vcc"); g(f"v_cndmask_b32 v{SQ+4}, v{SQ+4}, v{SQ+4+r}, vcc")
        G = Qd(26)
        g(f"v_mul_f32 v{G}, {f32(1/512)}, v{SQ}"); g(f"v_mul_f32 v{SQ+4}, {f32(1/512)}, v{SQ+4}"); g(f"v_fma_f32 v{SQ+4}, -v{G}, v{G}, v{SQ+4}")
        g(f"v_max_f32 v{SQ+4}, 0, v{SQ+4}")
        self.rbf(G); self.rbf(SQ+4); g(f"v_add_f32 v{SQ+4}, {f32(1e-5)}, v{SQ+4}"); self.rbf(SQ+4)
        g(f"v_sqrt_f32 v{SQ+4}, v{SQ+4}"); self.rbf(SQ+4); g(f"v_rcp_f32 v{G+1}, v{SQ+4}")
        g("s_mov_b32 s52, 0")
        g.label("L_jn", keep=True)
        g(f"v_readfirstlane_b32 s70, v{self.vNON}"); g(f"v_readfirstlane_b32 s71, v{self.vNON+1}")
        g("s_cmp_lg_u32 s70, 0"); g.branch("s_cbranch_scc1 L_jn2", keep=True)
        g(f"buffer_load_dwordx2 {vr(self.vNON,2)}, v{self.vZero}, {SDBG}, 0 offen sc1")
        g("s_add_u32 s52, s52, 1"); g("s_waitcnt vmcnt(0)"); g(f"s_cmp_lt_u32 s52, {POLL_LIMIT}"); g.branch("s_cbranch_scc1 L_jn", keep=True)
        g.label("L_jn2", keep=True)
        g(f"v_mov_b32 v{G+2}, s70"); g(f"v_mov_b32 v{G+3}, s71")
        g("s_lshl_b32 s4, s96, 4"); g(f"s_add_u32 s4, s4, {WS_ST}"); g("s_mov_b64 exec, 15")
        g(f"buffer_store_dwordx4 {vr(G,4)}, v{self.vL16}, {SWS}, s4 offen sc1"); g("s_mov_b64 exec, -1")
        self.stamp("st")
        g("s_lshl_b32 s4, s90, 6"); g(f"v_add_u32 v{a}, s4, v{L}"); g(f"v_min_u32 v{a}, 79, v{a}")
        g(f"s_lshl_b32 s4, {sRB}, 6"); g("s_sub_u32 s4, s4, 16"); g(f"v_add_u32 v{b}, s4, v{a}"); g(f"v_max_i32 v{b}, 0, v{b}")
        g(f"v_lshlrev_b32 v{b}, 4, v{b}"); g(f"v_add_u32 v{b}, {WS_ST}, v{b}")
        g(f"v_lshlrev_b32 v{a}, 2, v{a}"); g(f"v_add_u32 v{a}, {TAB}, v{a}")
        def batch():
            if EARLY: return
            if self.o("b_is", 1): self.lwait(K_IS, c, sleep=1)
            else: self.lwait(K_A + self.o("b_0", 5), c, sleep=2, addr=vWs)
            self.stamp("go"); batch_loads()
        def gather():
            self.lwait(K_A + self.o("g_at", 5), c, sleep=2)
            g("s_mov_b32 s52, 0")
            g.label("L_jg", keep=True)
            g(f"buffer_load_dwordx4 {vr(G,4)}, v{b}, {SWS}, 0 offen sc1")
            g("s_add_u32 s52, s52, 1"); g(f"s_cmp_gt_u32 s52, {POLL_LIMIT}"); g("s_cbranch_scc1 L_jg2")
            g("s_waitcnt vmcnt(0)")
            g(f"v_cmp_ne_u64 vcc, {sNON}, {vr(G+2,2)}"); g("s_cbranch_vccz L_jg2")
            g("s_sleep 4"); g.branch("s_branch L_jg", keep=True)
            g.label("L_jg2", keep=True)
            g(f"ds_write_b32 v{a}, v{G}"); g(f"ds_write_b32 v{a}, v{G+1} offset:512")
            g(f"v_mov_b32 v{a}, {NONL}"); g(f"ds_write_b64 v{a}, {vr(self.vNON,2)}")
            g.add(self.sig(K_TB))
            self.stamp("TB")
        def patch():
            g("s_waitcnt vmcnt(0)")
            for u in range(6):
                for j2 in range(2): g(f"ds_read_b64_tr_b16 {vr(Qd(6+u)+2*j2,2)}, v{vPr} offset:{u*32 + j2*768}")
            g.add(self.sig(K_PP))
            for u in range(6):
                g(f"s_add_u32 s4, s94, {u*32*K1}"); g(f"buffer_store_dwordx4 {vr(Qd(6+u),4)}, v{vPs}, {SWS}, s4 offen sc1")
            g("s_mov_b32 s6, 0"); g("s_mov_b32 s7, -1")
            A6 = [CA, Qd(0), Qd(16), Qd(20), Qd(28), Qd(32)]
            for u in range(6): g(f"v_mfma_f32_32x32x16_bf16 {vr(A6[u],16)}, {vr(ON,4)}, {vr(Qd(6+u),4)}, 0")
            for i in range(3): g(f"v_cndmask_b32 v{Qd(15)+i}, v{A6[2*i]}, v{A6[2*i+1]}, s[6:7]")
            g(f"buffer_store_dwordx3 {vr(Qd(15),3)}, v{vP12}, {SWS}, s93 offen sc1")
            g("s_waitcnt vmcnt(0)")
            g("s_mov_b64 exec, 0xffff"); g(f"buffer_store_dwordx2 {vr(self.vNON,2)}, v{vF8}, {SWS}, s92 offen sc1"); g("s_mov_b64 exec, -1")
            self.stamp("PF")
        if EARLY:
            if self.o("p_at", -1) >= 0: self.lwait(K_A + self.o("p_at", -1), c, sleep=2)
            patch(); gather()
        elif self.o("b_first", 0) == 2: batch(); gather(); patch()
        elif self.o("b_first", 0): batch(); patch(); gather()
        else: gather(); batch(); patch()
        self.lwait(K_AE, c, sleep=2)
        g.branch("s_branch L_sym")
        jobcode = g.end()

        self.role = "H"
        self.stamp("sym")
        KO = (list(range(16, 32)) + list(range(16))) if self.o("c_ko", 1) else list(range(32))
        def pjob(p):
            out = []
            for half in range(2):
                for e in range(2):
                    u = 2*p + e; base = KO[16*half]*K1; v = vCs if u < 2 else vCs2
                    for j in range(4):
                        l = [f"s_add_u32 m0, {sUm}, {(p%2)*65536 + e*32768 + base}", f"s_add_u32 s3, {sCm}, {u*32*K1 + base}"] if j == 0 else []
                        l.append(f"buffer_load_dwordx4 v{v}, {SWS}, s3 offen offset:{j*K1} sc1 lds")
                        out.append(self.grp(*l, tag=f"wu{p}{half}"))
            return out
        qD = {n: Qd(2*(n - 11)) for n in range(11, 22)}
        def djob(n):
            j, i = DK[n]; sb = sD7 if (j, i) == (0, 7) else sD0; off = (12*i + 2*j)*16384
            if n < 11:
                m = (sDm, n*2048) if n < 3 else (sBm, (n-3)*2048)
                return [self.grp(f"s_add_u32 m0, {m[0]}, {m[1] + h*K1}", f"s_add_u32 s3, {sb}, {off + h*8192}", f"buffer_load_dwordx4 v{vKs}, {SWD}, s3 offen lds", tag="wd0" if n < 3 else "wd1") for h in range(2)]
            return [self.grp(f"s_add_u32 s3, {sb}, {off + h*8192}", f"buffer_load_dwordx4 {vr(qD[n]+4*h,4)}, v{vKs}, {SWD}, s3 offen") for h in range(2)]
        def dwrite(part, sk):
            f, n, _, _ = DPART[part]
            for i in range(n):
                for h in range(2): g(f"ds_write_b128 v{vDw[part % 3]}, {vr(qD[f+i]+4*h,4)} offset:{i*2048 + h*K1}")
            g.add(self.sig(sk))
        def cs_sum():
            for st in (4, 2, 1):
                for j in range(st):
                    for i in range(3): g(f"v_add_f32 v{Qd(44+j)+i}, v{Qd(44+j)+i}, v{Qd(44+j+st)+i}")
            g(f"s_lshr_b32 s4, {sW}, 1"); g("s_lshl_b32 s4, s4, 9"); g(f"s_and_b32 s6, {sW}, 1"); g("s_lshl_b32 s6, s6, 3"); g("s_add_u32 s4, s4, s6"); g(f"s_add_u32 s4, s4, {CST}")
            g(f"v_and_b32 v{b}, 31, v{L}"); g(f"v_lshl_add_u32 v{a}, v{b}, 4, s4"); g(f"v_lshrrev_b32 v{b}, 5, v{L}"); g(f"v_lshl_add_u32 v{a}, v{b}, 10, v{a}")
            self.lwait(K_T2, c, sleep=1)
            for i in range(3):
                x = Qd(44) + i; o = CA + 2*i
                g(f"v_cvt_pk_bf16_f32 v{o+1}, v{x}, 0"); g(f"v_lshlrev_b32 v{b}, 16, v{o+1}"); g(f"v_sub_f32 v{b}, v{x}, v{b}"); g(f"v_cvt_pk_bf16_f32 v{o}, v{x}, v{b}")
                g(f"ds_write_b64 v{a}, {vr(o,2)} offset:{2*i*K1}")
            g.add(self.sig(K_CS))
        LA = self.o("h_la", 8)
        gap = [x for n in range(11, 22) for x in djob(n)] + [x for n in range(3) for x in djob(n)]
        def take(n):
            nonlocal gap
            t = gap[:n]; gap = gap[n:]; return t
        self.lwait(K_PP, c)
        run(take(self.o("h_g0", 0)))
        def pw(): g.add(self.apoll_issue(vPW, t2)); g.add(self.apoll_check(vPW, t2, plain=True)); self.stamp("PW")
        if self.o("pw_first", 0): pw()
        if self.o("g1", 1): self.lwait(K_G1, c, sleep=1)
        self.stamp("G1")
        if not self.o("pw_first", 0): pw()
        loads = pjob(0)
        loads += [self.grp(f"s_add_u32 s3, {sCSr}, {(j//4)*16*K1}", f"buffer_load_dwordx3 {vr(Qd(44+j),3)}, v{vPC}, {SWS}, s3 offen offset:{(j%4)*K1} sc1") for j in range(8)]
        loads += take(self.o("h_g1", 0))
        run(loads)
        g.waitvm("wu01"); g.add(self.sig(K_C01)); self.stamp("C01")
        cs_sum()
        def mix(A, B):
            out = []; marks = []
            for i in range(0, len(A), 4):
                out += A[i:i+4]; marks.append(len(out)); out += B[i:i+4]
            return out + B[len(A):], marks
        self.lwait(K_B4, c, sleep=1)
        p1 = pjob(1); NE = self.o("u23e", 8)
        run(p1[:NE])
        if self.o("g2", 1): self.lwait(K_G2, c, sleep=1)
        self.stamp("G2")
        after(max(8 - NE, 0) + (LA if NE < 8 else 0), lambda: (g.waitvm("wu10"), g.add(self.sig(K_C23))))
        after(16 - NE + LA, lambda: (g.waitvm("wu11"), g.add(self.sig(K_C23b)), self.stamp("C23")))
        run(p1[NE:] + take(self.o("h_g2", 10)))
        self.lwait(K_P0, c, sleep=1)
        self.stamp("P0")
        if self.o("mix45", 1): l3, mk = mix(pjob(2), take(99))
        else: l3, mk = pjob(2) + take(99), [4, 8, 12, 16]
        after(mk[1] + LA, lambda: (g.waitvm("wu20"), g.add(self.sig(K_C45))))
        after(mk[3] + LA, lambda: (g.waitvm("wu21"), g.add(self.sig(K_C45b)), self.stamp("C45")))
        run(l3)
        self.stamp("n3")
        self.lwait(K_U3, c, sleep=1)
        run([x for n in range(3, 11) for x in djob(n)])
        g.waitvm("wd0"); g.add(self.sig(K_D1)); g.waitvm("wd1"); g.add(self.sig(K_D2))
        self.stamp("D2")
        self.lwait(K_U5, c, sleep=1); dwrite(2, K_D3)
        self.lwait(K_DS, c, own=True, sleep=1); dwrite(3, K_D4)
        self.stamp("D4")
        if self.stamps:
            g(f"s_lshl_b32 s3, s2, 2"); g(f"s_add_u32 s3, s3, {sW}"); g("s_lshl_b32 s3, s3, 8"); g(f"s_add_u32 s3, s3, {WS_STAMP + 0x40000}")
            g(f"v_lshlrev_b32 v{a}, 2, v{L}"); g(f"buffer_store_dword v{self.vST}, v{a}, {SWS}, s3 offen")
        g("s_endpgm")
        g.add(jobcode)
        self.role = "C"

    def consts(self, a, b):
        g, V, L = self.g, self.V, self.vL
        self.sO0, self.sO1, self.sF1 = self.s(), self.s(), self.s()
        g(f"s_lshl_b32 s4, {sCB}, 2"); g(f"s_add_u32 s4, s4, {sW}")
        g(f"s_lshl_b32 s6, {sRB}, 6"); g("s_add_u32 s6, s6, s4"); g("s_lshl_b32 s6, s6, 10"); g(f"s_add_u32 {self.sO0}, s6, {WS_O}"); g(f"s_add_u32 {self.sO1}, {self.sO0}, {32*K1}")
        g(f"s_lshl_b32 s6, {sRB}, 5"); g("s_add_u32 s6, s6, s4"); g("s_lshl_b32 s6, s6, 3"); g(f"s_add_u32 {self.sF1}, s6, {WS_FF}")
        self.sOF = [[self.s(), self.s()], [self.s(), self.s()]]; self.sHF = [self.s(), self.s()]
        g(f"s_lshr_b32 s4, {sW}, 1"); g("s_mul_i32 s4, s4, 6"); g(f"s_and_b32 s7, {sW}, 1"); g("s_add_u32 s5, s4, s7")
        for rt in range(2):
            g(f"s_lshr_b32 s4, {sW}, 1"); g(f"s_xor_b32 s4, s4, {rt}"); g(f"s_lshl_b32 s6, {sRB}, 1"); g("s_add_u32 s4, s4, s6")
            g("s_lshl_b32 s6, s4, 5"); g(f"s_lshl_b32 s7, {sW}, 3"); g("s_add_u32 s6, s6, s7"); g("s_lshl_b32 s6, s6, 10"); g(f"s_add_u32 {self.sOF[rt][0]}, s6, {WS_O}")
            g(f"s_add_u32 {self.sOF[rt][1]}, {self.sOF[rt][0]}, 4096")
            g(f"s_mul_i32 s6, s4, {HHP}"); g(f"s_add_u32 s6, s6, {WS_HH//K1}"); g("s_add_u32 s7, s6, s5"); g(f"s_lshl_b32 {self.sHF[rt]}, s7, 10")
        self.sHs, self.sHt, self.sF2 = self.s(), self.s(), self.s()
        g(f"s_lshl_b32 s4, {sRB}, 1"); g(f"s_lshr_b32 s6, {sW}, 1"); g("s_add_u32 s4, s4, s6")
        g(f"s_lshl_b32 s6, {sCB}, 1"); g(f"s_and_b32 s7, {sW}, 1"); g("s_add_u32 s6, s6, s7")
        self.vRM = V(1)
        g(f"v_and_b32 v{a}, 31, v{L}"); g(f"v_lshlrev_b32 v{a}, 10, v{a}"); g(f"v_lshrrev_b32 v{b}, 5, v{L}"); g(f"v_lshl_add_u32 v{a}, v{b}, 4, v{a}")
        g("s_lshl_b32 s7, s4, 15"); g(f"v_add_u32 v{a}, s7, v{a}"); g("s_lshl_b32 s7, s6, 6"); g(f"v_add_u32 v{self.vRM}, s7, v{a}")
        g("s_lshl_b32 s4, s4, 4"); g("s_add_u32 s4, s4, s6")
        g("s_lshl_b32 s6, s4, 11"); g(f"s_add_u32 {self.sHs}, s6, {WS_H}")
        g("s_lshl_b32 s6, s4, 8"); g(f"s_add_u32 {self.sHt}, s6, {WS_HST}")
        g("s_lshl_b32 s6, s4, 3"); g(f"s_add_u32 {self.sF2}, s6, {WS_FF + 1024*8}")
        self.vKr = V(1)
        g(f"v_lshrrev_b32 v{a}, 5, v{L}"); g(f"v_lshlrev_b32 v{a}, 10, v{a}")
        g(f"v_bfe_u32 v{b}, v{L}, 2, 2"); g(f"v_lshl_add_u32 v{a}, v{b}, 7, v{a}")
        g(f"v_bfe_u32 v{b}, v{L}, 3, 1"); g(f"s_and_b32 s4, {sW}, 1"); g(f"v_xor_b32 v{b}, s4, v{b}"); g(f"v_lshl_add_u32 v{a}, v{b}, 6, v{a}")
        g(f"v_bfe_u32 v{b}, v{L}, 4, 1"); g(f"v_lshl_add_u32 v{a}, v{b}, 5, v{a}")
        self.pi8(a, b); g(f"v_mov_b32 v{self.vKr}, v{a}")
        self.sCh, self.sCt, self.sCo, self.sF3 = self.s(), self.s(), self.s(), self.s()
        g(f"s_lshl_b32 s4, {sR128}, 2"); g(f"s_add_u32 s4, s4, {sW}")
        g("s_lshl_b32 s6, s4, 15"); g(f"s_add_u32 {self.sCh}, s6, {WS_H}")
        g("s_lshl_b32 s6, s4, 12"); g(f"s_add_u32 {self.sCt}, s6, {WS_HST}")
        g(f"s_mul_i32 s6, s4, {HHP}"); g(f"s_mul_i32 s7, {sCGX}, 6"); g("s_add_u32 s6, s6, s7"); g("s_lshl_b32 s6, s6, 10"); g(f"s_add_u32 {self.sCo}, s6, {WS_HH}")
        g("s_mul_i32 s6, s4, 48"); g(f"s_add_u32 s6, s6, {sCGX}"); g("s_lshl_b32 s6, s6, 3"); g(f"s_add_u32 {self.sF3}, s6, {WS_FF + 2048*8}")
        self.vP1, self.vP2, self.vP3 = V(1), V(1), V(1)
        g("s_lshl_b32 s6, s4, 7"); g(f"s_add_u32 s6, s6, {WS_FF + 1024*8}")
        g(f"v_and_b32 v{a}, 15, v{L}"); g(f"v_lshl_add_u32 v{self.vP2}, v{a}, 3, s6")
        g(f"s_lshl_b32 s4, {sRB}, 5"); g(f"s_lshl_b32 s6, {sW}, 3"); g("s_add_u32 s4, s4, s6"); g("s_lshl_b32 s4, s4, 3"); g(f"s_add_u32 s4, s4, {WS_FF}")
        g(f"v_and_b32 v{a}, 7, v{L}"); g(f"v_lshl_add_u32 v{self.vP1}, v{a}, 3, s4")
        g(f"s_lshr_b32 s7, {sW}, 1"); g("s_sub_u32 s6, 7, s7"); g(f"v_min_u32 v{a}, s6, v{a}"); g(f"v_lshlrev_b32 v{a}, 4, v{a}")
        g(f"v_bfe_u32 v{b}, v{L}, 3, 1"); g(f"v_mul_u32_u24 v{b}, {48*8}, v{b}")
        g(f"s_mul_i32 s4, {sRB}, 96"); g("s_add_u32 s4, s4, s7"); g("s_lshl_b32 s4, s4, 3"); g(f"s_add_u32 s4, s4, {WS_FF + 2048*8}")
        g(f"v_add3_u32 v{self.vP3}, v{a}, v{b}, s4")

    def phaseA(self):
        g, V, L = self.g, self.V, self.vL
        g.label("L_compute", keep=True)
        self.vL4 = V(1); self.vHP = V(8, 4); self.vX3 = V(4)
        a, b, c = V(1), V(1), V(1); J = self.vX3
        if self.o("prio", 1): g(f"s_setprio {self.o('prio', 1)}")
        g("s_getpc_b64 s[6:7]"); g.raw("L_pc:")
        g(f"s_sub_u32 s6, s6, L_pc-{NAME}_kernel"); g("s_subb_u32 s7, s7, 0")
        g(f"v_lshrrev_b32 v{a}, 4, v0"); g(f"v_lshl_add_u32 v{a}, s5, 4, v{a}"); g(f"v_lshlrev_b32 v{a}, 7, v{a}")
        g(f"v_min_u32 v{a}, L_codeend-{NAME}_kernel-4, v{a}")
        g(f"global_load_dword v{J}, v{a}, s[6:7]")
        g(f"v_lshlrev_b32 v{self.vL8}, 3, v{L}"); g(f"v_lshlrev_b32 v{self.vL4}, 2, v{L}"); g(f"v_mov_b32 v{self.vZero}, 0")
        ONES = V(4, 4); Z4 = self.vHP
        for i in range(4): g(f"v_mov_b32 v{ONES+i}, 0x3f803f80"); g(f"v_mov_b32 v{Z4+i}, 0")
        g(f"v_bfe_u32 v{a}, v{L}, 3, 2"); g(f"v_mul_u32_u24 v{a}, {SLOT}, v{a}"); g(f"v_and_b32 v{b}, 7, v{L}"); g(f"v_lshl_add_u32 v{a}, v{b}, 4, v{a}")
        g(f"ds_write_b128 v{a}, {vr(ONES,4)}")
        g(f"v_add_u32 v{a}, {SYNC}, v{self.vL16}"); g(f"ds_write_b128 v{a}, {vr(Z4,4)}")
        g(f"v_mov_b32 v{c}, 0")
        for i, x in enumerate(WARM[1:]): g(f"s_mov_b32 s3, {x}"); g(f"v_writelane_b32 v{c}, s3, {i+1}")
        g(f"s_or_b32 s3, s2, {sW}")
        g("s_waitcnt lgkmcnt(0)")
        if self.stamps: g(f"v_writelane_b32 v{self.vST}, s100, 0"); self.names["C"].append("start")
        self.srd(36, 64, 256)
        g("s_cmp_eq_u32 s3, 0"); g.branch("s_cbranch_scc1 L_pubnonce", keep=True)
        g.label("L_pubdone", keep=True)
        g.begin(); g.label("L_pubnonce", keep=True)
        g("s_or_b32 s100, s100, 1"); g(f"v_mov_b32 v{self.vNON}, s100"); g(f"v_mov_b32 v{self.vNON+1}, s101")
        g("s_mov_b64 exec, 1"); g(f"buffer_store_dwordx2 {vr(self.vNON,2)}, v{self.vZero}, {SDBG}, 0 offen sc1"); g("s_mov_b64 exec, -1")
        g.branch("s_branch L_pubdone", keep=True); self.tail.append(g.end())
        self.srd(8, 48, 2048*512*2); self.srd(32, 62, 2048*512*2); self.srd(40, 66, WS_SIZE)
        if self.o("tlb", 1):
            g(f"s_cmp_eq_u32 {sW}, 1"); g("s_cselect_b64 s[6:7], s[56:57], s[52:53]")
            g(f"s_cmp_eq_u32 {sW}, 2"); g("s_cselect_b64 s[6:7], s[58:59], s[6:7]")
            g(f"s_cmp_eq_u32 {sW}, 3"); g("s_cselect_b64 s[6:7], s[60:61], s[6:7]")
            g("s_mov_b32 s16, s6"); g("s_and_b32 s17, s7, 0xffff"); g("s_mov_b32 s18, 4096"); g("s_mov_b32 s19, 0x20000")
            g(f"buffer_load_dword v{J+1}, v{self.vZero}, s[16:19], 0 offen")
            g(f"buffer_load_dword v{J+2}, v{c}, {SWS}, 0 offen")
            g(f"buffer_load_dword v{J+3}, v{self.vZero}, {SOUT}, 0 offen")
        g("s_barrier")
        self.cmap(); self.sync_consts(a); self.consts(a, b)
        g(f"v_lshrrev_b32 v{a}, 4, v{L}"); g(f"v_lshl_add_u32 v{a}, v{a}, 7, v{self.vP3}")
        g("s_mov_b32 s6, 0"); g("s_mov_b32 s7, 0x00ff0000"); g(f"v_cndmask_b32 v{a}, v{a}, v{self.vP2}, s[6:7]")
        g("s_mov_b32 s7, 0xff000000"); g(f"v_cndmask_b32 v{a}, v{a}, v{self.vP1}, s[6:7]")
        vFw = V(1); g(f"v_mov_b32 v{vFw}, v{a}")
        vXr = [V(1), V(1)]; vWr = V(1)
        g(f"v_bfe_u32 v{a}, v{L}, 1, 3"); g(f"v_lshrrev_b32 v{b}, 4, v{L}"); g(f"v_xor_b32 v{a}, v{a}, v{b}"); g(f"v_lshlrev_b32 v{a}, 4, v{a}")
        g(f"v_and_b32 v{c}, 15, v{L}"); g(f"v_lshl_add_u32 v{vXr[0]}, v{c}, 7, v{a}"); g(f"v_xor_b32 v{vXr[1]}, 64, v{vXr[0]}")
        g(f"v_bfe_u32 v{a}, v{L}, 3, 2"); g(f"v_xor_b32 v{a}, {sW}, v{a}"); g(f"v_lshlrev_b32 v{a}, 5, v{a}")
        g(f"v_mul_u32_u24 v{b}, 3072, v{b}"); g(f"v_bfe_u32 v{c}, v{L}, 2, 2"); g(f"v_lshl_add_u32 v{a}, v{c}, 7, v{a}")
        g(f"v_and_b32 v{c}, 3, v{L}"); g(f"v_lshl_add_u32 v{a}, v{c}, 3, v{a}"); g(f"v_add_u32 v{vWr}, v{a}, v{b}")
        BC, BP, BP1, MK = V(4, 4), V(4, 4), V(4, 4), V(4, 4); vT1, vT2 = V(1), V(1)
        g(f"v_and_b32 v{a}, 15, v{L}"); g(f"v_lshrrev_b32 v{b}, 4, v{L}")
        g(f"v_lshlrev_b32 v{vT1}, 2, v{a}"); g(f"v_add_u32 v{vT1}, {TAB}, v{vT1}")
        g(f"v_lshlrev_b32 v{vT2}, 4, v{b}"); g(f"v_add_u32 v{vT2}, {TAB}, v{vT2}")
        g(f"v_lshlrev_b32 v{b}, 2, v{b}"); g(f"v_sub_u32 v{a}, v{a}, v{b}"); g(f"v_mov_b32 v{c}, {f32(-1e30)}")
        g(f"s_cmp_eq_u32 {sRB}, 0"); g("s_cselect_b64 s[58:59], 0, -1")
        for r in range(4):
            g(f"v_subrev_u32 v{b}, {r}, v{a}"); g(f"v_and_b32 v{b}, 0x80000001, v{b}")
            g(f"v_cmp_eq_u32 vcc, 0, v{b}"); g(f"v_cndmask_b32 v{BC+r}, v{c}, 0, vcc")
            g(f"v_cmp_eq_u32 vcc, 0x80000000, v{b}"); g(f"v_cndmask_b32 v{BP+r}, v{c}, 0, vcc")
            g(f"v_cndmask_b32 v{BP1+r}, v{c}, v{BP+r}, s[58:59]")
        for i, B in enumerate((BP, BC)):
            for h in range(2):
                g(f"v_ashrrev_i32 v{a}, 31, v{B+2*h}"); g(f"v_ashrrev_i32 v{b}, 31, v{B+2*h+1}")
                g(f"v_and_b32 v{a}, 0xffff, v{a}"); g(f"v_and_b32 v{b}, 0xffff0000, v{b}"); g(f"v_or_b32 v{a}, v{a}, v{b}"); g(f"v_not_b32 v{MK+2*i+h}, v{a}")
        g(f"s_mov_b32 s60, {f32(1/512)}"); g(f"s_mov_b32 s61, {f32(0.25*LOG2E)}")
        FB = [V(32, 4), V(32, 4)]
        XF = [[FB[i] + 4*t for t in range(5)] for i in range(2)]; WF = [[FB[i] + 20 + 4*p for p in range(3)] for i in range(2)]
        Q = [V(4, 4) for t in range(5)]; Kc = [V(4, 4) for t in range(5)]; Vc = [V(4, 4) for t in range(5)]
        def reads(s):
            g.begin(); bi = s & 1
            if s and s % 2 == 0:
                d = SLOT if (s // 2) % 4 else (-3*SLOT) & 0xffffffff
                for r in (vWr, vXr[0], vXr[1]): g(f"v_add_u32 v{r}, {d}, v{r}")
            for p in range(3):
                for j2 in range(2): g(f"ds_read_b64_tr_b16 {vr(WF[bi][p]+2*j2,2)}, v{vWr} offset:{10*K1 + bi*12288 + p*K1 + j2*512}")
                if p == 0:
                    for t in range(5): g(f"ds_read_b128 {vr(XF[bi][t],4)}, v{vXr[bi]} offset:{t*2048}")
            return g.end()
        def mfmas(s):
            g.begin(); bi = s & 1
            def mf(d, x, y): g(f"v_mfma_f32_16x16x32_bf16 {vr(d,4)}, {vr(x,4)}, {vr(y,4)}, {vr(d,4) if s else 0}")
            for t in range(5): mf(Q[t], WF[bi][0], XF[bi][t])
            for t in range(5): mf(Kc[t], WF[bi][1], XF[bi][t])
            for t in range(5): mf(Vc[t], XF[bi][t], WF[bi][2])
            return g.end()
        M1 = V(6); R1 = V(6); M2 = [V(4, 4) for t in range(5)]; R2 = [V(4, 4) for t in range(5)]
        g.begin()
        for t in range(5):
            g(f"ds_read_b32 v{M1+t}, v{vT1} offset:{t*64}"); g(f"ds_read_b32 v{R1+t}, v{vT1} offset:{512+t*64}")
        for t in range(5):
            g(f"ds_read_b128 {vr(M2[t],4)}, v{vT2} offset:{t*64}"); g(f"ds_read_b128 {vr(R2[t],4)}, v{vT2} offset:{512+t*64}")
        gn = self.get_nonce(a)
        fin = singles(g.end()) + [gn[0] + self.sig(K_T2)]
        XR = self.vHP; tk = V(1)
        g(f"buffer_load_dword v{vFw}, v{vFw}, {SWS}, 0 offen sc1")
        self.stamp("pre")
        self.lwait(K_A, tk)
        self.stamp("bar0")
        g.add(reads(0)); g.add(self.lchk_issue(K_A + 1, tk))
        stg = {0: 1, 1: 2, 3: 3, 5: 4, 7: 5, 9: 6, 11: 7, 13: 8}
        for s in range(16):
            g.comment(f"A step {s}")
            if self.o("ast", 0): self.stamp(f"s{s}")
            mf = mfmas(s); W = Weave(mf, 2); n = len(mf)
            if s in stg: W.at(0, self.lchk_check(K_A + stg[s], tk))
            if s < 15:
                rs = singles(reads(s + 1))
                if s % 2 == 0 and s <= 6: rs[-1] = rs[-1] + self.sig(K_F + s // 2)
                if s == 14: rs[-1] = rs[-1] + self.sig(K_AE)
                left, _ = W.fill(rs, 0, n - 2); assert not left
            if s + 1 in stg: W.at(n - 4, self.lchk_issue(K_A + stg[s + 1], tk))
            if s == 12:
                W.at(n - 3, self.grp(f"buffer_load_dwordx4 {vr(XR,4)}, v{self.vRM}, {SX}, 0 offen"))
                W.at(n - 2, self.grp(f"buffer_load_dwordx4 {vr(XR+4,4)}, v{self.vRM}, {SX}, 0 offen offset:32"))
            if s == 14: W.at(n - 5, self.lchk_issue(K_TB, b)); W.at(n - 1, self.lchk_check(K_TB, b))
            if s == 15:
                left, _ = W.fill(fin, 0); assert not left
            g.add(W.out())
        self.stamp("loop")
        for r in [vWr, vT1, vT2, tk, vFw] + vXr: V.release(r)
        V.release(FB[0], 32); V.release(FB[1], 32)
        CSQ, CSK = V(4, 4), V(4, 4); CSV = V(2)
        for r in range(4): g(f"v_mov_b32_dpp v{CSQ+r}, v{Q[0]+r} row_newbcast:0 row_mask:0xf bank_mask:0xf")
        for r in range(4): g(f"v_mov_b32_dpp v{CSK+r}, v{Kc[0]+r} row_newbcast:0 row_mask:0xf bank_mask:0xf")
        QB = [None] + [V(2) for t in range(4)]; KB = [V(2) for t in range(5)]; VB = V(10, 2)
        bc = lambda reg: (vr(reg & ~1, 2), reg & 1)
        for t in range(5):
            mp, ms = bc(M1 + t); rp, rs = bc(R1 + t)
            for X, CS in ((Q[t], CSQ), (Kc[t], CSK)):
                if X == Q[0]: continue
                for h in range(2):
                    g(f"v_pk_fma_f32 {vr(X+2*h,2)}, {mp}, {vr(CS+2*h,2)}, {vr(X+2*h,2)} op_sel:[{ms},0,0] op_sel_hi:[{ms},1,1] neg_lo:[1,0,0] neg_hi:[1,0,0]")
            for h in range(2): g(f"v_pk_mul_f32 {vr(Kc[t]+2*h,2)}, {rp}, {vr(Kc[t]+2*h,2)} op_sel:[{rs},0] op_sel_hi:[{rs},1]")
            if t == 0: g(f"v_mov_b32 v{CSV}, v{Vc[0]}"); g(f"v_mov_b32 v{CSV+1}, v{Vc[0]}")
            if t == 1: g(f"v_permlane16_swap_b32 v{CSV}, v{CSV+1}")
            if t == 2: g(f"v_mov_b32 v{CSV+1}, v{CSV}")
            if t == 3: g(f"v_permlane32_swap_b32 v{CSV}, v{CSV+1}")
            if t:
                for h in range(2): g(f"v_cvt_pk_bf16_f32 v{QB[t]+h}, v{Q[t]+2*h}, v{Q[t]+2*h+1}")
            for h in range(2): g(f"v_cvt_pk_bf16_f32 v{KB[t]+h}, v{Kc[t]+2*h}, v{Kc[t]+2*h+1}")
        for t in range(5):
            for h in range(2):
                g(f"v_pk_fma_f32 {vr(Vc[t]+2*h,2)}, {vr(M2[t]+2*h,2)}, {vr(CSV,2)}, {vr(Vc[t]+2*h,2)} op_sel_hi:[1,0,1] neg_lo:[1,0,0] neg_hi:[1,0,0]")
            for h in range(2): g(f"v_pk_mul_f32 {vr(Vc[t]+2*h,2)}, {vr(R2[t]+2*h,2)}, {vr(Vc[t]+2*h,2)}")
        R4 = range(1, 5)
        SP = {t: Q[t] for t in R4}; SC = {t: Kc[t] for t in R4}
        AQ = {t: V(1) for t in R4}; U = {t: V(2) for t in R4}; MX = {t: V(1) for t in R4}; TX = {t: V(1) for t in R4}
        cv = [f"v_cvt_pk_bf16_f32 v{VB+2*t+h}, v{Vc[t]+2*h}, v{Vc[t]+2*h+1}" for t in range(5) for h in range(2)]
        cv += [f"v_mul_f32 v{AQ[t]}, s61, v{R1+t}" for t in R4] + [i.text for i in gn[1]]
        for t in R4:
            g(f"v_mfma_f32_16x16x16_bf16 {vr(SP[t],4)}, {vr(KB[t-1],2)}, {vr(QB[t],2)}, {vr(BP1 if t == 1 else BP,4)}")
            g(cv.pop(0)); g(cv.pop(0))
            g(f"v_mfma_f32_16x16x16_bf16 {vr(SC[t],4)}, {vr(KB[t],2)}, {vr(QB[t],2)}, {vr(BC,4)}")
            g(cv.pop(0)); g(cv.pop(0))
        for t in R4:
            for h in range(2): g(f"v_max3_f32 v{U[t]+h}, v{SP[t]+2*h}, v{SP[t]+2*h+1}, v{SC[t]+2*h}")
        for t in R4:
            for h in range(2): g(f"v_max_f32 v{U[t]+h}, v{U[t]+h}, v{SC[t]+2*h+1}")
        for t in R4: g(f"v_max_f32 v{MX[t]}, v{U[t]}, v{U[t]+1}")
        for t in R4: g(f"v_max_f32 v{TX[t]}, v{U[t]}, v{U[t]+1}")
        for t in R4: g(f"v_permlane16_swap_b32 v{MX[t]}, v{TX[t]}")
        for t in R4: g(f"v_max_f32 v{MX[t]}, v{MX[t]}, v{TX[t]}")
        for t in R4: g(f"v_mov_b32 v{TX[t]}, v{MX[t]}")
        for t in R4: g(f"v_permlane32_swap_b32 v{MX[t]}, v{TX[t]}")
        for t in R4: g(f"v_max_f32 v{MX[t]}, v{MX[t]}, v{TX[t]}")
        for t in R4:
            for h in range(2): g(f"v_sub_f32 v{U[t]+h}, v{U[t]+h}, v{MX[t]}")
        for t in R4:
            for h in range(2): g(f"v_mul_f32 v{U[t]+h}, v{U[t]+h}, v{AQ[t]}")
        for t in R4:
            for h in range(2): g(f"v_exp_f32 v{U[t]+h}, v{U[t]+h}")
        PB = {t: V(4, 4) for t in R4}
        for t in R4:
            for h in range(2): g(f"v_cvt_pk_bf16_f32 v{U[t]+h}, v{U[t]+h}, v{U[t]+h}")
        for t in R4:
            for i in range(4): g(f"v_and_b32 v{PB[t]+i}, v{MK+i}, v{U[t]+(i&1)}")
            if t > 1:
                g(f"v_mfma_f32_16x16x32_bf16 {vr(SP[t-1],4)}, {vr(ONES,4)}, {vr(PB[t-1],4)}, 0")
                g(f"v_mfma_f32_16x16x32_bf16 {vr(SC[t-1],4)}, {vr(VB+2*(t-2),4)}, {vr(PB[t-1],4)}, 0")
        g(f"v_mfma_f32_16x16x32_bf16 {vr(SP[4],4)}, {vr(ONES,4)}, {vr(PB[4],4)}, 0")
        g(f"v_mfma_f32_16x16x32_bf16 {vr(SC[4],4)}, {vr(VB+6,4)}, {vr(PB[4],4)}, 0")
        OB = [PB[1], PB[3]]
        for pr in range(2):
            for t in (1 + 2*pr, 2 + 2*pr): g(f"v_rcp_f32 v{MX[t]}, v{SP[t]}")
            for t in (1 + 2*pr, 2 + 2*pr):
                for r in range(4): g(f"v_mul_f32 v{SC[t]+r}, v{MX[t]}, v{SC[t]+r}")
            for i, t in enumerate((1 + 2*pr, 2 + 2*pr)):
                for h in range(2): g(f"v_cvt_pk_bf16_f32 v{OB[pr]+2*i+h}, v{SC[t]+2*h}, v{SC[t]+2*h+1}")
            for h in range(2): g(f"v_permlane16_swap_b32 v{OB[pr]+h}, v{OB[pr]+2+h}")
            g(f"buffer_store_dwordx4 {vr(OB[pr],4)}, v{self.vL16}, {SWS}, {self.sO1 if pr else self.sO0} offen {self.SC}", tag="ost")
        self.stamp("Aepi")
        for t in range(5):
            V.release(Q[t], 4); V.release(Kc[t], 4); V.release(Vc[t], 4); V.release(KB[t], 2); V.release(M2[t], 4); V.release(R2[t], 4)
        for t in R4:
            V.release(QB[t], 2); V.release(MX[t]); V.release(TX[t]); V.release(AQ[t]); V.release(U[t], 2); V.release(PB[t], 4)
        V.release(M1, 6); V.release(R1, 6); V.release(VB, 10); V.release(CSV, 2)
        for r in (CSQ, CSK, BC, BP, BP1, MK, ONES): V.release(r, 4)
        V.release(a); V.release(b); V.release(c); V.release(0); V.release(self.vX3, 4)

    def red_consts(self, alloc=True):
        g, V = self.g, self.V
        if alloc: self.vRw = [V(1), V(1), V(1)]; self.vRr = V(1)
        for i in (1, 2, 3):
            g(f"s_xor_b32 s5, {sW}, {i}"); g("s_lshl_b32 s5, s5, 14"); g(f"s_add_u32 s5, s5, {64*K1 + (i-1)*4096}"); g(f"v_add_u32 v{self.vRw[i-1]}, s5, v{self.vL16}")
        g(f"s_lshl_b32 s5, {sW}, 14"); g(f"s_add_u32 s5, s5, {64*K1}"); g(f"v_add_u32 v{self.vRr}, s5, v{self.vL16}")
    def red_write(self, ACC, a):
        return [self.grp(f"ds_write_b128 v{self.vRw[a-1]}, {vr(ACC[a]+4*j,4)} offset:{j*K1}") for j in range(4)]
    def red_add(self, ACC, T):
        for i in range(12): self.g(f"ds_read_b128 {vr(T+4*i,4)}, v{self.vRr} offset:{i*K1}")
        return [f"v_pk_add_f32 {vr(ACC[0]+2*j,2)}, {vr(ACC[0]+2*j,2)}, {vr(T+16*a+2*j,2)}" for a in range(3) for j in range(8)]

    def phaseB(self):
        g, V = self.g, self.V
        XR = self.vHP; PZ = self.o("pause", 1)
        WB = V(64, 4); OF = V(64, 4); ACC = [V(16, 4) for _ in range(4)]; rd = [V(1), V(1)]; t2 = V(2); t1 = V(1); self.vX3 = V(4)
        self.red_consts()
        g(f"v_add_u32 v{rd[0]}, s5, v{self.vKr}"); g(f"v_xor_b32 v{rd[1]}, 64, v{rd[0]}")
        g.add(self.lchk_issue(K_WB, t1, own=True))
        for j in range(8):
            g(f"v_lshlrev_b32 v{ACC[0]+2*j}, 16, v{XR+j}"); g(f"v_and_b32 v{ACC[0]+2*j+1}, 0xffff0000, v{XR+j}")
        def wbreads():
            for ks in range(8):
                for ct in range(2):
                    for j2 in range(2): g(f"ds_read_b64_tr_b16 {vr(WB+(ks*2+ct)*4+2*j2,2)}, v{rd[ct]} offset:{ks*2048+j2*512}")
            g.add(self.sig(K_B2))
        if self.o("wb_early", 0): g.add(self.lchk_check(K_WB, t1, own=True)); wbreads()
        g.waitvm("ost"); g.add(self.flag_fast(self.sF1))
        self.stamp("F1")
        if not self.o("wb_early", 0): g.add(self.lchk_check(K_WB, t1, own=True)); wbreads()
        self.poll(self.vP1, t2, pre=[self.flag_slow(self.sF1)])
        self.stamp("P1")
        lo = [(ks, rt) for rt in (1, 0) for ks in range(8)]
        lds = [self.grp(f"buffer_load_dwordx4 {vr(OF+(ks*2+rt)*4,4)}, v{self.vL16}, {SWS}, {self.sOF[rt][ks//4]} offen offset:{(ks%4)*K1} sc1") for ks, rt in lo]
        NL0 = self.o("b_l0", 8)
        for grp in lds[:NL0]: g.add(grp)
        g.begin()
        for ks, rt in lo:
            for ct in (1, 0):
                a = 2*rt + ct
                g(f"v_mfma_f32_32x32x16_bf16 {vr(ACC[a],16)}, {vr(WB+(ks*2+ct)*4,4)}, {vr(OF+(ks*2+rt)*4,4)}, {vr(ACC[a],16) if (ks or a == 0) else 0}")
        mf = g.end(); W = Weave(mf, 5)
        for i, grp in enumerate(lds[NL0:]): W.at(2*i, grp)
        W.at(2*(len(lds) - NL0), self.flag_slow(self.sF1)); W.at(self.o('b_go', 2), self.sig(K_G1))
        W.at(12, self.lchk_issue(K_B2, t1)); W.at(17, self.lchk_check(K_B2, t1))
        W.even(self.red_write(ACC, 3) + self.red_write(ACC, 2), 19, 31)
        g.add(W.out())
        self.stamp("Bmf")
        for grp in self.red_write(ACC, 1): g.add(grp)
        g.add(self.sig(K_B3))
        self.lwait(K_B3, t1)
        adds = self.red_add(ACC, WB)
        g.add(self.sig(K_B4))
        for l in adds: g(l)
        H = ACC[0]
        for j in range(8): g(f"v_cvt_pk_bf16_f32 v{self.vHP+j}, v{H+2*j}, v{H+2*j+1}")
        g(f"buffer_store_dwordx4 {vr(self.vHP,4)}, v{self.vL16}, {SWS}, {self.sHs} offen {self.SC}", tag="hst")
        g(f"buffer_store_dwordx4 {vr(self.vHP+4,4)}, v{self.vL16}, {SWS}, {self.sHs} offen offset:1024 {self.SC}", tag="hst")
        S2, Q2 = ACC[1], ACC[1] + 2
        g(f"v_pk_add_f32 {vr(S2,2)}, {vr(H,2)}, {vr(H+2,2)}"); g(f"v_pk_mul_f32 {vr(Q2,2)}, {vr(H,2)}, {vr(H,2)}")
        g(f"v_pk_fma_f32 {vr(Q2,2)}, {vr(H+2,2)}, {vr(H+2,2)}, {vr(Q2,2)}")
        for j in range(2, 8):
            g(f"v_pk_add_f32 {vr(S2,2)}, {vr(S2,2)}, {vr(H+2*j,2)}"); g(f"v_pk_fma_f32 {vr(Q2,2)}, {vr(H+2*j,2)}, {vr(H+2*j,2)}, {vr(Q2,2)}")
        g(f"v_add_f32 v{S2}, v{S2}, v{S2+1}"); g(f"v_add_f32 v{Q2}, v{Q2}, v{Q2+1}")
        g(f"v_permlane32_swap_b32 v{S2}, v{Q2}"); g(f"v_add_f32 v{S2}, v{S2}, v{Q2}")
        g(f"buffer_store_dword v{S2}, v{self.vL4}, {SWS}, {self.sHt} offen {self.SC}", tag="hst")
        self.stamp("Bst")
        V.release(WB, 64); V.release(OF, 64); V.release(t2, 2); V.release(t1); V.release(self.vP1); V.release(self.vX3, 4)
        for x in ACC: V.release(x, 16)
        for x in rd + self.vRw + [self.vRr]: V.release(x)

    def phaseC(self):
        g, V = self.g, self.V
        HF = V(128, 4); ACC = [V(16, 4) for _ in range(4)]; ST = ACC[2]
        NF = self.o("c_nf", 5); FR = [V(4, 4) for _ in range(NF)]
        MF = V(4, 4); T = V(8, 4); t2 = V(2); AA = V(2); VV, t1, vHi, vCt = V(1), V(1), V(1), V(1)
        A0, A1 = AA, AA + 1; self.vX3 = T; PZ = self.o("pause", 1)
        g(f"v_add_u32 v{vHi}, 0x10000, v{self.vL16}"); g(f"v_add_u32 v{vCt}, {CST}, v{self.vL16}")
        g(f"s_add_u32 s54, {self.sCo}, 4096")
        g.add(self.lchk_issue(K_C01, t1))
        g.waitvm("hst"); g.add(self.flag_fast(self.sF2))
        self.stamp("F2")
        g(f"s_cmp_eq_u32 {sCGX}, 15"); g.branch("s_cbranch_scc1 L_skipC", keep=True)
        g.begin(); g.label("L_skipC", keep=True)
        g.add(self.flag_slow(self.sF2)); g.add(self.sig(K_G2))
        for kw, k in ((K_C01, K_P0), (K_C23b, K_U3), (K_C45b, K_U5)): self.lwait(kw, t1, sleep=2); g.add(self.sig(k))
        g.branch("s_branch L_cdone"); self.tail.append(g.end())
        g.add(self.lchk_check(K_C01, t1))
        seq = [(2*p + e, ks) for p in range(3) for ks in range(33) for e in range(2)]
        idx = {x: i for i, x in enumerate(seq)}; RA = NF - 1
        KO = (list(range(16, 32)) + list(range(16))) if self.o('c_ko', 1) else list(range(32))
        def rd(i):
            u, ks = seq[i]; g.begin()
            if ks < 32: g(f"ds_read_b128 {vr(FR[i % NF],4)}, v{vHi if (u//2) % 2 else self.vL16} offset:{(u%2)*32768 + KO[ks]*K1}")
            else: g(f"ds_read_b128 {vr(FR[i % NF],4)}, v{vCt} offset:{u*K1}")
            if ks == 31 and u % 2: g.add(self.sig((K_P0, K_U3, K_U5)[u // 2]))
            return g.end()
        for i in range(RA): g.add(rd(i))
        if self.o("c_ko", 1):
            vPa = MF; g(f"v_or_b32 v{vPa}, 64, v{self.vP2}")
            self.poll(vPa, t2, pre=[self.flag_slow(self.sF2)])
        else: self.poll(self.vP2, t2, pre=[self.flag_slow(self.sF2)])
        self.stamp("P2")
        hl = []
        for ks in range(32):
            l = [f"s_add_u32 s55, {self.sCh}, {KO[ks]*K1}"] if ks % 4 == 0 else []
            l.append(f"buffer_load_dwordx4 {vr(HF+4*ks,4)}, v{self.vL16}, {SWS}, s55 offen offset:{(ks%4)*K1} sc1")
            hl.append(self.grp(*l))
        sl = [self.grp(f"buffer_load_dword v{ST+i}, v{self.vL4}, {SWS}, {self.sCt} offen offset:{i*256} sc1") for i in range(16)]
        NH0 = self.o("c_h0", 8)
        for grp in hl[:NH0]: g.add(grp)
        g.begin()
        for st in (8, 4, 2, 1):
            for i in range(st): g(f"v_add_f32 v{ST+i}, v{ST+i}, v{ST+i+st}")
        g(f"v_mov_b32 v{ST+1}, v{ST}"); g(f"v_permlane32_swap_b32 v{ST}, v{ST+1}")
        g(f"v_mul_f32 v{ST}, s60, v{ST}"); g(f"v_mul_f32 v{ST+1}, s60, v{ST+1}")
        g(f"v_fma_f32 v{ST+1}, -v{ST}, v{ST}, v{ST+1}"); g(f"v_max_f32 v{ST+1}, 0, v{ST+1}")
        self.rbf(ST+1); g(f"v_add_f32 v{ST+1}, {f32(1e-5)}, v{ST+1}"); self.rbf(ST+1)
        g(f"v_sqrt_f32 v{ST+1}, v{ST+1}"); g(f"v_cvt_pk_bf16_f32 v{MF}, -v{ST}, -v{ST}"); self.rbf(ST+1)
        g(f"v_rcp_f32 v{ST+2}, v{ST+1}"); g(f"v_mul_f32 v{VV}, v{ST+1}, v{ST+1}")
        c0 = -2.0 * 0.7978845608028654 * LOG2E
        g(f"v_mul_f32 v{A0}, {f32(c0)}, v{ST+2}"); g(f"v_mul_f32 v{ST+3}, v{ST+2}, v{ST+2}")
        g(f"v_mul_f32 v{A1}, {f32(0.044715)}, v{A0}"); g(f"v_mul_f32 v{A1}, v{ST+3}, v{A1}")
        g(f"v_mov_b32 v{MF+1}, 0"); g(f"v_mov_b32 v{MF+2}, v{MF}"); g(f"v_mov_b32 v{MF+3}, 0")
        stats = singles(g.end())
        def store(u, G): g(f"buffer_store_dwordx4 {vr(G,4)}, v{self.vL16}, {SWS}, {self.sCo if u < 4 else 's54'} offen offset:{(u%4)*K1} {self.SC}", tag=f"hh{u//2}")
        def epi(u):
            g.begin(); G = ACC[u % 4]; U = G + 8
            for i in range(8): g(f"v_mul_f32 v{T+i}, v{G+i}, v{G+i}")
            for i in range(8): g(f"v_fma_f32 v{T+i}, v{T+i}, v{A1}, v{A0}")
            for i in range(8): g(f"v_mul_f32 v{T+i}, v{G+i}, v{T+i}")
            for i in range(8): g(f"v_exp_f32 v{T+i}, v{T+i}"); g(f"v_mul_f32 v{U+i}, v{G+i}, v{U+i}")
            for i in range(8): g(f"v_fma_f32 v{T+i}, v{T+i}, v{VV}, v{VV}")
            for i in range(8):
                g(f"v_rcp_f32 v{T+i}, v{T+i}")
                if i: g(f"v_mul_f32 v{U+i-1}, v{U+i-1}, v{T+i-1}")
            g(f"v_mul_f32 v{U+7}, v{U+7}, v{T+7}")
            for i in range(4): g(f"v_cvt_pk_bf16_f32 v{G+i}, v{U+2*i}, v{U+2*i+1}")
            store(u, G)
            return singles(g.end())
        def epi_pk(u):
            g.begin(); G = ACC[u % 4]; U = G + 8; P = lambda x, i: vr(x + 2*i, 2); vv = (vr(VV & ~1, 2), VV & 1)
            for i in range(4): g(f"v_pk_mul_f32 {P(T,i)}, {P(G,i)}, {P(G,i)}")
            for i in range(4): g(f"v_pk_fma_f32 {P(T,i)}, {P(T,i)}, {vr(AA,2)}, {vr(AA,2)} op_sel:[0,1,0] op_sel_hi:[1,1,0]")
            for i in range(4): g(f"v_pk_mul_f32 {P(T,i)}, {P(G,i)}, {P(T,i)}")
            for i in range(8): g(f"v_exp_f32 v{T+i}, v{T+i}")
            for i in range(4): g(f"v_pk_mul_f32 {P(U,i)}, {P(G,i)}, {P(U,i)}")
            for i in range(4): g(f"v_pk_fma_f32 {P(T,i)}, {P(T,i)}, {vv[0]}, {vv[0]} op_sel:[0,{vv[1]},{vv[1]}] op_sel_hi:[1,{vv[1]},{vv[1]}]")
            for i in range(8): g(f"v_rcp_f32 v{T+i}, v{T+i}")
            for i in range(4): g(f"v_pk_mul_f32 {P(U,i)}, {P(U,i)}, {P(T,i)}")
            for i in range(4): g(f"v_cvt_pk_bf16_f32 v{G+i}, v{U+2*i}, v{U+2*i+1}")
            store(u, G)
            return g.end()
        def flg(p, slow=True):
            g.begin(); g.waitvm(f"hh{p}"); g.add(self.flag_fast(self.sF3, 128*p))
            if slow: g.add(self.flag_slow(self.sF3, 128*p))
            return g.end()
        NK = 22; NWF = 4
        DA = [HF, HF + 80, HF + 96, HF + 112]
        WF = HF + 16
        HRq = [HF + 48 + 4*i for i in range(8)] + [ACC[2] + 4*i for i in range(4)] + [ACC[3] + 4*i for i in range(4)] + list(FR) + [MF]
        NH = len(HRq)
        HR2 = [ACC[0] + 4*i for i in range(4)] + [ACC[1] + 4*i for i in range(4)]
        drd = [[V(1), self.vL4], [vCt, vHi]]; vZ = self.vP2
        lo = [(n, rt) for n in range(NK) for rt in (1, 0)]
        hreg = lambda m: HRq[m % NH]
        g.begin()
        for i, (u, ks) in enumerate(seq):
            acc = ACC[u % 4]
            g(f"v_mfma_f32_32x32x16_bf16 {vr(acc,16)}, {vr(FR[i % NF],4)}, {vr(HF+4*ks,4) if ks < 32 else vr(MF,4)}, {vr(acc,16) if ks else 0}")
        D0 = len(seq)
        for m, (n, rt) in enumerate(lo):
            for ct in (1, 0):
                a = 2*rt + ct
                g(f"v_mfma_f32_32x32x16_bf16 {vr(DA[a],16)}, {vr(WF+((n%NWF)*2+ct)*4,4)}, {vr(hreg(m),4)}, {vr(DA[a],16) if (n or a == 0) else 0}")
        mf = g.end(); W = Weave(mf, 5)
        for key, k in (((2, 0), K_C23), ((2, 16), K_C23b), ((4, 0), K_C45), ((4, 16), K_C45b), ((0, 32), K_CS)):
            at = idx[key] - RA; tk = t1 if key[1] < 32 else t2
            W.at(at - 5, self.lchk_issue(k, tk)); W.at(at - 1, self.lchk_check(k, tk))
        for i in range(RA, len(seq)): W.at(i - RA, rd(i))
        for i in range(0, len(seq) - 1, 2):
            g.begin(); g.needs(vr(FR[(i + 1) % NF], 4)); W.before(i, g.end())
        pos = 0
        if self.o("c_ko", 1):
            at = 2*(16 - NH0); g.add(self.apoll_issue(self.vP2, t2)); W.at(at - 1, self.apoll_check(self.vP2, t2, pre=[self.flag_slow(self.sF2)]))
        else: at = 0
        for grp in hl[NH0:]: W.at(pos, grp); pos += 2
        for k, grp in enumerate(sl): W.at(at + 1 + k, grp)
        W.at(pos, self.flag_slow(self.sF2))
        W.at(self.o("c_unp", 36), self.sig(K_G2))
        left, _ = W.fill(stats, 50, 63, cap=6); assert not left
        if self.stamps:
            keys = [(0, 16), (2, 0), (2, 16), (4, 0), (4, 16)] if self.o("cst", 0) else []
            for key in keys:
                g.begin(); self.stamp("c%d_%d" % key); W.before(idx[key], g.end())
            g.begin(); self.stamp("Cmf"); cm = g.end()
        EC = self.o("e_cap", 5); epos = {}
        for p in range(2):
            rest, epos[p] = W.fill(epi(2*p) + epi(2*p + 1), idx[(2*p + 2, 1)], idx[(2*p + 2, 32)], cap=EC); assert not rest
        W.at(epos[0] + self.o("c_fl", 26), flg(0))
        self.vX3 = HR2[0] if False else None
        X3 = V(3, 2) if False else None
        lds = [self.grp(f"s_add_u32 s3, {self.sHF[rt]}, {(12*DK[n][1] + 2*DK[n][0])*K1}",
                        f"buffer_load_dwordx4 {vr(hreg(m),4)}, v{vZ if DK[n] == (0, 7) else self.vL16}, {SWS}, s3 offen sc1") for m, (n, rt) in enumerate(lo)]
        def part_of(i):
            for p, (f, n, _, _) in enumerate(DPART):
                if f <= i < f + n: return p, i - f
        def rdset(p):
            r = drd[p % 2]
            return self.grp(f"s_mul_i32 s5, {sW}, {DPART[p][3]}", f"s_add_u32 s5, s5, {DPART[p][2]}", f"v_add_u32 v{r[0]}, s5, v{self.vKr}", f"v_xor_b32 v{r[1]}, 64, v{r[0]}")
        def wread(i):
            p, j = part_of(i)
            out = [self.grp(f"ds_read_b64_tr_b16 {vr(WF+((i%NWF)*2+ct)*4+2*j2,2)}, v{drd[p%2][ct]} offset:{j*2048+j2*512}") for ct in range(2) for j2 in range(2)]
            if i == 2: out[-1] = out[-1] + self.sig(K_DS)
            return out
        init = singles(self.grp(*[x for j in range(8) for x in (f"v_lshlrev_b32 v{DA[0]+2*j}, 16, v{self.vHP+j}", f"v_and_b32 v{DA[0]+2*j+1}, 0xffff0000, v{self.vHP+j}")]))
        zset = self.grp(f"s_cmp_ge_u32 {sW}, 2", "s_cselect_b32 s5, 0x80000000, 0", f"v_or_b32 v{vZ}, s5, v{self.vL16}")
        self.vX3 = WF + 24
        p0 = idx[(4, 20)]; p1 = epos[1] + 3
        PRE = 8 + min(self.o("d_pre", 4), max(0, D0 - 1 - p1))
        W.at(p0 - self.o("d_pl", 16), self.apoll_issue(self.vP3, t2)); W.at(p0, self.apoll_check(self.vP3, t2))
        W.even(lds[:8], p0 + 1, p0 + 17)
        for i, grp in enumerate(lds[8:PRE]): W.at(max(p1, p0 + 17) + i, grp)
        W.at(idx[(4, 18)], rdset(0)); W.at(idx[(4, 19)], zset)
        W.at(idx[(4, 22)], self.lchk_issue(K_D1, t1, own=True)); W.at(idx[(4, 25)], self.lchk_check(K_D1, t1, own=True))
        W.even([x for i in range(NWF - 1) for x in wread(i)], idx[(4, 26)], D0 - 1)
        left, _ = W.fill(init, epos[1], D0 - 1, cap=8); assert not left
        g.begin(); g.label("L_cdone", keep=True)
        self.poll(self.vP3, t2)
        for grp in lds[:PRE] + [rdset(0), zset] + init: g.add(grp)
        self.lwait(K_D1, t1, own=True)
        for i in range(NWF - 1):
            for grp in wread(i): g.add(grp)
        g.branch("s_branch L_dgo"); self.tail.append(g.end())
        DM = self.o("d_mode", 1)
        if self.stamps: W.before(D0, cm)
        if DM: W.before(D0, epi_pk(4) + flg(1) + epi_pk(5))
        g.begin(); g.raw("L_dgo:"); W.before(D0, g.end())
        self.vX3 = self.vHP
        W.before(D0, rdset(1) + self.lchk_issue(K_D2, t1, own=True) + self.lchk_check(K_D2, t1, own=True))
        for p, k in ((2, K_D3), (3, K_D4)):
            at = D0 + 4*(DPART[p][0] - (NWF - 1))
            W.at(at - 6, rdset(p)); W.at(at - 4, self.lchk_issue(k, t1, own=True)); W.at(at - 1, self.lchk_check(k, t1, own=True))
        for i in range(NWF - 1, NK):
            for j, grp in enumerate(wread(i)): W.at(D0 + 4*(i - (NWF - 1)) + j, grp)
        LD = self.o("d_la", 14)
        lat = lambda m: D0 + max(m - PRE, 2*(m - LD))
        W.at(D0, ([] if DM else flg(1)) + self.apoll_issue(self.vP3, t2, 128))
        W.at(lat(16), self.apoll_check(self.vP3, t2, 128))
        LD2 = self.o("d_la2", 7)
        lat2 = lambda m: D0 + 2*(m - LD2) if m >= 30 else lat(m)
        pi = lat2(30) - self.o("d_p2", 6)
        W.at(pi, self.apoll_issue(self.vP3, t2, 256)) if False else None
        for m in range(PRE, 30):
            assert m < NH or lat2(m) > D0 + 2*(m - NH) + 1
            W.at(lat2(m), lds[m])
        if DM: e2 = D0
        else:
            rest, e2 = W.fill(epi(4) + epi(5), D0 + 2, pi - 2, cap=self.o("e_cap2", 9)); assert not rest, len(rest)
        f2 = min(e2 + self.o("d_fl", 10), pi - 1)
        W.at(f2, flg(2))
        W.at(pi, self.apoll_issue(self.vP3, t2, 256)); W.at(lat2(30), self.apoll_check(self.vP3, t2, 256))
        for m in range(30, len(lds)): W.at(lat2(m), lds[m])
        self.info = (e2 - D0, f2 - D0, pi - D0, p0 - D0)
        self.vRw = [T, T + 1, T + 2]; self.vRr = T + 3
        g.begin(); self.red_consts(alloc=False); rc = g.end()
        for i in range(4): W.at(e2 + 3 + 2*i, rc[4*i:4*i+4])
        W.at(D0 + 4*(DPART[3][0] - (NWF - 1)) + 6, self.grp("s_barrier"))
        g.add(W.out())
        self.stamp("Dmf")
        for a in (3, 2, 1):
            for grp in self.red_write(DA, a): g.add(grp)
        g.waitds(); g("s_barrier")
        assert ACC[1] == ACC[0] + 16 and ACC[2] == ACC[0] + 32
        for l in self.red_add(DA, ACC[0]): g(l)
        for j in range(8): g(f"v_cvt_pk_bf16_f32 v{self.vHP+j}, v{DA[0]+2*j}, v{DA[0]+2*j+1}")
        g(f"buffer_store_dwordx4 {vr(self.vHP,4)}, v{self.vRM}, {SOUT}, 0 offen")
        g(f"buffer_store_dwordx4 {vr(self.vHP+4,4)}, v{self.vRM}, {SOUT}, 0 offen offset:32")

    def build(self):
        g = self.g
        self.prologue(); self.helper(); self.phaseA(); self.phaseB(); self.phaseC()
        if self.stamps:
            self.stamp("end")
            g(f"s_lshl_b32 s3, s2, 2"); g(f"s_add_u32 s3, s3, {sW}"); g("s_lshl_b32 s3, s3, 8"); g(f"s_add_u32 s3, s3, {WS_STAMP}")
            g(f"v_lshlrev_b32 v{self.vL4}, 2, v{self.vL}"); g(f"buffer_store_dword v{self.vST}, v{self.vL4}, {SWS}, s3 offen")
        g.label("L_end", keep=True)
        g("s_endpgm")
        for st in self.tail: g.add(st)
        g.raw("L_codeend:")
        body = g.finalize()
        hdr = open("ref.txt").read().split("; Override launch geometry")[0]
        s = hdr + "; @launch grid=(256,1,1) block=(512,1,1) lds=163840\n"
        s += '.amdgcn_target "amdgcn-amd-amdhsa--gfx950"\n.text\n'
        s += f".globl {NAME}_kernel\n.p2align 8\n.type {NAME}_kernel,@function\n{NAME}_kernel:\n"
        s += body + "    s_endpgm\n"
        s += f'.section .rodata,"a"\n.p2align 6\n.amdhsa_kernel {NAME}_kernel\n'
        s += "  .amdhsa_next_free_vgpr 256\n  .amdhsa_next_free_sgpr 102\n  .amdhsa_accum_offset 256\n"
        s += "  .amdhsa_group_segment_fixed_size 0\n  .amdhsa_kernarg_size 80\n  .amdhsa_user_sgpr_count 2\n"
        s += "  .amdhsa_user_sgpr_kernarg_segment_ptr 1\n  .amdhsa_system_sgpr_workgroup_id_x 1\n"
        s += "  .amdhsa_float_denorm_mode_32 3\n.end_amdhsa_kernel\n"
        return s

if __name__ == "__main__":
    import argparse
    ap = argparse.ArgumentParser()
    ap.add_argument("-o", default="k.s"); ap.add_argument("--stamps", action="store_true"); ap.add_argument("--opt", default="")
    a = ap.parse_args()
    opt = {kv.split("=")[0]: int(kv.split("=")[1]) for kv in a.opt.split(",") if kv}
    k = K(a.stamps, opt); s = k.build()
    open(a.o, "w").write(s)
    if a.stamps: open(a.o + ".names", "w").write("\n".join(" ".join(k.names[r]) for r in "CSJ"))
    print("ins", k.g.stats, "vgpr hi", k.V.hi, "sgpr hi", k.S.hi, k.info)
```

```python
import sys, struct
sys.path.insert(0, "gen")
from asmgen import *

NAME = "sequential_preLN__sliding_local_dilated__glu_gated_geglu__prompt"
WS_O, WS_H, WS_HH, WS_HST, WS_CS = 0x000000, 0x200000, 0x400000, 0xA00000, 0xA40000
WS_F1, WS_F2, WS_F3, WS_FC, WS_STAMP = 0xB00000, 0xB20000, 0xB40000, 0xB60000, 0xC00000
WS_SIZE = 0x1000000
HHP = 96
SX, SWQ, SWO, SWG, SWU, SWD, SOUT, SDBG, SWS = [f"s[{b}:{b+3}]" for b in range(8, 44, 4)]
sW, sRB, sCB, sR128, sCGX, sISCS = "s44", "s45", "s46", "s47", "s48", "s49"
sNON = "s[50:51]"
POLL_LIMIT = 1 << 16
LOG2E = 1.4426950408889634

def f32(x): return "0x%08x" % struct.unpack("<I", struct.pack("<f", x))[0]

class K:
    def __init__(self, stamps=False, upto="D", opt=None):
        self.g = Gen(); self.V = Alloc(0, 256); self.A = Alloc(0, 256)
        self.stamps = stamps; self.upto = upto; self.nstamp = 0; self.tail = []
        self.opt = opt or {}; self.snames = []
    def stamp(self, name=""):
        if not self.stamps: return
        i = self.nstamp; self.nstamp += 1; self.snames.append(name)
        self.g("s_memrealtime s[72:73]"); self.g("s_waitcnt lgkmcnt(0)"); self.g(f"v_writelane_b32 v{self.vST}, s72, {i}")

    def poll(self, vaddr, tmp):
        g = self.g; L = g.newlabel("L_poll"); Lgo = g.newlabel("L_go")
        g("s_mov_b32 s52, 0")
        g.label(L, keep=True)
        g(f"buffer_load_dwordx2 {vr(tmp,2)}, {vr(vaddr)}, {SWS}, 0 offen sc1")
        g("s_add_u32 s52, s52, 1")
        g(f"s_cmp_gt_u32 s52, {POLL_LIMIT}")
        g(f"s_cbranch_scc1 {Lgo}")
        g("s_waitcnt vmcnt(0)")
        g(f"v_cmp_ne_u64 vcc, {sNON}, {vr(tmp,2)}")
        g(f"s_cbranch_vccnz {L}")
        g.label(Lgo, keep=True)
    def flag(self, soff):
        g = self.g
        g("s_mov_b64 exec, 0xffff")
        g(f"buffer_store_dwordx2 {vr(self.vNON,2)}, {vr(self.vL8)}, {SWS}, {soff} offen sc1", tag="flag")
        g("s_mov_b64 exec, -1")

    def prologue(self):
        g, V = self.g, self.V
        g("s_cmp_ge_u32 s2, 256")
        g("s_cbranch_scc1 L_end")
        g("s_load_dwordx16 s[48:63], s[0:1], 0")
        g("s_load_dwordx4 s[64:67], s[0:1], 64")
        g("s_memrealtime s[100:101]")
        v0 = V(1); assert v0 == 0
        self.vL = V(1); self.vL16 = V(1); self.vL8 = V(1); self.vNON = V(2); self.vHP = V(8, 4)
        t = V(1)
        if self.stamps:
            self.vST = V(1); g(f"v_mov_b32 v{self.vST}, 0"); self.nstamp = 1; self.snames.append("start")
        g(f"v_lshrrev_b32 v{t}, 6, v0")
        g(f"v_and_b32 v{self.vL}, 63, v0")
        g(f"v_readfirstlane_b32 {sW}, v{t}")
        g("s_and_b32 s4, s2, 7")
        g("s_lshr_b32 s5, s2, 3")
        g("s_getpc_b64 s[6:7]")
        g.raw("L_pc:")
        g(f"v_lshrrev_b32 v{t}, 4, v0")
        g(f"v_lshl_add_u32 v{t}, s5, 4, v{t}")
        g(f"v_lshlrev_b32 v{t}, 7, v{t}")
        g(f"v_min_u32 v{t}, L_codeend-L_pc-4, v{t}")
        self.vJunk = V(1)
        g(f"global_load_dword v{self.vJunk}, v{t}, s[6:7]")
        g("s_lshl_b32 s3, s4, 2"); g("s_lshr_b32 s6, s5, 3"); g(f"s_add_u32 {sRB}, s3, s6")
        g(f"s_and_b32 {sCB}, s5, 7")
        g("s_lshl_b32 s3, s4, 1"); g("s_lshr_b32 s6, s5, 4"); g(f"s_add_u32 {sR128}, s3, s6")
        g(f"v_lshlrev_b32 v{self.vL16}, 4, v{self.vL}")
        g(f"v_lshlrev_b32 v{self.vL8}, 3, v{self.vL}")
        V.release(t)
    def srd(self, base, ptr, size):
        g = self.g
        g(f"s_mov_b32 s{base}, s{ptr}"); g(f"s_and_b32 s{base+1}, s{ptr+1}, 0xffff")
        g(f"s_mov_b32 s{base+2}, {size}"); g(f"s_mov_b32 s{base+3}, 0x20000")

    def phaseA(self):
        g, V = self.g, self.V
        L = self.vL
        RING = 81920; TAB = 155648; TCSV = TAB + 1024
        vXs, vWs = V(1), V(1)
        a, b, c = V(1), V(1), V(1)
        g(f"s_and_b32 s3, {sW}, 1"); g("s_lshl_b32 s6, s3, 3")
        g(f"v_lshrrev_b32 v{a}, 3, v{L}")
        g(f"v_add_u32 v{b}, s6, v{a}")
        g(f"v_bfe_u32 v{c}, v{b}, 1, 3")
        g(f"v_and_b32 v{vXs}, 7, v{L}")
        g(f"v_xor_b32 v{c}, v{c}, v{vXs}")
        g(f"v_lshlrev_b32 v{b}, 10, v{b}")
        g(f"v_lshl_add_u32 v{vXs}, v{c}, 4, v{b}")
        g(f"s_lshr_b32 s6, {sW}, 1"); g("s_lshl_b32 s6, s6, 7")
        g(f"v_add_u32 v{vXs}, s6, v{vXs}")
        g(f"v_bfe_u32 v{b}, v{L}, 4, 1")
        g("s_lshl_b32 s6, s3, 1")
        g(f"v_or_b32 v{b}, s6, v{b}")
        g(f"v_bfe_u32 v{c}, v{L}, 1, 2")
        g(f"v_xor_b32 v{b}, v{b}, v{c}")
        g(f"v_and_b32 v{c}, 1, v{L}")
        g(f"v_lshlrev_b32 v{c}, 4, v{c}")
        g(f"v_lshl_add_u32 v{b}, v{b}, 5, v{c}")
        g(f"v_mul_u32_u24 v{a}, 3072, v{a}")
        g(f"s_mul_i32 s6, {sW}, {8*3072}"); g(f"s_lshl_b32 s7, {sCB}, 7"); g("s_add_u32 s6, s6, s7")
        g(f"v_add3_u32 v{vWs}, v{a}, v{b}, s6")
        sXb, sX0, sXm, sWm, sEx = "s68", "s69", "s70", "s71", "s5"
        g(f"s_lshl_b32 {sXb}, {sRB}, 16"); g(f"s_sub_u32 {sXb}, {sXb}, 16384"); g(f"s_max_i32 {sX0}, {sXb}, 0")
        g(f"s_lshl_b32 {sXm}, {sW}, 10")
        g(f"s_mul_i32 {sWm}, {sW}, 3072"); g(f"s_add_u32 {sWm}, {sWm}, {RING}")
        g("s_cmp_eq_u32 s3, 0"); g(f"s_cselect_b32 {sEx}, 0xffffff00, -1")
        g("s_waitcnt lgkmcnt(0)")
        self.srd(8, 48, 2048*512*2); self.srd(12, 50, 512*1536*2)
        if self.stamps: g(f"v_writelane_b32 v{self.vST}, s100, 0")
        g(f"s_or_b32 s3, s2, {sW}"); g("s_cmp_eq_u32 s3, 0")
        g.branch("s_cbranch_scc1 L_pubnonce", keep=True)
        g.label("L_pubdone", keep=True)
        g.begin()
        g.label("L_pubnonce", keep=True)
        self.srd(36, 64, 256)
        g("s_or_b32 s100, s100, 1")
        g(f"v_mov_b32 v{self.vNON}, s100"); g(f"v_mov_b32 v{self.vNON+1}, s101"); g(f"v_mov_b32 v{a}, 0")
        g("s_mov_b64 exec, 1")
        g(f"buffer_store_dwordx2 {vr(self.vNON,2)}, v{a}, {SDBG}, 0 offen sc1")
        g("s_mov_b64 exec, -1")
        g.branch("s_branch L_pubdone", keep=True)
        self.tail.append(g.end())
        def xjob(q, t):
            g.begin()
            g(f"s_add_u32 m0, {sXm}, {t*16384 + q*4096}")
            if t == 0:
                g(f"s_add_u32 s3, {sX0}, {q*256}"); g(f"s_mov_b32 exec_lo, {sEx}")
            else:
                g(f"s_add_u32 s3, {sXb}, {t*16384 + q*256}")
            g(f"buffer_load_dwordx4 v{vXs}, {SX}, s3 offen lds", tag=f"x{q}")
            if t == 0: g("s_mov_b32 exec_lo, -1")
            return g.end()
        def wjob(s, p):
            g.begin()
            g(f"s_add_u32 m0, {sWm}, {(s % 6)*12288}")
            g(f"s_mov_b32 s3, {s*32*3072}")
            g(f"buffer_load_dwordx4 v{vWs}, {SWQ}, s3 offen offset:{p*1024} lds", tag=f"w{s}")
            return g.end()
        jobs = []
        for s in range(16):
            if s % 4 == 0: jobs += [(-1, xjob(s // 4, t)) for t in range(5)]
            jobs += [(s - 6, wjob(s, p)) for p in range(3)]
        INIT = self.opt.get("a_init", 17)
        for _, st in jobs[:INIT]: g.add(st)
        jpos = INIT
        self.srd(16, 52, 512*512*2); self.srd(20, 56, 512*1376*2); self.srd(24, 58, 512*1376*2); self.srd(28, 60, 1376*512*2)
        self.srd(32, 62, 2048*512*2); self.srd(36, 64, 256); self.srd(40, 66, WS_SIZE)
        g("s_lshr_b32 s3, s2, 3"); g("s_and_b32 s3, s3, 15")
        g("s_cmp_eq_u32 s3, 15"); g(f"s_cselect_b32 {sISCS}, 1, 0"); g(f"s_cselect_b32 {sCGX}, {sR128}, s3")
        vXr = [V(1), V(1)]; vXr4 = [V(1), V(1)]; vSr = [V(1), V(1)]; vWr = V(1)
        ONES = V(4, 4)
        g(f"v_bfe_u32 v{a}, v{L}, 1, 3")
        g(f"v_lshrrev_b32 v{b}, 4, v{L}")
        g(f"v_xor_b32 v{a}, v{a}, v{b}")
        g(f"v_lshlrev_b32 v{a}, 4, v{a}")
        g(f"v_and_b32 v{c}, 15, v{L}")
        g(f"v_lshl_add_u32 v{vXr[0]}, v{c}, 7, v{a}")
        g(f"v_xor_b32 v{vXr[1]}, 64, v{vXr[0]}")
        g(f"s_add_u32 s3, {sW}, 1"); g("s_lshl_b32 s3, s3, 14")
        for i in range(2):
            g(f"v_add_u32 v{vXr4[i]}, 0x10000, v{vXr[i]}")
            g(f"v_add_u32 v{vSr[i]}, s3, v{vXr[i]}")
        g(f"v_bfe_u32 v{a}, v{L}, 3, 2")
        g(f"v_xor_b32 v{a}, {sW}, v{a}")
        g(f"v_lshlrev_b32 v{a}, 5, v{a}")
        g(f"v_mul_u32_u24 v{b}, 3072, v{b}")
        g(f"v_bfe_u32 v{c}, v{L}, 2, 2")
        g(f"v_lshl_add_u32 v{a}, v{c}, 7, v{a}")
        g(f"v_and_b32 v{c}, 3, v{L}")
        g(f"v_lshl_add_u32 v{a}, v{c}, 3, v{a}")
        g(f"v_add_u32 v{a}, {RING}, v{a}")
        g(f"v_add_u32 v{vWr}, v{a}, v{b}")
        for i in range(4): g(f"v_mov_b32 v{ONES+i}, 0x3f803f80")
        g(f"v_lshrrev_b32 v{a}, 3, v{L}"); g(f"v_and_b32 v{b}, 7, v{L}"); g(f"v_lshlrev_b32 v{a}, 11, v{a}")
        g(f"v_lshl_add_u32 v{a}, v{b}, 4, v{a}")
        g(f"ds_write_b128 v{a}, {vr(ONES,4)}")
        self.flag_addrs(a, b, c)
        XF = [[V(4, 4) for t in range(5)] for _ in range(2)]
        WF = [[V(4, 4) for p in range(3)] for _ in range(2)]
        SF = [V(4, 4) for _ in range(2)]
        Q = [V(4, 4) for t in range(5)]; Kc = [V(4, 4) for t in range(5)]; Vc = [V(4, 4) for t in range(5)]
        G0, GS, SS = V(4, 4), V(4, 4), V(4, 4)
        def reads(s):
            g.begin(); bi = s & 1
            for p in range(3):
                for j2 in range(2):
                    g(f"ds_read_b64_tr_b16 {vr(WF[bi][p]+2*j2,2)}, v{vWr} offset:{(s%6)*12288 + p*1024 + j2*512}")
                if p < 2:
                    for t in (2*p, 2*p+1):
                        g(f"ds_read_b128 {vr(XF[bi][t],4)}, v{vXr[s&1]} offset:{t*16384 + (s>>1)*2048}")
            g(f"ds_read_b128 {vr(XF[bi][4],4)}, v{vXr4[s&1]} offset:{(s>>1)*2048}")
            g(f"ds_read_b128 {vr(SF[bi],4)}, v{vSr[s&1]} offset:{(s>>1)*2048}")
            return g.end()
        def mfmas(s):
            g.begin(); bi = s & 1
            def mf(d, x, y): g(f"v_mfma_f32_16x16x32_bf16 {vr(d,4)}, {vr(x,4)}, {vr(y,4)}, {vr(d,4) if s else 0}")
            for t in range(5): mf(Q[t], WF[bi][0], XF[bi][t])
            for t in range(5): mf(Kc[t], WF[bi][1], XF[bi][t])
            for t in range(5): mf(Vc[t], XF[bi][t], WF[bi][2])
            mf(G0, XF[bi][0], XF[bi][0]); mf(GS, SF[bi], SF[bi]); mf(SS, ONES, SF[bi])
            return g.end()
        self.stamp()
        g.waitds(); g.waitvm("x0", "w0"); g("s_barrier")
        self.stamp()
        g.add(reads(0))
        RATE = self.opt.get("a_rate", 5)
        vN = V(2)
        for s in range(16):
            g.comment(f"A step {s}")
            g.waitds()
            if s < 15:
                g.waitvm(f"x{(s+1)//4}", f"w{s+1}"); g("s_barrier")
            fill = reads(s + 1) if s < 15 else []
            n = 0
            while jpos < len(jobs) and jobs[jpos][0] <= s and n < RATE:
                fill = fill + [("grp", jobs[jpos][1])]; jpos += 1; n += 1
            if s == 12:
                g.begin(); g(f"v_mov_b32 v{a}, 0"); g(f"buffer_load_dwordx2 {vr(vN,2)}, v{a}, {SDBG}, 0 offen sc1")
                fill = fill + [("grp", g.end())]
            z = zipstreams(mfmas(s), fill, 0, 16) if fill else mfmas(s)
            for it in z:
                if isinstance(it, tuple): g.add(it[1])
                else: g.add([it])
        assert jpos == len(jobs), (jpos, len(jobs))
        self.stamp()
        for bi in range(2):
            for r in XF[bi] + WF[bi] + [SF[bi]]: V.release(r, 4)
        for r in [vXs, vWs, vWr] + vXr + vXr4 + vSr: V.release(r)
        g("s_mov_b32 s52, 0x22222222"); g("s_mov_b32 s53, 0x22222222")
        g("s_mov_b32 s54, 0x44444444"); g("s_mov_b32 s55, 0x44444444")
        g("s_mov_b32 s56, 0x88888888"); g("s_mov_b32 s57, 0x88888888")
        def diag(dst, src):
            g(f"v_cndmask_b32 v{dst}, v{src}, v{src+1}, s[52:53]")
            g(f"v_cndmask_b32 v{dst}, v{dst}, v{src+2}, s[54:55]")
            g(f"v_cndmask_b32 v{dst}, v{dst}, v{src+3}, s[56:57]")
        T = V(4, 4); MA = [V(2), V(2)]; q1, q0, s0 = V(1), V(1), V(1)
        CSQ, CSK = V(4, 4), V(4, 4)
        for r in range(4):
            g(f"v_mov_b32_dpp v{CSQ+r}, v{Q[0]+r} row_newbcast:0 row_mask:0xf bank_mask:0xf")
            g(f"v_mov_b32_dpp v{CSK+r}, v{Kc[0]+r} row_newbcast:0 row_mask:0xf bank_mask:0xf")
        for r in range(4):
            g(f"v_mov_b32_dpp v{T+r}, v{G0+r} row_newbcast:0 row_mask:0xf bank_mask:0xf")
        diag(q0, G0); diag(s0, T); diag(q1, GS)
        g(f"s_mov_b32 s58, {f32(1/512)}")
        for (S, Qq, M) in ((s0, q0, MA[0]), (SS, q1, MA[1])):
            g(f"v_mul_f32 v{M}, s58, v{S}")
            g(f"v_mul_f32 v{Qq}, s58, v{Qq}")
            g(f"v_fma_f32 v{Qq}, -v{M}, v{M}, v{Qq}")
            g(f"v_max_f32 v{Qq}, 0, v{Qq}")
            g(f"v_add_f32 v{Qq}, {f32(1e-5)}, v{Qq}")
            g(f"v_rsq_f32 v{M+1}, v{Qq}")
        g(f"v_and_b32 v{a}, 15, v{L}"); g(f"v_lshlrev_b32 v{a}, 3, v{a}"); g(f"v_add_u32 v{a}, {TAB}, v{a}")
        g(f"s_lshl_b32 s3, {sW}, 7"); g(f"v_add_u32 v{b}, s3, v{a}")
        g(f"s_lshl_b32 s3, {sW}, 6"); g(f"s_add_u32 s3, s3, {TCSV}")
        g(f"v_and_b32 v{c}, 15, v{L}"); g(f"v_lshl_add_u32 v{c}, v{c}, 2, s3")
        g("s_mov_b32 exec_lo, 0x00f0000f"); g("s_mov_b32 exec_hi, 0xf0000f00")
        g(f"ds_write_b64 v{a}, {vr(MA[0],2)}")
        g(f"ds_write_b64 v{b}, {vr(MA[1],2)} offset:128")
        g("s_mov_b64 exec, 0xffff")
        g(f"ds_write_b32 v{c}, v{Vc[0]}")
        g("s_mov_b64 exec, -1")
        g(f"v_lshrrev_b32 v{b}, 4, v{L}"); g(f"v_lshlrev_b32 v{b}, 5, v{b}"); g(f"v_add_u32 v{b}, {TAB}, v{b}")
        g.waitds(); g("s_barrier")
        self.hookA_lds_free()
        V.release(T, 4); V.release(MA[0], 2); V.release(MA[1], 2); V.release(q1); V.release(q0); V.release(s0)
        V.release(G0, 4); V.release(GS, 4); V.release(SS, 4)
        M1 = [V(2) for t in range(5)]; M2 = [V(8, 4) for t in range(5)]; CSV = V(1)
        g(f"ds_read_b32 v{CSV}, v{c}")
        for t in range(5): g(f"ds_read_b64 {vr(M1[t],2)}, v{a} offset:{t*128}")
        for t in range(5):
            g(f"ds_read_b128 {vr(M2[t],4)}, v{b} offset:{t*128}")
            g(f"ds_read_b128 {vr(M2[t]+4,4)}, v{b} offset:{t*128+16}")
        BC, BP, BP1 = V(4, 4), V(4, 4), V(4, 4)
        NEG = f32(-1e30)
        g(f"v_and_b32 v{a}, 15, v{L}"); g(f"v_lshrrev_b32 v{b}, 4, v{L}"); g(f"v_lshlrev_b32 v{b}, 2, v{b}")
        g(f"v_sub_u32 v{a}, v{a}, v{b}")
        g(f"v_mov_b32 v{c}, {NEG}")
        g(f"s_cmp_eq_u32 {sRB}, 0"); g("s_cselect_b64 s[58:59], 0, -1")
        for r in range(4):
            g(f"v_subrev_u32 v{b}, {r}, v{a}")
            g(f"v_and_b32 v{b}, 0x80000001, v{b}")
            g(f"v_cmp_eq_u32 vcc, 0, v{b}")
            g(f"v_cndmask_b32 v{BC+r}, v{c}, 0, vcc")
            g(f"v_cmp_eq_u32 vcc, 0x80000000, v{b}")
            g(f"v_cndmask_b32 v{BP+r}, v{c}, 0, vcc")
            g(f"v_cndmask_b32 v{BP1+r}, v{c}, v{BP+r}, s[58:59]")
        Lback = g.newlabel("L_nb")
        g(f"v_readfirstlane_b32 s50, v{vN}"); g(f"v_readfirstlane_b32 s51, v{vN+1}")
        g("s_cmp_eq_u32 s50, 0")
        g.branch("s_cbranch_scc1 L_getnonce", keep=True)
        g.label(Lback, keep=True)
        g.begin()
        g.label("L_getnonce", keep=True)
        g("s_mov_b32 s52, 0"); g(f"v_mov_b32 v{self.vNON}, 0")
        g.label("L_getnonce2", keep=True)
        g(f"buffer_load_dwordx2 {vr(vN,2)}, v{self.vNON}, {SDBG}, 0 offen sc1")
        g("s_waitcnt vmcnt(0)")
        g(f"v_readfirstlane_b32 s50, v{vN}"); g(f"v_readfirstlane_b32 s51, v{vN+1}")
        g("s_add_u32 s52, s52, 1"); g(f"s_cmp_gt_u32 s52, {POLL_LIMIT}")
        g.branch(f"s_cbranch_scc1 {Lback}", keep=True)
        g("s_cmp_eq_u32 s50, 0")
        g.branch("s_cbranch_scc1 L_getnonce2", keep=True)
        g.branch(f"s_branch {Lback}", keep=True)
        self.tail.append(g.end())
        g(f"v_mov_b32 v{self.vNON}, s50"); g(f"v_mov_b32 v{self.vNON+1}, s51")
        V.release(vN, 2)
        QB = [None] + [V(2) for t in range(4)]; KB = [V(2) for t in range(5)]; VB = V(10, 2)
        for t in range(5):
            for r in range(4):
                if t: g(f"v_fma_f32 v{Q[t]+r}, -v{M1[t]}, v{CSQ+r}, v{Q[t]+r}")
                g(f"v_fma_f32 v{Kc[t]+r}, -v{M1[t]}, v{CSK+r}, v{Kc[t]+r}")
            for r in range(4): g(f"v_mul_f32 v{Kc[t]+r}, v{M1[t]+1}, v{Kc[t]+r}")
            if t:
                for h in range(2): g(f"v_cvt_pk_bf16_f32 v{QB[t]+h}, v{Q[t]+2*h}, v{Q[t]+2*h+1}")
            for h in range(2): g(f"v_cvt_pk_bf16_f32 v{KB[t]+h}, v{Kc[t]+2*h}, v{Kc[t]+2*h+1}")
        SP = {t: Q[t] for t in range(1, 5)}; SC = {t: Kc[t] for t in range(1, 5)}
        for t in range(1, 5):
            g(f"v_mfma_f32_16x16x16_bf16 {vr(SP[t],4)}, {vr(KB[t-1],2)}, {vr(QB[t],2)}, {vr(BP1 if t == 1 else BP,4)}")
            g(f"v_mfma_f32_16x16x16_bf16 {vr(SC[t],4)}, {vr(KB[t],2)}, {vr(QB[t],2)}, {vr(BC,4)}")
        for t in range(5):
            for r in range(4): g(f"v_fma_f32 v{Vc[t]+r}, -v{M2[t]+2*r}, v{CSV}, v{Vc[t]+r}")
            for r in range(4): g(f"v_mul_f32 v{Vc[t]+r}, v{M2[t]+2*r+1}, v{Vc[t]+r}")
            for h in range(2): g(f"v_cvt_pk_bf16_f32 v{VB+2*t+h}, v{Vc[t]+2*h}, v{Vc[t]+2*h+1}")
        MX = {t: V(1) for t in range(1, 5)}; TX = {t: V(1) for t in range(1, 5)}; AQ = {t: V(1) for t in range(1, 5)}
        R4 = range(1, 5)
        g(f"s_mov_b32 s58, {f32(0.25*LOG2E)}")
        for t in R4: g(f"v_mul_f32 v{AQ[t]}, s58, v{M1[t]+1}")
        for t in R4: g(f"v_max3_f32 v{MX[t]}, v{SP[t]}, v{SP[t]+1}, v{SP[t]+2}")
        for t in R4: g(f"v_max3_f32 v{TX[t]}, v{SC[t]}, v{SC[t]+1}, v{SC[t]+2}")
        for t in R4: g(f"v_max3_f32 v{MX[t]}, v{MX[t]}, v{SP[t]+3}, v{SC[t]+3}")
        for t in R4: g(f"v_max_f32 v{MX[t]}, v{MX[t]}, v{TX[t]}")
        for sw in ("v_permlane16_swap_b32", "v_permlane32_swap_b32"):
            for t in R4: g(f"v_mov_b32 v{TX[t]}, v{MX[t]}")
            for t in R4: g(f"{sw} v{MX[t]}, v{TX[t]}")
            for t in R4: g(f"v_max_f32 v{MX[t]}, v{MX[t]}, v{TX[t]}")
        for t in R4: g(f"v_mul_f32 v{MX[t]}, v{MX[t]}, v{AQ[t]}")
        PB = {t: V(4, 4) for t in R4}
        for t in R4:
            for S in (SP[t], SC[t]):
                for r in range(4): g(f"v_fma_f32 v{S+r}, v{S+r}, v{AQ[t]}, -v{MX[t]}")
            for S in (SP[t], SC[t]):
                for r in range(4): g(f"v_exp_f32 v{S+r}, v{S+r}")
        for t in R4:
            for i, S in enumerate((SP[t], SC[t])):
                for h in range(2): g(f"v_cvt_pk_bf16_f32 v{PB[t]+2*i+h}, v{S+2*h}, v{S+2*h+1}")
        for t in R4:
            g(f"v_mfma_f32_16x16x32_bf16 {vr(SP[t],4)}, {vr(ONES,4)}, {vr(PB[t],4)}, 0")
            g(f"v_mfma_f32_16x16x32_bf16 {vr(SC[t],4)}, {vr(VB+2*(t-1),4)}, {vr(PB[t],4)}, 0")
        g(f"s_lshl_b32 s3, {sRB}, 6"); g(f"s_lshl_b32 s6, {sCB}, 2"); g("s_add_u32 s3, s3, s6"); g(f"s_add_u32 s3, s3, {sW}")
        g("s_lshl_b32 s3, s3, 10"); g(f"s_add_u32 s6, s3, {32*1024}")
        g(f"s_lshl_b32 s7, {sRB}, 5"); g(f"s_lshl_b32 s4, {sCB}, 2"); g("s_add_u32 s7, s7, s4"); g(f"s_add_u32 s7, s7, {sW}")
        g("s_lshl_b32 s7, s7, 7"); g(f"s_add_u32 s7, s7, {WS_F1}")
        for t in R4: g(f"v_rcp_f32 v{MX[t]}, v{SP[t]}")
        for t in R4:
            for r in range(4): g(f"v_mul_f32 v{SC[t]+r}, v{MX[t]}, v{SC[t]+r}")
        OB = [PB[1], PB[3]]
        for pr in range(2):
            tx, ty = 1 + 2*pr, 2 + 2*pr
            for h in range(2):
                g(f"v_cvt_pk_bf16_f32 v{OB[pr]+h}, v{SC[tx]+2*h}, v{SC[tx]+2*h+1}")
                g(f"v_cvt_pk_bf16_f32 v{OB[pr]+2+h}, v{SC[ty]+2*h}, v{SC[ty]+2*h+1}")
        for pr in range(2):
            for h in range(2): g(f"v_permlane16_swap_b32 v{OB[pr]+h}, v{OB[pr]+2+h}")
        g(f"buffer_store_dwordx4 {vr(OB[0],4)}, v{self.vL16}, {SWS}, s3 offen sc1", tag="ost")
        g(f"buffer_store_dwordx4 {vr(OB[1],4)}, v{self.vL16}, {SWS}, s6 offen sc1", tag="ost")
        self.stamp()
        self.hookA_after_store()
        g.waitvm("ost")
        self.flag("s7")
        self.stamp()
        for t in range(5):
            V.release(Q[t], 4); V.release(Kc[t], 4); V.release(Vc[t], 4); V.release(M1[t], 2); V.release(M2[t], 8); V.release(KB[t], 2)
        for t in R4:
            V.release(QB[t], 2); V.release(MX[t]); V.release(TX[t]); V.release(AQ[t]); V.release(PB[t], 4)
        V.release(VB, 10); V.release(CSV); V.release(CSQ, 4); V.release(CSK, 4); V.release(BC, 4); V.release(BP, 4); V.release(BP1, 4)
        V.release(ONES, 4); V.release(a); V.release(b); V.release(c)

    def flag_addrs(self, a, b, c):
        g, V, L = self.g, self.V, self.vL
        self.vP1, self.vP2, self.vP3 = V(1), V(1), V(1)
        g(f"s_lshl_b32 s3, {sRB}, 5"); g(f"s_lshl_b32 s6, {sW}, 3"); g("s_add_u32 s3, s3, s6"); g("s_lshl_b32 s3, s3, 7"); g(f"s_add_u32 s3, s3, {WS_F1}")
        g(f"v_and_b32 v{a}, 7, v{L}"); g(f"v_lshl_add_u32 v{self.vP1}, v{a}, 7, s3")
        g(f"s_lshl_b32 s3, {sR128}, 2"); g(f"s_add_u32 s3, s3, {sW}"); g("s_lshl_b32 s3, s3, 11"); g(f"s_add_u32 s3, s3, {WS_F2}")
        g(f"v_and_b32 v{a}, 15, v{L}"); g(f"v_lshl_add_u32 v{self.vP2}, v{a}, 7, s3")
        g(f"s_lshl_b32 s3, {sRB}, 12"); g(f"s_add_u32 s3, s3, {WS_F3}")
        g(f"v_min_u32 v{a}, 14, v{a}"); g(f"v_and_b32 v{b}, 16, v{L}"); g(f"v_or_b32 v{a}, v{a}, v{b}")
        g(f"v_lshl_add_u32 v{self.vP3}, v{a}, 7, s3")
        g("s_mov_b32 s6, 0"); g("s_mov_b32 s7, 0x0000ffff")
        g(f"v_cndmask_b32 v{a}, v{self.vP3}, v{self.vP2}, s[6:7]")
        g("s_mov_b32 s7, 0xffff0000")
        g(f"v_cndmask_b32 v{a}, v{a}, v{self.vP1}, s[6:7]")
        g(f"buffer_load_dword v{self.vJunk}, v{a}, {SWS}, 0 offen sc1")

    def hookA_lds_free(self): pass
    def hookA_after_store(self): pass

    def ksplit_consts(self):
        g, V, L = self.g, self.V, self.vL
        a, b = V(1), V(1)
        self.vKs = V(1); self.vKr = [V(1), V(1)]
        g(f"v_bfe_u32 v{a}, v{L}, 4, 1"); g(f"v_lshlrev_b32 v{a}, 2, v{a}")
        g(f"v_and_b32 v{b}, 7, v{L}"); g(f"v_xor_b32 v{a}, v{a}, v{b}"); g(f"v_lshlrev_b32 v{a}, 4, v{a}")
        g(f"v_lshrrev_b32 v{b}, 3, v{L}"); g(f"v_lshl_add_u32 v{a}, v{b}, 10, v{a}")
        g(f"s_lshl_b32 s3, {sCB}, 7"); g(f"v_add_u32 v{self.vKs}, s3, v{a}")
        g(f"v_lshrrev_b32 v{a}, 5, v{L}"); g(f"v_lshlrev_b32 v{a}, 10, v{a}")
        g(f"v_bfe_u32 v{b}, v{L}, 2, 2"); g(f"v_lshl_add_u32 v{a}, v{b}, 7, v{a}")
        g(f"v_bfe_u32 v{b}, v{L}, 3, 1"); g(f"s_and_b32 s3, {sW}, 1"); g(f"v_xor_b32 v{b}, s3, v{b}"); g(f"v_lshl_add_u32 v{a}, v{b}, 6, v{a}")
        g(f"v_bfe_u32 v{b}, v{L}, 4, 1"); g(f"v_lshl_add_u32 v{a}, v{b}, 5, v{a}")
        self.pi8(a, b)
        g(f"v_mov_b32 v{self.vKr[0]}, v{a}"); g(f"v_xor_b32 v{self.vKr[1]}, 64, v{a}")
        V.release(a); V.release(b)
    def pi8(self, acc, t):
        g, L = self.g, self.vL
        g(f"v_and_b32 v{t}, 1, v{L}"); g(f"v_lshl_add_u32 v{acc}, v{t}, 4, v{acc}")
        g(f"v_bfe_u32 v{t}, v{L}, 1, 1"); g(f"v_lshl_add_u32 v{acc}, v{t}, 3, v{acc}")
    def reduce4(self, ACC, RED, T):
        g, V = self.g, self.V
        vw = V(1); vrd = V(1)
        for a in (1, 2, 3):
            g(f"s_xor_b32 s3, {sW}, {a}"); g("s_mul_i32 s3, s3, 12288"); g(f"s_add_u32 s3, s3, {RED + (a-1)*4096}")
            g(f"v_add_u32 v{vw}, s3, v{self.vL16}")
            for j in range(4): g(f"ds_write_b128 v{vw}, {vr(ACC[a]+4*j,4)} offset:{j*1024}")
        g(f"s_mul_i32 s3, {sW}, 12288"); g(f"s_add_u32 s3, s3, {RED}"); g(f"v_add_u32 v{vrd}, s3, v{self.vL16}")
        g.waitds(); g("s_barrier")
        for i in range(12): g(f"ds_read_b128 {vr(T+4*i,4)}, v{vrd} offset:{i*1024}")
        for a in range(3):
            for j in range(8): g(f"v_pk_add_f32 {vr(ACC[0]+2*j,2)}, {vr(ACC[0]+2*j,2)}, {vr(T+16*a+2*j,2)}")
        V.release(vw); V.release(vrd)
    def rowmajor_off(self):
        g, V, L = self.g, self.V, self.vL
        r = V(1); t = V(1)
        g(f"v_and_b32 v{t}, 31, v{L}"); g(f"v_lshlrev_b32 v{r}, 10, v{t}")
        g(f"v_lshrrev_b32 v{t}, 5, v{L}"); g(f"v_lshl_add_u32 v{r}, v{t}, 4, v{r}")
        g(f"s_lshl_b32 s3, {sRB}, 1"); g(f"s_lshr_b32 s6, {sW}, 1"); g("s_add_u32 s3, s3, s6"); g("s_lshl_b32 s3, s3, 15")
        g(f"s_lshl_b32 s6, {sCB}, 1"); g(f"s_and_b32 s7, {sW}, 1"); g("s_add_u32 s6, s6, s7"); g("s_lshl_b32 s6, s6, 6")
        g("s_add_u32 s3, s3, s6"); g(f"v_add_u32 v{r}, s3, v{r}")
        V.release(t)
        return r

    def phaseB(self):
        g, V = self.g, self.V
        STG = 65536; RED = 65536
        self.ksplit_consts()
        self.vRM = self.rowmajor_off()
        XR = V(8, 4)
        g(f"buffer_load_dwordx4 {vr(XR,4)}, v{self.vRM}, {SX}, 0 offen")
        g(f"buffer_load_dwordx4 {vr(XR+4,4)}, v{self.vRM}, {SX}, 0 offen offset:32")
        g(f"s_lshl_b32 s6, {sW}, 14"); g(f"s_add_u32 s6, s6, {STG}"); g(f"s_lshl_b32 s7, {sW}, 17")
        for i in range(16):
            g(f"s_add_u32 m0, s6, {i*1024}"); g(f"s_add_u32 s3, s7, {i*8192}")
            g(f"buffer_load_dwordx4 v{self.vKs}, {SWO}, s3 offen lds", tag="wb")
        WB = V(64, 4); OF = V(64, 4); ACC = [V(16, 4) for _ in range(4)]
        rd = [V(1), V(1)]
        for i in range(2): g(f"v_add_u32 v{rd[i]}, s6, v{self.vKr[i]}")
        for j in range(8):
            g(f"v_lshlrev_b32 v{ACC[0]+2*j}, 16, v{XR+j}"); g(f"v_and_b32 v{ACC[0]+2*j+1}, 0xffff0000, v{XR+j}")
        g.waitvm("wb")
        for ks in range(8):
            for ct in range(2):
                for j2 in range(2):
                    g(f"ds_read_b64_tr_b16 {vr(WB+(ks*2+ct)*4+2*j2,2)}, v{rd[ct]} offset:{ks*2048+j2*512}")
        for rt in range(2):
            g(f"s_lshr_b32 s3, {sW}, 1"); g(f"s_xor_b32 s3, s3, {rt}"); g(f"s_lshl_b32 s6, {sRB}, 1"); g("s_add_u32 s3, s3, s6")
            g("s_lshl_b32 s3, s3, 5"); g(f"s_lshl_b32 s6, {sW}, 3"); g("s_add_u32 s3, s3, s6"); g(f"s_lshl_b32 s{54+2*rt}, s3, 10")
            g(f"s_add_u32 s{55+2*rt}, s{54+2*rt}, 4096")
        g.waitds()
        self.stamp()
        t2 = V(2)
        self.poll(self.vP1, t2)
        self.stamp()
        for ks in range(8):
            for rt in range(2):
                g(f"buffer_load_dwordx4 {vr(OF+(ks*2+rt)*4,4)}, v{self.vL16}, {SWS}, s{54+2*rt+ks//4} offen offset:{(ks%4)*1024} sc1")
        g("s_barrier")
        for ks in range(8):
            for rt in range(2):
                for ct in range(2):
                    a = 2*rt + ct
                    c = vr(ACC[a],16) if (ks or a == 0) else "0"
                    g(f"v_mfma_f32_32x32x16_bf16 {vr(ACC[a],16)}, {vr(WB+(ks*2+ct)*4,4)}, {vr(OF+(ks*2+rt)*4,4)}, {c}")
        self.stamp()
        self.reduce4(ACC, RED, WB)
        H = ACC[0]
        for j in range(8): g(f"v_cvt_pk_bf16_f32 v{self.vHP+j}, v{H+2*j}, v{H+2*j+1}")
        g(f"s_lshl_b32 s3, {sRB}, 1"); g(f"s_lshr_b32 s6, {sW}, 1"); g("s_add_u32 s3, s3, s6"); g("s_lshl_b32 s3, s3, 4")
        g(f"s_lshl_b32 s6, {sCB}, 1"); g(f"s_and_b32 s7, {sW}, 1"); g("s_add_u32 s6, s6, s7"); g("s_add_u32 s3, s3, s6")
        g("s_lshl_b32 s6, s3, 11"); g(f"s_add_u32 s6, s6, {WS_H}")
        g(f"buffer_store_dwordx4 {vr(self.vHP,4)}, v{self.vL16}, {SWS}, s6 offen sc1", tag="hst")
        g(f"buffer_store_dwordx4 {vr(self.vHP+4,4)}, v{self.vL16}, {SWS}, s6 offen offset:1024 sc1", tag="hst")
        S2, Q2 = ACC[1], ACC[1] + 2
        g(f"v_pk_add_f32 {vr(S2,2)}, {vr(H,2)}, {vr(H+2,2)}"); g(f"v_pk_mul_f32 {vr(Q2,2)}, {vr(H,2)}, {vr(H,2)}")
        g(f"v_pk_fma_f32 {vr(Q2,2)}, {vr(H+2,2)}, {vr(H+2,2)}, {vr(Q2,2)}")
        for j in range(2, 8):
            g(f"v_pk_add_f32 {vr(S2,2)}, {vr(S2,2)}, {vr(H+2*j,2)}")
            g(f"v_pk_fma_f32 {vr(Q2,2)}, {vr(H+2*j,2)}, {vr(H+2*j,2)}, {vr(Q2,2)}")
        g(f"v_add_f32 v{S2}, v{S2}, v{S2+1}"); g(f"v_add_f32 v{Q2}, v{Q2}, v{Q2+1}")
        g(f"v_permlane32_swap_b32 v{S2}, v{Q2}")
        g(f"v_add_f32 v{S2}, v{S2}, v{Q2}")
        g(f"v_lshlrev_b32 v{Q2}, 2, v{self.vL}")
        g("s_lshl_b32 s6, s3, 8"); g(f"s_add_u32 s6, s6, {WS_HST}")
        g(f"buffer_store_dword v{S2}, v{Q2}, {SWS}, s6 offen sc1", tag="hst")
        g("s_lshl_b32 s7, s3, 7"); g(f"s_add_u32 s7, s7, {WS_F2}")
        g.waitvm("hst")
        self.flag("s7")
        self.stamp()
        V.release(XR, 8); V.release(WB, 64); V.release(OF, 64); V.release(t2, 2)
        for x in ACC: V.release(x, 16)
        for x in rd: V.release(x)

    def c_consts(self):
        g, V, L = self.g, self.V, self.vL
        a, b = V(1), V(1)
        self.vCs = [V(1), V(1)]; self.vCr = [[V(1), V(1)], [V(1), V(1)]]
        g(f"v_lshrrev_b32 v{a}, 2, v{L}"); g(f"v_mul_u32_u24 v{a}, 2752, v{a}")
        g(f"v_and_b32 v{b}, 3, v{L}"); g(f"v_lshl_add_u32 v{a}, v{b}, 4, v{a}")
        g(f"s_mul_i32 s3, {sCGX}, 192"); g(f"s_mul_i32 s6, {sW}, {4*16*2752}"); g("s_add_u32 s3, s3, s6")
        g(f"v_add_u32 v{self.vCs[0]}, s3, v{a}")
        g(f"v_xor_b32 v{a}, 32, v{a}")
        g(f"v_add_u32 v{self.vCs[1]}, s3, v{a}")
        g(f"v_bfe_u32 v{b}, v{L}, 4, 1"); g(f"v_mul_u32_u24 v{a}, {1024+32}, v{b}")
        g(f"v_lshrrev_b32 v{b}, 5, v{L}"); g(f"v_lshl_add_u32 v{a}, v{b}, 9, v{a}")
        g(f"v_bfe_u32 v{b}, v{L}, 2, 2"); g(f"v_lshl_add_u32 v{a}, v{b}, 6, v{a}")
        self.pi8(a, b)
        g(f"v_mov_b32 v{self.vCr[0][0]}, v{a}"); g(f"v_xor_b32 v{self.vCr[0][1]}, 32, v{a}")
        for e in range(2): g(f"v_add_u32 v{self.vCr[1][e]}, 0x10000, v{self.vCr[0][e]}")
        g(f"s_lshl_b32 s60, {sW}, 13")
        V.release(a); V.release(b)
    def c_dma(self, c):
        g = self.g; out = []
        p, hk = c // 2, c % 2
        for i in range(4):
            for mat in range(2):
                g.begin()
                g(f"s_add_u32 m0, s60, {(p%2)*65536 + hk*32768 + i*2048 + mat*1024}")
                g(f"s_mov_b32 s3, {p*64 + (hk*16+i)*16*2752}")
                g(f"buffer_load_dwordx4 v{self.vCs[mat]}, {SWU if mat else SWG}, s3 offen lds", tag=f"wc{c}")
                out.append(g.end())
        return out
    def c_read(self, dst, p, e, ks):
        g = self.g
        base = self.vCr[p % 2][e]
        for j2 in range(2): g(f"ds_read_b64_tr_b16 {vr(dst+2*j2,2)}, v{base} offset:{ks*2048 + j2*256}")

    def phaseC(self):
        g, V, A = self.g, self.V, self.A
        self.c_consts()
        g("s_barrier")
        for c in range(4):
            for grp in self.c_dma(c): g.add(grp)
        g(f"s_cmp_eq_u32 {sISCS}, 1")
        g.branch("s_cbranch_scc1 L_cs", keep=True)
        t2 = V(2)
        HF = A(128, 4); ST = V(16, 4)
        g(f"s_lshl_b32 s3, {sR128}, 2"); g(f"s_add_u32 s3, s3, {sW}")
        g("s_lshl_b32 s54, s3, 15"); g(f"s_add_u32 s54, s54, {WS_H}")
        g("s_lshl_b32 s55, s3, 12"); g(f"s_add_u32 s55, s55, {WS_HST}")
        g(f"s_mul_i32 s56, s3, {HHP}"); g(f"s_mul_i32 s6, {sCGX}, 6"); g("s_add_u32 s56, s56, s6"); g("s_lshl_b32 s56, s56, 10"); g(f"s_add_u32 s56, s56, {WS_HH}")
        g("s_add_u32 s57, s56, 4096")
        g("s_lshl_b32 s58, s3, 4"); g(f"s_add_u32 s58, s58, {sCGX}"); g("s_lshl_b32 s58, s58, 7"); g(f"s_add_u32 s58, s58, {WS_F3}")
        g(f"s_mul_i32 s59, {sCGX}, {6*512}"); g(f"s_add_u32 s59, s59, {WS_CS}")
        vL4 = V(1); vPC = V(1)
        g(f"v_lshlrev_b32 v{vL4}, 2, v{self.vL}")
        g(f"s_lshl_b32 s6, {sCGX}, 9"); g(f"s_add_u32 s6, s6, {WS_FC}")
        g(f"v_and_b32 v{vPC}, 3, v{self.vL}"); g(f"v_lshl_add_u32 v{vPC}, v{vPC}, 7, s6")
        self.stamp()
        self.poll(self.vP2, t2)
        self.stamp()
        for ks in range(32):
            if ks % 4 == 0 and ks: g("s_add_u32 s54, s54, 4096")
            g(f"buffer_load_dwordx4 {ar(HF+4*ks,4)}, v{self.vL16}, {SWS}, s54 offen offset:{(ks%4)*1024} sc1")
        for i in range(16): g(f"buffer_load_dword v{ST+i}, v{vL4}, {SWS}, s55 offen offset:{i*256} sc1")
        g("s_barrier")
        ACC = [V(16, 4) for _ in range(4)]
        NF = 6; FR = [V(4, 4) for _ in range(NF)]
        CSF = [V(4, 4) for _ in range(6)]; MF = V(4, 4); A0, A1, VV = V(1), V(1), V(1)
        T = V(8, 4); OUT = [V(4, 4), V(4, 4)]
        g.begin()
        for st in (8, 4, 2, 1):
            for i in range(st): g(f"v_add_f32 v{ST+i}, v{ST+i}, v{ST+i+st}")
        g(f"v_mov_b32 v{ST+1}, v{ST}")
        g(f"s_mov_b32 s6, {f32(1/512)}")
        g(f"v_permlane32_swap_b32 v{ST}, v{ST+1}")
        g(f"v_mul_f32 v{ST}, s6, v{ST}"); g(f"v_mul_f32 v{ST+1}, s6, v{ST+1}")
        g(f"v_fma_f32 v{ST+1}, -v{ST}, v{ST}, v{ST+1}"); g(f"v_max_f32 v{ST+1}, 0, v{ST+1}")
        g(f"v_add_f32 v{VV}, {f32(1e-5)}, v{ST+1}")
        g(f"v_rsq_f32 v{ST+2}, v{VV}")
        c0 = -2.0 * 0.7978845608028654 * LOG2E
        g(f"v_cvt_pk_bf16_f32 v{MF}, -v{ST}, -v{ST}")
        g(f"v_mul_f32 v{A0}, {f32(c0)}, v{ST+2}")
        g(f"v_mul_f32 v{ST+3}, v{ST+2}, v{ST+2}")
        g(f"v_mul_f32 v{A1}, {f32(0.044715)}, v{A0}"); g(f"v_mul_f32 v{A1}, v{ST+3}, v{A1}")
        g(f"v_and_b32 v{ST+4}, 0xffff0000, v{MF}")
        g(f"v_sub_f32 v{ST+4}, -v{ST}, v{ST+4}")
        g(f"v_cvt_pk_bf16_f32 v{MF+1}, v{ST+4}, 0")
        g(f"v_mov_b32 v{MF+2}, 0"); g(f"v_mov_b32 v{MF+3}, 0")
        for u in range(6): g(f"v_mov_b32 v{CSF[u]+2}, 0"); g(f"v_mov_b32 v{CSF[u]+3}, 0")
        stats = g.end()
        def epi(u, acc):
            g.begin(); G, U, O = acc, acc + 8, OUT[u % 2]
            for i in range(8): g(f"v_mul_f32 v{T+i}, v{G+i}, v{G+i}")
            for i in range(8): g(f"v_fma_f32 v{T+i}, v{T+i}, v{A1}, v{A0}")
            for i in range(8): g(f"v_mul_f32 v{T+i}, v{G+i}, v{T+i}")
            for i in range(8):
                g(f"v_exp_f32 v{T+i}, v{T+i}"); g(f"v_mul_f32 v{U+i}, v{G+i}, v{U+i}")
            for i in range(8): g(f"v_fma_f32 v{T+i}, v{T+i}, v{VV}, v{VV}")
            for i in range(8): g(f"v_rcp_f32 v{T+i}, v{T+i}")
            for i in range(8): g(f"v_mul_f32 v{U+i}, v{U+i}, v{T+i}")
            for i in range(4): g(f"v_cvt_pk_bf16_f32 v{O+i}, v{U+2*i}, v{U+2*i+1}")
            g(f"buffer_store_dwordx4 {vr(O,4)}, v{self.vL16}, {SWS}, s{56 + u//4} offen offset:{(u%4)*1024} sc1", tag="hhst")
            return g.end()
        seq = []
        for ks in range(32): seq += [(0, ks), (1, ks)]
        seq += [(0, 32), (1, 32)]
        for u in range(2, 6): seq += [(u, ks) for ks in range(33)]
        accof = {0: 0, 1: 1, 2: 2, 3: 3, 4: 0, 5: 1}
        rseq = [x for x in seq if x[1] < 32]
        RA = NF - 1
        fpos = 0
        def emit_read():
            nonlocal fpos
            if fpos >= len(rseq): return
            u, ks = rseq[fpos]
            if u == 4 and ks == 0:
                g.waitvm("wc4", "wc5"); g("s_barrier")
            self.c_read(FR[fpos % NF], u // 2, u % 2, ks); fpos += 1
        for _ in range(RA): emit_read()
        queue = []
        used = 0
        RATE = self.opt.get("c_rate", 3)
        for idx, (u, ks) in enumerate(seq):
            acc = ACC[accof[u]]
            if (u, ks) == (0, 20): queue += stats
            if (u, ks) == (0, 32):
                for it in queue: g.add([it])
                queue = []
                self.poll(vPC, t2)
                for uu in range(6): g(f"buffer_load_dwordx2 {vr(CSF[uu],2)}, v{self.vL8}, {SWS}, s59 offen offset:{uu*512} sc1")
            if (u, ks) == (2, 0):
                g("s_barrier")
                for c in (4, 5):
                    for grp in self.c_dma(c): queue.append(("grp", grp))
                queue += epi(0, ACC[0]) + epi(1, ACC[1])
            if ks == 0 and u >= 3: queue += epi(u - 1, ACC[accof[u - 1]])
            if ks == 0 and u >= 4:
                pass
            if ks < 32:
                c = vr(acc, 16) if ks else "0"
                g(f"v_mfma_f32_32x32x16_bf16 {vr(acc,16)}, {vr(FR[used % NF],4)}, {ar(HF+4*ks,4)}, {c}"); used += 1
                emit_read()
            else:
                g(f"v_mfma_f32_32x32x16_bf16 {vr(acc,16)}, {vr(CSF[u],4)}, {vr(MF,4)}, {vr(acc,16)}")
            n = 0
            while queue and n < RATE:
                it = queue.pop(0)
                if isinstance(it, tuple): g.add(it[1]); n += 3
                else: g.add([it]); n += 2 if it.kind == "trans" else 1
            if ks == 32 and u in (3, 4):
                tgt = set(range(ACC[accof[u+1]], ACC[accof[u+1]] + 16))
                last = -1
                for qi, it in enumerate(queue):
                    if not isinstance(it, tuple) and any(r[0] == "v" and r[1] in tgt for r in it.rd + it.wr): last = qi
                for it in queue[:last+1]:
                    if isinstance(it, tuple): g.add(it[1])
                    else: g.add([it])
                queue = queue[last+1:]
        self.stamp()
        for it in queue:
            if isinstance(it, tuple): g.add(it[1])
            else: g.add([it])
        g.add(epi(5, ACC[accof[5]]))
        g.waitvm("hhst")
        self.flag("s58")
        g.label("L_cdone")
        self.stamp()
        g.begin()
        g.label("L_cs", keep=True)
        ON = ACC[2]; base = [ST, ST + 1]
        for i in range(4): g(f"v_mov_b32 v{ON+i}, 0x3f803f80")
        g(f"s_and_b32 s3, {sW}, 1"); g("s_lshl_b32 s3, s3, 5"); g(f"s_lshr_b32 s6, {sW}, 1"); g("s_lshl_b32 s6, s6, 15")
        for sl in range(2):
            g(f"v_xor_b32 v{base[sl]}, s3, v{self.vCr[sl][0]}"); g(f"v_add_u32 v{base[sl]}, s6, v{base[sl]}")
        g(f"s_mul_i32 s54, {sCGX}, {6*512}"); g(f"s_and_b32 s3, {sW}, 1"); g("s_lshl_b32 s3, s3, 9"); g("s_add_u32 s54, s54, s3")
        g(f"s_lshr_b32 s3, {sW}, 1"); g("s_lshl_b32 s3, s3, 8"); g("s_add_u32 s54, s54, s3"); g(f"s_add_u32 s54, s54, {WS_CS}")
        g(f"s_lshl_b32 s58, {sCGX}, 2"); g(f"s_add_u32 s58, s58, {sW}"); g("s_lshl_b32 s58, s58, 7"); g(f"s_add_u32 s58, s58, {WS_FC}")
        for p in range(3):
            g("s_waitcnt vmcnt(0)"); g("s_barrier")
            if p == 1:
                for c in (4, 5):
                    for grp in self.c_dma(c): g.add(grp)
            acc = ACC[p % 2]
            for ks in range(16):
                f = FR[ks % NF]
                for j2 in range(2): g(f"ds_read_b64_tr_b16 {vr(f+2*j2,2)}, v{base[p%2]} offset:{ks*2048 + j2*256}")
                if ks >= 4:
                    k = ks - 4; g(f"v_mfma_f32_32x32x16_bf16 {vr(acc,16)}, {vr(ON,4)}, {vr(FR[k % NF],4)}, {vr(acc,16) if k else 0}")
            for k in range(12, 16): g(f"v_mfma_f32_32x32x16_bf16 {vr(acc,16)}, {vr(ON,4)}, {vr(FR[k % NF],4)}, {vr(acc,16)}")
            O = OUT[p % 2]
            g(f"v_cvt_pk_bf16_f32 v{O+1}, v{acc}, 0")
            g(f"v_lshlrev_b32 v{T}, 16, v{O+1}"); g(f"v_sub_f32 v{T}, v{acc}, v{T}")
            g(f"v_cvt_pk_bf16_f32 v{O}, v{acc}, v{T}")
            g("s_mov_b32 exec_hi, 0")
            g(f"buffer_store_dwordx2 {vr(O,2)}, v{self.vL8}, {SWS}, s54 offen offset:{p*1024} sc1")
            g("s_mov_b64 exec, -1")
        g("s_waitcnt vmcnt(0)")
        self.flag("s58")
        g.branch("s_branch L_cdone")
        self.tail.append(g.end())
        V.release(t2, 2); A.release(HF, 128); V.release(ST, 16); V.release(vL4); V.release(vPC)
        for x in ACC: V.release(x, 16)
        for x in FR + CSF + OUT + [MF]: V.release(x, 4)
        for x in [A0, A1, VV] + self.vCs + self.vCr[0] + self.vCr[1]: V.release(x)
        V.release(T, 8)

    def phaseD(self):
        g, V, A = self.g, self.V, self.A
        RED = 0; NK = 22
        g("s_barrier")
        g(f"s_mul_i32 s6, {sW}, 40960"); g(f"s_mul_i32 s7, {sW}, {NK*16*1024}")
        g(f"s_cmp_eq_u32 {sW}, 3"); g(f"s_cselect_b32 s61, 0, {2*16384}"); g("s_add_u32 s61, s61, s7"); g(f"s_add_u32 s61, s61, {18*16384}")
        def wdma(ks, slot):
            for h in range(2):
                g(f"s_add_u32 m0, s6, {slot*2048 + h*1024}")
                if ks < 20: g(f"s_add_u32 s3, s7, {ks*16384 + h*8192}")
                else: g(f"s_add_u32 s3, s61, {(ks-20)*16384 + h*8192}")
                g(f"buffer_load_dwordx4 v{self.vKs}, {SWD}, s3 offen lds", tag=f"wd{ks}")
        for ks in range(20): wdma(ks, ks)
        WD = A(NK*8, 4)
        rd = [V(1), V(1)]
        for i in range(2): g(f"v_add_u32 v{rd[i]}, s6, v{self.vKr[i]}")
        def wread(ks, slot):
            g.waitvm(f"wd{ks}")
            for ct in range(2):
                for j2 in range(2):
                    g(f"ds_read_b64_tr_b16 {ar(WD+(ks*2+ct)*4+2*j2,2)}, v{rd[ct]} offset:{slot*2048+j2*512}")
        wread(0, 0); wread(1, 1); g.waitds()
        wdma(20, 0); wdma(21, 1)
        for ks in range(2, 20): wread(ks, ks)
        wread(20, 0); wread(21, 1)
        ACC = [V(16, 4) for _ in range(4)]
        for j in range(8):
            g(f"v_lshlrev_b32 v{ACC[0]+2*j}, 16, v{self.vHP+j}"); g(f"v_and_b32 v{ACC[0]+2*j+1}, 0xffff0000, v{self.vHP+j}")
        vZ = V(1)
        g(f"s_cmp_eq_u32 {sW}, 3"); g("s_cselect_b32 s3, 0x80000000, 0"); g(f"v_or_b32 v{vZ}, s3, v{self.vL16}")
        for rt in range(2):
            g(f"s_lshr_b32 s3, {sW}, 1"); g(f"s_xor_b32 s3, s3, {rt}"); g(f"s_lshl_b32 s6, {sRB}, 1"); g("s_add_u32 s3, s3, s6")
            g(f"s_mul_i32 s3, s3, {HHP}"); g(f"s_mul_i32 s6, {sW}, {NK}"); g("s_add_u32 s3, s3, s6"); g("s_lshl_b32 s3, s3, 10")
            g(f"s_add_u32 s{54+rt}, s3, {WS_HH}")
        FRG = []
        for i in range(NK*2):
            try: FRG.append(("a", A(4, 4)))
            except RuntimeError: FRG.append(("v", V(4, 4)))
        TT = V(48, 4)
        g.waitds()
        self.stamp()
        t2 = V(2)
        self.poll(self.vP3, t2)
        self.stamp()
        for ks in range(NK):
            if ks % 4 == 0 and ks:
                g("s_add_u32 s54, s54, 4096"); g("s_add_u32 s55, s55, 4096")
            for rt in range(2):
                k, r = FRG[ks*2+rt]
                g(f"buffer_load_dwordx4 {vr(r,4,k)}, v{vZ if ks >= 20 else self.vL16}, {SWS}, s{54+rt} offen offset:{(ks%4)*1024} sc1")
        g("s_barrier")
        for ks in range(NK):
            for rt in range(2):
                for ct in range(2):
                    a = 2*rt + ct; k, r = FRG[ks*2+rt]
                    c = vr(ACC[a],16) if (ks or a == 0) else "0"
                    g(f"v_mfma_f32_32x32x16_bf16 {vr(ACC[a],16)}, {ar(WD+(ks*2+ct)*4,4)}, {vr(r,4,k)}, {c}")
        self.stamp()
        self.reduce4(ACC, RED, TT)
        H = ACC[0]
        for j in range(8): g(f"v_cvt_pk_bf16_f32 v{self.vHP+j}, v{H+2*j}, v{H+2*j+1}")
        g(f"buffer_store_dwordx4 {vr(self.vHP,4)}, v{self.vRM}, {SOUT}, 0 offen")
        g(f"buffer_store_dwordx4 {vr(self.vHP+4,4)}, v{self.vRM}, {SOUT}, 0 offen offset:32")

    def finish(self):
        g, V = self.g, self.V
        if self.stamps:
            self.stamp()
            b = V(1)
            g(f"s_lshl_b32 s3, s2, 2"); g(f"s_add_u32 s3, s3, {sW}"); g("s_lshl_b32 s3, s3, 8"); g(f"s_add_u32 s3, s3, {WS_STAMP}")
            g(f"v_lshlrev_b32 v{b}, 2, v{self.vL}")
            g(f"buffer_store_dword v{self.vST}, v{b}, {SWS}, s3 offen")
        g("s_mov_b32 s52, 0")
        g.label("L_dg", keep=True)
        g("s_memrealtime s[72:73]"); g("s_add_u32 s52, s52, 1"); g("s_waitcnt lgkmcnt(0)"); g("s_sub_u32 s72, s72, s50")
        g("s_cmp_gt_u32 s52, 100000"); g("s_cbranch_scc1 L_end")
        g(f"s_cmp_lt_u32 s72, 5000"); g("s_cbranch_scc1 L_dg")
        g.label("L_end", keep=True)
        g("s_endpgm")
        for st in self.tail: g.add(st)
        g.raw("L_codeend:")
        body = g.finalize()
        hdr = open(f"cdna_kernels/{NAME}.s.ref").read().split("; Override launch geometry")[0]
        nv = 512
        s = hdr + "; @launch grid=(256,1,1) block=(256,1,1) lds=163840\n"
        s += '.amdgcn_target "amdgcn-amd-amdhsa--gfx950"\n.text\n'
        s += f".globl {NAME}_kernel\n.p2align 8\n.type {NAME}_kernel,@function\n{NAME}_kernel:\n"
        s += body
        s += "    s_endpgm\n"
        s += f'.section .rodata,"a"\n.p2align 6\n.amdhsa_kernel {NAME}_kernel\n'
        s += f"  .amdhsa_next_free_vgpr {nv}\n  .amdhsa_next_free_sgpr 102\n  .amdhsa_accum_offset 256\n"
        s += "  .amdhsa_group_segment_fixed_size 0\n  .amdhsa_kernarg_size 80\n  .amdhsa_user_sgpr_count 2\n"
        s += "  .amdhsa_user_sgpr_kernarg_segment_ptr 1\n  .amdhsa_system_sgpr_workgroup_id_x 1\n"
        s += "  .amdhsa_float_denorm_mode_32 3\n"
        s += ".end_amdhsa_kernel\n"
        return s

def build(stamps=False, upto="D", opt=None):
    k = K(stamps, upto, opt)
    k.prologue(); k.phaseA()
    if upto >= "B": k.phaseB()
    if upto >= "C": k.phaseC()
    if upto >= "D": k.phaseD()
    s = k.finish()
    return s, k

if __name__ == "__main__":
    import argparse
    ap = argparse.ArgumentParser()
    ap.add_argument("-o", default="k.s"); ap.add_argument("--stamps", action="store_true"); ap.add_argument("--upto", default="D")
    ap.add_argument("--opt", default="")
    a = ap.parse_args()
    opt = {kv.split("=")[0]: int(kv.split("=")[1]) for kv in a.opt.split(",") if kv}
    s, k = build(a.stamps, a.upto, opt)
    open(a.o, "w").write(s)
    print("ins", k.g.stats, "vgpr hi", k.V.hi, "agpr hi", k.A.hi, "nstamp", k.nstamp)
```

```python
import sys, struct
sys.path.insert(0, "gen")
from asmgen import *

NAME = "sequential_preLN__sliding_local_dilated__glu_gated_geglu__prompt"
K1 = 1024
WS_O, WS_H, WS_HH, WS_HST, WS_CS, WS_ST = 0x001000, 0x202000, 0x403000, 0xA04000, 0xA44000, 0xAC4000
WS_FF, WS_FW, WS_FS, WS_STAMP, WS_WC = 0xAD0000, 0xAE0000, 0xB00000, 0xC00000, 0xD00000
WS_SIZE = 0x1000000
HHP = 96
HHPAD = lambda pg: WS_HH + (-(-((pg << 21) - WS_HH) // (HHP*K1)))*HHP*K1 + 94*K1
WARM = [0, 0x201000, 0x402000, HHPAD(3), HHPAD(4), 0xA03000, 0xCF0000, 0xFF0000]
assert [x >> 21 for x in WARM] == list(range(8))
SX, SWQ, SWO, SWG, SWU, SWD, SOUT, SDBG, SWS = [f"s[{b}:{b+3}]" for b in range(8, 44, 4)]
sW, sRB, sCB, sR128, sCGX = "s44", "s45", "s46", "s47", "s68"
sNON = "s[70:71]"
POLL_LIMIT = 1 << 16
LOG2E = 1.4426950408889634
SLOT = 34*K1; SCR = 136*K1; TAB = 152*K1; CST = 152*K1; SYNC = 159*K1; NONL = SYNC + 1008
(K_WB, K_B2, K_B3, K_B4, K_C01, K_C23, K_P0, K_C45, K_U3, K_U5, K_D1, K_D2, K_D3, K_D4, K_DS, K_AE, K_TB, K_PZ, K_CS, K_T2, K_PP, K_IS) = range(22)
K_A = 22; K_F = 31; K_G1 = 35; K_G2 = 36; K_C23b = 37; K_C45b = 38; K_P0b = 39; K_C01b = 40
DPART = [(0, 3, 128*K1, 6*K1), (3, 8, 64*K1, 16*K1), (11, 8, 0, 16*K1), (19, 3, 128*K1, 6*K1)]
DK = [(0, i) for i in range(8)] + [(1, i) for i in range(7)] + [(2, i) for i in range(7)]
def f32(x): return "0x%08x" % struct.unpack("<I", struct.pack("<f", x))[0]

class K:
    def __init__(self, stamps=False, opt=None):
        self.g = Gen(); self.V = Alloc(0, 256); self.S = Alloc(74, 100)
        self.stamps = stamps; self.tail = []; self.opt = opt or {}; self.names = {"C": [], "S": [], "J": []}; self.role = "C"
        self.SC = "" if self.opt.get("loc", 0) else "sc1"
    def o(self, k, d): return self.opt.get(k, d)
    def stamp(self, name):
        if not self.stamps: return
        roles = "SJ" if self.role == "H" else self.role
        if self.role == "H":
            n = max(len(self.names["S"]), len(self.names["J"]))
            for r in "SJ": self.names[r] += ["-"] * (n - len(self.names[r]))
        i = len(self.names[roles[0]])
        for r in roles: self.names[r].append(name)
        self.g("s_memtime s[72:73]" if self.o("cyc", 0) else "s_memrealtime s[72:73]"); self.g("s_waitcnt lgkmcnt(0)"); self.g(f"v_writelane_b32 v{self.vST}, s72, {i}")
    def s(self): return f"s{self.S(1)}"
    def grp(self, *lines, tag=None):
        g = self.g; g.begin()
        for l in lines: g(l, tag)
        return g.end()

    def flag_fast(self, sid, off=0):
        if not self.o("fast", 1): return []
        return self.grp("s_mov_b64 exec, 1", f"buffer_store_dwordx2 {vr(self.vNON,2)}, v{self.vZero}, {SWS}, {sid} offen offset:{off}", "s_mov_b64 exec, -1")
    def flag_slow(self, sid, off=0):
        return self.grp(f"s_lshl_b32 s4, {sid}, 4", f"s_add_u32 s4, s4, {(WS_FS - WS_FF*16 + off*16) & 0xffffffff}", "s_mov_b64 exec, 0xffff",
                        f"buffer_store_dwordx2 {vr(self.vNON,2)}, v{self.vL8}, {SWS}, s4 offen sc1", "s_mov_b64 exec, -1")
    def slow_loop(self, Ls, Lb, vaddr, tmp, off, pre):
        g = self.g; L2 = g.newlabel("L_sl"); x = self.vX3
        g.begin()
        g.label(Ls, keep=True)
        for grp in pre: g.add(grp)
        g("s_mov_b32 s53, 0")
        g(f"v_lshlrev_b32 v{x+2}, 4, v{vaddr}"); g(f"v_add_u32 v{x+2}, {(WS_FS - WS_FF*16 + off*16) & 0xffffffff}, v{x+2}")
        g.label(L2, keep=True)
        g(f"buffer_load_dwordx2 {vr(tmp,2)}, v{vaddr}, {SWS}, 0 offen offset:{off} sc1")
        g(f"buffer_load_dwordx2 {vr(x,2)}, v{x+2}, {SWS}, 0 offen sc1")
        g("s_add_u32 s53, s53, 1"); g("s_waitcnt vmcnt(0)")
        g(f"s_cmp_gt_u32 s53, {POLL_LIMIT}"); g(f"s_cbranch_scc1 {Lb}")
        g(f"v_cmp_ne_u64 vcc, {sNON}, {vr(tmp,2)}"); g(f"v_cmp_ne_u64 s[6:7], {sNON}, {vr(x,2)}")
        g("s_and_b64 vcc, vcc, s[6:7]"); g(f"s_cbranch_vccnz {L2}")
        g.branch(f"s_branch {Lb}", keep=True)
        self.tail.append(g.end())
    def poll(self, vaddr, tmp, off=0, pre=()):
        g = self.g; L = g.newlabel("L_poll"); Lb = g.newlabel("L_go"); Ls = g.newlabel("L_slow")
        if not self.o("fast", 1):
            g.branch(f"s_cbranch_execnz {Ls}", keep=True); g("s_waitcnt vmcnt(0)")
        else:
            g("s_mov_b32 s52, 0")
            g.label(L, keep=True)
            g(f"buffer_load_dwordx2 {vr(tmp,2)}, v{vaddr}, {SWS}, 0 offen offset:{off} sc1")
            g("s_add_u32 s52, s52, 1"); g(f"s_cmp_gt_u32 s52, {self.o('nfast', 24)}"); g(f"s_cbranch_scc1 {Ls}")
            g("s_waitcnt vmcnt(0)")
            g(f"v_cmp_ne_u64 vcc, {sNON}, {vr(tmp,2)}"); g(f"s_cbranch_vccnz {L}")
        g.label(Lb, keep=True)
        self.slow_loop(Ls, Lb, vaddr, tmp, off, pre)
    def apoll_issue(self, vaddr, tmp, off=0):
        return self.grp(f"buffer_load_dwordx2 {vr(tmp,2)}, v{vaddr}, {SWS}, 0 offen offset:{off} sc1")
    def apoll_check(self, vaddr, tmp, off=0, pre=(), plain=False):
        g = self.g; Ls = g.newlabel("L_as"); Lb = g.newlabel("L_ab")
        g.begin(); g(f"v_cmp_ne_u64 vcc, {sNON}, {vr(tmp,2)}"); g(f"s_cbranch_vccnz {Ls}"); g.raw(Lb + ":"); main = g.end()
        g.begin(); g.label(Ls, keep=True)
        if plain:
            L2 = g.newlabel("L_al"); g("s_mov_b32 s53, 0"); g.label(L2, keep=True)
            g(f"buffer_load_dwordx2 {vr(tmp,2)}, v{vaddr}, {SWS}, 0 offen offset:{off} sc1")
            g("s_add_u32 s53, s53, 1"); g("s_waitcnt vmcnt(0)"); g(f"s_sleep {self.o('pw_slp', 1)}")
            g(f"s_cmp_gt_u32 s53, {POLL_LIMIT}"); g(f"s_cbranch_scc1 {Lb}")
            g(f"v_cmp_ne_u64 vcc, {sNON}, {vr(tmp,2)}"); g(f"s_cbranch_vccnz {L2}")
        else: self.poll(vaddr, tmp, off, pre)
        g.branch(f"s_branch {Lb}", keep=True)
        self.tail.append(g.end())
        return main
    def sig(self, k): return self.grp(f"ds_write_b32 v{self.vSig}, v{self.vSig} offset:{16*k}")
    def lchk_issue(self, k, tmp, own=False):
        return self.grp(f"ds_read_b32 v{tmp}, v{self.vOwn if own else self.vAll} offset:{16*k}")
    def lchk_check(self, k, tmp, own=False, neg=False, sleep=0):
        g = self.g; Ls = g.newlabel("L_ls"); Lb = g.newlabel("L_lb"); L2 = g.newlabel("L_ll"); cmp_ = "ne" if neg else "eq"
        g.begin(); g(f"v_cmp_{cmp_}_u32 vcc, 0, v{tmp}"); g(f"s_cbranch_vccnz {Ls}"); g.raw(Lb + ":"); main = g.end()
        g.begin()
        g.label(Ls, keep=True); g("s_mov_b32 s53, 0")
        g.label(L2, keep=True)
        g(f"ds_read_b32 v{tmp}, v{self.vOwn if own else self.vAll} offset:{16*k}")
        g("s_add_u32 s53, s53, 1")
        if sleep: g(f"s_sleep {sleep}")
        g("s_waitcnt lgkmcnt(0)")
        g(f"s_cmp_gt_u32 s53, {POLL_LIMIT*16}"); g(f"s_cbranch_scc1 {Lb}")
        g(f"v_cmp_{cmp_}_u32 vcc, 0, v{tmp}"); g(f"s_cbranch_vccnz {L2}")
        g.branch(f"s_branch {Lb}", keep=True)
        self.tail.append(g.end())
        return main
    def lwait(self, k, tmp, own=False, sleep=0, addr=None):
        g = self.g; L = g.newlabel("L_lw"); Lgo = g.newlabel("L_lg")
        g("s_mov_b32 s53, 0")
        g.label(L, keep=True)
        g(f"ds_read_b32 v{tmp}, v{addr if addr is not None else (self.vOwn if own else self.vAll)} offset:{16*k}")
        g("s_add_u32 s53, s53, 1"); g(f"s_cmp_gt_u32 s53, {POLL_LIMIT*16}"); g(f"s_cbranch_scc1 {Lgo}")
        if sleep: g(f"s_sleep {sleep}")
        g("s_waitcnt lgkmcnt(0)")
        g(f"v_cmp_eq_u32 vcc, 0, v{tmp}"); g(f"s_cbranch_vccnz {L}")
        g.label(Lgo, keep=True)
    def pause(self, on):
        return self.sig(K_PZ) if on else self.grp(f"ds_write_b32 v{self.vSig}, v{self.vZero} offset:{16*K_PZ}")
    def sync_consts(self, a):
        g, L = self.g, self.vL
        g(f"s_lshl_b32 s4, {sW}, 2"); g(f"s_add_u32 s4, s4, {SYNC}"); g(f"v_mov_b32 v{self.vOwn}, s4")
        g(f"v_mov_b32 v{a}, 0x40000"); g(f"v_cmp_eq_u32 vcc, 0, v{L}"); g(f"v_cndmask_b32 v{self.vSig}, v{a}, v{self.vOwn}, vcc")
        g(f"v_and_b32 v{a}, 3, v{L}"); g(f"v_lshlrev_b32 v{a}, 2, v{a}"); g(f"v_add_u32 v{self.vAll}, {SYNC}, v{a}")
    def get_nonce(self, a):
        return [self.grp(f"v_mov_b32 v{a}, {NONL}", f"ds_read_b64 {vr(self.vNON,2)}, v{a}"),
                self.grp(f"v_readfirstlane_b32 s70, v{self.vNON}", f"v_readfirstlane_b32 s71, v{self.vNON+1}")]
    def srd(self, base, ptr, size):
        g = self.g
        g(f"s_mov_b32 s{base}, s{ptr}"); g(f"s_and_b32 s{base+1}, s{ptr+1}, 0xffff"); g(f"s_mov_b32 s{base+2}, {size}"); g(f"s_mov_b32 s{base+3}, 0x20000")
    def pi8(self, acc, t):
        g, L = self.g, self.vL
        g(f"v_and_b32 v{t}, 1, v{L}"); g(f"v_lshl_add_u32 v{acc}, v{t}, 4, v{acc}")
        g(f"v_bfe_u32 v{t}, v{L}, 1, 1"); g(f"v_lshl_add_u32 v{acc}, v{t}, 3, v{acc}")
    def rbf(self, r):
        self.g(f"v_cvt_pk_bf16_f32 v{r}, v{r}, v{r}"); self.g(f"v_and_b32 v{r}, 0xffff0000, v{r}")
    def cmap(self):
        g = self.g
        if self.o("cmap", 0) == 0:
            g("s_and_b32 s4, s2, 7"); g("s_lshl_b32 s4, s4, 1"); g("s_lshr_b32 s6, s2, 7"); g(f"s_add_u32 {sR128}, s4, s6")
            g("s_lshr_b32 s4, s2, 3"); g(f"s_and_b32 {sCGX}, s4, 15")
            if self.o("cgmap", 1):
                perm = list(range(16)); perm[3], perm[14] = 14, 3; perm[11], perm[15] = 15, 11
                lo = sum(perm[i] << (4*i) for i in range(8)); hi = sum(perm[8+i] << (4*i) for i in range(8))
                g(f"s_mov_b32 s6, {lo:#x}"); g(f"s_mov_b32 s7, {hi:#x}"); g(f"s_lshl_b32 s4, {sCGX}, 2"); g("s_lshr_b64 s[6:7], s[6:7], s4"); g(f"s_and_b32 {sCGX}, s6, 15")
        else:
            g("s_and_b32 s4, s2, 6"); g("s_lshl_b32 s4, s4, 1"); g("s_lshr_b32 s6, s2, 6"); g(f"s_add_u32 {sR128}, s4, s6")
            g("s_lshr_b32 s4, s2, 3"); g("s_and_b32 s4, s4, 7"); g("s_and_b32 s6, s2, 1"); g("s_lshl_b32 s6, s6, 3"); g(f"s_add_u32 {sCGX}, s4, s6")
            perm = [0, 1, 2, 14, 3, 4, 5, 6, 7, 8, 9, 15, 10, 11, 12, 13]
            lo = sum(perm[i] << (4*i) for i in range(8)); hi = sum(perm[8+i] << (4*i) for i in range(8))
            g(f"s_mov_b32 s6, {lo:#x}"); g(f"s_mov_b32 s7, {hi:#x}"); g(f"s_lshl_b32 s4, {sCGX}, 2"); g("s_lshr_b64 s[6:7], s[6:7], s4"); g(f"s_and_b32 {sCGX}, s6, 15")

    def prologue(self):
        g, V = self.g, self.V
        g("s_cmp_ge_u32 s2, 256"); g("s_cbranch_scc1 L_end")
        g("s_load_dwordx16 s[48:63], s[0:1], 0"); g("s_load_dwordx4 s[64:67], s[0:1], 64"); g("s_memrealtime s[100:101]")
        assert V(1) == 0
        self.vL, self.vL16, self.vST, self.vNON, self.vSig, self.vOwn, self.vAll, self.vL8, self.vZero = V(1), V(1), V(1), V(2), V(1), V(1), V(1), V(1), V(1)
        self.NCOMMON = 11
        g(f"v_lshrrev_b32 v{self.vL16}, 6, v0"); g(f"v_and_b32 v{self.vL}, 63, v0"); g(f"v_readfirstlane_b32 s3, v{self.vL16}")
        g("s_and_b32 s4, s2, 7"); g("s_lshr_b32 s5, s2, 3")
        g("s_lshl_b32 s6, s4, 2"); g("s_lshr_b32 s7, s5, 3"); g(f"s_add_u32 {sRB}, s6, s7"); g(f"s_and_b32 {sCB}, s5, 7")
        g(f"s_and_b32 {sW}, s3, 3")
        if self.stamps: g(f"v_mov_b32 v{self.vST}, 0")
        g(f"v_lshlrev_b32 v{self.vL16}, 4, v{self.vL}")
        g("s_cmp_lt_u32 s3, 4"); g.branch("s_cbranch_scc1 L_compute", keep=True)
        g("s_cmp_ge_u32 s3, 6"); g.branch("s_cbranch_scc1 L_job", keep=True)

    def helper(self):
        g = self.g; V = Alloc(self.NCOMMON, 256); L = self.vL
        a, b, c, vXs, vWs = V(1), V(1), V(1), V(1), V(1)
        vKs, vCs, vCs2, vCw, vPW, vPC = V(1), V(1), V(1), V(1), V(1), V(1); vDw = [V(1) for _ in range(3)]; t2 = V(2)
        STG = V(208, 4); CA = V(16, 4); ON = V(4, 4)
        Qd = lambda i: STG + 4*i
        sBm, sBs, sCm, sD0, sD7, sDm, sUm, sCSr = "s82", "s83", "s84", "s85", "s86", "s87", "s88", "s89"
        def start_stamp():
            if self.stamps: g(f"v_writelane_b32 v{self.vST}, s100, 0"); self.names[self.role].append("start")
        def sym_setup():
            g.begin()
            self.srd(16, 52, 512*512*2); self.srd(28, 60, 1376*512*2); self.srd(40, 66, WS_SIZE)
            self.cmap()
            g(f"v_bfe_u32 v{a}, v{L}, 4, 1"); g(f"v_lshlrev_b32 v{a}, 2, v{a}")
            g(f"v_and_b32 v{b}, 7, v{L}"); g(f"v_xor_b32 v{a}, v{a}, v{b}"); g(f"v_lshlrev_b32 v{a}, 4, v{a}")
            g(f"v_lshrrev_b32 v{b}, 3, v{L}"); g(f"v_lshl_add_u32 v{a}, v{b}, 10, v{a}")
            g(f"s_lshl_b32 s4, {sCB}, 7"); g(f"v_add_u32 v{vKs}, s4, v{a}")
            g(f"s_lshl_b32 s6, {sW}, 14"); g(f"s_add_u32 {sBm}, s6, {64*K1}"); g(f"s_lshl_b32 {sBs}, {sW}, 17")
            g(f"s_lshl_b32 {sUm}, {sW}, 12")
            g(f"s_mul_i32 s4, {sCGX}, {6*32*K1}"); g(f"s_add_u32 s4, s4, {sUm}"); g(f"s_add_u32 {sCm}, s4, {WS_WC}")
            g(f"s_cmp_ge_u32 {sCGX}, 14"); g("s_cselect_b32 s4, 0x80000000, 0"); g(f"v_or_b32 v{vCs2}, s4, v{self.vL16}")
            g(f"s_cmp_eq_u32 {sCGX}, 15"); g("s_cselect_b32 s4, 0x80000000, 0"); g(f"s_cselect_b32 s6, 0, {sCGX}"); g(f"v_or_b32 v{vCs}, s4, v{self.vL16}")
            g("s_lshl_b32 s6, s6, 3"); g(f"s_add_u32 s6, s6, {sW}"); g("s_lshl_b32 s7, s6, 9"); g(f"s_add_u32 s7, s7, {WS_FW}")
            g(f"v_and_b32 v{a}, 3, v{L}"); g(f"v_bfe_u32 v{b}, v{L}, 2, 1"); g(f"v_lshl_add_u32 v{a}, v{b}, 4, v{a}"); g(f"v_lshl_add_u32 v{vPW}, v{a}, 7, s7")
            g(f"s_lshl_b32 s6, s6, 12"); g(f"s_add_u32 {sCSr}, s6, {WS_CS}"); g(f"v_mul_u32_u24 v{vPC}, 12, v{L}")
            for i in range(3):
                g(f"s_mul_i32 s4, {sW}, {DPART[i][3]}"); g(f"s_add_u32 s4, s4, {DPART[i][2]}"); g(f"v_add_u32 v{vDw[i]}, s4, v{self.vL16}")
                if i == 0: g(f"s_mov_b32 {sDm}, s4")
            g(f"s_lshr_b32 s4, {sW}, 1"); g("s_mul_i32 s4, s4, 6"); g(f"s_and_b32 s7, {sW}, 1"); g("s_add_u32 s4, s4, s7")
            g(f"s_lshl_b32 {sD0}, s4, 14"); g(f"s_lshl_b32 {sD7}, s7, 14")
            return g.end()
        events = {}
        def after(n, fn): events.setdefault(n, []).append(fn)
        PZ = self.o("pause", 1)
        def run(loads, pz_from=None, slow=0):
            pend = False; dep0 = self.o("h_dep", 9) if self.role == "H" else 0
            for n in range(len(loads) + 1):
                for fn in events.pop(n, []): fn(); pend = False
                if n == len(loads): break
                if PZ and pz_from is not None and n >= pz_from and (n - pz_from) % 2 == 0:
                    if not pend: g.add(self.lchk_issue(K_PZ, vXs))
                    g.add(self.lchk_check(K_PZ, vXs, neg=True, sleep=1))
                    g.add(loads[n]); g.add(self.lchk_issue(K_PZ, vXs)); pend = True
                else: g.add(loads[n])
                dep = self.o("tr_d", 3) if n < slow else dep0
                if dep: g(f"s_waitcnt vmcnt({dep-1})")
            for n in sorted(events):
                for fn in events.pop(n): fn()

        self.role = "S"
        if self.o("sprio", 0): g(f"s_setprio {self.o('sprio', 2)}")
        sXb, sX0, sXm, sWm, sEx, sRk, sKq, sWq = "s74", "s75", "s76", "s77", "s78", "s79", "s80", "s81"
        g(f"s_lshl_b32 s6, {sW}, 3")
        g(f"v_lshrrev_b32 v{a}, 3, v{L}"); g(f"v_add_u32 v{b}, s6, v{a}"); g(f"v_bfe_u32 v{c}, v{b}, 1, 3")
        g(f"v_and_b32 v{vXs}, 7, v{L}"); g(f"v_xor_b32 v{c}, v{c}, v{vXs}"); g(f"v_lshlrev_b32 v{vXs}, 10, v{b}"); g(f"v_lshl_add_u32 v{vXs}, v{c}, 4, v{vXs}")
        g(f"v_mul_u32_u24 v{a}, 3072, v{b}")
        g(f"v_bfe_u32 v{b}, v{L}, 4, 1"); g(f"s_lshl_b32 s6, {sW}, 1"); g(f"v_or_b32 v{b}, s6, v{b}")
        g(f"v_bfe_u32 v{c}, v{L}, 1, 2"); g(f"v_xor_b32 v{b}, v{b}, v{c}")
        g(f"v_and_b32 v{c}, 1, v{L}"); g(f"v_lshlrev_b32 v{c}, 4, v{c}"); g(f"v_lshl_add_u32 v{b}, v{b}, 5, v{c}")
        g(f"s_lshl_b32 s7, {sCB}, 7"); g(f"v_add3_u32 v{vWs}, v{a}, v{b}, s7")
        g(f"s_lshl_b32 {sXb}, {sRB}, 16"); g(f"s_sub_u32 {sX0}, {sXb}, 16384"); g(f"s_max_i32 {sX0}, {sX0}, 0")
        g(f"s_lshl_b32 {sXm}, {sW}, 10"); g(f"s_mul_i32 {sWm}, {sW}, 3072"); g(f"s_add_u32 {sWm}, {sWm}, {10*K1}")
        g(f"s_cmp_eq_u32 {sW}, 0"); g(f"s_cselect_b32 {sEx}, 0xffffff00, -1")
        RM = self.o("rotmask", 7)
        g(f"s_add_u32 s6, s4, {sCB}"); g(f"s_and_b32 {sRk}, s6, {RM}")
        if self.o("rot3", 0):
            g(f"s_lshl_b32 s7, {sRB}, 1"); g(f"s_cmp_eq_u32 {sCB}, 3"); g("s_cselect_b32 s7, s7, 0"); g(f"s_add_u32 {sRk}, {sRk}, s7")
        g("s_mov_b32 s10, %d" % (2048*512*2)); g("s_mov_b32 s11, 0x20000"); g("s_mov_b32 s14, %d" % (512*1536*2)); g("s_mov_b32 s15, 0x20000")
        g("s_waitcnt lgkmcnt(0)")
        g("s_mov_b32 s8, s48"); g("s_and_b32 s9, s49, 0xffff"); g("s_mov_b32 s12, s50"); g("s_and_b32 s13, s51, 0xffff")
        start_stamp(); self.stamp("ka")
        jobs = []; last = {}
        for P in range(8):
            sl = (P % 4) * SLOT
            for t in range(5):
                l = []
                if t == 0: l += [f"s_add_u32 {sKq}, {sRk}, {P}", f"s_and_b32 {sKq}, {sKq}, 7", f"s_mul_i32 {sWq}, {sKq}, {64*3072}", f"s_lshl_b32 {sKq}, {sKq}, 7"]
                l += [f"s_add_u32 m0, {sXm}, {sl + t*2048}"]
                if t == 0: l += [f"s_add_u32 s3, {sX0}, {sKq}", f"s_mov_b32 exec_lo, {sEx}"]
                elif t == 1: l += [f"s_add_u32 s3, {sXb}, {sKq}"]
                else: l += ["s_add_u32 s3, s3, 16384"]
                l += [f"buffer_load_dwordx4 v{vXs}, {SX}, s3 offen lds"]
                if t == 0: l += ["s_mov_b32 exec_lo, -1"]
                jobs.append(self.grp(*l, tag=f"x{P}"))
            for h in range(2):
                for bb in range(2):
                    for p in range(3):
                        l = [f"s_add_u32 m0, {sWm}, {sl + h*12288 + bb*6144}", f"s_add_u32 s3, {sWq}, {(h*32 + bb*16)*3072}"] if p == 0 else []
                        l += [f"buffer_load_dwordx4 v{vWs}, {SWQ}, s3 offen offset:{p*K1} lds"]
                        jobs.append(self.grp(*l, tag=f"w{2*P+h}"))
                last[2*P + h] = len(jobs)
        HF1 = self.o("h_first", 17); SL = self.o("h_sl", 16)
        def first():
            self.sync_consts(a); g("s_barrier")
            for k in (K_TB, K_PP): g.add(self.sig(k))
        after(HF1, first)
        chunks = []; cur = []
        for it in sym_setup():
            if len(cur) >= 6 and not it.op.startswith("s_cselect") and not cur[-1].op.startswith("s_cmp"): chunks.append(cur); cur = []
            cur.append(it)
        chunks.append(cur)
        for i, ch in enumerate(chunks): after(36 + i, (lambda ch=ch: g.add(ch)))
        assert 36 + len(chunks) < 4*17 - 3
        def stage_fn(k, s1):
            def fn():
                g.waitvm(f"w{s1}"); g.add(self.sig(K_A + k))
                if self.o("ast", 0) or k == 8: self.stamp(f"A{k}")
            return fn
        for k, s1 in enumerate([0, 1, 3, 5, 7, 9, 11, 13, 15]):
            lim = ((last[s1] + 16) // 17) * 17
            n = last[s1] + SL
            if s1 >= 7: n = last[s1] if self.o("h_blk", 0) else n
            after(max(n, HF1), stage_fn(k, s1))
        for P in range(4, 8):
            after(17*P - 3, (lambda P=P: g.add(self.lchk_issue(K_F + P - 4, c))))
            after(17*P, (lambda P=P: g.add(self.lchk_check(K_F + P - 4, c, sleep=1))))
        WBR = self.o("wb_reg", 0)
        after(len(jobs), lambda: self.stamp("Ais"))
        if WBR:
            jobs += [self.grp(f"s_add_u32 s3, {sBs}, {(i//16)*256*K1 + (i%16)*8192}", f"buffer_load_dwordx4 {vr(Qd(i),4)}, v{vKs}, {SWO}, s3 offen") for i in range(32)]
        after(len(jobs) - self.o("is_early", 0), lambda: g.add(self.sig(K_IS)))
        run(jobs)
        g(f"v_add_u32 v{a}, {sBm}, v{self.vL16}")
        self.lwait(K_AE, c, sleep=1); self.stamp("AE")
        if WBR:
            for i in range(32):
                g(f"ds_write_b128 v{a}, {vr(Qd(i),4)} offset:{(i//16)*32*K1 + (i%16)*K1}")
                if i == 15: g.add(self.sig(K_WB))
        else:
            for i in range(32):
                g(f"s_add_u32 m0, {sBm}, {(i//16)*32*K1 + (i%16)*K1}"); g(f"s_add_u32 s3, {sBs}, {(i//16)*256*K1 + (i%16)*8192}")
                g(f"buffer_load_dwordx4 v{vKs}, {SWO}, s3 offen lds", tag="wb")
            g.waitvm("wb"); g.add(self.sig(K_WB))
        g(f"ds_write_b32 v{self.vSig}, v{self.vSig} offset:{16*K_WB + 8}")
        self.lwait(K_TB, c)
        for grp in self.get_nonce(a): g.add(grp)
        self.stamp("WB")
        g.label("L_sym")
        g(f"s_setprio {self.o('hprio', 0)}")

        g.begin(); self.role = "J"
        g.label("L_job", keep=True)
        PV = [Qd(12), Qd(12) + 1, Qd(12) + 2]; vTc = Qd(12) + 3; vPr, vPs, vP12, vF8 = Qd(13), Qd(13) + 1, Qd(13) + 2, Qd(13) + 3
        vTb, vT3 = Qd(14) + 2, Qd(14) + 3
        g(f"s_and_b32 s90, {sW}, 1")
        g("s_lshl_b32 s4, s2, 1"); g("s_add_u32 s98, s4, s90"); g("s_cmp_lt_u32 s98, 480"); g("s_cselect_b32 s91, 0, 0x80000000")
        g("s_mul_i32 s7, s98, 4370"); g("s_lshr_b32 s7, s7, 16"); g("s_mul_i32 s6, s7, 15"); g("s_sub_u32 s6, s98, s6"); g("s_and_b32 s7, s7, 31")
        g("s_lshl_b32 s92, s6, 5"); g("s_add_u32 s92, s92, s7")
        g(f"s_mul_i32 s94, s6, {6*32*K1}"); g("s_lshl_b32 s4, s7, 10"); g("s_add_u32 s94, s94, s4"); g(f"s_add_u32 s94, s94, {WS_WC}")
        g("s_mul_i32 s6, s6, 192"); g(f"s_mul_i32 s7, s7, {16*2752}"); g("s_add_u32 s6, s6, s7"); g("s_or_b32 s6, s6, s91")
        for i in range(3):
            g(f"v_add_u32 v{a}, {64*i}, v{L}"); g(f"v_mul_u32_u24 v{b}, 5462, v{a}"); g(f"v_lshrrev_b32 v{b}, 16, v{b}")
            g(f"v_mul_u32_u24 v{b}, {2752 - 192}, v{b}"); g(f"v_lshl_add_u32 v{b}, v{a}, 4, v{b}"); g(f"v_add_u32 v{PV[i]}, s6, v{b}")
        g(f"s_mul_i32 s95, s90, {6*K1 + 64}"); g(f"s_add_u32 s95, s95, {SCR}")
        g("s_lshl_b32 s6, s5, 1"); g("s_add_u32 s99, s6, s90"); g(f"v_mov_b32 v{b}, 0x80000000")
        g("s_mul_i32 s6, s99, 24"); g(f"v_add_u32 v{a}, s6, v{L}"); g(f"v_lshlrev_b32 v{a}, 10, v{a}"); g(f"v_cmp_gt_u32 vcc, 24, v{L}"); g(f"v_cndmask_b32 v{vT3}, v{b}, v{a}, vcc")
        g("s_mul_i32 s6, s98, 22"); g(f"v_add_u32 v{a}, s6, v{L}"); g(f"v_lshlrev_b32 v{a}, 7, v{a}"); g(f"v_cmp_gt_u32 vcc, 22, v{L}"); g(f"v_cndmask_b32 v{vTc}, v{b}, v{a}, vcc")
        g("s_lshl_b32 s6, s98, 3"); g(f"v_add_u32 v{a}, s6, v{L}"); g(f"v_lshlrev_b32 v{a}, 7, v{a}"); g(f"v_cmp_gt_u32 vcc, 8, v{L}"); g(f"v_cndmask_b32 v{vTb}, v{b}, v{a}, vcc")
        if self.o("t3b", 1):
            g("s_lshl_b32 s6, s99, 3"); g("s_sub_u32 s6, s6, 8"); g(f"v_add_u32 v{a}, s6, v{L}"); g(f"v_lshlrev_b32 v{a}, 10, v{a}"); g(f"v_add_u32 v{a}, 384, v{a}")
            g("s_mov_b32 s6, 0xff00"); g("s_mov_b32 s7, 0"); g(f"v_cndmask_b32 v{vTb}, v{vTb}, v{a}, s[6:7]")
        g("s_waitcnt lgkmcnt(0)")
        start_stamp()
        self.srd(12, 50, 512*1536*2); self.srd(20, 56, 512*1376*2); self.srd(24, 58, 512*1376*2); self.srd(16, 52, 512*512*2); self.srd(28, 60, 1376*512*2)
        if self.o("t3", 1): g(f"buffer_load_dword v{vT3}, v{vT3}, {SWQ}, 0 offen offset:384")
        WOT = self.o("wo_t", 1)
        if WOT == 1: g(f"buffer_load_dword v{Qd(14)}, v{vTb}, {SWO}, 0 offen")
        if self.o("wd_t", 0): g(f"buffer_load_dword v{Qd(14)+1}, v{vTc}, {SWD}, 0 offen")
        def batch_loads():
            for m in range(2):
                for i in range(3):
                    g(f"s_add_u32 m0, s95, {m*(3*K1 + 32) + i*K1}"); g("s_nop 0")
                    g(f"buffer_load_dwordx4 v{PV[i]}, {(SWG, SWU)[m]}, 0 offen lds", tag="pl")
            if not self.o("wd_t", 0): g(f"buffer_load_dword v{Qd(14)+1}, v{vTc}, {SWD}, 0 offen")
        EARLY = self.o("early", 0)
        self.sync_consts(a)
        g("s_barrier")
        for k in list(range(K_A, K_A + 9)) + [K_IS]: g.add(self.sig(k))
        if EARLY:
            g(f"buffer_load_dword v{Qd(14)}, v{vTb}, {SWO}, 0 offen"); batch_loads(); self.stamp("go")
        g(f"v_mov_b32 v{self.vZero}, 0"); g(f"v_lshlrev_b32 v{self.vL8}, 3, v{L}")
        g.add(sym_setup())
        self.srd(8, 48, 2048*512*2); self.srd(36, 64, 256)
        g("s_lshl_b32 s93, s92, 10"); g(f"s_add_u32 s93, s93, {WS_CS}"); g("s_lshl_b32 s92, s92, 7"); g(f"s_add_u32 s92, s92, {WS_FW}")
        g(f"v_bfe_u32 v{b}, v{L}, 4, 1"); g(f"v_mul_u32_u24 v{a}, {3*K1 + 32}, v{b}")
        g(f"v_lshrrev_b32 v{b}, 5, v{L}"); g(f"v_mul_u32_u24 v{b}, {8*192}, v{b}"); g(f"v_add_u32 v{a}, v{a}, v{b}")
        g(f"v_bfe_u32 v{b}, v{L}, 2, 2"); g(f"v_mul_u32_u24 v{b}, 192, v{b}"); g(f"v_add_u32 v{a}, v{a}, v{b}")
        self.pi8(a, b); g(f"v_add_u32 v{vPr}, s95, v{a}")
        g(f"v_or_b32 v{vPs}, s91, v{self.vL16}"); g(f"v_or_b32 v{vF8}, s91, v{self.vL8}"); g(f"v_or_b32 v{vP12}, s91, v{vPC}")
        for i in range(4): g(f"v_mov_b32 v{ON+i}, 0x3f803f80")
        g(f"s_lshr_b32 s4, s2, {self.o('b_sh', 6)}"); g(f"s_and_b32 s4, s4, {self.o('b_n', 4) - 1}"); g("s_lshl_b32 s4, s4, 4"); g(f"v_add_u32 v{vWs}, s4, v{self.vAll}")
        g(f"s_lshl_b32 s96, {sRB}, 6"); g(f"s_lshl_b32 s4, {sCB}, 3"); g("s_add_u32 s96, s96, s4"); g("s_lshl_b32 s4, s90, 2"); g("s_add_u32 s96, s96, s4")
        self.stamp("set")
        if self.o("s_at", 0) >= 0: self.lwait(K_A + self.o("s_at", 0), c, sleep=2)
        g("s_lshl_b32 s4, s96, 10")
        for r in range(4): g(f"buffer_load_dwordx4 {vr(Qd(16+r),4)}, v{self.vL16}, {SX}, s4 offen offset:{r*K1}")
        g(f"buffer_load_dwordx2 {vr(self.vNON,2)}, v{self.vZero}, {SDBG}, 0 offen sc1")
        if not EARLY and WOT == 0: g(f"buffer_load_dword v{Qd(14)}, v{vTb}, {SWO}, 0 offen")
        if self.o("jprio", 0): g(f"s_setprio {self.o('jprio', 0)}")
        SQ = Qd(20); U = Qd(24)
        for r in range(4):
            for j in range(4):
                g(f"v_lshlrev_b32 v{U+2*j}, 16, v{Qd(16+r)+j}"); g(f"v_and_b32 v{U+2*j+1}, 0xffff0000, v{Qd(16+r)+j}")
            g(f"v_add_f32 v{SQ+r}, v{U}, v{U+1}"); g(f"v_mul_f32 v{SQ+4+r}, v{U}, v{U}"); g(f"v_fmac_f32 v{SQ+4+r}, v{U+1}, v{U+1}")
            for j in range(2, 8):
                g(f"v_add_f32 v{SQ+r}, v{SQ+r}, v{U+j}"); g(f"v_fmac_f32 v{SQ+4+r}, v{U+j}, v{U+j}")
        for sh in (8, 4, 2, 1):
            for i in range(8): g(f"v_add_f32_dpp v{SQ+i}, v{SQ+i}, v{SQ+i} row_ror:{sh} row_mask:0xf bank_mask:0xf")
        for sw in ("v_permlane16_swap_b32", "v_permlane32_swap_b32"):
            for i in range(8): g(f"v_mov_b32 v{U+i}, v{SQ+i}")
            for i in range(8): g(f"{sw} v{SQ+i}, v{U+i}")
            for i in range(8): g(f"v_add_f32 v{SQ+i}, v{SQ+i}, v{U+i}")
        for r in range(1, 4):
            g(f"v_cmp_eq_u32 vcc, {r}, v{L}"); g(f"v_cndmask_b32 v{SQ}, v{SQ}, v{SQ+r}, vcc"); g(f"v_cndmask_b32 v{SQ+4}, v{SQ+4}, v{SQ+4+r}, vcc")
        G = Qd(26)
        g(f"v_mul_f32 v{G}, {f32(1/512)}, v{SQ}"); g(f"v_mul_f32 v{SQ+4}, {f32(1/512)}, v{SQ+4}"); g(f"v_fma_f32 v{SQ+4}, -v{G}, v{G}, v{SQ+4}")
        g(f"v_max_f32 v{SQ+4}, 0, v{SQ+4}")
        self.rbf(G); self.rbf(SQ+4); g(f"v_add_f32 v{SQ+4}, {f32(1e-5)}, v{SQ+4}"); self.rbf(SQ+4)
        g(f"v_sqrt_f32 v{SQ+4}, v{SQ+4}"); self.rbf(SQ+4); g(f"v_rcp_f32 v{G+1}, v{SQ+4}")
        g("s_mov_b32 s52, 0")
        g.label("L_jn", keep=True)
        g(f"v_readfirstlane_b32 s70, v{self.vNON}"); g(f"v_readfirstlane_b32 s71, v{self.vNON+1}")
        g("s_cmp_lg_u32 s70, 0"); g.branch("s_cbranch_scc1 L_jn2", keep=True)
        g(f"buffer_load_dwordx2 {vr(self.vNON,2)}, v{self.vZero}, {SDBG}, 0 offen sc1")
        g("s_add_u32 s52, s52, 1"); g("s_waitcnt vmcnt(0)"); g(f"s_cmp_lt_u32 s52, {POLL_LIMIT}"); g.branch("s_cbranch_scc1 L_jn", keep=True)
        g.label("L_jn2", keep=True)
        g(f"v_mov_b32 v{G+2}, s70"); g(f"v_mov_b32 v{G+3}, s71")
        g("s_lshl_b32 s4, s96, 4"); g(f"s_add_u32 s4, s4, {WS_ST}"); g("s_mov_b64 exec, 15")
        g(f"buffer_store_dwordx4 {vr(G,4)}, v{self.vL16}, {SWS}, s4 offen sc1"); g("s_mov_b64 exec, -1")
        if self.o("jprio", 0): g("s_setprio 0")
        self.stamp("st")
        g("s_lshl_b32 s4, s90, 6"); g(f"v_add_u32 v{a}, s4, v{L}"); g(f"v_min_u32 v{a}, 79, v{a}")
        g(f"s_lshl_b32 s4, {sRB}, 6"); g("s_sub_u32 s4, s4, 16"); g(f"v_add_u32 v{b}, s4, v{a}"); g(f"v_max_i32 v{b}, 0, v{b}")
        g(f"v_lshlrev_b32 v{b}, 4, v{b}"); g(f"v_add_u32 v{b}, {WS_ST}, v{b}")
        g(f"v_lshlrev_b32 v{a}, 2, v{a}"); g(f"v_add_u32 v{a}, {TAB}, v{a}")
        def batch():
            if EARLY: return
            if self.o("b_is", 1): self.lwait(K_IS, c, sleep=1)
            else: self.lwait(K_A + self.o("b_0", 5), c, sleep=2, addr=vWs)
            self.stamp("go"); batch_loads()
        def gather():
            self.lwait(K_A + self.o("g_at", 5), c, sleep=2)
            g("s_mov_b32 s52, 0")
            g.label("L_jg", keep=True)
            g(f"buffer_load_dwordx4 {vr(G,4)}, v{b}, {SWS}, 0 offen sc1")
            g("s_add_u32 s52, s52, 1"); g(f"s_cmp_gt_u32 s52, {POLL_LIMIT}"); g("s_cbranch_scc1 L_jg2")
            g("s_waitcnt vmcnt(0)")
            g(f"v_cmp_ne_u64 vcc, {sNON}, {vr(G+2,2)}"); g("s_cbranch_vccz L_jg2")
            g("s_sleep 4"); g.branch("s_branch L_jg", keep=True)
            g.label("L_jg2", keep=True)
            g(f"ds_write_b32 v{a}, v{G}"); g(f"ds_write_b32 v{a}, v{G+1} offset:512")
            g(f"v_mov_b32 v{a}, {NONL}"); g(f"ds_write_b64 v{a}, {vr(self.vNON,2)}")
            g.add(self.sig(K_TB))
            self.stamp("TB")
        def patch():
            g("s_waitcnt vmcnt(0)")
            self.stamp("pl")
            if self.o("jprio2", 0): g(f"s_setprio {self.o('jprio2', 0)}")
            for u in range(6):
                for j2 in range(2): g(f"ds_read_b64_tr_b16 {vr(Qd(6+u)+2*j2,2)}, v{vPr} offset:{u*32 + j2*768}")
            g.add(self.sig(K_PP))
            for u in range(6):
                g(f"s_add_u32 s4, s94, {u*32*K1}"); g(f"buffer_store_dwordx4 {vr(Qd(6+u),4)}, v{vPs}, {SWS}, s4 offen sc1")
            g("s_mov_b32 s6, 0"); g("s_mov_b32 s7, -1")
            A6 = [CA, Qd(0), Qd(16), Qd(20), Qd(28), Qd(32)]
            for u in range(6): g(f"v_mfma_f32_32x32x16_bf16 {vr(A6[u],16)}, {vr(ON,4)}, {vr(Qd(6+u),4)}, 0")
            for i in range(3): g(f"v_cndmask_b32 v{Qd(15)+i}, v{A6[2*i]}, v{A6[2*i+1]}, s[6:7]")
            g(f"buffer_store_dwordx3 {vr(Qd(15),3)}, v{vP12}, {SWS}, s93 offen sc1")
            g("s_waitcnt vmcnt(0)")
            g("s_mov_b64 exec, 0xffff"); g(f"buffer_store_dwordx2 {vr(self.vNON,2)}, v{vF8}, {SWS}, s92 offen sc1"); g("s_mov_b64 exec, -1")
            self.stamp("PF")
        if EARLY:
            if self.o("p_at", -1) >= 0: self.lwait(K_A + self.o("p_at", -1), c, sleep=2)
            patch(); gather()
        elif self.o("b_first", 0) == 2: batch(); gather(); patch()
        elif self.o("b_first", 0): batch(); patch(); gather()
        else: gather(); batch(); patch()
        self.lwait(K_AE, c, sleep=2)
        g.branch("s_branch L_sym")
        jobcode = g.end()

        self.role = "H"
        self.stamp("sym")
        KO = (list(range(16, 32)) + list(range(16))) if self.o("c_ko", 1) else list(range(32))
        def pjob(p):
            out = []
            for half in range(2):
                for e in range(2):
                    u = 2*p + e; base = KO[16*half]*K1; v = vCs if u < 2 else vCs2
                    for j in range(4):
                        l = [f"s_add_u32 m0, {sUm}, {(p%2)*65536 + e*32768 + base}", f"s_add_u32 s3, {sCm}, {u*32*K1 + base}"] if j == 0 else []
                        l.append(f"buffer_load_dwordx4 v{v}, {SWS}, s3 offen offset:{j*K1} sc1 lds")
                        out.append(self.grp(*l, tag=f"wu{p}{half}"))
            return out
        qD = {n: Qd(2*(n - 11)) for n in range(11, 22)}
        def djob(n):
            j, i = DK[n]; sb = sD7 if (j, i) == (0, 7) else sD0; off = (12*i + 2*j)*16384
            if n < 11:
                m = (sDm, n*2048) if n < 3 else (sBm, (n-3)*2048)
                return [self.grp(f"s_add_u32 m0, {m[0]}, {m[1] + h*K1}", f"s_add_u32 s3, {sb}, {off + h*8192}", f"buffer_load_dwordx4 v{vKs}, {SWD}, s3 offen lds", tag="wd0" if n < 3 else "wd1") for h in range(2)]
            return [self.grp(f"s_add_u32 s3, {sb}, {off + h*8192}", f"buffer_load_dwordx4 {vr(qD[n]+4*h,4)}, v{vKs}, {SWD}, s3 offen") for h in range(2)]
        def dwrite(part, sk):
            f, n, _, _ = DPART[part]
            for i in range(n):
                for h in range(2): g(f"ds_write_b128 v{vDw[part % 3]}, {vr(qD[f+i]+4*h,4)} offset:{i*2048 + h*K1}")
            g.add(self.sig(sk))
        def cs_sum():
            for st in (4, 2, 1):
                for j in range(st):
                    for i in range(3): g(f"v_add_f32 v{Qd(44+j)+i}, v{Qd(44+j)+i}, v{Qd(44+j+st)+i}")
            g(f"s_lshr_b32 s4, {sW}, 1"); g("s_lshl_b32 s4, s4, 9"); g(f"s_and_b32 s6, {sW}, 1"); g("s_lshl_b32 s6, s6, 3"); g("s_add_u32 s4, s4, s6"); g(f"s_add_u32 s4, s4, {CST}")
            g(f"v_and_b32 v{b}, 31, v{L}"); g(f"v_lshl_add_u32 v{a}, v{b}, 4, s4"); g(f"v_lshrrev_b32 v{b}, 5, v{L}"); g(f"v_lshl_add_u32 v{a}, v{b}, 10, v{a}")
            self.lwait(K_T2, c, sleep=1)
            for i in range(3):
                x = Qd(44) + i; o = CA + 2*i
                g(f"v_cvt_pk_bf16_f32 v{o+1}, v{x}, 0"); g(f"v_lshlrev_b32 v{b}, 16, v{o+1}"); g(f"v_sub_f32 v{b}, v{x}, v{b}"); g(f"v_cvt_pk_bf16_f32 v{o}, v{x}, v{b}")
                g(f"ds_write_b64 v{a}, {vr(o,2)} offset:{2*i*K1}")
            g.add(self.sig(K_CS))
        LA = self.o("h_la", 8)
        gap = [x for n in range(11, 22) for x in djob(n)] + [x for n in range(3) for x in djob(n)]
        def take(n):
            nonlocal gap
            t = gap[:n]; gap = gap[n:]; return t
        self.lwait(K_PP, c)
        def trickle(n):
            d = self.o("tr_d", 3)
            for grp in take(n): g.add(grp); g(f"s_waitcnt vmcnt({d-1})")
        trickle(self.o("h_g0", 12))
        def pw(): g.add(self.apoll_issue(vPW, t2)); g.add(self.apoll_check(vPW, t2, plain=True)); self.stamp("PW")
        PF_ = self.o("pw_first", 2)
        if PF_ == 2: g.add(self.apoll_issue(vPW, t2))
        US = self.o("u_slow", 0)
        if self.o("g1", 1) and not US: self.lwait(K_G1, c, sleep=1)
        self.stamp("G1")
        if US: after(US, lambda: self.lwait(K_G1, c, sleep=1))
        if PF_ == 2: g.add(self.apoll_check(vPW, t2, plain=True)); self.stamp("PW")
        else: pw()
        p0 = pjob(0); p1 = pjob(1); p2 = pjob(2)
        csl = [self.grp(f"s_add_u32 s3, {sCSr}, {(j//4)*16*K1}", f"buffer_load_dwordx3 {vr(Qd(44+j),3)}, v{vPC}, {SWS}, s3 offen offset:{(j%4)*K1} sc1") for j in range(8)]
        CL = self.o("cs_late", 1); MB = self.o("mid", 2)
        if MB == 3:
            after(16, lambda: (g.waitvm("wu00"), g.add(self.sig(K_C01)), self.stamp("C01"), self.lwait(K_B4, c, sleep=1)))
            after(24, lambda: (g.waitvm("wu01"), g.add(self.sig(K_C01b))))
            run(p0 + p1[:8] + ([] if CL else csl), slow=US)
            g.waitvm("wu10"); g.add(self.sig(K_C23)); late = []
        else:
            run(p0[:8]); g.waitvm("wu00"); g.add(self.sig(K_C01)); self.stamp("C01"); self.lwait(K_B4, c, sleep=1)
            if MB == 2: run(p1[:8]); g.waitvm("wu10"); g.add(self.sig(K_C23)); late = p0[8:]
            else: late = p1[:8] + p0[8:]
        if not CL: cs_sum()
        if self.o("g2", 1): self.lwait(K_G2, c, sleep=1)
        self.stamp("G2")
        if MB == 1: after(8 + 4, lambda: (g.waitvm("wu10"), g.add(self.sig(K_C23))))
        if MB < 3: after(len(late) + 6, lambda: (g.waitvm("wu01"), g.add(self.sig(K_C01b))))
        if CL: late = late + csl; after(len(late) + 8, cs_sum)
        after(len(late) + 8 + LA, lambda: (g.waitvm("wu11"), g.add(self.sig(K_C23b)), self.stamp("C23")))
        run(late + p1[8:] + take(self.o("h_g2", 4)))
        self.lwait(K_P0, c, sleep=1)
        self.stamp("P0")
        after(8 + LA, lambda: (g.waitvm("wu20"), g.add(self.sig(K_C45))))
        run(p2[:8] + take(self.o("h_g3", 6)))
        self.lwait(K_P0b, c, sleep=1)
        after(8 + LA, lambda: (g.waitvm("wu21"), g.add(self.sig(K_C45b)), self.stamp("C45")))
        run(p2[8:] + take(99))
        g.waitvm("wd0"); g.add(self.sig(K_D1))
        self.stamp("n3")
        self.lwait(K_U3, c, sleep=1)
        run([x for n in range(3, 11) for x in djob(n)])
        g.waitvm("wd1"); g.add(self.sig(K_D2))
        self.stamp("D2")
        self.lwait(K_U5, c, sleep=1); dwrite(2, K_D3)
        self.lwait(K_DS, c, own=True, sleep=1); dwrite(3, K_D4)
        self.stamp("D4")
        if self.stamps:
            g(f"s_lshl_b32 s3, s2, 2"); g(f"s_add_u32 s3, s3, {sW}"); g("s_lshl_b32 s3, s3, 8"); g(f"s_add_u32 s3, s3, {WS_STAMP + 0x40000}")
            g(f"v_lshlrev_b32 v{a}, 2, v{L}"); g(f"buffer_store_dword v{self.vST}, v{a}, {SWS}, s3 offen")
        g("s_endpgm")
        g.add(jobcode)
        self.role = "C"

    def consts(self, a, b):
        g, V, L = self.g, self.V, self.vL
        self.sO0, self.sO1, self.sF1 = self.s(), self.s(), self.s()
        g(f"s_lshl_b32 s4, {sCB}, 2"); g(f"s_add_u32 s4, s4, {sW}")
        g(f"s_lshl_b32 s6, {sRB}, 6"); g("s_add_u32 s6, s6, s4"); g("s_lshl_b32 s6, s6, 10"); g(f"s_add_u32 {self.sO0}, s6, {WS_O}"); g(f"s_add_u32 {self.sO1}, {self.sO0}, {32*K1}")
        g(f"s_lshl_b32 s6, {sRB}, 5"); g("s_add_u32 s6, s6, s4"); g("s_lshl_b32 s6, s6, 3"); g(f"s_add_u32 {self.sF1}, s6, {WS_FF}")
        self.sOF = [[self.s(), self.s()], [self.s(), self.s()]]; self.sHF = [self.s(), self.s()]
        g(f"s_lshr_b32 s4, {sW}, 1"); g("s_mul_i32 s4, s4, 6"); g(f"s_and_b32 s7, {sW}, 1"); g("s_add_u32 s5, s4, s7")
        for rt in range(2):
            g(f"s_lshr_b32 s4, {sW}, 1"); g(f"s_xor_b32 s4, s4, {rt}"); g(f"s_lshl_b32 s6, {sRB}, 1"); g("s_add_u32 s4, s4, s6")
            g("s_lshl_b32 s6, s4, 5"); g(f"s_lshl_b32 s7, {sW}, 3"); g("s_add_u32 s6, s6, s7"); g("s_lshl_b32 s6, s6, 10"); g(f"s_add_u32 {self.sOF[rt][0]}, s6, {WS_O}")
            g(f"s_add_u32 {self.sOF[rt][1]}, {self.sOF[rt][0]}, 4096")
            g(f"s_mul_i32 s6, s4, {HHP}"); g(f"s_add_u32 s6, s6, {WS_HH//K1}"); g("s_add_u32 s7, s6, s5"); g(f"s_lshl_b32 {self.sHF[rt]}, s7, 10")
        self.sHs, self.sHt, self.sF2 = self.s(), self.s(), self.s()
        g(f"s_lshl_b32 s4, {sRB}, 1"); g(f"s_lshr_b32 s6, {sW}, 1"); g("s_add_u32 s4, s4, s6")
        g(f"s_lshl_b32 s6, {sCB}, 1"); g(f"s_and_b32 s7, {sW}, 1"); g("s_add_u32 s6, s6, s7")
        self.vRM = V(1)
        g(f"v_and_b32 v{a}, 31, v{L}"); g(f"v_lshlrev_b32 v{a}, 10, v{a}"); g(f"v_lshrrev_b32 v{b}, 5, v{L}"); g(f"v_lshl_add_u32 v{a}, v{b}, 4, v{a}")
        g("s_lshl_b32 s7, s4, 15"); g(f"v_add_u32 v{a}, s7, v{a}"); g("s_lshl_b32 s7, s6, 6"); g(f"v_add_u32 v{self.vRM}, s7, v{a}")
        g("s_lshl_b32 s4, s4, 4"); g("s_add_u32 s4, s4, s6")
        g("s_lshl_b32 s6, s4, 11"); g(f"s_add_u32 {self.sHs}, s6, {WS_H}")
        g("s_lshl_b32 s6, s4, 8"); g(f"s_add_u32 {self.sHt}, s6, {WS_HST}")
        g("s_lshl_b32 s6, s4, 3"); g(f"s_add_u32 {self.sF2}, s6, {WS_FF + 1024*8}")
        self.vKr = V(1)
        g(f"v_lshrrev_b32 v{a}, 5, v{L}"); g(f"v_lshlrev_b32 v{a}, 10, v{a}")
        g(f"v_bfe_u32 v{b}, v{L}, 2, 2"); g(f"v_lshl_add_u32 v{a}, v{b}, 7, v{a}")
        g(f"v_bfe_u32 v{b}, v{L}, 3, 1"); g(f"s_and_b32 s4, {sW}, 1"); g(f"v_xor_b32 v{b}, s4, v{b}"); g(f"v_lshl_add_u32 v{a}, v{b}, 6, v{a}")
        g(f"v_bfe_u32 v{b}, v{L}, 4, 1"); g(f"v_lshl_add_u32 v{a}, v{b}, 5, v{a}")
        self.pi8(a, b); g(f"v_mov_b32 v{self.vKr}, v{a}")
        self.sCh, self.sCt, self.sCo, self.sF3 = self.s(), self.s(), self.s(), self.s()
        g(f"s_lshl_b32 s4, {sR128}, 2"); g(f"s_add_u32 s4, s4, {sW}")
        g("s_lshl_b32 s6, s4, 15"); g(f"s_add_u32 {self.sCh}, s6, {WS_H}")
        g("s_lshl_b32 s6, s4, 12"); g(f"s_add_u32 {self.sCt}, s6, {WS_HST}")
        g(f"s_mul_i32 s6, s4, {HHP}"); g(f"s_mul_i32 s7, {sCGX}, 6"); g("s_add_u32 s6, s6, s7"); g("s_lshl_b32 s6, s6, 10"); g(f"s_add_u32 {self.sCo}, s6, {WS_HH}")
        g("s_mul_i32 s6, s4, 48"); g(f"s_add_u32 s6, s6, {sCGX}"); g("s_lshl_b32 s6, s6, 3"); g(f"s_add_u32 {self.sF3}, s6, {WS_FF + 2048*8}")
        self.vP1, self.vP2, self.vP3 = V(1), V(1), V(1)
        g("s_lshl_b32 s6, s4, 7"); g(f"s_add_u32 s6, s6, {WS_FF + 1024*8}")
        g(f"v_and_b32 v{a}, 15, v{L}"); g(f"v_lshl_add_u32 v{self.vP2}, v{a}, 3, s6")
        g(f"s_lshl_b32 s4, {sRB}, 5"); g(f"s_lshl_b32 s6, {sW}, 3"); g("s_add_u32 s4, s4, s6"); g("s_lshl_b32 s4, s4, 3"); g(f"s_add_u32 s4, s4, {WS_FF}")
        g(f"v_and_b32 v{a}, 7, v{L}"); g(f"v_lshl_add_u32 v{self.vP1}, v{a}, 3, s4")
        g(f"s_lshr_b32 s7, {sW}, 1"); g("s_sub_u32 s6, 7, s7"); g(f"v_min_u32 v{a}, s6, v{a}"); g(f"v_lshlrev_b32 v{a}, 4, v{a}")
        g(f"v_bfe_u32 v{b}, v{L}, 3, 1"); g(f"v_mul_u32_u24 v{b}, {48*8}, v{b}")
        g(f"s_mul_i32 s4, {sRB}, 96"); g("s_add_u32 s4, s4, s7"); g("s_lshl_b32 s4, s4, 3"); g(f"s_add_u32 s4, s4, {WS_FF + 2048*8}")
        g(f"v_add3_u32 v{self.vP3}, v{a}, v{b}, s4")

    def phaseA(self):
        g, V, L = self.g, self.V, self.vL
        g.label("L_compute", keep=True)
        self.vL4 = V(1); self.vHP = V(8, 4); self.vX3 = V(4)
        a, b, c = V(1), V(1), V(1); J = self.vX3
        if self.o("prio", 1): g(f"s_setprio {self.o('prio', 1)}")
        g("s_getpc_b64 s[6:7]"); g.raw("L_pc:")
        g(f"s_sub_u32 s6, s6, L_pc-{NAME}_kernel"); g("s_subb_u32 s7, s7, 0")
        g(f"v_lshrrev_b32 v{a}, 4, v0"); g(f"v_lshl_add_u32 v{a}, s5, 4, v{a}"); g(f"v_lshlrev_b32 v{a}, 7, v{a}")
        g(f"v_min_u32 v{a}, L_codeend-{NAME}_kernel-4, v{a}")
        g(f"global_load_dword v{J}, v{a}, s[6:7]")
        g(f"v_lshlrev_b32 v{self.vL8}, 3, v{L}"); g(f"v_lshlrev_b32 v{self.vL4}, 2, v{L}"); g(f"v_mov_b32 v{self.vZero}, 0")
        ONES = V(4, 4); Z4 = self.vHP
        for i in range(4): g(f"v_mov_b32 v{ONES+i}, 0x3f803f80"); g(f"v_mov_b32 v{Z4+i}, 0")
        g(f"v_bfe_u32 v{a}, v{L}, 3, 2"); g(f"v_mul_u32_u24 v{a}, {SLOT}, v{a}"); g(f"v_and_b32 v{b}, 7, v{L}"); g(f"v_lshl_add_u32 v{a}, v{b}, 4, v{a}")
        g(f"ds_write_b128 v{a}, {vr(ONES,4)}")
        g(f"v_add_u32 v{a}, {SYNC}, v{self.vL16}"); g(f"ds_write_b128 v{a}, {vr(Z4,4)}")
        g(f"v_mov_b32 v{c}, 0")
        for i, x in enumerate(WARM[1:]): g(f"s_mov_b32 s3, {x}"); g(f"v_writelane_b32 v{c}, s3, {i+1}")
        g(f"s_or_b32 s3, s2, {sW}")
        g("s_waitcnt lgkmcnt(0)")
        if self.stamps: g(f"v_writelane_b32 v{self.vST}, s100, 0"); self.names["C"].append("start")
        self.srd(36, 64, 256)
        g("s_cmp_eq_u32 s3, 0"); g.branch("s_cbranch_scc1 L_pubnonce", keep=True)
        g.label("L_pubdone", keep=True)
        g.begin(); g.label("L_pubnonce", keep=True)
        g("s_or_b32 s100, s100, 1"); g(f"v_mov_b32 v{self.vNON}, s100"); g(f"v_mov_b32 v{self.vNON+1}, s101")
        g("s_mov_b64 exec, 1"); g(f"buffer_store_dwordx2 {vr(self.vNON,2)}, v{self.vZero}, {SDBG}, 0 offen sc1"); g("s_mov_b64 exec, -1")
        g.branch("s_branch L_pubdone", keep=True); self.tail.append(g.end())
        self.srd(8, 48, 2048*512*2); self.srd(32, 62, 2048*512*2); self.srd(40, 66, WS_SIZE)
        if self.o("tlb", 1):
            g(f"s_cmp_eq_u32 {sW}, 1"); g("s_cselect_b64 s[6:7], s[56:57], s[52:53]")
            g(f"s_cmp_eq_u32 {sW}, 2"); g("s_cselect_b64 s[6:7], s[58:59], s[6:7]")
            g(f"s_cmp_eq_u32 {sW}, 3"); g("s_cselect_b64 s[6:7], s[60:61], s[6:7]")
            g("s_mov_b32 s16, s6"); g("s_and_b32 s17, s7, 0xffff"); g("s_mov_b32 s18, 4096"); g("s_mov_b32 s19, 0x20000")
            g(f"buffer_load_dword v{J+1}, v{self.vZero}, s[16:19], 0 offen")
            g(f"buffer_load_dword v{J+2}, v{c}, {SWS}, 0 offen")
            g(f"buffer_load_dword v{J+3}, v{self.vZero}, {SOUT}, 0 offen")
        g("s_barrier")
        self.cmap(); self.sync_consts(a); self.consts(a, b)
        g(f"v_lshrrev_b32 v{a}, 4, v{L}"); g(f"v_lshl_add_u32 v{a}, v{a}, 7, v{self.vP3}")
        g("s_mov_b32 s6, 0"); g("s_mov_b32 s7, 0x00ff0000"); g(f"v_cndmask_b32 v{a}, v{a}, v{self.vP2}, s[6:7]")
        g("s_mov_b32 s7, 0xff000000"); g(f"v_cndmask_b32 v{a}, v{a}, v{self.vP1}, s[6:7]")
        vFw = V(1); g(f"v_mov_b32 v{vFw}, v{a}")
        vXr = [V(1), V(1)]; vWr = V(1)
        g(f"v_bfe_u32 v{a}, v{L}, 1, 3"); g(f"v_lshrrev_b32 v{b}, 4, v{L}"); g(f"v_xor_b32 v{a}, v{a}, v{b}"); g(f"v_lshlrev_b32 v{a}, 4, v{a}")
        g(f"v_and_b32 v{c}, 15, v{L}"); g(f"v_lshl_add_u32 v{vXr[0]}, v{c}, 7, v{a}"); g(f"v_xor_b32 v{vXr[1]}, 64, v{vXr[0]}")
        g(f"v_bfe_u32 v{a}, v{L}, 3, 2"); g(f"v_xor_b32 v{a}, {sW}, v{a}"); g(f"v_lshlrev_b32 v{a}, 5, v{a}")
        g(f"v_mul_u32_u24 v{b}, 3072, v{b}"); g(f"v_bfe_u32 v{c}, v{L}, 2, 2"); g(f"v_lshl_add_u32 v{a}, v{c}, 7, v{a}")
        g(f"v_and_b32 v{c}, 3, v{L}"); g(f"v_lshl_add_u32 v{a}, v{c}, 3, v{a}"); g(f"v_add_u32 v{vWr}, v{a}, v{b}")
        BC, BP, BP1, MK = V(4, 4), V(4, 4), V(4, 4), V(4, 4); vT1, vT2 = V(1), V(1)
        g(f"v_and_b32 v{a}, 15, v{L}"); g(f"v_lshrrev_b32 v{b}, 4, v{L}")
        g(f"v_lshlrev_b32 v{vT1}, 2, v{a}"); g(f"v_add_u32 v{vT1}, {TAB}, v{vT1}")
        g(f"v_lshlrev_b32 v{vT2}, 4, v{b}"); g(f"v_add_u32 v{vT2}, {TAB}, v{vT2}")
        g(f"v_lshlrev_b32 v{b}, 2, v{b}"); g(f"v_sub_u32 v{a}, v{a}, v{b}"); g(f"v_mov_b32 v{c}, {f32(-1e30)}")
        g(f"s_cmp_eq_u32 {sRB}, 0"); g("s_cselect_b64 s[58:59], 0, -1")
        for r in range(4):
            g(f"v_subrev_u32 v{b}, {r}, v{a}"); g(f"v_and_b32 v{b}, 0x80000001, v{b}")
            g(f"v_cmp_eq_u32 vcc, 0, v{b}"); g(f"v_cndmask_b32 v{BC+r}, v{c}, 0, vcc")
            g(f"v_cmp_eq_u32 vcc, 0x80000000, v{b}"); g(f"v_cndmask_b32 v{BP+r}, v{c}, 0, vcc")
            g(f"v_cndmask_b32 v{BP1+r}, v{c}, v{BP+r}, s[58:59]")
        for i, B in enumerate((BP, BC)):
            for h in range(2):
                g(f"v_ashrrev_i32 v{a}, 31, v{B+2*h}"); g(f"v_ashrrev_i32 v{b}, 31, v{B+2*h+1}")
                g(f"v_and_b32 v{a}, 0xffff, v{a}"); g(f"v_and_b32 v{b}, 0xffff0000, v{b}"); g(f"v_or_b32 v{a}, v{a}, v{b}"); g(f"v_not_b32 v{MK+2*i+h}, v{a}")
        g(f"s_mov_b32 s60, {f32(1/512)}"); g(f"s_mov_b32 s61, {f32(0.25*LOG2E)}")
        FB = [V(32, 4), V(32, 4)]
        XF = [[FB[i] + 4*t for t in range(5)] for i in range(2)]; WF = [[FB[i] + 20 + 4*p for p in range(3)] for i in range(2)]
        Q = [V(4, 4) for t in range(5)]; Kc = [V(4, 4) for t in range(5)]; Vc = [V(4, 4) for t in range(5)]
        def reads(s):
            g.begin(); bi = s & 1
            if s and s % 2 == 0:
                d = SLOT if (s // 2) % 4 else (-3*SLOT) & 0xffffffff
                for r in (vWr, vXr[0], vXr[1]): g(f"v_add_u32 v{r}, {d}, v{r}")
            for p in range(3):
                for j2 in range(2): g(f"ds_read_b64_tr_b16 {vr(WF[bi][p]+2*j2,2)}, v{vWr} offset:{10*K1 + bi*12288 + p*K1 + j2*512}")
                if p == 0:
                    for t in range(5): g(f"ds_read_b128 {vr(XF[bi][t],4)}, v{vXr[bi]} offset:{t*2048}")
            return g.end()
        def mfmas(s):
            g.begin(); bi = s & 1
            def mf(d, x, y): g(f"v_mfma_f32_16x16x32_bf16 {vr(d,4)}, {vr(x,4)}, {vr(y,4)}, {vr(d,4) if s else 0}")
            for t in range(5): mf(Q[t], WF[bi][0], XF[bi][t])
            for t in range(5): mf(Kc[t], WF[bi][1], XF[bi][t])
            for t in range(5): mf(Vc[t], XF[bi][t], WF[bi][2])
            return g.end()
        M1 = V(6); R1 = V(6); M2 = [V(4, 4) for t in range(5)]; R2 = [V(4, 4) for t in range(5)]
        g.begin()
        for t in range(5):
            g(f"ds_read_b32 v{M1+t}, v{vT1} offset:{t*64}"); g(f"ds_read_b32 v{R1+t}, v{vT1} offset:{512+t*64}")
        for t in range(5):
            g(f"ds_read_b128 {vr(M2[t],4)}, v{vT2} offset:{t*64}"); g(f"ds_read_b128 {vr(R2[t],4)}, v{vT2} offset:{512+t*64}")
        gn = self.get_nonce(a)
        fin = singles(g.end()) + [gn[0] + self.sig(K_T2)]
        XR = self.vHP; tk = V(1)
        g(f"buffer_load_dword v{vFw}, v{vFw}, {SWS}, 0 offen sc1")
        self.stamp("pre")
        self.lwait(K_A, tk)
        self.stamp("bar0")
        g.add(reads(0)); g.add(self.lchk_issue(K_A + 1, tk))
        stg = {0: 1, 1: 2, 3: 3, 5: 4, 7: 5, 9: 6, 11: 7, 13: 8}
        for s in range(16):
            g.comment(f"A step {s}")
            if self.o("ast", 0): self.stamp(f"s{s}")
            mf = mfmas(s); W = Weave(mf, 2); n = len(mf)
            if s in stg: W.at(0, self.lchk_check(K_A + stg[s], tk))
            if s < 15:
                rs = singles(reads(s + 1))
                if s % 2 == 0 and s <= 6: rs[-1] = rs[-1] + self.sig(K_F + s // 2)
                if s == 14: rs[-1] = rs[-1] + self.sig(K_AE)
                left, _ = W.fill(rs, 0, n - 2); assert not left
            if s + 1 in stg: W.at(n - 4, self.lchk_issue(K_A + stg[s + 1], tk))
            if s == 12:
                W.at(n - 3, self.grp(f"buffer_load_dwordx4 {vr(XR,4)}, v{self.vRM}, {SX}, 0 offen"))
                W.at(n - 2, self.grp(f"buffer_load_dwordx4 {vr(XR+4,4)}, v{self.vRM}, {SX}, 0 offen offset:32"))
            if s == 14: W.at(n - 5, self.lchk_issue(K_TB, b)); W.at(n - 1, self.lchk_check(K_TB, b))
            if s == 15:
                left, _ = W.fill(fin, 0); assert not left
            g.add(W.out())
        self.stamp("loop")
        for r in [vWr, vT1, vT2, tk, vFw] + vXr: V.release(r)
        V.release(FB[0], 32); V.release(FB[1], 32)
        CSQ, CSK = V(4, 4), V(4, 4); CSV = V(2)
        for r in range(4): g(f"v_mov_b32_dpp v{CSQ+r}, v{Q[0]+r} row_newbcast:0 row_mask:0xf bank_mask:0xf")
        for r in range(4): g(f"v_mov_b32_dpp v{CSK+r}, v{Kc[0]+r} row_newbcast:0 row_mask:0xf bank_mask:0xf")
        QB = [None] + [V(2) for t in range(4)]; KB = [V(2) for t in range(5)]; VB = V(10, 2)
        bc = lambda reg: (vr(reg & ~1, 2), reg & 1)
        for t in range(5):
            mp, ms = bc(M1 + t); rp, rs = bc(R1 + t)
            for X, CS in ((Q[t], CSQ), (Kc[t], CSK)):
                if X == Q[0]: continue
                for h in range(2):
                    g(f"v_pk_fma_f32 {vr(X+2*h,2)}, {mp}, {vr(CS+2*h,2)}, {vr(X+2*h,2)} op_sel:[{ms},0,0] op_sel_hi:[{ms},1,1] neg_lo:[1,0,0] neg_hi:[1,0,0]")
            for h in range(2): g(f"v_pk_mul_f32 {vr(Kc[t]+2*h,2)}, {rp}, {vr(Kc[t]+2*h,2)} op_sel:[{rs},0] op_sel_hi:[{rs},1]")
            if t == 0: g(f"v_mov_b32 v{CSV}, v{Vc[0]}"); g(f"v_mov_b32 v{CSV+1}, v{Vc[0]}")
            if t == 1: g(f"v_permlane16_swap_b32 v{CSV}, v{CSV+1}")
            if t == 2: g(f"v_mov_b32 v{CSV+1}, v{CSV}")
            if t == 3: g(f"v_permlane32_swap_b32 v{CSV}, v{CSV+1}")
            if t:
                for h in range(2): g(f"v_cvt_pk_bf16_f32 v{QB[t]+h}, v{Q[t]+2*h}, v{Q[t]+2*h+1}")
            for h in range(2): g(f"v_cvt_pk_bf16_f32 v{KB[t]+h}, v{Kc[t]+2*h}, v{Kc[t]+2*h+1}")
        for t in range(5):
            for h in range(2):
                g(f"v_pk_fma_f32 {vr(Vc[t]+2*h,2)}, {vr(M2[t]+2*h,2)}, {vr(CSV,2)}, {vr(Vc[t]+2*h,2)} op_sel_hi:[1,0,1] neg_lo:[1,0,0] neg_hi:[1,0,0]")
            for h in range(2): g(f"v_pk_mul_f32 {vr(Vc[t]+2*h,2)}, {vr(R2[t]+2*h,2)}, {vr(Vc[t]+2*h,2)}")
        R4 = range(1, 5)
        SP = {t: Q[t] for t in R4}; SC = {t: Kc[t] for t in R4}
        AQ = {t: V(1) for t in R4}; U = {t: V(2) for t in R4}; MX = {t: V(1) for t in R4}; TX = {t: V(1) for t in R4}
        cv = [f"v_cvt_pk_bf16_f32 v{VB+2*t+h}, v{Vc[t]+2*h}, v{Vc[t]+2*h+1}" for t in range(5) for h in range(2)]
        cv += [f"v_mul_f32 v{AQ[t]}, s61, v{R1+t}" for t in R4] + [i.text for i in gn[1]]
        for t in R4:
            g(f"v_mfma_f32_16x16x16_bf16 {vr(SP[t],4)}, {vr(KB[t-1],2)}, {vr(QB[t],2)}, {vr(BP1 if t == 1 else BP,4)}")
            g(cv.pop(0)); g(cv.pop(0))
            g(f"v_mfma_f32_16x16x16_bf16 {vr(SC[t],4)}, {vr(KB[t],2)}, {vr(QB[t],2)}, {vr(BC,4)}")
            g(cv.pop(0)); g(cv.pop(0))
        for t in R4:
            for h in range(2): g(f"v_max3_f32 v{U[t]+h}, v{SP[t]+2*h}, v{SP[t]+2*h+1}, v{SC[t]+2*h}")
        for t in R4:
            for h in range(2): g(f"v_max_f32 v{U[t]+h}, v{U[t]+h}, v{SC[t]+2*h+1}")
        for t in R4: g(f"v_max_f32 v{MX[t]}, v{U[t]}, v{U[t]+1}")
        for t in R4: g(f"v_max_f32 v{TX[t]}, v{U[t]}, v{U[t]+1}")
        for t in R4: g(f"v_permlane16_swap_b32 v{MX[t]}, v{TX[t]}")
        for t in R4: g(f"v_max_f32 v{MX[t]}, v{MX[t]}, v{TX[t]}")
        for t in R4: g(f"v_mov_b32 v{TX[t]}, v{MX[t]}")
        for t in R4: g(f"v_permlane32_swap_b32 v{MX[t]}, v{TX[t]}")
        for t in R4: g(f"v_max_f32 v{MX[t]}, v{MX[t]}, v{TX[t]}")
        for t in R4:
            for h in range(2): g(f"v_sub_f32 v{U[t]+h}, v{U[t]+h}, v{MX[t]}")
        for t in R4:
            for h in range(2): g(f"v_mul_f32 v{U[t]+h}, v{U[t]+h}, v{AQ[t]}")
        for t in R4:
            for h in range(2): g(f"v_exp_f32 v{U[t]+h}, v{U[t]+h}")
        PB = {t: V(4, 4) for t in R4}
        for t in R4:
            for h in range(2): g(f"v_cvt_pk_bf16_f32 v{U[t]+h}, v{U[t]+h}, v{U[t]+h}")
        for t in R4:
            for i in range(4): g(f"v_and_b32 v{PB[t]+i}, v{MK+i}, v{U[t]+(i&1)}")
            if t > 1:
                g(f"v_mfma_f32_16x16x32_bf16 {vr(SP[t-1],4)}, {vr(ONES,4)}, {vr(PB[t-1],4)}, 0")
                g(f"v_mfma_f32_16x16x32_bf16 {vr(SC[t-1],4)}, {vr(VB+2*(t-2),4)}, {vr(PB[t-1],4)}, 0")
        g(f"v_mfma_f32_16x16x32_bf16 {vr(SP[4],4)}, {vr(ONES,4)}, {vr(PB[4],4)}, 0")
        g(f"v_mfma_f32_16x16x32_bf16 {vr(SC[4],4)}, {vr(VB+6,4)}, {vr(PB[4],4)}, 0")
        OB = [PB[1], PB[3]]
        for pr in range(2):
            for t in (1 + 2*pr, 2 + 2*pr): g(f"v_rcp_f32 v{MX[t]}, v{SP[t]}")
            for t in (1 + 2*pr, 2 + 2*pr):
                for r in range(4): g(f"v_mul_f32 v{SC[t]+r}, v{MX[t]}, v{SC[t]+r}")
            for i, t in enumerate((1 + 2*pr, 2 + 2*pr)):
                for h in range(2): g(f"v_cvt_pk_bf16_f32 v{OB[pr]+2*i+h}, v{SC[t]+2*h}, v{SC[t]+2*h+1}")
            for h in range(2): g(f"v_permlane16_swap_b32 v{OB[pr]+h}, v{OB[pr]+2+h}")
            g(f"buffer_store_dwordx4 {vr(OB[pr],4)}, v{self.vL16}, {SWS}, {self.sO1 if pr else self.sO0} offen {self.SC}", tag="ost")
        self.stamp("Aepi")
        for t in range(5):
            V.release(Q[t], 4); V.release(Kc[t], 4); V.release(Vc[t], 4); V.release(KB[t], 2); V.release(M2[t], 4); V.release(R2[t], 4)
        for t in R4:
            V.release(QB[t], 2); V.release(MX[t]); V.release(TX[t]); V.release(AQ[t]); V.release(U[t], 2); V.release(PB[t], 4)
        V.release(M1, 6); V.release(R1, 6); V.release(VB, 10); V.release(CSV, 2)
        for r in (CSQ, CSK, BC, BP, BP1, MK, ONES): V.release(r, 4)
        V.release(a); V.release(b); V.release(c); V.release(0); V.release(self.vX3, 4)

    def red_consts(self, alloc=True):
        g, V = self.g, self.V
        if alloc: self.vRw = [V(1), V(1), V(1)]; self.vRr = V(1)
        for i in (1, 2, 3):
            g(f"s_xor_b32 s5, {sW}, {i}"); g("s_lshl_b32 s5, s5, 14"); g(f"s_add_u32 s5, s5, {64*K1 + (i-1)*4096}"); g(f"v_add_u32 v{self.vRw[i-1]}, s5, v{self.vL16}")
        g(f"s_lshl_b32 s5, {sW}, 14"); g(f"s_add_u32 s5, s5, {64*K1}"); g(f"v_add_u32 v{self.vRr}, s5, v{self.vL16}")
    def red_write(self, ACC, a):
        return [self.grp(f"ds_write_b128 v{self.vRw[a-1]}, {vr(ACC[a]+4*j,4)} offset:{j*K1}") for j in range(4)]
    def red_add(self, ACC, T):
        for i in range(12): self.g(f"ds_read_b128 {vr(T+4*i,4)}, v{self.vRr} offset:{i*K1}")
        return [f"v_pk_add_f32 {vr(ACC[0]+2*j,2)}, {vr(ACC[0]+2*j,2)}, {vr(T+16*a+2*j,2)}" for a in range(3) for j in range(8)]

    def phaseB(self):
        g, V = self.g, self.V
        XR = self.vHP; PZ = self.o("pause", 1)
        WB = V(64, 4); OF = V(64, 4); ACC = [V(16, 4) for _ in range(4)]; rd = [V(1), V(1)]; t2 = V(2); t1 = V(1); self.vX3 = V(4)
        self.red_consts()
        g(f"v_add_u32 v{rd[0]}, s5, v{self.vKr}"); g(f"v_xor_b32 v{rd[1]}, 64, v{rd[0]}")
        g.add(self.lchk_issue(K_WB, t1, own=True))
        for j in range(8):
            g(f"v_lshlrev_b32 v{ACC[0]+2*j}, 16, v{XR+j}"); g(f"v_and_b32 v{ACC[0]+2*j+1}, 0xffff0000, v{XR+j}")
        def wbreads():
            for ks in range(8):
                for ct in range(2):
                    for j2 in range(2): g(f"ds_read_b64_tr_b16 {vr(WB+(ks*2+ct)*4+2*j2,2)}, v{rd[ct]} offset:{ks*2048+j2*512}")
            g.add(self.sig(K_B2))
        if self.o("wb_early", 0): g.add(self.lchk_check(K_WB, t1, own=True)); wbreads()
        g.waitvm("ost"); g.add(self.flag_fast(self.sF1))
        self.stamp("F1")
        if not self.o("wb_early", 0): g.add(self.lchk_check(K_WB, t1, own=True)); wbreads()
        self.poll(self.vP1, t2, pre=[self.flag_slow(self.sF1)])
        self.stamp("P1")
        lo = [(ks, rt) for rt in (1, 0) for ks in range(8)]
        lds = [self.grp(f"buffer_load_dwordx4 {vr(OF+(ks*2+rt)*4,4)}, v{self.vL16}, {SWS}, {self.sOF[rt][ks//4]} offen offset:{(ks%4)*K1} sc1") for ks, rt in lo]
        NL0 = self.o("b_l0", 8)
        for grp in lds[:NL0]: g.add(grp)
        g.begin()
        for ks, rt in lo:
            for ct in (1, 0):
                a = 2*rt + ct
                g(f"v_mfma_f32_32x32x16_bf16 {vr(ACC[a],16)}, {vr(WB+(ks*2+ct)*4,4)}, {vr(OF+(ks*2+rt)*4,4)}, {vr(ACC[a],16) if (ks or a == 0) else 0}")
        mf = g.end(); W = Weave(mf, 5)
        for i, grp in enumerate(lds[NL0:]): W.at(2*i, grp)
        W.at(2*(len(lds) - NL0), self.flag_slow(self.sF1)); W.at(self.o('b_go', 14), self.sig(K_G1))
        W.at(12, self.lchk_issue(K_B2, t1)); W.at(17, self.lchk_check(K_B2, t1))
        W.even(self.red_write(ACC, 3) + self.red_write(ACC, 2), 19, 31)
        g.add(W.out())
        self.stamp("Bmf")
        for grp in self.red_write(ACC, 1): g.add(grp)
        g.add(self.sig(K_B3))
        self.lwait(K_B3, t1)
        adds = self.red_add(ACC, WB)
        g.add(self.sig(K_B4))
        for l in adds: g(l)
        H = ACC[0]
        for j in range(8): g(f"v_cvt_pk_bf16_f32 v{self.vHP+j}, v{H+2*j}, v{H+2*j+1}")
        g(f"buffer_store_dwordx4 {vr(self.vHP,4)}, v{self.vL16}, {SWS}, {self.sHs} offen {self.SC}", tag="hst")
        g(f"buffer_store_dwordx4 {vr(self.vHP+4,4)}, v{self.vL16}, {SWS}, {self.sHs} offen offset:1024 {self.SC}", tag="hst")
        S2, Q2 = ACC[1], ACC[1] + 2
        g(f"v_pk_add_f32 {vr(S2,2)}, {vr(H,2)}, {vr(H+2,2)}"); g(f"v_pk_mul_f32 {vr(Q2,2)}, {vr(H,2)}, {vr(H,2)}")
        g(f"v_pk_fma_f32 {vr(Q2,2)}, {vr(H+2,2)}, {vr(H+2,2)}, {vr(Q2,2)}")
        for j in range(2, 8):
            g(f"v_pk_add_f32 {vr(S2,2)}, {vr(S2,2)}, {vr(H+2*j,2)}"); g(f"v_pk_fma_f32 {vr(Q2,2)}, {vr(H+2*j,2)}, {vr(H+2*j,2)}, {vr(Q2,2)}")
        g(f"v_add_f32 v{S2}, v{S2}, v{S2+1}"); g(f"v_add_f32 v{Q2}, v{Q2}, v{Q2+1}")
        g(f"v_permlane32_swap_b32 v{S2}, v{Q2}"); g(f"v_add_f32 v{S2}, v{S2}, v{Q2}")
        g(f"buffer_store_dword v{S2}, v{self.vL4}, {SWS}, {self.sHt} offen {self.SC}", tag="hst")
        self.stamp("Bst")
        V.release(WB, 64); V.release(OF, 64); V.release(t2, 2); V.release(t1); V.release(self.vP1); V.release(self.vX3, 4)
        for x in ACC: V.release(x, 16)
        for x in rd + self.vRw + [self.vRr]: V.release(x)

    def phaseC(self):
        g, V = self.g, self.V
        HF = V(128, 4); ACC = [V(16, 4) for _ in range(4)]; ST = HF + 112
        NF = self.o("c_nf", 5); FR = [V(4, 4) for _ in range(NF)]
        MF = V(4, 4); T = V(8, 4); t2 = V(2); AA = V(2); VV, t1, vHi, vCt = V(1), V(1), V(1), V(1)
        A0, A1 = AA, AA + 1; self.vX3 = T; PZ = self.o("pause", 1)
        g(f"v_add_u32 v{vHi}, 0x10000, v{self.vL16}"); g(f"v_add_u32 v{vCt}, {CST}, v{self.vL16}")
        g(f"s_add_u32 s54, {self.sCo}, 4096")
        g.waitvm("hst"); g.add(self.flag_fast(self.sF2))
        if self.o("cmap", 0): g.add(self.flag_slow(self.sF2)); self.opt["nfast"] = 0
        self.stamp("F2")
        g(f"s_cmp_eq_u32 {sCGX}, 15"); g.branch("s_cbranch_scc1 L_skipC", keep=True)
        g.begin(); g.label("L_skipC", keep=True)
        g.add(self.flag_slow(self.sF2)); g.add(self.sig(K_G2))
        for kw, k in ((K_C01b, K_P0), (K_C01b, K_P0b), (K_C23b, K_U3), (K_C45b, K_U5)): self.lwait(kw, t1, sleep=2); g.add(self.sig(k))
        g.branch("s_branch L_cdone"); self.tail.append(g.end())
        seq = []; k1 = 0; L0 = self.o("c_lead", 4); RN, RD = self.o("c_rn", 1), self.o("c_rd", 2)
        for ks in range(33):
            seq += [(0, ks), (1, ks)]
            while ks >= L0 and ks < 31 and k1 < ((ks - L0 + 1) * RN) // RD: seq += [(2, k1), (3, k1)]; k1 += 1
        self.K1 = k1
        seq += [(2 + e, ks) for ks in range(k1, 33) for e in range(2)] + [(4 + e, ks) for ks in range(33) for e in range(2)]
        idx = {x: i for i, x in enumerate(seq)}; RA = NF - 1
        KO = (list(range(16, 32)) + list(range(16))) if self.o('c_ko', 1) else list(range(32))
        def rd(i):
            u, ks = seq[i]; g.begin()
            if ks < 32: g(f"ds_read_b128 {vr(FR[i % NF],4)}, v{vHi if (u//2) % 2 else self.vL16} offset:{(u%2)*32768 + KO[ks]*K1}")
            else: g(f"ds_read_b128 {vr(FR[i % NF],4)}, v{vCt} offset:{u*K1}")
            if ks == 31 and u % 2: g.add(self.sig((K_P0b, K_U3, K_U5)[u // 2]))
            if (u, ks) == (1, 15): g.add(self.sig(K_P0))
            return g.end()
        if self.o("c_ko", 1):
            vPa = MF; g(f"v_or_b32 v{vPa}, 64, v{self.vP2}")
            self.poll(vPa, t2, pre=[self.flag_slow(self.sF2)])
        else: self.poll(self.vP2, t2, pre=[self.flag_slow(self.sF2)])
        self.stamp("P2")
        hl = []
        for ks in range(32):
            l = [f"s_add_u32 s55, {self.sCh}, {KO[ks]*K1}"] if ks % 4 == 0 else []
            l.append(f"buffer_load_dwordx4 {vr(HF+4*ks,4)}, v{self.vL16}, {SWS}, s55 offen offset:{(ks%4)*K1} sc1")
            hl.append(self.grp(*l))
        sl = [self.grp(f"buffer_load_dword v{ST+i}, v{self.vL4}, {SWS}, {self.sCt} offen offset:{i*256} sc1") for i in range(16)]
        NH0 = self.o("c_h0", 8)
        g.add(self.lchk_issue(K_C01, t1))
        for grp in hl[:NH0]: g.add(grp)
        g.add(self.lchk_check(K_C01, t1))
        for i in range(RA): g.add(rd(i))
        g.begin()
        for st in (8, 4, 2, 1):
            for i in range(st): g(f"v_add_f32 v{ST+i}, v{ST+i}, v{ST+i+st}")
        g(f"v_mov_b32 v{ST+1}, v{ST}"); g(f"v_permlane32_swap_b32 v{ST}, v{ST+1}")
        g(f"v_mul_f32 v{ST}, s60, v{ST}"); g(f"v_mul_f32 v{ST+1}, s60, v{ST+1}")
        g(f"v_fma_f32 v{ST+1}, -v{ST}, v{ST}, v{ST+1}"); g(f"v_max_f32 v{ST+1}, 0, v{ST+1}")
        self.rbf(ST+1); g(f"v_add_f32 v{ST+1}, {f32(1e-5)}, v{ST+1}"); self.rbf(ST+1)
        g(f"v_sqrt_f32 v{ST+1}, v{ST+1}"); g(f"v_cvt_pk_bf16_f32 v{MF}, -v{ST}, -v{ST}"); self.rbf(ST+1)
        g(f"v_rcp_f32 v{ST+2}, v{ST+1}"); g(f"v_mul_f32 v{VV}, v{ST+1}, v{ST+1}")
        c0 = -2.0 * 0.7978845608028654 * LOG2E
        g(f"v_mul_f32 v{A0}, {f32(c0)}, v{ST+2}"); g(f"v_mul_f32 v{ST+3}, v{ST+2}, v{ST+2}")
        g(f"v_mul_f32 v{A1}, {f32(0.044715)}, v{A0}"); g(f"v_mul_f32 v{A1}, v{ST+3}, v{A1}")
        g(f"v_mov_b32 v{MF+1}, 0"); g(f"v_mov_b32 v{MF+2}, v{MF}"); g(f"v_mov_b32 v{MF+3}, 0")
        stats = singles(g.end())
        def store(u, G): g(f"buffer_store_dwordx4 {vr(G,4)}, v{self.vL16}, {SWS}, {self.sCo if u < 4 else 's54'} offen offset:{(u%4)*K1} {self.SC}", tag=f"hh{u//2}")
        def epi(u):
            g.begin(); G = ACC[u % 4]; U = G + 8
            for i in range(8): g(f"v_mul_f32 v{T+i}, v{G+i}, v{G+i}")
            for i in range(8): g(f"v_fma_f32 v{T+i}, v{T+i}, v{A1}, v{A0}")
            for i in range(8): g(f"v_mul_f32 v{T+i}, v{G+i}, v{T+i}")
            for i in range(8): g(f"v_exp_f32 v{T+i}, v{T+i}"); g(f"v_mul_f32 v{U+i}, v{G+i}, v{U+i}")
            for i in range(8): g(f"v_fma_f32 v{T+i}, v{T+i}, v{VV}, v{VV}")
            for i in range(8):
                g(f"v_rcp_f32 v{T+i}, v{T+i}")
                if i: g(f"v_mul_f32 v{U+i-1}, v{U+i-1}, v{T+i-1}")
            g(f"v_mul_f32 v{U+7}, v{U+7}, v{T+7}")
            for i in range(4): g(f"v_cvt_pk_bf16_f32 v{G+i}, v{U+2*i}, v{U+2*i+1}")
            store(u, G)
            return singles(g.end())
        def epi_pk(u):
            g.begin(); G = ACC[u % 4]; U = G + 8; P = lambda x, i: vr(x + 2*i, 2); vv = (vr(VV & ~1, 2), VV & 1)
            for i in range(4): g(f"v_pk_mul_f32 {P(T,i)}, {P(G,i)}, {P(G,i)}")
            for i in range(4): g(f"v_pk_fma_f32 {P(T,i)}, {P(T,i)}, {vr(AA,2)}, {vr(AA,2)} op_sel:[0,1,0] op_sel_hi:[1,1,0]")
            for i in range(4): g(f"v_pk_mul_f32 {P(T,i)}, {P(G,i)}, {P(T,i)}")
            for i in range(8): g(f"v_exp_f32 v{T+i}, v{T+i}")
            for i in range(4): g(f"v_pk_mul_f32 {P(U,i)}, {P(G,i)}, {P(U,i)}")
            for i in range(4): g(f"v_pk_fma_f32 {P(T,i)}, {P(T,i)}, {vv[0]}, {vv[0]} op_sel:[0,{vv[1]},{vv[1]}] op_sel_hi:[1,{vv[1]},{vv[1]}]")
            for i in range(8): g(f"v_rcp_f32 v{T+i}, v{T+i}")
            for i in range(4): g(f"v_pk_mul_f32 {P(U,i)}, {P(U,i)}, {P(T,i)}")
            for i in range(4): g(f"v_cvt_pk_bf16_f32 v{G+i}, v{U+2*i}, v{U+2*i+1}")
            store(u, G)
            return g.end()
        def flg(p, slow=True):
            g.begin(); g.waitvm(f"hh{p}"); g.add(self.flag_fast(self.sF3, 128*p))
            if slow: g.add(self.flag_slow(self.sF3, 128*p))
            return g.end()
        NK = 22; NWF = 4
        DA = [HF, HF + 80, HF + 96, HF + 112]
        WF = HF + 16
        HRq = [HF + 48 + 4*i for i in range(8)] + [ACC[2] + 4*i for i in range(4)] + [ACC[3] + 4*i for i in range(4)] + list(FR) + [MF]
        NH = len(HRq)
        HR2 = [ACC[0] + 4*i for i in range(4)] + [ACC[1] + 4*i for i in range(4)]
        drd = [[V(1), self.vL4], [vCt, vHi]]; vZ = self.vP2
        lo = [(n, rt) for n in range(NK) for rt in (1, 0)]
        hreg = lambda m: HRq[m % NH]
        g.begin()
        for i, (u, ks) in enumerate(seq):
            acc = ACC[u % 4]
            g(f"v_mfma_f32_32x32x16_bf16 {vr(acc,16)}, {vr(FR[i % NF],4)}, {vr(HF+4*ks,4) if ks < 32 else vr(MF,4)}, {vr(acc,16) if ks else 0}")
        D0 = len(seq)
        for m, (n, rt) in enumerate(lo):
            for ct in (1, 0):
                a = 2*rt + ct
                g(f"v_mfma_f32_32x32x16_bf16 {vr(DA[a],16)}, {vr(WF+((n%NWF)*2+ct)*4,4)}, {vr(hreg(m),4)}, {vr(DA[a],16) if (n or a == 0) else 0}")
        mf = g.end(); W = Weave(mf, 5)
        for key, k in (((2, 0), K_C23), ((0, 16), K_C01b), ((2, 16), K_C23b), ((4, 0), K_C45), ((4, 16), K_C45b), ((0, 32), K_CS)):
            at = idx[key] - RA; tk = t1 if key[1] < 32 else t2
            W.at(max(at - 5, 0), self.lchk_issue(k, tk)); W.at(at - 1, self.lchk_check(k, tk))
        for i in range(RA, len(seq)): W.at(i - RA, rd(i))
        for i in range(0, len(seq) - 1, 2):
            g.begin(); g.needs(vr(FR[(i + 1) % NF], 4)); W.before(i, g.end())
        HS = self.o("c_hs", 2)
        at = HS*(16 - NH0)
        W.at(max(at - self.o("c_p2l", 12), 0), self.apoll_issue(self.vP2, t2)); W.at(at, self.apoll_check(self.vP2, t2, pre=[self.flag_slow(self.sF2)]))
        for i, grp in enumerate(hl[NH0:16]): W.at(HS*i, grp)
        for k, grp in enumerate(sl): W.at(at + k // 2, grp)
        pos = at + 8
        for grp in hl[16:28]: W.at(pos, grp); pos += HS
        left, sp = W.fill(stats, pos - self.o('c_se', 6), 80, cap=6); assert not left
        sp = max(sp, pos)
        for i, grp in enumerate(hl[28:]): W.at(sp + 1 + i, grp)
        assert sp + 5 < idx[(0, 28)] - 14, (sp, idx[(0, 28)])
        W.at(sp + 6, self.flag_slow(self.sF2))
        W.at(self.o("c_unp", 0), self.sig(K_G2))
        if self.stamps:
            keys = [(0, 4), (0, 8), (0, 16), (0, 24), (1, 32), (4, 0), (4, 8), (4, 16), (4, 21), (4, 26)] if self.o("cst", 0) else []
            for key in keys:
                g.begin(); self.stamp("c%d_%d" % key); W.before(idx[key], g.end())
            g.begin(); self.stamp("Cmf"); cm = g.end()
        EC = self.o("e_cap", 5); epos = {}
        rest, epos[0] = W.fill(epi(0) + epi(1), idx[(1, 32)] + 3, idx[(4, 0)] - 1, cap=self.o("e_cap0", 7)); assert not rest, len(rest)
        rest, epos[1] = W.fill(epi(2) + epi(3), idx[(4, 1)], idx[(4, 32)], cap=EC + self.o("e_x", 1)); assert not rest
        W.at(epos[0] + self.o("c_fl", 20), flg(0))
        self.vX3 = HR2[0] if False else None
        X3 = V(3, 2) if False else None
        lds = [self.grp(f"s_add_u32 s3, {self.sHF[rt]}, {(12*DK[n][1] + 2*DK[n][0])*K1}",
                        f"buffer_load_dwordx4 {vr(hreg(m),4)}, v{vZ if DK[n] == (0, 7) else self.vL16}, {SWS}, s3 offen sc1") for m, (n, rt) in enumerate(lo)]
        def part_of(i):
            for p, (f, n, _, _) in enumerate(DPART):
                if f <= i < f + n: return p, i - f
        def rdset(p):
            r = drd[p % 2]
            return self.grp(f"s_mul_i32 s5, {sW}, {DPART[p][3]}", f"s_add_u32 s5, s5, {DPART[p][2]}", f"v_add_u32 v{r[0]}, s5, v{self.vKr}", f"v_xor_b32 v{r[1]}, 64, v{r[0]}")
        def wread(i):
            p, j = part_of(i)
            out = [self.grp(f"ds_read_b64_tr_b16 {vr(WF+((i%NWF)*2+ct)*4+2*j2,2)}, v{drd[p%2][ct]} offset:{j*2048+j2*512}") for ct in range(2) for j2 in range(2)]
            if i == 2: out[-1] = out[-1] + self.sig(K_DS)
            return out
        init = singles(self.grp(*[x for j in range(8) for x in (f"v_lshlrev_b32 v{DA[0]+2*j}, 16, v{self.vHP+j}", f"v_and_b32 v{DA[0]+2*j+1}, 0xffff0000, v{self.vHP+j}")]))
        zset = self.grp(f"s_cmp_ge_u32 {sW}, 2", "s_cselect_b32 s5, 0x80000000, 0", f"v_or_b32 v{vZ}, s5, v{self.vL16}")
        self.vX3 = WF + 24
        p0 = idx[(4, 20)]; p1 = epos[1] + 3
        PRE = 8 + min(self.o("d_pre", 4), max(0, D0 - 1 - p1))
        W.at(p0 - self.o("d_pl", 16), self.apoll_issue(self.vP3, t2)); W.at(p0, self.apoll_check(self.vP3, t2))
        W.even(lds[:8], p0 + 1, p0 + 17)
        for i, grp in enumerate(lds[8:PRE]): W.at(max(p1, p0 + 17) + i, grp)
        W.at(idx[(4, 18)], rdset(0)); W.at(idx[(4, 19)], zset)
        W.at(idx[(4, 22)], self.lchk_issue(K_D1, t1, own=True)); W.at(idx[(4, 25)], self.lchk_check(K_D1, t1, own=True))
        W.even([x for i in range(NWF - 1) for x in wread(i)], idx[(4, 26)], D0 - 1)
        left, _ = W.fill(init, epos[1], D0 - 1, cap=8); assert not left
        g.begin(); g.label("L_cdone", keep=True)
        self.poll(self.vP3, t2)
        for grp in [rdset(0), zset] + lds[:PRE] + init: g.add(grp)
        self.lwait(K_D1, t1, own=True)
        for i in range(NWF - 1):
            for grp in wread(i): g.add(grp)
        g.branch("s_branch L_dgo"); self.tail.append(g.end())
        DM = self.o("d_mode", 2)
        if self.stamps: W.before(D0, cm)
        if DM == 1: W.before(D0, epi_pk(4) + flg(1) + epi_pk(5))
        if DM == 2: W.before(D0, flg(1, slow=bool(self.o('cmap', 0))) + epi_pk(4) + epi_pk(5) + self.flag_slow(self.sF3, 128))
        g.begin(); g.raw("L_dgo:"); W.before(D0, g.end())
        self.vX3 = self.vHP
        W.before(D0, rdset(1) + self.lchk_issue(K_D2, t1, own=True) + self.lchk_check(K_D2, t1, own=True))
        for p, k in ((2, K_D3), (3, K_D4)):
            at = D0 + 4*(DPART[p][0] - (NWF - 1))
            W.at(at - 6, rdset(p)); W.at(at - 4, self.lchk_issue(k, t1, own=True)); W.at(at - 1, self.lchk_check(k, t1, own=True))
        for i in range(NWF - 1, NK):
            for j, grp in enumerate(wread(i)): W.at(D0 + 4*(i - (NWF - 1)) + j, grp)
        LD = self.o("d_la", 14)
        lat = lambda m: D0 + max(m - PRE, 2*(m - LD))
        S1 = self.o("d_s1", 12); lat0 = lat
        lat = lambda m: max(lat0(m), D0 + S1 + (m - 16)) if m >= 16 else lat0(m)
        W.at(D0 + self.o("d_s1p", 0), ([] if DM else flg(1)) + self.apoll_issue(self.vP3, t2, 128))
        W.at(lat(16), self.apoll_check(self.vP3, t2, 128))
        LD2 = self.o("d_la2", 7)
        lat2 = lambda m: D0 + 2*(m - LD2) if m >= 30 else lat(m)
        pi = lat2(30) - self.o("d_p2", 6)
        W.at(pi, self.apoll_issue(self.vP3, t2, 256)) if False else None
        for m in range(PRE, 30):
            assert m < NH or lat2(m) > D0 + 2*(m - NH) + 1
            W.at(lat2(m), lds[m])
        if DM: e2 = D0
        else:
            rest, e2 = W.fill(epi(4) + epi(5), D0 + 2, pi - 2, cap=self.o("e_cap2", 9)); assert not rest, len(rest)
        f2 = min(e2 + self.o("d_fl", 10), pi - 1)
        W.at(f2, flg(2))
        W.at(pi, self.apoll_issue(self.vP3, t2, 256)); W.at(lat2(30), self.apoll_check(self.vP3, t2, 256))
        for m in range(30, len(lds)): W.at(lat2(m), lds[m])
        self.info = (e2 - D0, f2 - D0, pi - D0, p0 - D0)
        if self.stamps and self.o("dst", 0):
            for at in (1, 16, 32, 46, 60, 74):
                g.begin(); self.stamp(f"d{at}"); W.before(D0 + at, g.end())
        self.vRw = [T, T + 1, T + 2]; self.vRr = T + 3
        g.begin(); self.red_consts(alloc=False); rc = g.end()
        for i in range(4): W.at(e2 + 3 + 2*i, rc[4*i:4*i+4])
        W.at(D0 + 4*(DPART[3][0] - (NWF - 1)) + 6, self.grp("s_barrier"))
        g.add(W.out())
        self.stamp("Dmf")
        for a in (3, 2, 1):
            for grp in self.red_write(DA, a): g.add(grp)
        g.waitds(); g("s_barrier")
        assert ACC[1] == ACC[0] + 16 and ACC[2] == ACC[0] + 32
        OF_ = ("", "sc1", "nt", "sc0 sc1")[self.o("ost", 0)]
        for l in self.red_add(DA, ACC[0]): g(l)
        for j in range(8): g(f"v_cvt_pk_bf16_f32 v{self.vHP+j}, v{DA[0]+2*j}, v{DA[0]+2*j+1}")
        g(f"buffer_store_dwordx4 {vr(self.vHP,4)}, v{self.vRM}, {SOUT}, 0 offen {OF_}")
        g(f"buffer_store_dwordx4 {vr(self.vHP+4,4)}, v{self.vRM}, {SOUT}, 0 offen offset:32 {OF_}")

    def build(self):
        g = self.g
        self.prologue(); self.helper(); self.phaseA(); self.phaseB(); self.phaseC()
        if self.stamps:
            self.stamp("end")
            g(f"s_lshl_b32 s3, s2, 2"); g(f"s_add_u32 s3, s3, {sW}"); g("s_lshl_b32 s3, s3, 8"); g(f"s_add_u32 s3, s3, {WS_STAMP}")
            g(f"v_lshlrev_b32 v{self.vL4}, 2, v{self.vL}"); g(f"buffer_store_dword v{self.vST}, v{self.vL4}, {SWS}, s3 offen")
        if self.o("diag_t", 0):
            g("s_mov_b32 s52, 0")
            g.label("L_dg", keep=True)
            g("s_memrealtime s[72:73]"); g("s_add_u32 s52, s52, 1"); g("s_waitcnt lgkmcnt(0)"); g("s_sub_u32 s72, s72, s70")
            g("s_cmp_gt_u32 s52, 100000"); g("s_cbranch_scc1 L_end")
            g(f"s_cmp_lt_u32 s72, {self.o('diag_t', 0)}"); g("s_cbranch_scc1 L_dg")
        g.label("L_end", keep=True)
        g("s_endpgm")
        for st in self.tail: g.add(st)
        g.raw("L_codeend:")
        body = g.finalize()
        hdr = open("ref.txt").read().split("; Override launch geometry")[0]
        s = hdr + "; @launch grid=(256,1,1) block=(512,1,1) lds=163840\n"
        s += '.amdgcn_target "amdgcn-amd-amdhsa--gfx950"\n.text\n'
        s += f".globl {NAME}_kernel\n.p2align 8\n.type {NAME}_kernel,@function\n{NAME}_kernel:\n"
        s += body + "    s_endpgm\n"
        s += f'.section .rodata,"a"\n.p2align 6\n.amdhsa_kernel {NAME}_kernel\n'
        s += "  .amdhsa_next_free_vgpr 256\n  .amdhsa_next_free_sgpr 102\n  .amdhsa_accum_offset 256\n"
        s += "  .amdhsa_group_segment_fixed_size 0\n  .amdhsa_kernarg_size 80\n  .amdhsa_user_sgpr_count 2\n"
        s += "  .amdhsa_user_sgpr_kernarg_segment_ptr 1\n  .amdhsa_system_sgpr_workgroup_id_x 1\n"
        s += "  .amdhsa_float_denorm_mode_32 3\n.end_amdhsa_kernel\n"
        return s

if __name__ == "__main__":
    import argparse
    ap = argparse.ArgumentParser()
    ap.add_argument("-o", default="k.s"); ap.add_argument("--stamps", action="store_true"); ap.add_argument("--opt", default="")
    a = ap.parse_args()
    opt = {kv.split("=")[0]: int(kv.split("=")[1]) for kv in a.opt.split(",") if kv}
    k = K(a.stamps, opt); s = k.build()
    open(a.o, "w").write(s)
    if a.stamps: open(a.o + ".names", "w").write("\n".join(" ".join(k.names[r]) for r in "CSJ"))
    print("ins", k.g.stats, "vgpr hi", k.V.hi, "sgpr hi", k.S.hi, k.info)
```

```python
import sys, struct
sys.path.insert(0, "gen")
from asmgen import *

NAME = "sequential_preLN__sliding_local_dilated__glu_gated_geglu__prompt"
K1 = 1024
WS_O, WS_H, WS_HH, WS_HST, WS_CS, WS_ST = 0x001000, 0x202000, 0x403000, 0xA04000, 0xA44000, 0xAC4000
WS_FF, WS_FW, WS_FS, WS_STAMP, WS_WC = 0xAD0000, 0xAE0000, 0xB00000, 0xC00000, 0xD00000
WS_SIZE = 0x1000000
HHP = 96
HHPAD = lambda pg: WS_HH + (-(-((pg << 21) - WS_HH) // (HHP*K1)))*HHP*K1 + 94*K1
WARM = [0, 0x201000, 0x402000, HHPAD(3), HHPAD(4), 0xA03000, 0xCF0000, 0xFF0000]
assert [x >> 21 for x in WARM] == list(range(8))
SX, SWQ, SWO, SWG, SWU, SWD, SOUT, SDBG, SWS = [f"s[{b}:{b+3}]" for b in range(8, 44, 4)]
sW, sRB, sCB, sR128, sCGX = "s44", "s45", "s46", "s47", "s68"
sNON = "s[70:71]"
POLL_LIMIT = 1 << 16
LOG2E = 1.4426950408889634
SLOT = 34*K1; SCR = 136*K1; TAB = 152*K1; CST = 152*K1; SYNC = 159*K1; NONL = SYNC + 1008
(K_WB, K_B2, K_B3, K_B4, K_C01, K_C23, K_P0, K_C45, K_U3, K_U5, K_D1, K_D2, K_D3, K_D4, K_DS, K_AE, K_TB, K_PZ, K_CS, K_T2, K_PP, K_IS) = range(22)
K_A = 22; K_F = 31; K_AX = 41; K_G1 = 35; K_G2 = 36; K_C23b = 37; K_C45b = 38; K_P0b = 39; K_C01b = 40
DPART = [(0, 3, 128*K1, 6*K1), (3, 8, 64*K1, 16*K1), (11, 8, 0, 16*K1), (19, 3, 128*K1, 6*K1)]
DK = [(0, i) for i in range(8)] + [(1, i) for i in range(7)] + [(2, i) for i in range(7)]
def f32(x): return "0x%08x" % struct.unpack("<I", struct.pack("<f", x))[0]

class K:
    def __init__(self, stamps=False, opt=None):
        self.g = Gen(); self.V = Alloc(0, 256); self.S = Alloc(74, 100)
        self.stamps = stamps; self.tail = []; self.opt = opt or {}; self.names = {"C": [], "S": [], "J": []}; self.role = "C"
        self.SC = "" if self.opt.get("loc", 0) else "sc1"
    def o(self, k, d): return self.opt.get(k, d)
    def stamp(self, name):
        if not self.stamps: return
        roles = "SJ" if self.role == "H" else self.role
        if self.role == "H":
            n = max(len(self.names["S"]), len(self.names["J"]))
            for r in "SJ": self.names[r] += ["-"] * (n - len(self.names[r]))
        i = len(self.names[roles[0]])
        for r in roles: self.names[r].append(name)
        self.g("s_memtime s[72:73]" if self.o("cyc", 0) else "s_memrealtime s[72:73]"); self.g("s_waitcnt lgkmcnt(0)"); self.g(f"v_writelane_b32 v{self.vST}, s72, {i}")
    def s(self): return f"s{self.S(1)}"
    def grp(self, *lines, tag=None):
        g = self.g; g.begin()
        for l in lines: g(l, tag)
        return g.end()

    def flag_fast(self, sid, off=0):
        if not self.o("fast", 1): return []
        return self.grp("s_mov_b64 exec, 1", f"buffer_store_dwordx2 {vr(self.vNON,2)}, v{self.vZero}, {SWS}, {sid} offen offset:{off}", "s_mov_b64 exec, -1")
    def flag_slow(self, sid, off=0):
        return self.grp(f"s_lshl_b32 s4, {sid}, 4", f"s_add_u32 s4, s4, {(WS_FS - WS_FF*16 + off*16) & 0xffffffff}", "s_mov_b64 exec, 0xffff",
                        f"buffer_store_dwordx2 {vr(self.vNON,2)}, v{self.vL8}, {SWS}, s4 offen sc1", "s_mov_b64 exec, -1")
    def slow_loop(self, Ls, Lb, vaddr, tmp, off, pre):
        g = self.g; L2 = g.newlabel("L_sl"); x = self.vX3
        g.begin()
        g.label(Ls, keep=True)
        for grp in pre: g.add(grp)
        g("s_mov_b32 s53, 0")
        g(f"v_lshlrev_b32 v{x+2}, 4, v{vaddr}"); g(f"v_add_u32 v{x+2}, {(WS_FS - WS_FF*16 + off*16) & 0xffffffff}, v{x+2}")
        g.label(L2, keep=True)
        g(f"buffer_load_dwordx2 {vr(tmp,2)}, v{vaddr}, {SWS}, 0 offen offset:{off} sc1")
        g(f"buffer_load_dwordx2 {vr(x,2)}, v{x+2}, {SWS}, 0 offen sc1")
        g("s_add_u32 s53, s53, 1"); g("s_waitcnt vmcnt(0)")
        g(f"s_cmp_gt_u32 s53, {POLL_LIMIT}"); g(f"s_cbranch_scc1 {Lb}")
        g(f"v_cmp_ne_u64 vcc, {sNON}, {vr(tmp,2)}"); g(f"v_cmp_ne_u64 s[6:7], {sNON}, {vr(x,2)}")
        g("s_and_b64 vcc, vcc, s[6:7]"); g(f"s_cbranch_vccnz {L2}")
        g.branch(f"s_branch {Lb}", keep=True)
        self.tail.append(g.end())
    def poll(self, vaddr, tmp, off=0, pre=()):
        g = self.g; L = g.newlabel("L_poll"); Lb = g.newlabel("L_go"); Ls = g.newlabel("L_slow")
        if not self.o("fast", 1):
            g.branch(f"s_cbranch_execnz {Ls}", keep=True); g("s_waitcnt vmcnt(0)")
        else:
            g("s_mov_b32 s52, 0")
            g.label(L, keep=True)
            g(f"buffer_load_dwordx2 {vr(tmp,2)}, v{vaddr}, {SWS}, 0 offen offset:{off} sc1")
            g("s_add_u32 s52, s52, 1"); g(f"s_cmp_gt_u32 s52, {self.o('nfast', 24)}"); g(f"s_cbranch_scc1 {Ls}")
            g("s_waitcnt vmcnt(0)")
            g(f"v_cmp_ne_u64 vcc, {sNON}, {vr(tmp,2)}"); g(f"s_cbranch_vccnz {L}")
        g.label(Lb, keep=True)
        self.slow_loop(Ls, Lb, vaddr, tmp, off, pre)
    def apoll_issue(self, vaddr, tmp, off=0):
        return self.grp(f"buffer_load_dwordx2 {vr(tmp,2)}, v{vaddr}, {SWS}, 0 offen offset:{off} sc1")
    def apoll_check(self, vaddr, tmp, off=0, pre=(), plain=False):
        g = self.g; Ls = g.newlabel("L_as"); Lb = g.newlabel("L_ab")
        g.begin(); g(f"v_cmp_ne_u64 vcc, {sNON}, {vr(tmp,2)}"); g(f"s_cbranch_vccnz {Ls}"); g.raw(Lb + ":"); main = g.end()
        g.begin(); g.label(Ls, keep=True)
        if plain:
            L2 = g.newlabel("L_al"); g("s_mov_b32 s53, 0"); g.label(L2, keep=True)
            g(f"buffer_load_dwordx2 {vr(tmp,2)}, v{vaddr}, {SWS}, 0 offen offset:{off} sc1")
            g("s_add_u32 s53, s53, 1"); g("s_waitcnt vmcnt(0)"); g(f"s_sleep {self.o('pw_slp', 1)}")
            g(f"s_cmp_gt_u32 s53, {POLL_LIMIT}"); g(f"s_cbranch_scc1 {Lb}")
            g(f"v_cmp_ne_u64 vcc, {sNON}, {vr(tmp,2)}"); g(f"s_cbranch_vccnz {L2}")
        else: self.poll(vaddr, tmp, off, pre)
        g.branch(f"s_branch {Lb}", keep=True)
        self.tail.append(g.end())
        return main
    def sig(self, k): return self.grp(f"ds_write_b32 v{self.vSig}, v{self.vSig} offset:{16*k}")
    def lchk_issue(self, k, tmp, own=False):
        return self.grp(f"ds_read_b32 v{tmp}, v{self.vOwn if own else self.vAll} offset:{16*k}")
    def lchk_check(self, k, tmp, own=False, neg=False, sleep=0):
        g = self.g; Ls = g.newlabel("L_ls"); Lb = g.newlabel("L_lb"); L2 = g.newlabel("L_ll"); cmp_ = "ne" if neg else "eq"
        g.begin(); g(f"v_cmp_{cmp_}_u32 vcc, 0, v{tmp}"); g(f"s_cbranch_vccnz {Ls}"); g.raw(Lb + ":"); main = g.end()
        g.begin()
        g.label(Ls, keep=True); g("s_mov_b32 s53, 0")
        g.label(L2, keep=True)
        g(f"ds_read_b32 v{tmp}, v{self.vOwn if own else self.vAll} offset:{16*k}")
        g("s_add_u32 s53, s53, 1")
        if sleep: g(f"s_sleep {sleep}")
        g("s_waitcnt lgkmcnt(0)")
        g(f"s_cmp_gt_u32 s53, {POLL_LIMIT*16}"); g(f"s_cbranch_scc1 {Lb}")
        g(f"v_cmp_{cmp_}_u32 vcc, 0, v{tmp}"); g(f"s_cbranch_vccnz {L2}")
        g.branch(f"s_branch {Lb}", keep=True)
        self.tail.append(g.end())
        return main
    def lwait(self, k, tmp, own=False, sleep=0, addr=None):
        g = self.g; L = g.newlabel("L_lw"); Lgo = g.newlabel("L_lg")
        g("s_mov_b32 s53, 0")
        g.label(L, keep=True)
        g(f"ds_read_b32 v{tmp}, v{addr if addr is not None else (self.vOwn if own else self.vAll)} offset:{16*k}")
        g("s_add_u32 s53, s53, 1"); g(f"s_cmp_gt_u32 s53, {POLL_LIMIT*16}"); g(f"s_cbranch_scc1 {Lgo}")
        if sleep: g(f"s_sleep {sleep}")
        g("s_waitcnt lgkmcnt(0)")
        g(f"v_cmp_eq_u32 vcc, 0, v{tmp}"); g(f"s_cbranch_vccnz {L}")
        g.label(Lgo, keep=True)
    def pause(self, on):
        return self.sig(K_PZ) if on else self.grp(f"ds_write_b32 v{self.vSig}, v{self.vZero} offset:{16*K_PZ}")
    def sync_consts(self, a):
        g, L = self.g, self.vL
        g(f"s_lshl_b32 s4, {sW}, 2"); g(f"s_add_u32 s4, s4, {SYNC}"); g(f"v_mov_b32 v{self.vOwn}, s4")
        g(f"v_mov_b32 v{a}, 0x40000"); g(f"v_cmp_eq_u32 vcc, 0, v{L}"); g(f"v_cndmask_b32 v{self.vSig}, v{a}, v{self.vOwn}, vcc")
        g(f"v_and_b32 v{a}, 3, v{L}"); g(f"v_lshlrev_b32 v{a}, 2, v{a}"); g(f"v_add_u32 v{self.vAll}, {SYNC}, v{a}")
    def get_nonce(self, a):
        return [self.grp(f"v_mov_b32 v{a}, {NONL}", f"ds_read_b64 {vr(self.vNON,2)}, v{a}"),
                self.grp(f"v_readfirstlane_b32 s70, v{self.vNON}", f"v_readfirstlane_b32 s71, v{self.vNON+1}")]
    def srd(self, base, ptr, size):
        g = self.g
        g(f"s_mov_b32 s{base}, s{ptr}"); g(f"s_and_b32 s{base+1}, s{ptr+1}, 0xffff"); g(f"s_mov_b32 s{base+2}, {size}"); g(f"s_mov_b32 s{base+3}, 0x20000")
    def pi8(self, acc, t):
        g, L = self.g, self.vL
        g(f"v_and_b32 v{t}, 1, v{L}"); g(f"v_lshl_add_u32 v{acc}, v{t}, 4, v{acc}")
        g(f"v_bfe_u32 v{t}, v{L}, 1, 1"); g(f"v_lshl_add_u32 v{acc}, v{t}, 3, v{acc}")
    def rbf(self, r):
        self.g(f"v_cvt_pk_bf16_f32 v{r}, v{r}, v{r}"); self.g(f"v_and_b32 v{r}, 0xffff0000, v{r}")
    def cmap(self):
        g = self.g
        if self.o("cmap", 0) == 0:
            g("s_and_b32 s4, s2, 7"); g("s_lshl_b32 s4, s4, 1"); g("s_lshr_b32 s6, s2, 7"); g(f"s_add_u32 {sR128}, s4, s6")
            g("s_lshr_b32 s4, s2, 3"); g(f"s_and_b32 {sCGX}, s4, 15")
            if self.o("cgmap", 1):
                perm = list(range(16)); perm[3], perm[14] = 14, 3; perm[11], perm[15] = 15, 11
                lo = sum(perm[i] << (4*i) for i in range(8)); hi = sum(perm[8+i] << (4*i) for i in range(8))
                g(f"s_mov_b32 s6, {lo:#x}"); g(f"s_mov_b32 s7, {hi:#x}"); g(f"s_lshl_b32 s4, {sCGX}, 2"); g("s_lshr_b64 s[6:7], s[6:7], s4"); g(f"s_and_b32 {sCGX}, s6, 15")
        else:
            g("s_and_b32 s4, s2, 6"); g("s_lshl_b32 s4, s4, 1"); g("s_lshr_b32 s6, s2, 6"); g(f"s_add_u32 {sR128}, s4, s6")
            g("s_lshr_b32 s4, s2, 3"); g("s_and_b32 s4, s4, 7"); g("s_and_b32 s6, s2, 1"); g("s_lshl_b32 s6, s6, 3"); g(f"s_add_u32 {sCGX}, s4, s6")
            perm = [0, 1, 2, 14, 3, 4, 5, 6, 7, 8, 9, 15, 10, 11, 12, 13]
            lo = sum(perm[i] << (4*i) for i in range(8)); hi = sum(perm[8+i] << (4*i) for i in range(8))
            g(f"s_mov_b32 s6, {lo:#x}"); g(f"s_mov_b32 s7, {hi:#x}"); g(f"s_lshl_b32 s4, {sCGX}, 2"); g("s_lshr_b64 s[6:7], s[6:7], s4"); g(f"s_and_b32 {sCGX}, s6, 15")

    def prologue(self):
        g, V = self.g, self.V
        g("s_cmp_ge_u32 s2, 256"); g("s_cbranch_scc1 L_end")
        g("s_load_dwordx16 s[48:63], s[0:1], 0"); g("s_load_dwordx4 s[64:67], s[0:1], 64"); g("s_memrealtime s[100:101]")
        assert V(1) == 0
        self.vL, self.vL16, self.vST, self.vNON, self.vSig, self.vOwn, self.vAll, self.vL8, self.vZero = V(1), V(1), V(1), V(2), V(1), V(1), V(1), V(1), V(1)
        self.NCOMMON = 11
        g(f"v_lshrrev_b32 v{self.vL16}, 6, v0"); g(f"v_and_b32 v{self.vL}, 63, v0"); g(f"v_readfirstlane_b32 s3, v{self.vL16}")
        g("s_and_b32 s4, s2, 7"); g("s_lshr_b32 s5, s2, 3")
        g("s_lshl_b32 s6, s4, 2"); g("s_lshr_b32 s7, s5, 3"); g(f"s_add_u32 {sRB}, s6, s7"); g(f"s_and_b32 {sCB}, s5, 7")
        g(f"s_and_b32 {sW}, s3, 3")
        if self.stamps: g(f"v_mov_b32 v{self.vST}, 0")
        g(f"v_lshlrev_b32 v{self.vL16}, 4, v{self.vL}")
        g("s_cmp_lt_u32 s3, 4"); g.branch("s_cbranch_scc1 L_compute", keep=True)
        g("s_cmp_ge_u32 s3, 6"); g.branch("s_cbranch_scc1 L_job", keep=True)

    def helper(self):
        g = self.g; V = Alloc(self.NCOMMON, 256); L = self.vL
        a, b, c, vXs, vWs = V(1), V(1), V(1), V(1), V(1)
        vKs, vCs, vCs2, vCw, vPW, vPC = V(1), V(1), V(1), V(1), V(1), V(1); vDw = [V(1) for _ in range(3)]; t2 = V(2)
        STG = V(208, 4); CA = V(16, 4); ON = V(4, 4)
        Qd = lambda i: STG + 4*i
        sBm, sBs, sCm, sD0, sD7, sDm, sUm, sCSr = "s82", "s83", "s84", "s85", "s86", "s87", "s88", "s89"
        def start_stamp():
            if self.stamps: g(f"v_writelane_b32 v{self.vST}, s100, 0"); self.names[self.role].append("start")
        def sym_setup():
            g.begin()
            self.srd(16, 52, 512*512*2); self.srd(28, 60, 1376*512*2); self.srd(40, 66, WS_SIZE)
            self.cmap()
            g(f"v_bfe_u32 v{a}, v{L}, 4, 1"); g(f"v_lshlrev_b32 v{a}, 2, v{a}")
            g(f"v_and_b32 v{b}, 7, v{L}"); g(f"v_xor_b32 v{a}, v{a}, v{b}"); g(f"v_lshlrev_b32 v{a}, 4, v{a}")
            g(f"v_lshrrev_b32 v{b}, 3, v{L}"); g(f"v_lshl_add_u32 v{a}, v{b}, 10, v{a}")
            g(f"s_lshl_b32 s4, {sCB}, 7"); g(f"v_add_u32 v{vKs}, s4, v{a}")
            g(f"s_lshl_b32 s6, {sW}, 14"); g(f"s_add_u32 {sBm}, s6, {64*K1}"); g(f"s_lshl_b32 {sBs}, {sW}, 17")
            g(f"s_lshl_b32 {sUm}, {sW}, 12")
            g(f"s_mul_i32 s4, {sCGX}, {6*32*K1}"); g(f"s_add_u32 s4, s4, {sUm}"); g(f"s_add_u32 {sCm}, s4, {WS_WC}")
            g(f"s_cmp_ge_u32 {sCGX}, 14"); g("s_cselect_b32 s4, 0x80000000, 0"); g(f"v_or_b32 v{vCs2}, s4, v{self.vL16}")
            g(f"s_cmp_eq_u32 {sCGX}, 15"); g("s_cselect_b32 s4, 0x80000000, 0"); g(f"s_cselect_b32 s6, 0, {sCGX}"); g(f"v_or_b32 v{vCs}, s4, v{self.vL16}")
            g("s_lshl_b32 s6, s6, 3"); g(f"s_add_u32 s6, s6, {sW}"); g("s_lshl_b32 s7, s6, 9"); g(f"s_add_u32 s7, s7, {WS_FW}")
            g(f"v_and_b32 v{a}, 3, v{L}"); g(f"v_bfe_u32 v{b}, v{L}, 2, 1"); g(f"v_lshl_add_u32 v{a}, v{b}, 4, v{a}"); g(f"v_lshl_add_u32 v{vPW}, v{a}, 7, s7")
            g(f"s_lshl_b32 s6, s6, 12"); g(f"s_add_u32 {sCSr}, s6, {WS_CS}"); g(f"v_mul_u32_u24 v{vPC}, 12, v{L}")
            for i in range(3):
                g(f"s_mul_i32 s4, {sW}, {DPART[i][3]}"); g(f"s_add_u32 s4, s4, {DPART[i][2]}"); g(f"v_add_u32 v{vDw[i]}, s4, v{self.vL16}")
                if i == 0: g(f"s_mov_b32 {sDm}, s4")
            g(f"s_lshr_b32 s4, {sW}, 1"); g("s_mul_i32 s4, s4, 6"); g(f"s_and_b32 s7, {sW}, 1"); g("s_add_u32 s4, s4, s7")
            g(f"s_lshl_b32 {sD0}, s4, 14"); g(f"s_lshl_b32 {sD7}, s7, 14")
            return g.end()
        events = {}
        def after(n, fn): events.setdefault(n, []).append(fn)
        PZ = self.o("pause", 1)
        def run(loads, pz_from=None, slow=0):
            pend = False; dep0 = self.o("h_dep", 9) if self.role == "H" else 0
            for n in range(len(loads) + 1):
                for fn in events.pop(n, []): fn(); pend = False
                if n == len(loads): break
                if PZ and pz_from is not None and n >= pz_from and (n - pz_from) % 2 == 0:
                    if not pend: g.add(self.lchk_issue(K_PZ, vXs))
                    g.add(self.lchk_check(K_PZ, vXs, neg=True, sleep=1))
                    g.add(loads[n]); g.add(self.lchk_issue(K_PZ, vXs)); pend = True
                else: g.add(loads[n])
                dep = self.o("tr_d", 3) if n < slow else dep0
                if dep: g(f"s_waitcnt vmcnt({dep-1})")
            for n in sorted(events):
                for fn in events.pop(n): fn()

        self.role = "S"
        if self.o("sprio", 0): g(f"s_setprio {self.o('sprio', 2)}")
        sXb, sX0, sXm, sWm, sEx, sRk, sKq, sWq = "s74", "s75", "s76", "s77", "s78", "s79", "s80", "s81"
        g(f"s_lshl_b32 s6, {sW}, 3")
        g(f"v_lshrrev_b32 v{a}, 3, v{L}"); g(f"v_add_u32 v{b}, s6, v{a}"); g(f"v_bfe_u32 v{c}, v{b}, 1, 3")
        g(f"v_and_b32 v{vXs}, 7, v{L}"); g(f"v_xor_b32 v{c}, v{c}, v{vXs}"); g(f"v_lshlrev_b32 v{vXs}, 10, v{b}"); g(f"v_lshl_add_u32 v{vXs}, v{c}, 4, v{vXs}")
        g(f"v_mul_u32_u24 v{a}, 3072, v{b}")
        g(f"v_bfe_u32 v{b}, v{L}, 4, 1"); g(f"s_lshl_b32 s6, {sW}, 1"); g(f"v_or_b32 v{b}, s6, v{b}")
        g(f"v_bfe_u32 v{c}, v{L}, 1, 2"); g(f"v_xor_b32 v{b}, v{b}, v{c}")
        g(f"v_and_b32 v{c}, 1, v{L}"); g(f"v_lshlrev_b32 v{c}, 4, v{c}"); g(f"v_lshl_add_u32 v{b}, v{b}, 5, v{c}")
        g(f"s_lshl_b32 s7, {sCB}, 7"); g(f"v_add3_u32 v{vWs}, v{a}, v{b}, s7")
        g(f"s_lshl_b32 {sXb}, {sRB}, 16"); g(f"s_sub_u32 {sX0}, {sXb}, 16384"); g(f"s_max_i32 {sX0}, {sX0}, 0")
        g(f"s_lshl_b32 {sXm}, {sW}, 10"); g(f"s_mul_i32 {sWm}, {sW}, 3072"); g(f"s_add_u32 {sWm}, {sWm}, {10*K1}")
        g(f"s_cmp_eq_u32 {sW}, 0"); g(f"s_cselect_b32 {sEx}, 0xffffff00, -1")
        RM = self.o("rotmask", 7)
        g(f"s_add_u32 s6, s4, {sCB}"); g(f"s_and_b32 {sRk}, s6, {RM}")
        if self.o("rot3", 0):
            g(f"s_lshl_b32 s7, {sRB}, 1"); g(f"s_cmp_eq_u32 {sCB}, 3"); g("s_cselect_b32 s7, s7, 0"); g(f"s_add_u32 {sRk}, {sRk}, s7")
        g("s_mov_b32 s10, %d" % (2048*512*2)); g("s_mov_b32 s11, 0x20000"); g("s_mov_b32 s14, %d" % (512*1536*2)); g("s_mov_b32 s15, 0x20000")
        g("s_waitcnt lgkmcnt(0)")
        g("s_mov_b32 s8, s48"); g("s_and_b32 s9, s49, 0xffff"); g("s_mov_b32 s12, s50"); g("s_and_b32 s13, s51, 0xffff")
        start_stamp(); self.stamp("ka")
        jobs = []; last = {}
        for P in range(8):
            sl = (P % 4) * SLOT
            for t in range(5):
                l = []
                if t == 0: l += [f"s_add_u32 {sKq}, {sRk}, {P}", f"s_and_b32 {sKq}, {sKq}, 7", f"s_mul_i32 {sWq}, {sKq}, {64*3072}", f"s_lshl_b32 {sKq}, {sKq}, 7"]
                l += [f"s_add_u32 m0, {sXm}, {sl + t*2048}"]
                if t == 0: l += [f"s_add_u32 s3, {sX0}, {sKq}", f"s_mov_b32 exec_lo, {sEx}"]
                elif t == 1: l += [f"s_add_u32 s3, {sXb}, {sKq}"]
                else: l += ["s_add_u32 s3, s3, 16384"]
                l += [f"buffer_load_dwordx4 v{vXs}, {SX}, s3 offen lds"]
                if t == 0: l += ["s_mov_b32 exec_lo, -1"]
                jobs.append(self.grp(*l, tag=f"x{P}"))
            for h in range(2):
                for bb in range(2):
                    for p in range(3):
                        l = [f"s_add_u32 m0, {sWm}, {sl + h*12288 + bb*6144}", f"s_add_u32 s3, {sWq}, {(h*32 + bb*16)*3072}"] if p == 0 else []
                        l += [f"buffer_load_dwordx4 v{vWs}, {SWQ}, s3 offen offset:{p*K1} lds"]
                        jobs.append(self.grp(*l, tag=f"w{2*P+h}"))
                last[2*P + h] = len(jobs)
        HF1 = self.o("h_first", 17); SL = self.o("h_sl", 16)
        def first():
            self.sync_consts(a); g("s_barrier")
            for k in (K_TB, K_PP): g.add(self.sig(k))
        after(HF1, first)
        chunks = []; cur = []
        for it in sym_setup():
            if len(cur) >= 6 and not it.op.startswith("s_cselect") and not cur[-1].op.startswith("s_cmp"): chunks.append(cur); cur = []
            cur.append(it)
        chunks.append(cur)
        for i, ch in enumerate(chunks): after(36 + i, (lambda ch=ch: g.add(ch)))
        assert 36 + len(chunks) < 4*17 - 3
        def stage_fn(k, s1):
            def fn():
                g.waitvm(f"w{s1}"); g.add(self.sig(K_A + k))
                if self.o("ast", 0) or k == 8: self.stamp(f"A{k}")
            return fn
        for k, s1 in enumerate([0, 1, 3, 5, 7, 9, 11, 13, 15]):
            lim = ((last[s1] + 16) // 17) * 17
            n = last[s1] + SL
            if s1 >= 7: n = last[s1] if self.o("h_blk", 0) else n
            after(max(n, HF1), stage_fn(k, s1))
        if self.o("fine", 1):
            for i, s1 in enumerate((2, 4)): after(max(last[s1] + SL, HF1), (lambda i=i, s1=s1: (g.waitvm(f"w{s1}"), g.add(self.sig(K_AX + i)))))
        for P in range(4, 8):
            after(17*P - 3, (lambda P=P: g.add(self.lchk_issue(K_F + P - 4, c))))
            after(17*P, (lambda P=P: g.add(self.lchk_check(K_F + P - 4, c, sleep=1))))
        WBR = self.o("wb_reg", 0)
        after(len(jobs), lambda: self.stamp("Ais"))
        if WBR:
            jobs += [self.grp(f"s_add_u32 s3, {sBs}, {(i//16)*256*K1 + (i%16)*8192}", f"buffer_load_dwordx4 {vr(Qd(i),4)}, v{vKs}, {SWO}, s3 offen") for i in range(32)]
        after(len(jobs) - self.o("is_early", 0), lambda: g.add(self.sig(K_IS)))
        run(jobs)
        g(f"v_add_u32 v{a}, {sBm}, v{self.vL16}")
        self.lwait(K_AE, c, sleep=1); self.stamp("AE")
        if WBR:
            for i in range(32):
                g(f"ds_write_b128 v{a}, {vr(Qd(i),4)} offset:{(i//16)*32*K1 + (i%16)*K1}")
                if i == 15: g.add(self.sig(K_WB))
        else:
            for i in range(32):
                g(f"s_add_u32 m0, {sBm}, {(i//16)*32*K1 + (i%16)*K1}"); g(f"s_add_u32 s3, {sBs}, {(i//16)*256*K1 + (i%16)*8192}")
                g(f"buffer_load_dwordx4 v{vKs}, {SWO}, s3 offen lds", tag=f"wb{i//16}")
                if self.o("wb_dep", 0): g(f"s_waitcnt vmcnt({self.o('wb_dep', 0) - 1})")
                if i == 31: g.waitvm("wb0"); g.add(self.sig(K_WB))
            g.waitvm("wb1")
        g(f"ds_write_b32 v{self.vSig}, v{self.vSig} offset:{16*K_WB + 8}")
        self.lwait(K_TB, c)
        for grp in self.get_nonce(a): g.add(grp)
        self.stamp("WB")
        g.label("L_sym")
        g(f"s_setprio {self.o('hprio', 0)}")

        g.begin(); self.role = "J"
        g.label("L_job", keep=True)
        PV = [Qd(12), Qd(12) + 1, Qd(12) + 2]; vTc = Qd(12) + 3; vPr, vPs, vP12, vF8 = Qd(13), Qd(13) + 1, Qd(13) + 2, Qd(13) + 3
        vTb, vT3 = Qd(14) + 2, Qd(14) + 3
        g(f"s_and_b32 s90, {sW}, 1")
        g("s_lshl_b32 s4, s2, 1"); g("s_add_u32 s98, s4, s90"); g("s_cmp_lt_u32 s98, 480"); g("s_cselect_b32 s91, 0, 0x80000000")
        g("s_mul_i32 s7, s98, 4370"); g("s_lshr_b32 s7, s7, 16"); g("s_mul_i32 s6, s7, 15"); g("s_sub_u32 s6, s98, s6"); g("s_and_b32 s7, s7, 31")
        g("s_lshl_b32 s92, s6, 5"); g("s_add_u32 s92, s92, s7")
        g(f"s_mul_i32 s94, s6, {6*32*K1}"); g("s_lshl_b32 s4, s7, 10"); g("s_add_u32 s94, s94, s4"); g(f"s_add_u32 s94, s94, {WS_WC}")
        g("s_mul_i32 s6, s6, 192"); g(f"s_mul_i32 s7, s7, {16*2752}"); g("s_add_u32 s6, s6, s7"); g("s_or_b32 s6, s6, s91")
        for i in range(3):
            g(f"v_add_u32 v{a}, {64*i}, v{L}"); g(f"v_mul_u32_u24 v{b}, 5462, v{a}"); g(f"v_lshrrev_b32 v{b}, 16, v{b}")
            g(f"v_mul_u32_u24 v{b}, {2752 - 192}, v{b}"); g(f"v_lshl_add_u32 v{b}, v{a}, 4, v{b}"); g(f"v_add_u32 v{PV[i]}, s6, v{b}")
        g(f"s_mul_i32 s95, s90, {6*K1 + 64}"); g(f"s_add_u32 s95, s95, {SCR}")
        g("s_lshl_b32 s6, s5, 1"); g("s_add_u32 s99, s6, s90"); g(f"v_mov_b32 v{b}, 0x80000000")
        g("s_mul_i32 s6, s99, 24"); g(f"v_add_u32 v{a}, s6, v{L}"); g(f"v_lshlrev_b32 v{a}, 10, v{a}"); g(f"v_cmp_gt_u32 vcc, 24, v{L}"); g(f"v_cndmask_b32 v{vT3}, v{b}, v{a}, vcc")
        g("s_mul_i32 s6, s98, 22"); g(f"v_add_u32 v{a}, s6, v{L}"); g(f"v_lshlrev_b32 v{a}, 7, v{a}"); g(f"v_cmp_gt_u32 vcc, 22, v{L}"); g(f"v_cndmask_b32 v{vTc}, v{b}, v{a}, vcc")
        g("s_lshl_b32 s6, s98, 3"); g(f"v_add_u32 v{a}, s6, v{L}"); g(f"v_lshlrev_b32 v{a}, 7, v{a}"); g(f"v_cmp_gt_u32 vcc, 8, v{L}"); g(f"v_cndmask_b32 v{vTb}, v{b}, v{a}, vcc")
        if self.o("t3b", 1):
            g("s_lshl_b32 s6, s99, 3"); g("s_sub_u32 s6, s6, 8"); g(f"v_add_u32 v{a}, s6, v{L}"); g(f"v_lshlrev_b32 v{a}, 10, v{a}"); g(f"v_add_u32 v{a}, 384, v{a}")
            g("s_mov_b32 s6, 0xff00"); g("s_mov_b32 s7, 0"); g(f"v_cndmask_b32 v{vTb}, v{vTb}, v{a}, s[6:7]")
        g("s_waitcnt lgkmcnt(0)")
        start_stamp()
        self.srd(12, 50, 512*1536*2); self.srd(20, 56, 512*1376*2); self.srd(24, 58, 512*1376*2); self.srd(16, 52, 512*512*2); self.srd(28, 60, 1376*512*2)
        if self.o("t3", 1): g(f"buffer_load_dword v{vT3}, v{vT3}, {SWQ}, 0 offen offset:384")
        WOT = self.o("wo_t", 1)
        if WOT == 1: g(f"buffer_load_dword v{Qd(14)}, v{vTb}, {SWO}, 0 offen")
        if self.o("wd_t", 0): g(f"buffer_load_dword v{Qd(14)+1}, v{vTc}, {SWD}, 0 offen")
        def batch_loads():
            for m in range(2):
                for i in range(3):
                    g(f"s_add_u32 m0, s95, {m*(3*K1 + 32) + i*K1}"); g("s_nop 0")
                    g(f"buffer_load_dwordx4 v{PV[i]}, {(SWG, SWU)[m]}, 0 offen lds", tag="pl")
            if not self.o("wd_t", 0) and not self.o("ct", 0): g(f"buffer_load_dword v{Qd(14)+1}, v{vTc}, {SWD}, 0 offen")
        EARLY = self.o("early", 0)
        self.sync_consts(a)
        g("s_barrier")
        for k in list(range(K_A, K_A + 9)) + [K_IS, K_AX, K_AX + 1]: g.add(self.sig(k))
        if EARLY:
            g(f"buffer_load_dword v{Qd(14)}, v{vTb}, {SWO}, 0 offen"); batch_loads(); self.stamp("go")
        g(f"v_mov_b32 v{self.vZero}, 0"); g(f"v_lshlrev_b32 v{self.vL8}, 3, v{L}")
        g.add(sym_setup())
        self.srd(8, 48, 2048*512*2); self.srd(36, 64, 256)
        g("s_lshl_b32 s93, s92, 10"); g(f"s_add_u32 s93, s93, {WS_CS}"); g("s_lshl_b32 s92, s92, 7"); g(f"s_add_u32 s92, s92, {WS_FW}")
        g(f"v_bfe_u32 v{b}, v{L}, 4, 1"); g(f"v_mul_u32_u24 v{a}, {3*K1 + 32}, v{b}")
        g(f"v_lshrrev_b32 v{b}, 5, v{L}"); g(f"v_mul_u32_u24 v{b}, {8*192}, v{b}"); g(f"v_add_u32 v{a}, v{a}, v{b}")
        g(f"v_bfe_u32 v{b}, v{L}, 2, 2"); g(f"v_mul_u32_u24 v{b}, 192, v{b}"); g(f"v_add_u32 v{a}, v{a}, v{b}")
        self.pi8(a, b); g(f"v_add_u32 v{vPr}, s95, v{a}")
        g(f"v_or_b32 v{vPs}, s91, v{self.vL16}"); g(f"v_or_b32 v{vF8}, s91, v{self.vL8}"); g(f"v_or_b32 v{vP12}, s91, v{vPC}")
        for i in range(4): g(f"v_mov_b32 v{ON+i}, 0x3f803f80")
        g(f"s_lshr_b32 s4, s2, {self.o('b_sh', 6)}"); g(f"s_and_b32 s4, s4, {self.o('b_n', 4) - 1}"); g("s_lshl_b32 s4, s4, 4"); g(f"v_add_u32 v{vWs}, s4, v{self.vAll}")
        g(f"s_lshl_b32 s96, {sRB}, 6"); g(f"s_lshl_b32 s4, {sCB}, 3"); g("s_add_u32 s96, s96, s4"); g("s_lshl_b32 s4, s90, 2"); g("s_add_u32 s96, s96, s4")
        self.stamp("set")
        if self.o("s_at", 0) >= 0: self.lwait(K_A + self.o("s_at", 0), c, sleep=2)
        g("s_lshl_b32 s4, s96, 10")
        for r in range(4): g(f"buffer_load_dwordx4 {vr(Qd(16+r),4)}, v{self.vL16}, {SX}, s4 offen offset:{r*K1}")
        g(f"buffer_load_dwordx2 {vr(self.vNON,2)}, v{self.vZero}, {SDBG}, 0 offen sc1")
        if not EARLY and WOT == 0: g(f"buffer_load_dword v{Qd(14)}, v{vTb}, {SWO}, 0 offen")
        if self.o("jprio", 0): g(f"s_setprio {self.o('jprio', 0)}")
        SQ = Qd(20); U = Qd(24)
        for r in range(4):
            for j in range(4):
                g(f"v_lshlrev_b32 v{U+2*j}, 16, v{Qd(16+r)+j}"); g(f"v_and_b32 v{U+2*j+1}, 0xffff0000, v{Qd(16+r)+j}")
            g(f"v_add_f32 v{SQ+r}, v{U}, v{U+1}"); g(f"v_mul_f32 v{SQ+4+r}, v{U}, v{U}"); g(f"v_fmac_f32 v{SQ+4+r}, v{U+1}, v{U+1}")
            for j in range(2, 8):
                g(f"v_add_f32 v{SQ+r}, v{SQ+r}, v{U+j}"); g(f"v_fmac_f32 v{SQ+4+r}, v{U+j}, v{U+j}")
        for sh in (8, 4, 2, 1):
            for i in range(8): g(f"v_add_f32_dpp v{SQ+i}, v{SQ+i}, v{SQ+i} row_ror:{sh} row_mask:0xf bank_mask:0xf")
        for sw in ("v_permlane16_swap_b32", "v_permlane32_swap_b32"):
            for i in range(8): g(f"v_mov_b32 v{U+i}, v{SQ+i}")
            for i in range(8): g(f"{sw} v{SQ+i}, v{U+i}")
            for i in range(8): g(f"v_add_f32 v{SQ+i}, v{SQ+i}, v{U+i}")
        for r in range(1, 4):
            g(f"v_cmp_eq_u32 vcc, {r}, v{L}"); g(f"v_cndmask_b32 v{SQ}, v{SQ}, v{SQ+r}, vcc"); g(f"v_cndmask_b32 v{SQ+4}, v{SQ+4}, v{SQ+4+r}, vcc")
        G = Qd(26)
        g(f"v_mul_f32 v{G}, {f32(1/512)}, v{SQ}"); g(f"v_mul_f32 v{SQ+4}, {f32(1/512)}, v{SQ+4}"); g(f"v_fma_f32 v{SQ+4}, -v{G}, v{G}, v{SQ+4}")
        g(f"v_max_f32 v{SQ+4}, 0, v{SQ+4}")
        self.rbf(G); self.rbf(SQ+4); g(f"v_add_f32 v{SQ+4}, {f32(1e-5)}, v{SQ+4}"); self.rbf(SQ+4)
        g(f"v_sqrt_f32 v{SQ+4}, v{SQ+4}"); self.rbf(SQ+4); g(f"v_rcp_f32 v{G+2}, v{SQ+4}")
        g("s_mov_b32 s52, 0")
        g.label("L_jn", keep=True)
        g(f"v_readfirstlane_b32 s70, v{self.vNON}"); g(f"v_readfirstlane_b32 s71, v{self.vNON+1}")
        g("s_cmp_lg_u32 s70, 0"); g.branch("s_cbranch_scc1 L_jn2", keep=True)
        g(f"buffer_load_dwordx2 {vr(self.vNON,2)}, v{self.vZero}, {SDBG}, 0 offen sc1")
        g("s_add_u32 s52, s52, 1"); g("s_waitcnt vmcnt(0)"); g(f"s_cmp_lt_u32 s52, {POLL_LIMIT}"); g.branch("s_cbranch_scc1 L_jn", keep=True)
        g.label("L_jn2", keep=True)
        g(f"v_mov_b32 v{G+1}, s70"); g(f"v_mov_b32 v{G+3}, s70")
        g("s_lshl_b32 s4, s96, 4"); g(f"s_add_u32 s4, s4, {WS_ST}"); g("s_mov_b64 exec, 15")
        g(f"buffer_store_dwordx4 {vr(G,4)}, v{self.vL16}, {SWS}, s4 offen sc1"); g("s_mov_b64 exec, -1")
        if self.o("jprio", 0): g("s_setprio 0")
        self.stamp("st")
        g("s_lshl_b32 s4, s90, 6"); g(f"v_add_u32 v{a}, s4, v{L}"); g(f"v_min_u32 v{a}, 79, v{a}")
        g(f"s_lshl_b32 s4, {sRB}, 6"); g("s_sub_u32 s4, s4, 16"); g(f"v_add_u32 v{b}, s4, v{a}"); g(f"v_max_i32 v{b}, 0, v{b}")
        g(f"v_lshlrev_b32 v{b}, 4, v{b}"); g(f"v_add_u32 v{b}, {WS_ST}, v{b}")
        g(f"v_lshlrev_b32 v{a}, 2, v{a}"); g(f"v_add_u32 v{a}, {TAB}, v{a}")
        def batch():
            if EARLY: return
            if self.o("b_is", 1): self.lwait(K_IS, c, sleep=1)
            else: self.lwait(K_A + self.o("b_0", 5), c, sleep=2, addr=vWs)
            self.stamp("go"); batch_loads()
        def gather():
            self.lwait(K_A + self.o("g_at", 5), c, sleep=2)
            g("s_mov_b32 s52, 0")
            g.label("L_jg", keep=True)
            g(f"buffer_load_dwordx4 {vr(G,4)}, v{b}, {SWS}, 0 offen sc1")
            g("s_add_u32 s52, s52, 1"); g(f"s_cmp_gt_u32 s52, {POLL_LIMIT}"); g("s_cbranch_scc1 L_jg2")
            g("s_waitcnt vmcnt(0)")
            g(f"v_cmp_ne_u32 vcc, s70, v{G+1}"); g(f"v_cmp_ne_u32 s[6:7], s70, v{G+3}"); g("s_or_b64 vcc, vcc, s[6:7]"); g("s_cbranch_vccz L_jg2")
            g("s_sleep 4"); g.branch("s_branch L_jg", keep=True)
            g.label("L_jg2", keep=True)
            g(f"ds_write_b32 v{a}, v{G}"); g(f"ds_write_b32 v{a}, v{G+2} offset:512")
            g(f"v_mov_b32 v{a}, {NONL}"); g(f"ds_write_b64 v{a}, {vr(self.vNON,2)}")
            g.add(self.sig(K_TB))
            self.stamp("TB")
        def patch():
            g("s_waitcnt vmcnt(0)")
            self.stamp("pl")
            if self.o("jprio2", 0): g(f"s_setprio {self.o('jprio2', 0)}")
            for u in range(6):
                for j2 in range(2): g(f"ds_read_b64_tr_b16 {vr(Qd(6+u)+2*j2,2)}, v{vPr} offset:{u*32 + j2*768}")
            g.add(self.sig(K_PP))
            for u in range(6):
                g(f"s_add_u32 s4, s94, {u*32*K1}"); g(f"buffer_store_dwordx4 {vr(Qd(6+u),4)}, v{vPs}, {SWS}, s4 offen sc1")
            g("s_mov_b32 s6, 0"); g("s_mov_b32 s7, -1")
            A6 = [CA, Qd(0), Qd(16), Qd(20), Qd(28), Qd(32)]
            for u in range(6): g(f"v_mfma_f32_32x32x16_bf16 {vr(A6[u],16)}, {vr(ON,4)}, {vr(Qd(6+u),4)}, 0")
            for i in range(3): g(f"v_cndmask_b32 v{Qd(15)+i}, v{A6[2*i]}, v{A6[2*i+1]}, s[6:7]")
            g(f"buffer_store_dwordx3 {vr(Qd(15),3)}, v{vP12}, {SWS}, s93 offen sc1")
            g("s_waitcnt vmcnt(0)")
            g("s_mov_b64 exec, 0xffff"); g(f"buffer_store_dwordx2 {vr(self.vNON,2)}, v{vF8}, {SWS}, s92 offen sc1"); g("s_mov_b64 exec, -1")
            self.stamp("PF")
        if EARLY:
            if self.o("p_at", -1) >= 0: self.lwait(K_A + self.o("p_at", -1), c, sleep=2)
            patch(); gather()
        elif self.o("b_first", 0) == 2: batch(); gather(); patch()
        elif self.o("b_first", 0): batch(); patch(); gather()
        else: gather(); batch(); patch()
        self.lwait(K_AE, c, sleep=2)
        g.branch("s_branch L_sym")
        jobcode = g.end()

        self.role = "H"
        self.stamp("sym")
        KO = (list(range(16, 32)) + list(range(16))) if self.o("c_ko", 1) else list(range(32))
        def pjob(p):
            out = []
            for half in range(2):
                for e in range(2):
                    u = 2*p + e; base = KO[16*half]*K1; v = vCs if u < 2 else vCs2
                    for j in range(4):
                        l = [f"s_add_u32 m0, {sUm}, {(p%2)*65536 + e*32768 + base}", f"s_add_u32 s3, {sCm}, {u*32*K1 + base}"] if j == 0 else []
                        l.append(f"buffer_load_dwordx4 v{v}, {SWS}, s3 offen offset:{j*K1} sc1 lds")
                        out.append(self.grp(*l, tag=f"wu{p}{half}"))
            return out
        qD = {n: Qd(2*(n - 11)) for n in range(11, 22)}
        def djob(n):
            j, i = DK[n]; sb = sD7 if (j, i) == (0, 7) else sD0; off = (12*i + 2*j)*16384
            if n < 11:
                m = (sDm, n*2048) if n < 3 else (sBm, (n-3)*2048)
                return [self.grp(f"s_add_u32 m0, {m[0]}, {m[1] + h*K1}", f"s_add_u32 s3, {sb}, {off + h*8192}", f"buffer_load_dwordx4 v{vKs}, {SWD}, s3 offen lds", tag="wd0" if n < 3 else "wd1") for h in range(2)]
            return [self.grp(f"s_add_u32 s3, {sb}, {off + h*8192}", f"buffer_load_dwordx4 {vr(qD[n]+4*h,4)}, v{vKs}, {SWD}, s3 offen") for h in range(2)]
        def dwrite(part, sk):
            f, n, _, _ = DPART[part]
            for i in range(n):
                for h in range(2): g(f"ds_write_b128 v{vDw[part % 3]}, {vr(qD[f+i]+4*h,4)} offset:{i*2048 + h*K1}")
            g.add(self.sig(sk))
        def cs_sum():
            for st in (4, 2, 1):
                for j in range(st):
                    for i in range(3): g(f"v_add_f32 v{Qd(44+j)+i}, v{Qd(44+j)+i}, v{Qd(44+j+st)+i}")
            g(f"s_lshr_b32 s4, {sW}, 1"); g("s_lshl_b32 s4, s4, 9"); g(f"s_and_b32 s6, {sW}, 1"); g("s_lshl_b32 s6, s6, 3"); g("s_add_u32 s4, s4, s6"); g(f"s_add_u32 s4, s4, {CST}")
            g(f"v_and_b32 v{b}, 31, v{L}"); g(f"v_lshl_add_u32 v{a}, v{b}, 4, s4"); g(f"v_lshrrev_b32 v{b}, 5, v{L}"); g(f"v_lshl_add_u32 v{a}, v{b}, 10, v{a}")
            self.lwait(K_T2, c, sleep=1)
            for i in range(3):
                x = Qd(44) + i; o = CA + 2*i
                g(f"v_cvt_pk_bf16_f32 v{o+1}, v{x}, 0"); g(f"v_lshlrev_b32 v{b}, 16, v{o+1}"); g(f"v_sub_f32 v{b}, v{x}, v{b}"); g(f"v_cvt_pk_bf16_f32 v{o}, v{x}, v{b}")
                g(f"ds_write_b64 v{a}, {vr(o,2)} offset:{2*i*K1}")
            g.add(self.sig(K_CS))
        LA = self.o("h_la", 8)
        gap = [x for n in range(11, 22) for x in djob(n)] + [x for n in range(3) for x in djob(n)]
        def take(n):
            nonlocal gap
            t = gap[:n]; gap = gap[n:]; return t
        self.lwait(K_PP, c)
        def trickle(n):
            d = self.o("tr_d", 3)
            for grp in take(n): g.add(grp); g(f"s_waitcnt vmcnt({d-1})")
        trickle(self.o("h_g0", 12))
        def pw(): g.add(self.apoll_issue(vPW, t2)); g.add(self.apoll_check(vPW, t2, plain=True)); self.stamp("PW")
        PF_ = self.o("pw_first", 2)
        if PF_ == 2: g.add(self.apoll_issue(vPW, t2))
        US = self.o("u_slow", 0)
        if self.o("g1", 1) and not US: self.lwait(K_G1, c, sleep=1)
        self.stamp("G1")
        if US: after(US, lambda: self.lwait(K_G1, c, sleep=1))
        if PF_ == 2: g.add(self.apoll_check(vPW, t2, plain=True)); self.stamp("PW")
        else: pw()
        p0 = pjob(0); p1 = pjob(1); p2 = pjob(2)
        csl = [self.grp(f"s_add_u32 s3, {sCSr}, {(j//4)*16*K1}", f"buffer_load_dwordx3 {vr(Qd(44+j),3)}, v{vPC}, {SWS}, s3 offen offset:{(j%4)*K1} sc1") for j in range(8)]
        CL = self.o("cs_late", 1); MB = self.o("mid", 2)
        if MB == 3:
            after(16, lambda: (g.waitvm("wu00"), g.add(self.sig(K_C01)), self.stamp("C01"), self.lwait(K_B4, c, sleep=1)))
            after(24, lambda: (g.waitvm("wu01"), g.add(self.sig(K_C01b))))
            run(p0 + p1[:8] + ([] if CL else csl), slow=US)
            g.waitvm("wu10"); g.add(self.sig(K_C23)); late = []
        else:
            run(p0[:8]); g.waitvm("wu00"); g.add(self.sig(K_C01)); self.stamp("C01"); self.lwait(K_B4, c, sleep=1)
            if MB == 2: run(p1[:8]); g.waitvm("wu10"); g.add(self.sig(K_C23)); late = p0[8:]
            else: late = p1[:8] + p0[8:]
        if not CL: cs_sum()
        if self.o("g2", 1): self.lwait(K_G2, c, sleep=1)
        self.stamp("G2")
        if MB == 1: after(8 + 4, lambda: (g.waitvm("wu10"), g.add(self.sig(K_C23))))
        if MB < 3: after(len(late) + 6, lambda: (g.waitvm("wu01"), g.add(self.sig(K_C01b))))
        if CL: late = late + csl; after(len(late) + 8, cs_sum)
        after(len(late) + 8 + LA, lambda: (g.waitvm("wu11"), g.add(self.sig(K_C23b)), self.stamp("C23")))
        run(late + p1[8:] + take(self.o("h_g2", 4)))
        self.lwait(K_P0, c, sleep=1)
        self.stamp("P0")
        after(8 + LA, lambda: (g.waitvm("wu20"), g.add(self.sig(K_C45))))
        run(p2[:8] + take(self.o("h_g3", 6)))
        self.lwait(K_P0b, c, sleep=1)
        after(8 + LA, lambda: (g.waitvm("wu21"), g.add(self.sig(K_C45b)), self.stamp("C45")))
        run(p2[8:] + take(99))
        g.waitvm("wd0"); g.add(self.sig(K_D1))
        self.stamp("n3")
        self.lwait(K_U3, c, sleep=1)
        run([x for n in range(3, 11) for x in djob(n)])
        g.waitvm("wd1"); g.add(self.sig(K_D2))
        self.stamp("D2")
        self.lwait(K_U5, c, sleep=1); dwrite(2, K_D3)
        self.lwait(K_DS, c, own=True, sleep=1); dwrite(3, K_D4)
        self.stamp("D4")
        if self.stamps:
            g(f"s_lshl_b32 s3, s2, 2"); g(f"s_add_u32 s3, s3, {sW}"); g("s_lshl_b32 s3, s3, 8"); g(f"s_add_u32 s3, s3, {WS_STAMP + 0x40000}")
            g(f"v_lshlrev_b32 v{a}, 2, v{L}"); g(f"buffer_store_dword v{self.vST}, v{a}, {SWS}, s3 offen")
        g("s_endpgm")
        g.add(jobcode)
        self.role = "C"

    def consts(self, a, b):
        g, V, L = self.g, self.V, self.vL
        self.sO0, self.sO1, self.sF1 = self.s(), self.s(), self.s()
        g(f"s_lshl_b32 s4, {sCB}, 2"); g(f"s_add_u32 s4, s4, {sW}")
        g(f"s_lshl_b32 s6, {sRB}, 6"); g("s_add_u32 s6, s6, s4"); g("s_lshl_b32 s6, s6, 10"); g(f"s_add_u32 {self.sO0}, s6, {WS_O}"); g(f"s_add_u32 {self.sO1}, {self.sO0}, {32*K1}")
        g(f"s_lshl_b32 s6, {sRB}, 5"); g("s_add_u32 s6, s6, s4"); g("s_lshl_b32 s6, s6, 3"); g(f"s_add_u32 {self.sF1}, s6, {WS_FF}")
        self.sOF = [[self.s(), self.s()], [self.s(), self.s()]]; self.sHF = [self.s(), self.s()]
        g(f"s_lshr_b32 s4, {sW}, 1"); g("s_mul_i32 s4, s4, 6"); g(f"s_and_b32 s7, {sW}, 1"); g("s_add_u32 s5, s4, s7")
        for rt in range(2):
            g(f"s_lshr_b32 s4, {sW}, 1"); g(f"s_xor_b32 s4, s4, {rt}"); g(f"s_lshl_b32 s6, {sRB}, 1"); g("s_add_u32 s4, s4, s6")
            g("s_lshl_b32 s6, s4, 5"); g(f"s_lshl_b32 s7, {sW}, 3"); g("s_add_u32 s6, s6, s7"); g("s_lshl_b32 s6, s6, 10"); g(f"s_add_u32 {self.sOF[rt][0]}, s6, {WS_O}")
            g(f"s_add_u32 {self.sOF[rt][1]}, {self.sOF[rt][0]}, 4096")
            g(f"s_mul_i32 s6, s4, {HHP}"); g(f"s_add_u32 s6, s6, {WS_HH//K1}"); g("s_add_u32 s7, s6, s5"); g(f"s_lshl_b32 {self.sHF[rt]}, s7, 10")
        self.sHs, self.sHt, self.sF2 = self.s(), self.s(), self.s()
        g(f"s_lshl_b32 s4, {sRB}, 1"); g(f"s_lshr_b32 s6, {sW}, 1"); g("s_add_u32 s4, s4, s6")
        g(f"s_lshl_b32 s6, {sCB}, 1"); g(f"s_and_b32 s7, {sW}, 1"); g("s_add_u32 s6, s6, s7")
        self.vRM = V(1)
        g(f"v_and_b32 v{a}, 31, v{L}"); g(f"v_lshlrev_b32 v{a}, 10, v{a}"); g(f"v_lshrrev_b32 v{b}, 5, v{L}"); g(f"v_lshl_add_u32 v{a}, v{b}, 4, v{a}")
        g("s_lshl_b32 s7, s4, 15"); g(f"v_add_u32 v{a}, s7, v{a}"); g("s_lshl_b32 s7, s6, 6"); g(f"v_add_u32 v{self.vRM}, s7, v{a}")
        g("s_lshl_b32 s4, s4, 4"); g("s_add_u32 s4, s4, s6")
        g("s_lshl_b32 s6, s4, 11"); g(f"s_add_u32 {self.sHs}, s6, {WS_H}")
        g("s_lshl_b32 s6, s4, 8"); g(f"s_add_u32 {self.sHt}, s6, {WS_HST}")
        g("s_lshl_b32 s6, s4, 3"); g(f"s_add_u32 {self.sF2}, s6, {WS_FF + 1024*8}")
        self.vKr = V(1)
        g(f"v_lshrrev_b32 v{a}, 5, v{L}"); g(f"v_lshlrev_b32 v{a}, 10, v{a}")
        g(f"v_bfe_u32 v{b}, v{L}, 2, 2"); g(f"v_lshl_add_u32 v{a}, v{b}, 7, v{a}")
        g(f"v_bfe_u32 v{b}, v{L}, 3, 1"); g(f"s_and_b32 s4, {sW}, 1"); g(f"v_xor_b32 v{b}, s4, v{b}"); g(f"v_lshl_add_u32 v{a}, v{b}, 6, v{a}")
        g(f"v_bfe_u32 v{b}, v{L}, 4, 1"); g(f"v_lshl_add_u32 v{a}, v{b}, 5, v{a}")
        self.pi8(a, b); g(f"v_mov_b32 v{self.vKr}, v{a}")
        self.sCh, self.sCt, self.sCo, self.sF3 = self.s(), self.s(), self.s(), self.s()
        g(f"s_lshl_b32 s4, {sR128}, 2"); g(f"s_add_u32 s4, s4, {sW}")
        g("s_lshl_b32 s6, s4, 15"); g(f"s_add_u32 {self.sCh}, s6, {WS_H}")
        g("s_lshl_b32 s6, s4, 12"); g(f"s_add_u32 {self.sCt}, s6, {WS_HST}")
        g(f"s_mul_i32 s6, s4, {HHP}"); g(f"s_mul_i32 s7, {sCGX}, 6"); g("s_add_u32 s6, s6, s7"); g("s_lshl_b32 s6, s6, 10"); g(f"s_add_u32 {self.sCo}, s6, {WS_HH}")
        g("s_mul_i32 s6, s4, 48"); g(f"s_add_u32 s6, s6, {sCGX}"); g("s_lshl_b32 s6, s6, 3"); g(f"s_add_u32 {self.sF3}, s6, {WS_FF + 2048*8}")
        self.vP1, self.vP2, self.vP3 = V(1), V(1), V(1)
        g("s_lshl_b32 s6, s4, 7"); g(f"s_add_u32 s6, s6, {WS_FF + 1024*8}")
        g(f"v_and_b32 v{a}, 15, v{L}"); g(f"v_lshl_add_u32 v{self.vP2}, v{a}, 3, s6")
        g(f"s_lshl_b32 s4, {sRB}, 5"); g(f"s_lshl_b32 s6, {sW}, 3"); g("s_add_u32 s4, s4, s6"); g("s_lshl_b32 s4, s4, 3"); g(f"s_add_u32 s4, s4, {WS_FF}")
        g(f"v_and_b32 v{a}, 7, v{L}"); g(f"v_lshl_add_u32 v{self.vP1}, v{a}, 3, s4")
        g(f"s_lshr_b32 s7, {sW}, 1"); g("s_sub_u32 s6, 7, s7"); g(f"v_min_u32 v{a}, s6, v{a}"); g(f"v_lshlrev_b32 v{a}, 4, v{a}")
        g(f"v_bfe_u32 v{b}, v{L}, 3, 1"); g(f"v_mul_u32_u24 v{b}, {48*8}, v{b}")
        g(f"s_mul_i32 s4, {sRB}, 96"); g("s_add_u32 s4, s4, s7"); g("s_lshl_b32 s4, s4, 3"); g(f"s_add_u32 s4, s4, {WS_FF + 2048*8}")
        g(f"v_add3_u32 v{self.vP3}, v{a}, v{b}, s4")

    def phaseA(self):
        g, V, L = self.g, self.V, self.vL
        g.label("L_compute", keep=True)
        self.vL4 = V(1); self.vHP = V(8, 4); self.vX3 = V(4)
        a, b, c = V(1), V(1), V(1); J = self.vX3
        if self.o("prio", 1): g(f"s_setprio {self.o('prio', 1)}")
        g("s_getpc_b64 s[6:7]"); g.raw("L_pc:")
        g(f"s_sub_u32 s6, s6, L_pc-{NAME}_kernel"); g("s_subb_u32 s7, s7, 0")
        g(f"v_lshrrev_b32 v{a}, 4, v0"); g(f"v_lshl_add_u32 v{a}, s5, 4, v{a}"); g(f"v_lshlrev_b32 v{a}, 7, v{a}")
        g(f"v_min_u32 v{a}, L_codeend-{NAME}_kernel-4, v{a}")
        g(f"global_load_dword v{J}, v{a}, s[6:7]")
        g(f"v_lshlrev_b32 v{self.vL8}, 3, v{L}"); g(f"v_lshlrev_b32 v{self.vL4}, 2, v{L}"); g(f"v_mov_b32 v{self.vZero}, 0")
        ONES = V(4, 4); Z4 = self.vHP
        for i in range(4): g(f"v_mov_b32 v{ONES+i}, 0x3f803f80"); g(f"v_mov_b32 v{Z4+i}, 0")
        g(f"v_bfe_u32 v{a}, v{L}, 3, 2"); g(f"v_mul_u32_u24 v{a}, {SLOT}, v{a}"); g(f"v_and_b32 v{b}, 7, v{L}"); g(f"v_lshl_add_u32 v{a}, v{b}, 4, v{a}")
        g(f"ds_write_b128 v{a}, {vr(ONES,4)}")
        g(f"v_add_u32 v{a}, {SYNC}, v{self.vL16}"); g(f"ds_write_b128 v{a}, {vr(Z4,4)}")
        g(f"s_or_b32 s3, s2, {sW}")
        g("s_waitcnt lgkmcnt(0)")
        if self.stamps: g(f"v_writelane_b32 v{self.vST}, s100, 0"); self.names["C"].append("start")
        self.srd(36, 64, 256)
        g("s_cmp_eq_u32 s3, 0"); g.branch("s_cbranch_scc1 L_pubnonce", keep=True)
        g.label("L_pubdone", keep=True)
        g.begin(); g.label("L_pubnonce", keep=True)
        g("s_or_b32 s100, s100, 1"); g(f"v_mov_b32 v{self.vNON}, s100"); g(f"v_mov_b32 v{self.vNON+1}, s101")
        g("s_mov_b64 exec, 1"); g(f"buffer_store_dwordx2 {vr(self.vNON,2)}, v{self.vZero}, {SDBG}, 0 offen sc1"); g("s_mov_b64 exec, -1")
        g.branch("s_branch L_pubdone", keep=True); self.tail.append(g.end())
        self.srd(8, 48, 2048*512*2); self.srd(32, 62, 2048*512*2); self.srd(40, 66, WS_SIZE)
        CT = self.o("ct", 0)
        if CT:
            g(f"s_cmp_eq_u32 {sW}, 2"); g("s_cselect_b64 s[6:7], s[58:59], s[56:57]")
            g(f"s_cmp_eq_u32 {sW}, 3"); g("s_cselect_b64 s[6:7], s[60:61], s[6:7]")
            g("s_mov_b32 s16, s6"); g("s_and_b32 s17, s7, 0xffff"); g(f"s_mov_b32 s18, {512*1376*2}"); g("s_mov_b32 s19, 0x20000")
            vTch = V(1); sGrp = self.s()
            g("s_mul_i32 s6, s2, 43"); g(f"v_add_u32 v{a}, s6, v{L}"); g(f"v_lshlrev_b32 v{a}, 7, v{a}")
            g(f"s_cmp_eq_u32 {sW}, 0"); g("s_cselect_b32 s4, 0, 43")
            g(f"v_mov_b32 v{b}, 0x80000000"); g(f"v_cmp_gt_u32 vcc, s4, v{L}"); g(f"v_cndmask_b32 v{vTch}, v{b}, v{a}, vcc")
            g(f"s_mul_i32 {sGrp}, s2, {self.o('ct_n', 8)}"); g(f"s_lshr_b32 {sGrp}, {sGrp}, 8")
        g("s_barrier")
        self.cmap(); self.sync_consts(a); self.consts(a, b)
        g(f"v_lshrrev_b32 v{a}, 4, v{L}"); g(f"v_lshl_add_u32 v{a}, v{a}, 7, v{self.vP3}")
        g("s_mov_b32 s6, 0"); g("s_mov_b32 s7, 0x00ff0000"); g(f"v_cndmask_b32 v{a}, v{a}, v{self.vP2}, s[6:7]")
        g("s_mov_b32 s7, 0xff000000"); g(f"v_cndmask_b32 v{a}, v{a}, v{self.vP1}, s[6:7]")
        vFw = V(1); g(f"v_mov_b32 v{vFw}, v{a}")
        vXr = [V(1), V(1)]; vWr = V(1)
        g(f"v_bfe_u32 v{a}, v{L}, 1, 3"); g(f"v_lshrrev_b32 v{b}, 4, v{L}"); g(f"v_xor_b32 v{a}, v{a}, v{b}"); g(f"v_lshlrev_b32 v{a}, 4, v{a}")
        g(f"v_and_b32 v{c}, 15, v{L}"); g(f"v_lshl_add_u32 v{vXr[0]}, v{c}, 7, v{a}"); g(f"v_xor_b32 v{vXr[1]}, 64, v{vXr[0]}")
        g(f"v_bfe_u32 v{a}, v{L}, 3, 2"); g(f"v_xor_b32 v{a}, {sW}, v{a}"); g(f"v_lshlrev_b32 v{a}, 5, v{a}")
        g(f"v_mul_u32_u24 v{b}, 3072, v{b}"); g(f"v_bfe_u32 v{c}, v{L}, 2, 2"); g(f"v_lshl_add_u32 v{a}, v{c}, 7, v{a}")
        g(f"v_and_b32 v{c}, 3, v{L}"); g(f"v_lshl_add_u32 v{a}, v{c}, 3, v{a}"); g(f"v_add_u32 v{vWr}, v{a}, v{b}")
        BC, BP, BP1, MK = V(4, 4), V(4, 4), V(4, 4), V(4, 4); vT1, vT2 = V(1), V(1)
        g(f"v_and_b32 v{a}, 15, v{L}"); g(f"v_lshrrev_b32 v{b}, 4, v{L}")
        g(f"v_lshlrev_b32 v{vT1}, 2, v{a}"); g(f"v_add_u32 v{vT1}, {TAB}, v{vT1}")
        g(f"v_lshlrev_b32 v{vT2}, 4, v{b}"); g(f"v_add_u32 v{vT2}, {TAB}, v{vT2}")
        g(f"v_lshlrev_b32 v{b}, 2, v{b}"); g(f"v_sub_u32 v{a}, v{a}, v{b}"); g(f"v_mov_b32 v{c}, {f32(-1e30)}")
        g(f"s_cmp_eq_u32 {sRB}, 0"); g("s_cselect_b64 s[58:59], 0, -1")
        for r in range(4):
            g(f"v_subrev_u32 v{b}, {r}, v{a}"); g(f"v_and_b32 v{b}, 0x80000001, v{b}")
            g(f"v_cmp_eq_u32 vcc, 0, v{b}"); g(f"v_cndmask_b32 v{BC+r}, v{c}, 0, vcc")
            g(f"v_cmp_eq_u32 vcc, 0x80000000, v{b}"); g(f"v_cndmask_b32 v{BP+r}, v{c}, 0, vcc")
            g(f"v_cndmask_b32 v{BP1+r}, v{c}, v{BP+r}, s[58:59]")
        for i, B in enumerate((BP, BC)):
            for h in range(2):
                g(f"v_ashrrev_i32 v{a}, 31, v{B+2*h}"); g(f"v_ashrrev_i32 v{b}, 31, v{B+2*h+1}")
                g(f"v_and_b32 v{a}, 0xffff, v{a}"); g(f"v_and_b32 v{b}, 0xffff0000, v{b}"); g(f"v_or_b32 v{a}, v{a}, v{b}"); g(f"v_not_b32 v{MK+2*i+h}, v{a}")
        g(f"s_mov_b32 s60, {f32(1/512)}"); g(f"s_mov_b32 s61, {f32(0.25*LOG2E)}")
        FB = [V(32, 4), V(32, 4)]
        XF = [[FB[i] + 4*t for t in range(5)] for i in range(2)]; WF = [[FB[i] + 20 + 4*p for p in range(3)] for i in range(2)]
        Q = [V(4, 4) for t in range(5)]; Kc = [V(4, 4) for t in range(5)]; Vc = [V(4, 4) for t in range(5)]
        def reads(s):
            g.begin(); bi = s & 1
            if s and s % 2 == 0:
                d = SLOT if (s // 2) % 4 else (-3*SLOT) & 0xffffffff
                for r in (vWr, vXr[0], vXr[1]): g(f"v_add_u32 v{r}, {d}, v{r}")
            for p in range(3):
                for j2 in range(2): g(f"ds_read_b64_tr_b16 {vr(WF[bi][p]+2*j2,2)}, v{vWr} offset:{10*K1 + bi*12288 + p*K1 + j2*512}")
                if p == 0:
                    for t in range(5): g(f"ds_read_b128 {vr(XF[bi][t],4)}, v{vXr[bi]} offset:{t*2048}")
            return g.end()
        def mfmas(s):
            g.begin(); bi = s & 1
            def mf(d, x, y): g(f"v_mfma_f32_16x16x32_bf16 {vr(d,4)}, {vr(x,4)}, {vr(y,4)}, {vr(d,4) if s else 0}")
            for t in range(5): mf(Q[t], WF[bi][0], XF[bi][t])
            for t in range(5): mf(Kc[t], WF[bi][1], XF[bi][t])
            for t in range(5): mf(Vc[t], XF[bi][t], WF[bi][2])
            return g.end()
        M1 = V(6); R1 = V(6); M2 = [V(4, 4) for t in range(5)]; R2 = [V(4, 4) for t in range(5)]
        g.begin()
        for t in range(5):
            g(f"ds_read_b32 v{M1+t}, v{vT1} offset:{t*64}"); g(f"ds_read_b32 v{R1+t}, v{vT1} offset:{512+t*64}")
        for t in range(5):
            g(f"ds_read_b128 {vr(M2[t],4)}, v{vT2} offset:{t*64}"); g(f"ds_read_b128 {vr(R2[t],4)}, v{vT2} offset:{512+t*64}")
        gn = self.get_nonce(a)
        fin = singles(g.end()) + [gn[0] + self.sig(K_T2)]
        XR = self.vHP; tk = V(1)
        g(f"buffer_load_dword v{vFw}, v{vFw}, {SWS}, 0 offen sc1")
        self.stamp("pre")
        self.lwait(K_A, tk)
        self.stamp("bar0")
        g.add(reads(0)); g.add(self.lchk_issue(K_A + 1, tk))
        stg = {0: 1, 1: 2, 3: 3, 5: 4, 7: 5, 9: 6, 11: 7, 13: 8}
        if self.o('fine', 1): stg.update({1: K_AX - K_A, 2: 2, 3: K_AX + 1 - K_A, 4: 3})
        for s in range(16):
            g.comment(f"A step {s}")
            if self.o("ast", 0): self.stamp(f"s{s}")
            mf = mfmas(s); W = Weave(mf, 2); n = len(mf)
            if s in stg: W.at(0, self.lchk_check(K_A + stg[s], tk))
            if s < 15:
                rs = singles(reads(s + 1))
                if s % 2 == 0 and s <= 6: rs[-1] = rs[-1] + self.sig(K_F + s // 2)
                if s == 14: rs[-1] = rs[-1] + self.sig(K_AE)
                left, _ = W.fill(rs, 0, n - 2); assert not left
            if s + 1 in stg: W.at(n - 4, self.lchk_issue(K_A + stg[s + 1], tk))
            if CT and 0 <= s - self.o("ct_0", 2) < self.o("ct_n", 8):
                Ls = g.newlabel("L_t")
                g.begin(); g(f"s_cmp_lg_u32 {sGrp}, {s - self.o('ct_0', 2)}"); g(f"s_cbranch_scc1 {Ls}")
                g.raw(f"    buffer_load_dword v{J+1}, v{vTch}, s[16:19], 0 offen"); g.raw(Ls + ":")
                W.at(n - 2, g.end())
            if s == 12:
                W.at(n - 3, self.grp(f"buffer_load_dwordx4 {vr(XR,4)}, v{self.vRM}, {SX}, 0 offen"))
                W.at(n - 2, self.grp(f"buffer_load_dwordx4 {vr(XR+4,4)}, v{self.vRM}, {SX}, 0 offen offset:32"))
            if s == 14: W.at(n - 5, self.lchk_issue(K_TB, b)); W.at(n - 1, self.lchk_check(K_TB, b))
            if s == 15:
                left, _ = W.fill(fin, 0); assert not left
            g.add(W.out())
        self.stamp("loop")
        for r in [vWr, vT1, vT2, tk, vFw] + vXr + ([vTch] if CT else []): V.release(r)
        V.release(FB[0], 32); V.release(FB[1], 32)
        CSQ, CSK = V(4, 4), V(4, 4); CSV = V(2)
        for r in range(4): g(f"v_mov_b32_dpp v{CSQ+r}, v{Q[0]+r} row_newbcast:0 row_mask:0xf bank_mask:0xf")
        for r in range(4): g(f"v_mov_b32_dpp v{CSK+r}, v{Kc[0]+r} row_newbcast:0 row_mask:0xf bank_mask:0xf")
        QB = [None] + [V(2) for t in range(4)]; KB = [V(2) for t in range(5)]; VB = V(10, 2)
        bc = lambda reg: (vr(reg & ~1, 2), reg & 1)
        for t in range(5):
            mp, ms = bc(M1 + t); rp, rs = bc(R1 + t)
            for X, CS in ((Q[t], CSQ), (Kc[t], CSK)):
                if X == Q[0]: continue
                for h in range(2):
                    g(f"v_pk_fma_f32 {vr(X+2*h,2)}, {mp}, {vr(CS+2*h,2)}, {vr(X+2*h,2)} op_sel:[{ms},0,0] op_sel_hi:[{ms},1,1] neg_lo:[1,0,0] neg_hi:[1,0,0]")
            for h in range(2): g(f"v_pk_mul_f32 {vr(Kc[t]+2*h,2)}, {rp}, {vr(Kc[t]+2*h,2)} op_sel:[{rs},0] op_sel_hi:[{rs},1]")
            if t == 0: g(f"v_mov_b32 v{CSV}, v{Vc[0]}"); g(f"v_mov_b32 v{CSV+1}, v{Vc[0]}")
            if t == 1: g(f"v_permlane16_swap_b32 v{CSV}, v{CSV+1}")
            if t == 2: g(f"v_mov_b32 v{CSV+1}, v{CSV}")
            if t == 3: g(f"v_permlane32_swap_b32 v{CSV}, v{CSV+1}")
            if t:
                for h in range(2): g(f"v_cvt_pk_bf16_f32 v{QB[t]+h}, v{Q[t]+2*h}, v{Q[t]+2*h+1}")
            for h in range(2): g(f"v_cvt_pk_bf16_f32 v{KB[t]+h}, v{Kc[t]+2*h}, v{Kc[t]+2*h+1}")
        for t in range(5):
            for h in range(2):
                g(f"v_pk_fma_f32 {vr(Vc[t]+2*h,2)}, {vr(M2[t]+2*h,2)}, {vr(CSV,2)}, {vr(Vc[t]+2*h,2)} op_sel_hi:[1,0,1] neg_lo:[1,0,0] neg_hi:[1,0,0]")
            for h in range(2): g(f"v_pk_mul_f32 {vr(Vc[t]+2*h,2)}, {vr(R2[t]+2*h,2)}, {vr(Vc[t]+2*h,2)}")
        R4 = range(1, 5)
        SP = {t: Q[t] for t in R4}; SC = {t: Kc[t] for t in R4}
        AQ = {t: V(1) for t in R4}; U = {t: V(2) for t in R4}; MX = {t: V(1) for t in R4}; TX = {t: V(1) for t in R4}
        cv = [f"v_cvt_pk_bf16_f32 v{VB+2*t+h}, v{Vc[t]+2*h}, v{Vc[t]+2*h+1}" for t in range(5) for h in range(2)]
        cv += [f"v_mul_f32 v{AQ[t]}, s61, v{R1+t}" for t in R4] + [i.text for i in gn[1]]
        for t in R4:
            g(f"v_mfma_f32_16x16x16_bf16 {vr(SP[t],4)}, {vr(KB[t-1],2)}, {vr(QB[t],2)}, {vr(BP1 if t == 1 else BP,4)}")
            g(cv.pop(0)); g(cv.pop(0))
            g(f"v_mfma_f32_16x16x16_bf16 {vr(SC[t],4)}, {vr(KB[t],2)}, {vr(QB[t],2)}, {vr(BC,4)}")
            g(cv.pop(0)); g(cv.pop(0))
        for t in R4:
            for h in range(2): g(f"v_max3_f32 v{U[t]+h}, v{SP[t]+2*h}, v{SP[t]+2*h+1}, v{SC[t]+2*h}")
        for t in R4:
            for h in range(2): g(f"v_max_f32 v{U[t]+h}, v{U[t]+h}, v{SC[t]+2*h+1}")
        for t in R4: g(f"v_max_f32 v{MX[t]}, v{U[t]}, v{U[t]+1}")
        for t in R4: g(f"v_max_f32 v{TX[t]}, v{U[t]}, v{U[t]+1}")
        for t in R4: g(f"v_permlane16_swap_b32 v{MX[t]}, v{TX[t]}")
        for t in R4: g(f"v_max_f32 v{MX[t]}, v{MX[t]}, v{TX[t]}")
        for t in R4: g(f"v_mov_b32 v{TX[t]}, v{MX[t]}")
        for t in R4: g(f"v_permlane32_swap_b32 v{MX[t]}, v{TX[t]}")
        for t in R4: g(f"v_max_f32 v{MX[t]}, v{MX[t]}, v{TX[t]}")
        for t in R4:
            for h in range(2): g(f"v_sub_f32 v{U[t]+h}, v{U[t]+h}, v{MX[t]}")
        for t in R4:
            for h in range(2): g(f"v_mul_f32 v{U[t]+h}, v{U[t]+h}, v{AQ[t]}")
        for t in R4:
            for h in range(2): g(f"v_exp_f32 v{U[t]+h}, v{U[t]+h}")
        PB = {t: V(4, 4) for t in R4}
        for t in R4:
            for h in range(2): g(f"v_cvt_pk_bf16_f32 v{U[t]+h}, v{U[t]+h}, v{U[t]+h}")
        for t in R4:
            for i in range(4): g(f"v_and_b32 v{PB[t]+i}, v{MK+i}, v{U[t]+(i&1)}")
            if t > 1:
                g(f"v_mfma_f32_16x16x32_bf16 {vr(SP[t-1],4)}, {vr(ONES,4)}, {vr(PB[t-1],4)}, 0")
                g(f"v_mfma_f32_16x16x32_bf16 {vr(SC[t-1],4)}, {vr(VB+2*(t-2),4)}, {vr(PB[t-1],4)}, 0")
        g(f"v_mfma_f32_16x16x32_bf16 {vr(SP[4],4)}, {vr(ONES,4)}, {vr(PB[4],4)}, 0")
        g(f"v_mfma_f32_16x16x32_bf16 {vr(SC[4],4)}, {vr(VB+6,4)}, {vr(PB[4],4)}, 0")
        OB = [PB[1], PB[3]]
        g.needs(vr(XR, 8))
        for pr in range(2):
            for t in (1 + 2*pr, 2 + 2*pr): g(f"v_rcp_f32 v{MX[t]}, v{SP[t]}")
            for t in (1 + 2*pr, 2 + 2*pr):
                for r in range(4): g(f"v_mul_f32 v{SC[t]+r}, v{MX[t]}, v{SC[t]+r}")
            for i, t in enumerate((1 + 2*pr, 2 + 2*pr)):
                for h in range(2): g(f"v_cvt_pk_bf16_f32 v{OB[pr]+2*i+h}, v{SC[t]+2*h}, v{SC[t]+2*h+1}")
            for h in range(2): g(f"v_permlane16_swap_b32 v{OB[pr]+h}, v{OB[pr]+2+h}")
            g(f"buffer_store_dwordx4 {vr(OB[pr],4)}, v{self.vL16}, {SWS}, {self.sO1 if pr else self.sO0} offen {self.SC}", tag="ost")
        self.stamp("Aepi")
        for t in range(5):
            V.release(Q[t], 4); V.release(Kc[t], 4); V.release(Vc[t], 4); V.release(KB[t], 2); V.release(M2[t], 4); V.release(R2[t], 4)
        for t in R4:
            V.release(QB[t], 2); V.release(MX[t]); V.release(TX[t]); V.release(AQ[t]); V.release(U[t], 2); V.release(PB[t], 4)
        V.release(M1, 6); V.release(R1, 6); V.release(VB, 10); V.release(CSV, 2)
        for r in (CSQ, CSK, BC, BP, BP1, MK, ONES): V.release(r, 4)
        V.release(a); V.release(b); V.release(c); V.release(0); V.release(self.vX3, 4)

    def red_consts(self, alloc=True):
        g, V = self.g, self.V
        if alloc: self.vRw = [V(1), V(1), V(1)]; self.vRr = V(1)
        for i in (1, 2, 3):
            g(f"s_xor_b32 s5, {sW}, {i}"); g("s_lshl_b32 s5, s5, 14"); g(f"s_add_u32 s5, s5, {64*K1 + (i-1)*4096}"); g(f"v_add_u32 v{self.vRw[i-1]}, s5, v{self.vL16}")
        g(f"s_lshl_b32 s5, {sW}, 14"); g(f"s_add_u32 s5, s5, {64*K1}"); g(f"v_add_u32 v{self.vRr}, s5, v{self.vL16}")
    def red_write(self, ACC, a):
        return [self.grp(f"ds_write_b128 v{self.vRw[a-1]}, {vr(ACC[a]+4*j,4)} offset:{j*K1}") for j in range(4)]
    def red_add(self, ACC, T):
        for i in range(12): self.g(f"ds_read_b128 {vr(T+4*i,4)}, v{self.vRr} offset:{i*K1}")
        return [f"v_pk_add_f32 {vr(ACC[0]+2*j,2)}, {vr(ACC[0]+2*j,2)}, {vr(T+16*a+2*j,2)}" for a in range(3) for j in range(8)]

    def phaseB(self):
        g, V = self.g, self.V
        XR = self.vHP; PZ = self.o("pause", 1)
        WB = V(64, 4); OF = V(64, 4); ACC = [V(16, 4) for _ in range(4)]; rd = [V(1), V(1)]; t2 = V(2); t1 = V(1); self.vX3 = V(4)
        self.red_consts()
        g(f"v_add_u32 v{rd[0]}, s5, v{self.vKr}"); g(f"v_xor_b32 v{rd[1]}, 64, v{rd[0]}")
        g.add(self.lchk_issue(K_WB, t1, own=True))
        for j in range(8):
            g(f"v_lshlrev_b32 v{ACC[0]+2*j}, 16, v{XR+j}"); g(f"v_and_b32 v{ACC[0]+2*j+1}, 0xffff0000, v{XR+j}")
        def wbreads():
            for ks in range(8):
                for ct in range(2):
                    for j2 in range(2): g(f"ds_read_b64_tr_b16 {vr(WB+(ks*2+ct)*4+2*j2,2)}, v{rd[ct]} offset:{ks*2048+j2*512}")
            g.add(self.sig(K_B2))
        if self.o("wb_early", 0): g.add(self.lchk_check(K_WB, t1, own=True)); wbreads()
        g.waitvm("ost"); g.add(self.flag_fast(self.sF1))
        self.stamp("F1")
        if not self.o("wb_early", 0): g.add(self.lchk_check(K_WB, t1, own=True)); wbreads()
        self.poll(self.vP1, t2, pre=[self.flag_slow(self.sF1)])
        self.stamp("P1")
        lo = [(ks, rt) for rt in (1, 0) for ks in range(8)]
        lds = [self.grp(f"buffer_load_dwordx4 {vr(OF+(ks*2+rt)*4,4)}, v{self.vL16}, {SWS}, {self.sOF[rt][ks//4]} offen offset:{(ks%4)*K1} sc1") for ks, rt in lo]
        NL0 = self.o("b_l0", 8)
        for grp in lds[:NL0]: g.add(grp)
        g.begin()
        for ks, rt in lo:
            for ct in (1, 0):
                a = 2*rt + ct
                g(f"v_mfma_f32_32x32x16_bf16 {vr(ACC[a],16)}, {vr(WB+(ks*2+ct)*4,4)}, {vr(OF+(ks*2+rt)*4,4)}, {vr(ACC[a],16) if (ks or a == 0) else 0}")
        mf = g.end(); W = Weave(mf, 5)
        for i, grp in enumerate(lds[NL0:]): W.at(2*i, grp)
        W.at(2*(len(lds) - NL0), self.flag_slow(self.sF1)); W.at(self.o('b_go', 14), self.sig(K_G1))
        W.at(12, self.lchk_issue(K_B2, t1)); W.at(17, self.lchk_check(K_B2, t1))
        W.even(self.red_write(ACC, 3) + self.red_write(ACC, 2), 19, 31)
        g.add(W.out())
        self.stamp("Bmf")
        for grp in self.red_write(ACC, 1): g.add(grp)
        g.add(self.sig(K_B3))
        self.lwait(K_B3, t1)
        adds = self.red_add(ACC, WB)
        g.add(self.sig(K_B4))
        for l in adds: g(l)
        H = ACC[0]
        for j in range(8): g(f"v_cvt_pk_bf16_f32 v{self.vHP+j}, v{H+2*j}, v{H+2*j+1}")
        g(f"buffer_store_dwordx4 {vr(self.vHP,4)}, v{self.vL16}, {SWS}, {self.sHs} offen {self.SC}", tag="hst")
        g(f"buffer_store_dwordx4 {vr(self.vHP+4,4)}, v{self.vL16}, {SWS}, {self.sHs} offen offset:1024 {self.SC}", tag="hst")
        S2, Q2 = ACC[1], ACC[1] + 2
        g(f"v_pk_add_f32 {vr(S2,2)}, {vr(H,2)}, {vr(H+2,2)}"); g(f"v_pk_mul_f32 {vr(Q2,2)}, {vr(H,2)}, {vr(H,2)}")
        g(f"v_pk_fma_f32 {vr(Q2,2)}, {vr(H+2,2)}, {vr(H+2,2)}, {vr(Q2,2)}")
        for j in range(2, 8):
            g(f"v_pk_add_f32 {vr(S2,2)}, {vr(S2,2)}, {vr(H+2*j,2)}"); g(f"v_pk_fma_f32 {vr(Q2,2)}, {vr(H+2*j,2)}, {vr(H+2*j,2)}, {vr(Q2,2)}")
        g(f"v_add_f32 v{S2}, v{S2}, v{S2+1}"); g(f"v_add_f32 v{Q2}, v{Q2}, v{Q2+1}")
        g(f"v_permlane32_swap_b32 v{S2}, v{Q2}"); g(f"v_add_f32 v{S2}, v{S2}, v{Q2}")
        g(f"buffer_store_dword v{S2}, v{self.vL4}, {SWS}, {self.sHt} offen {self.SC}", tag="hst")
        self.stamp("Bst")
        V.release(WB, 64); V.release(OF, 64); V.release(t2, 2); V.release(t1); V.release(self.vP1); V.release(self.vX3, 4)
        for x in ACC: V.release(x, 16)
        for x in rd + self.vRw + [self.vRr]: V.release(x)

    def phaseC(self):
        g, V = self.g, self.V
        HF = V(128, 4); ACC = [V(16, 4) for _ in range(4)]; ST = HF + 112
        NF = self.o("c_nf", 5); FR = [V(4, 4) for _ in range(NF)]
        MF = V(4, 4); T = V(8, 4); t2 = V(2); AA = V(2); VV, t1, vHi, vCt = V(1), V(1), V(1), V(1)
        A0, A1 = AA, AA + 1; self.vX3 = T; PZ = self.o("pause", 1)
        g(f"v_add_u32 v{vHi}, 0x10000, v{self.vL16}"); g(f"v_add_u32 v{vCt}, {CST}, v{self.vL16}")
        g(f"s_add_u32 s54, {self.sCo}, 4096")
        g.waitvm("hst"); g.add(self.flag_fast(self.sF2))
        if self.o("cmap", 0): g.add(self.flag_slow(self.sF2)); self.opt["nfast"] = 0
        self.stamp("F2")
        g(f"s_cmp_eq_u32 {sCGX}, 15"); g.branch("s_cbranch_scc1 L_skipC", keep=True)
        g.begin(); g.label("L_skipC", keep=True)
        g.add(self.flag_slow(self.sF2)); g.add(self.sig(K_G2))
        for kw, k in ((K_C01b, K_P0), (K_C01b, K_P0b), (K_C23b, K_U3), (K_C45b, K_U5)): self.lwait(kw, t1, sleep=2); g.add(self.sig(k))
        g.branch("s_branch L_cdone"); self.tail.append(g.end())
        seq = []; k1 = 0; L0 = self.o("c_lead", 4); RN, RD = self.o("c_rn", 1), self.o("c_rd", 2)
        for ks in range(33):
            seq += [(0, ks), (1, ks)]
            while ks >= L0 and ks < 31 and k1 < ((ks - L0 + 1) * RN) // RD: seq += [(2, k1), (3, k1)]; k1 += 1
        self.K1 = k1
        seq += [(2 + e, ks) for ks in range(k1, 33) for e in range(2)] + [(4 + e, ks) for ks in range(33) for e in range(2)]
        idx = {x: i for i, x in enumerate(seq)}; RA = NF - 1
        KO = (list(range(16, 32)) + list(range(16))) if self.o('c_ko', 1) else list(range(32))
        def rd(i):
            u, ks = seq[i]; g.begin()
            if ks < 32: g(f"ds_read_b128 {vr(FR[i % NF],4)}, v{vHi if (u//2) % 2 else self.vL16} offset:{(u%2)*32768 + KO[ks]*K1}")
            else: g(f"ds_read_b128 {vr(FR[i % NF],4)}, v{vCt} offset:{u*K1}")
            if ks == 31 and u % 2: g.add(self.sig((K_P0b, K_U3, K_U5)[u // 2]))
            if (u, ks) == (1, 15): g.add(self.sig(K_P0))
            return g.end()
        if self.o("c_ko", 1):
            vPa = MF; g(f"v_or_b32 v{vPa}, 64, v{self.vP2}")
            self.poll(vPa, t2, pre=[self.flag_slow(self.sF2)])
        else: self.poll(self.vP2, t2, pre=[self.flag_slow(self.sF2)])
        self.stamp("P2")
        hl = []
        for ks in range(32):
            l = [f"s_add_u32 s55, {self.sCh}, {KO[ks]*K1}"] if ks % 4 == 0 else []
            l.append(f"buffer_load_dwordx4 {vr(HF+4*ks,4)}, v{self.vL16}, {SWS}, s55 offen offset:{(ks%4)*K1} sc1")
            hl.append(self.grp(*l))
        sl = [self.grp(f"buffer_load_dword v{ST+i}, v{self.vL4}, {SWS}, {self.sCt} offen offset:{i*256} sc1") for i in range(16)]
        NH0 = self.o("c_h0", 8)
        g.add(self.lchk_issue(K_C01, t1))
        for grp in hl[:NH0]: g.add(grp)
        g.add(self.lchk_check(K_C01, t1))
        for i in range(RA): g.add(rd(i))
        g.begin()
        for st in (8, 4, 2, 1):
            for i in range(st): g(f"v_add_f32 v{ST+i}, v{ST+i}, v{ST+i+st}")
        g(f"v_mov_b32 v{ST+1}, v{ST}"); g(f"v_permlane32_swap_b32 v{ST}, v{ST+1}")
        g(f"v_mul_f32 v{ST}, s60, v{ST}"); g(f"v_mul_f32 v{ST+1}, s60, v{ST+1}")
        g(f"v_fma_f32 v{ST+1}, -v{ST}, v{ST}, v{ST+1}"); g(f"v_max_f32 v{ST+1}, 0, v{ST+1}")
        self.rbf(ST+1); g(f"v_add_f32 v{ST+1}, {f32(1e-5)}, v{ST+1}"); self.rbf(ST+1)
        g(f"v_sqrt_f32 v{ST+1}, v{ST+1}"); g(f"v_cvt_pk_bf16_f32 v{MF}, -v{ST}, -v{ST}"); self.rbf(ST+1)
        g(f"v_rcp_f32 v{ST+2}, v{ST+1}"); g(f"v_mul_f32 v{VV}, v{ST+1}, v{ST+1}")
        c0 = -2.0 * 0.7978845608028654 * LOG2E
        g(f"v_mul_f32 v{A0}, {f32(c0)}, v{ST+2}"); g(f"v_mul_f32 v{ST+3}, v{ST+2}, v{ST+2}")
        g(f"v_mul_f32 v{A1}, {f32(0.044715)}, v{A0}"); g(f"v_mul_f32 v{A1}, v{ST+3}, v{A1}")
        g(f"v_mov_b32 v{MF+1}, 0"); g(f"v_mov_b32 v{MF+2}, v{MF}"); g(f"v_mov_b32 v{MF+3}, 0")
        stats = singles(g.end())
        def store(u, G): g(f"buffer_store_dwordx4 {vr(G,4)}, v{self.vL16}, {SWS}, {self.sCo if u < 4 else 's54'} offen offset:{(u%4)*K1} {self.SC}", tag=f"hh{u//2}")
        def epi(u):
            g.begin(); G = ACC[u % 4]; U = G + 8
            for i in range(8): g(f"v_mul_f32 v{T+i}, v{G+i}, v{G+i}")
            for i in range(8): g(f"v_fma_f32 v{T+i}, v{T+i}, v{A1}, v{A0}")
            for i in range(8): g(f"v_mul_f32 v{T+i}, v{G+i}, v{T+i}")
            for i in range(8): g(f"v_exp_f32 v{T+i}, v{T+i}"); g(f"v_mul_f32 v{U+i}, v{G+i}, v{U+i}")
            for i in range(8): g(f"v_fma_f32 v{T+i}, v{T+i}, v{VV}, v{VV}")
            for i in range(8):
                g(f"v_rcp_f32 v{T+i}, v{T+i}")
                if i: g(f"v_mul_f32 v{U+i-1}, v{U+i-1}, v{T+i-1}")
            g(f"v_mul_f32 v{U+7}, v{U+7}, v{T+7}")
            for i in range(4): g(f"v_cvt_pk_bf16_f32 v{G+i}, v{U+2*i}, v{U+2*i+1}")
            store(u, G)
            return singles(g.end())
        def epi_pk(u):
            g.begin(); G = ACC[u % 4]; U = G + 8; P = lambda x, i: vr(x + 2*i, 2); vv = (vr(VV & ~1, 2), VV & 1)
            for i in range(4): g(f"v_pk_mul_f32 {P(T,i)}, {P(G,i)}, {P(G,i)}")
            for i in range(4): g(f"v_pk_fma_f32 {P(T,i)}, {P(T,i)}, {vr(AA,2)}, {vr(AA,2)} op_sel:[0,1,0] op_sel_hi:[1,1,0]")
            for i in range(4): g(f"v_pk_mul_f32 {P(T,i)}, {P(G,i)}, {P(T,i)}")
            for i in range(8): g(f"v_exp_f32 v{T+i}, v{T+i}")
            for i in range(4): g(f"v_pk_mul_f32 {P(U,i)}, {P(G,i)}, {P(U,i)}")
            for i in range(4): g(f"v_pk_fma_f32 {P(T,i)}, {P(T,i)}, {vv[0]}, {vv[0]} op_sel:[0,{vv[1]},{vv[1]}] op_sel_hi:[1,{vv[1]},{vv[1]}]")
            for i in range(8): g(f"v_rcp_f32 v{T+i}, v{T+i}")
            for i in range(4): g(f"v_pk_mul_f32 {P(U,i)}, {P(U,i)}, {P(T,i)}")
            for i in range(4): g(f"v_cvt_pk_bf16_f32 v{G+i}, v{U+2*i}, v{U+2*i+1}")
            store(u, G)
            return g.end()
        def flg(p, slow=True):
            g.begin(); g.waitvm(f"hh{p}"); g.add(self.flag_fast(self.sF3, 128*p))
            if slow: g.add(self.flag_slow(self.sF3, 128*p))
            return g.end()
        NK = 22; NWF = 4
        DA = [HF, HF + 80, HF + 96, HF + 112]
        WF = HF + 16
        HRq = [HF + 48 + 4*i for i in range(8)] + [ACC[2] + 4*i for i in range(4)] + [ACC[3] + 4*i for i in range(4)] + list(FR) + [MF]
        NH = len(HRq)
        HR2 = [ACC[0] + 4*i for i in range(4)] + [ACC[1] + 4*i for i in range(4)]
        drd = [[V(1), self.vL4], [vCt, vHi]]; vZ = self.vP2
        lo = [(n, rt) for n in range(NK) for rt in (1, 0)]
        hreg = lambda m: HRq[m % NH]
        g.begin()
        for i, (u, ks) in enumerate(seq):
            acc = ACC[u % 4]
            g(f"v_mfma_f32_32x32x16_bf16 {vr(acc,16)}, {vr(FR[i % NF],4)}, {vr(HF+4*ks,4) if ks < 32 else vr(MF,4)}, {vr(acc,16) if ks else 0}")
        D0 = len(seq)
        DT = self.o("d_tail", 3)
        mo = list(enumerate(lo)); mo = mo[:len(mo) - 2*DT] + [x for x in mo[len(mo) - 2*DT:] if x[1][1] == 1] + [x for x in mo[len(mo) - 2*DT:] if x[1][1] == 0]
        for m, (n, rt) in mo:
            for ct in (1, 0):
                a = 2*rt + ct
                g(f"v_mfma_f32_32x32x16_bf16 {vr(DA[a],16)}, {vr(WF+((n%NWF)*2+ct)*4,4)}, {vr(hreg(m),4)}, {vr(DA[a],16) if (n or a == 0) else 0}")
        mf = g.end(); W = Weave(mf, 5)
        for key, k in (((2, 0), K_C23), ((0, 16), K_C01b), ((2, 16), K_C23b), ((4, 0), K_C45), ((4, 16), K_C45b), ((0, 32), K_CS)):
            at = idx[key] - RA; tk = t1 if key[1] < 32 else t2
            W.at(max(at - 5, 0), self.lchk_issue(k, tk)); W.at(at - 1, self.lchk_check(k, tk))
        for i in range(RA, len(seq)): W.at(i - RA, rd(i))
        for i in range(0, len(seq) - 1, 2):
            g.begin(); g.needs(vr(FR[(i + 1) % NF], 4)); W.before(i, g.end())
        HS = self.o("c_hs", 2)
        at = HS*(16 - NH0)
        W.at(max(at - self.o("c_p2l", 12), 0), self.apoll_issue(self.vP2, t2)); W.at(at, self.apoll_check(self.vP2, t2, pre=[self.flag_slow(self.sF2)]))
        for i, grp in enumerate(hl[NH0:16]): W.at(HS*i, grp)
        for k, grp in enumerate(sl): W.at(at + k // 2, grp)
        pos = at + 8
        for grp in hl[16:28]: W.at(pos, grp); pos += HS
        left, sp = W.fill(stats, pos - self.o('c_se', 6), 80, cap=6); assert not left
        sp = max(sp, pos)
        for i, grp in enumerate(hl[28:]): W.at(sp + 1 + i, grp)
        assert sp + 5 < idx[(0, 28)] - 14, (sp, idx[(0, 28)])
        W.at(sp + 6, self.flag_slow(self.sF2))
        W.at(self.o("c_unp", 0), self.sig(K_G2))
        if self.stamps:
            keys = [(0, 4), (0, 8), (0, 16), (0, 24), (1, 32), (4, 0), (4, 8), (4, 16), (4, 21), (4, 26)] if self.o("cst", 0) else []
            for key in keys:
                g.begin(); self.stamp("c%d_%d" % key); W.before(idx[key], g.end())
            g.begin(); self.stamp("Cmf"); cm = g.end()
        EC = self.o("e_cap", 5); epos = {}
        rest, epos[0] = W.fill(epi(0) + epi(1), idx[(1, 32)] + 3, idx[(4, 0)] - 1, cap=self.o("e_cap0", 7)); assert not rest, len(rest)
        rest, epos[1] = W.fill(epi(2) + epi(3), idx[(4, 1)], idx[(4, 32)], cap=EC + self.o("e_x", 1)); assert not rest
        W.at(epos[0] + self.o("c_fl", 20), flg(0))
        self.vX3 = HR2[0] if False else None
        X3 = V(3, 2) if False else None
        lds = [self.grp(f"s_add_u32 s3, {self.sHF[rt]}, {(12*DK[n][1] + 2*DK[n][0])*K1}",
                        f"buffer_load_dwordx4 {vr(hreg(m),4)}, v{vZ if DK[n] == (0, 7) else self.vL16}, {SWS}, s3 offen sc1") for m, (n, rt) in enumerate(lo)]
        def part_of(i):
            for p, (f, n, _, _) in enumerate(DPART):
                if f <= i < f + n: return p, i - f
        def rdset(p):
            r = drd[p % 2]
            return self.grp(f"s_mul_i32 s5, {sW}, {DPART[p][3]}", f"s_add_u32 s5, s5, {DPART[p][2]}", f"v_add_u32 v{r[0]}, s5, v{self.vKr}", f"v_xor_b32 v{r[1]}, 64, v{r[0]}")
        def wread(i):
            p, j = part_of(i)
            out = [self.grp(f"ds_read_b64_tr_b16 {vr(WF+((i%NWF)*2+ct)*4+2*j2,2)}, v{drd[p%2][ct]} offset:{j*2048+j2*512}") for ct in range(2) for j2 in range(2)]
            if i == 2: out[-1] = out[-1] + self.sig(K_DS)
            return out
        init = singles(self.grp(*[x for j in range(8) for x in (f"v_lshlrev_b32 v{DA[0]+2*j}, 16, v{self.vHP+j}", f"v_and_b32 v{DA[0]+2*j+1}, 0xffff0000, v{self.vHP+j}")]))
        zset = self.grp(f"s_cmp_ge_u32 {sW}, 2", "s_cselect_b32 s5, 0x80000000, 0", f"v_or_b32 v{vZ}, s5, v{self.vL16}")
        self.vX3 = WF + 24
        p0 = idx[(4, 20)]; p1 = epos[1] + 3
        PRE = 8 + min(self.o("d_pre", 4), max(0, D0 - 1 - p1))
        W.at(p0 - self.o("d_pl", 16), self.apoll_issue(self.vP3, t2)); W.at(p0, self.apoll_check(self.vP3, t2))
        W.even(lds[:8], p0 + 1, p0 + 17)
        for i, grp in enumerate(lds[8:PRE]): W.at(max(p1, p0 + 17) + i, grp)
        W.at(idx[(4, 18)], rdset(0)); W.at(idx[(4, 19)], zset)
        W.at(idx[(4, 22)], self.lchk_issue(K_D1, t1, own=True)); W.at(idx[(4, 25)], self.lchk_check(K_D1, t1, own=True))
        W.even([x for i in range(NWF - 1) for x in wread(i)], idx[(4, 26)], D0 - 1)
        left, _ = W.fill(init, epos[1], D0 - 1, cap=8); assert not left
        g.begin(); g.label("L_cdone", keep=True)
        self.poll(self.vP3, t2)
        for grp in [rdset(0), zset] + lds[:PRE] + init: g.add(grp)
        self.lwait(K_D1, t1, own=True)
        for i in range(NWF - 1):
            for grp in wread(i): g.add(grp)
        g.branch("s_branch L_dgo"); self.tail.append(g.end())
        DM = self.o("d_mode", 2)
        if self.stamps: W.before(D0, cm)
        if DM == 1: W.before(D0, epi_pk(4) + flg(1) + epi_pk(5))
        if DM == 2: W.before(D0, flg(1, slow=bool(self.o('cmap', 0))) + epi_pk(4) + epi_pk(5) + self.flag_slow(self.sF3, 128))
        g.begin(); g.raw("L_dgo:"); W.before(D0, g.end())
        self.vX3 = self.vHP
        W.before(D0, rdset(1) + self.lchk_issue(K_D2, t1, own=True) + self.lchk_check(K_D2, t1, own=True))
        for p, k in ((2, K_D3), (3, K_D4)):
            at = D0 + 4*(DPART[p][0] - (NWF - 1))
            W.at(at - 6, rdset(p)); W.at(at - 4, self.lchk_issue(k, t1, own=True)); W.at(at - 1, self.lchk_check(k, t1, own=True))
        for i in range(NWF - 1, NK):
            for j, grp in enumerate(wread(i)): W.at(D0 + 4*(i - (NWF - 1)) + j, grp)
        assert DT <= NWF - 1
        LD = self.o("d_la", 14)
        lat = lambda m: D0 + max(m - PRE, 2*(m - LD))
        S1 = self.o("d_s1", 12); lat0 = lat
        lat = lambda m: max(lat0(m), D0 + S1 + (m - 16)) if m >= 16 else lat0(m)
        W.at(D0 + self.o("d_s1p", 0), ([] if DM else flg(1)) + self.apoll_issue(self.vP3, t2, 128))
        W.at(lat(16), self.apoll_check(self.vP3, t2, 128))
        LD2 = self.o("d_la2", 7)
        lat2 = lambda m: D0 + 2*(m - LD2) if m >= 30 else lat(m)
        pi = lat2(30) - self.o("d_p2", 6)
        W.at(pi, self.apoll_issue(self.vP3, t2, 256)) if False else None
        for m in range(PRE, 30):
            assert m < NH or lat2(m) > D0 + 2*(m - NH) + 1
            W.at(lat2(m), lds[m])
        if DM: e2 = D0
        else:
            rest, e2 = W.fill(epi(4) + epi(5), D0 + 2, pi - 2, cap=self.o("e_cap2", 9)); assert not rest, len(rest)
        f2 = min(e2 + self.o("d_fl", 10), pi - 1)
        W.at(f2, flg(2))
        W.at(pi, self.apoll_issue(self.vP3, t2, 256)); W.at(lat2(30), self.apoll_check(self.vP3, t2, 256))
        for m in range(30, len(lds)): W.at(lat2(m), lds[m])
        self.info = (e2 - D0, f2 - D0, pi - D0, p0 - D0)
        if self.stamps and self.o("dst", 0):
            for at in (1, 16, 32, 46, 60, 74):
                g.begin(); self.stamp(f"d{at}"); W.before(D0 + at, g.end())
        self.vRw = [T, T + 1, T + 2]; self.vRr = T + 3
        g.begin(); self.red_consts(alloc=False); rc = g.end()
        for i in range(4): W.at(e2 + 3 + 2*i, rc[4*i:4*i+4])
        W.at(D0 + 4*(DPART[3][0] - (NWF - 1)) + 6, self.grp("s_barrier"))
        if DT >= 2: W.even(self.red_write(DA, 3) + self.red_write(DA, 2), len(mf) - 2*DT + 1, len(mf))
        g.add(W.out())
        self.stamp("Dmf")
        for a in ((1,) if DT >= 2 else (3, 2, 1)):
            for grp in self.red_write(DA, a): g.add(grp)
        g.waitds(); g("s_barrier")
        assert ACC[1] == ACC[0] + 16 and ACC[2] == ACC[0] + 32
        OF_ = ("", "sc1", "nt", "sc0 sc1")[self.o("ost", 0)]
        for l in self.red_add(DA, ACC[0]): g(l)
        for j in range(8): g(f"v_cvt_pk_bf16_f32 v{self.vHP+j}, v{DA[0]+2*j}, v{DA[0]+2*j+1}")
        g(f"buffer_store_dwordx4 {vr(self.vHP,4)}, v{self.vRM}, {SOUT}, 0 offen {OF_}")
        g(f"buffer_store_dwordx4 {vr(self.vHP+4,4)}, v{self.vRM}, {SOUT}, 0 offen offset:32 {OF_}")

    def build(self):
        g = self.g
        self.prologue(); self.helper(); self.phaseA(); self.phaseB(); self.phaseC()
        if self.stamps:
            self.stamp("end")
            g(f"s_lshl_b32 s3, s2, 2"); g(f"s_add_u32 s3, s3, {sW}"); g("s_lshl_b32 s3, s3, 8"); g(f"s_add_u32 s3, s3, {WS_STAMP}")
            g(f"v_lshlrev_b32 v{self.vL4}, 2, v{self.vL}"); g(f"buffer_store_dword v{self.vST}, v{self.vL4}, {SWS}, s3 offen")
        if self.o("diag_t", 0):
            g("s_mov_b32 s52, 0")
            g.label("L_dg", keep=True)
            g("s_memrealtime s[72:73]"); g("s_add_u32 s52, s52, 1"); g("s_waitcnt lgkmcnt(0)"); g("s_sub_u32 s72, s72, s70")
            g("s_cmp_gt_u32 s52, 100000"); g("s_cbranch_scc1 L_end")
            g(f"s_cmp_lt_u32 s72, {self.o('diag_t', 0)}"); g("s_cbranch_scc1 L_dg")
        g.label("L_end", keep=True)
        g("s_endpgm")
        for st in self.tail: g.add(st)
        g.raw("L_codeend:")
        body = g.finalize()
        hdr = open("ref.txt").read().split("; Override launch geometry")[0]
        s = hdr + "; @launch grid=(256,1,1) block=(512,1,1) lds=163840\n"
        s += '.amdgcn_target "amdgcn-amd-amdhsa--gfx950"\n.text\n'
        s += f".globl {NAME}_kernel\n.p2align 8\n.type {NAME}_kernel,@function\n{NAME}_kernel:\n"
        s += body + "    s_endpgm\n"
        s += f'.section .rodata,"a"\n.p2align 6\n.amdhsa_kernel {NAME}_kernel\n'
        s += "  .amdhsa_next_free_vgpr 256\n  .amdhsa_next_free_sgpr 102\n  .amdhsa_accum_offset 256\n"
        s += "  .amdhsa_group_segment_fixed_size 0\n  .amdhsa_kernarg_size 80\n  .amdhsa_user_sgpr_count 2\n"
        s += "  .amdhsa_user_sgpr_kernarg_segment_ptr 1\n  .amdhsa_system_sgpr_workgroup_id_x 1\n"
        s += "  .amdhsa_float_denorm_mode_32 3\n.end_amdhsa_kernel\n"
        return s

if __name__ == "__main__":
    import argparse
    ap = argparse.ArgumentParser()
    ap.add_argument("-o", default="k.s"); ap.add_argument("--stamps", action="store_true"); ap.add_argument("--opt", default="")
    a = ap.parse_args()
    opt = {kv.split("=")[0]: int(kv.split("=")[1]) for kv in a.opt.split(",") if kv}
    k = K(a.stamps, opt); s = k.build()
    open(a.o, "w").write(s)
    if a.stamps: open(a.o + ".names", "w").write("\n".join(" ".join(k.names[r]) for r in "CSJ"))
    print("ins", k.g.stats, "vgpr hi", k.V.hi, "sgpr hi", k.S.hi, k.info)
```

```python
import sys, struct
sys.path.insert(0, "gen")
from asmgen import *

NAME = "sequential_preLN__sliding_local_dilated__glu_gated_geglu__prompt"
K1 = 1024
WS_O, WS_H, WS_HH, WS_HST, WS_CS, WS_ST = 0x001000, 0x202000, 0x403000, 0xA04000, 0xA44000, 0xAC4000
WS_FF, WS_FW, WS_FS, WS_STAMP, WS_WC = 0xAD0000, 0xAE0000, 0xB00000, 0xC00000, 0xD00000
WS_SIZE = 0x1000000
HHP = 96
HHPAD = lambda pg: WS_HH + (-(-((pg << 21) - WS_HH) // (HHP*K1)))*HHP*K1 + 92*K1
WARM = [0, 0x201000, 0x402000, HHPAD(3), HHPAD(4), 0xA03000, 0xCF0000, 0xFF0000]
assert [x >> 21 for x in WARM] == list(range(8))
SX, SWQ, SWO, SWG, SWU, SWD, SOUT, SDBG, SWS = [f"s[{b}:{b+3}]" for b in range(8, 44, 4)]
sW, sRB, sCB, sR128, sCGX = "s44", "s45", "s46", "s47", "s68"
sNON = "s[70:71]"
POLL_LIMIT = 1 << 16
LOG2E = 1.4426950408889634
SLOT = 34*K1; SCR = 136*K1; TAB = 152*K1; CST = 152*K1; SYNC = 159*K1; NONL = SYNC + 1008
(K_WB, K_B2, K_B3, K_B4, K_C01, K_C23, K_P0, K_C45, K_U3, K_U5, K_D1, K_D2, K_D3, K_D4, K_DS, K_AE, K_TB, K_PZ, K_CS, K_T2, K_PP, K_IS) = range(22)
K_A = 22; K_F = 31; K_AX = 41; K_G1 = 35; K_G2 = 36; K_C23b = 37; K_C45b = 38; K_P0b = 39; K_C01b = 40
DPART = [(0, 3, 128*K1, 6*K1), (3, 8, 64*K1, 16*K1), (11, 8, 0, 16*K1), (19, 3, 128*K1, 6*K1)]
DK = [(0, i) for i in range(8)] + [(1, i) for i in range(7)] + [(2, i) for i in range(7)]
def f32(x): return "0x%08x" % struct.unpack("<I", struct.pack("<f", x))[0]

class K:
    def __init__(self, stamps=False, opt=None):
        self.g = Gen(); self.V = Alloc(0, 256); self.S = Alloc(74, 100)
        self.stamps = stamps; self.tail = []; self.opt = opt or {}; self.names = {"C": [], "S": [], "J": []}; self.role = "C"
        self.SC = "" if self.opt.get("loc", 0) else "sc1"
    def o(self, k, d): return self.opt.get(k, d)
    def stamp(self, name):
        if not self.stamps: return
        roles = "SJ" if self.role == "H" else self.role
        if self.role == "H":
            n = max(len(self.names["S"]), len(self.names["J"]))
            for r in "SJ": self.names[r] += ["-"] * (n - len(self.names[r]))
        i = len(self.names[roles[0]])
        for r in roles: self.names[r].append(name)
        self.g("s_memtime s[72:73]" if self.o("cyc", 0) else "s_memrealtime s[72:73]"); self.g("s_waitcnt lgkmcnt(0)"); self.g(f"v_writelane_b32 v{self.vST}, s72, {i}")
    def s(self): return f"s{self.S(1)}"
    def grp(self, *lines, tag=None):
        g = self.g; g.begin()
        for l in lines: g(l, tag)
        return g.end()

    def flag_fast(self, sid, off=0):
        if not self.o("fast", 1): return []
        return self.grp("s_mov_b64 exec, 1", f"buffer_store_dwordx2 {vr(self.vNON,2)}, v{self.vZero}, {SWS}, {sid} offen offset:{off}", "s_mov_b64 exec, -1")
    def flag_slow(self, sid, off=0):
        return self.grp(f"s_lshl_b32 s4, {sid}, 4", f"s_add_u32 s4, s4, {(WS_FS - WS_FF*16 + off*16) & 0xffffffff}", "s_mov_b64 exec, 0xffff",
                        f"buffer_store_dwordx2 {vr(self.vNON,2)}, v{self.vL8}, {SWS}, s4 offen sc1", "s_mov_b64 exec, -1")
    def slow_loop(self, Ls, Lb, vaddr, tmp, off, pre):
        g = self.g; L2 = g.newlabel("L_sl"); x = self.vX3
        g.begin()
        g.label(Ls, keep=True)
        for grp in pre: g.add(grp)
        g("s_mov_b32 s53, 0")
        g(f"v_lshlrev_b32 v{x+2}, 4, v{vaddr}"); g(f"v_add_u32 v{x+2}, {(WS_FS - WS_FF*16 + off*16) & 0xffffffff}, v{x+2}")
        g.label(L2, keep=True)
        g(f"buffer_load_dwordx2 {vr(tmp,2)}, v{vaddr}, {SWS}, 0 offen offset:{off} sc1")
        g(f"buffer_load_dwordx2 {vr(x,2)}, v{x+2}, {SWS}, 0 offen sc1")
        g("s_add_u32 s53, s53, 1"); g("s_waitcnt vmcnt(0)")
        g(f"s_cmp_gt_u32 s53, {POLL_LIMIT}"); g(f"s_cbranch_scc1 {Lb}")
        g(f"v_cmp_ne_u64 vcc, {sNON}, {vr(tmp,2)}"); g(f"v_cmp_ne_u64 s[6:7], {sNON}, {vr(x,2)}")
        g("s_and_b64 vcc, vcc, s[6:7]"); g(f"s_cbranch_vccnz {L2}")
        g.branch(f"s_branch {Lb}", keep=True)
        self.tail.append(g.end())
    def poll(self, vaddr, tmp, off=0, pre=()):
        g = self.g; L = g.newlabel("L_poll"); Lb = g.newlabel("L_go"); Ls = g.newlabel("L_slow")
        if not self.o("fast", 1):
            g.branch(f"s_cbranch_execnz {Ls}", keep=True); g("s_waitcnt vmcnt(0)")
        else:
            g("s_mov_b32 s52, 0")
            g.label(L, keep=True)
            g(f"buffer_load_dwordx2 {vr(tmp,2)}, v{vaddr}, {SWS}, 0 offen offset:{off} sc1")
            g("s_add_u32 s52, s52, 1"); g(f"s_cmp_gt_u32 s52, {self.o('nfast', 24)}"); g(f"s_cbranch_scc1 {Ls}")
            g("s_waitcnt vmcnt(0)")
            g(f"v_cmp_ne_u64 vcc, {sNON}, {vr(tmp,2)}"); g(f"s_cbranch_vccnz {L}")
        g.label(Lb, keep=True)
        self.slow_loop(Ls, Lb, vaddr, tmp, off, pre)
    def apoll_issue(self, vaddr, tmp, off=0):
        return self.grp(f"buffer_load_dwordx2 {vr(tmp,2)}, v{vaddr}, {SWS}, 0 offen offset:{off} sc1")
    def apoll_check(self, vaddr, tmp, off=0, pre=(), plain=False):
        g = self.g; Ls = g.newlabel("L_as"); Lb = g.newlabel("L_ab")
        g.begin(); g(f"v_cmp_ne_u64 vcc, {sNON}, {vr(tmp,2)}"); g(f"s_cbranch_vccnz {Ls}"); g.raw(Lb + ":"); main = g.end()
        g.begin(); g.label(Ls, keep=True)
        if plain:
            L2 = g.newlabel("L_al"); g("s_mov_b32 s53, 0"); g.label(L2, keep=True)
            g(f"buffer_load_dwordx2 {vr(tmp,2)}, v{vaddr}, {SWS}, 0 offen offset:{off} sc1")
            g("s_add_u32 s53, s53, 1"); g("s_waitcnt vmcnt(0)"); g(f"s_sleep {self.o('pw_slp', 1)}")
            g(f"s_cmp_gt_u32 s53, {POLL_LIMIT}"); g(f"s_cbranch_scc1 {Lb}")
            g(f"v_cmp_ne_u64 vcc, {sNON}, {vr(tmp,2)}"); g(f"s_cbranch_vccnz {L2}")
        else: self.poll(vaddr, tmp, off, pre)
        g.branch(f"s_branch {Lb}", keep=True)
        self.tail.append(g.end())
        return main
    def sig(self, k): return self.grp(f"ds_write_b32 v{self.vSig}, v{self.vSig} offset:{16*k}")
    def lchk_issue(self, k, tmp, own=False):
        return self.grp(f"ds_read_b32 v{tmp}, v{self.vOwn if own else self.vAll} offset:{16*k}")
    def lchk_check(self, k, tmp, own=False, neg=False, sleep=0):
        g = self.g; Ls = g.newlabel("L_ls"); Lb = g.newlabel("L_lb"); L2 = g.newlabel("L_ll"); cmp_ = "ne" if neg else "eq"
        g.begin(); g(f"v_cmp_{cmp_}_u32 vcc, 0, v{tmp}"); g(f"s_cbranch_vccnz {Ls}"); g.raw(Lb + ":"); main = g.end()
        g.begin()
        g.label(Ls, keep=True); g("s_mov_b32 s53, 0")
        g.label(L2, keep=True)
        g(f"ds_read_b32 v{tmp}, v{self.vOwn if own else self.vAll} offset:{16*k}")
        g("s_add_u32 s53, s53, 1")
        if sleep: g(f"s_sleep {sleep}")
        g("s_waitcnt lgkmcnt(0)")
        g(f"s_cmp_gt_u32 s53, {POLL_LIMIT*16}"); g(f"s_cbranch_scc1 {Lb}")
        g(f"v_cmp_{cmp_}_u32 vcc, 0, v{tmp}"); g(f"s_cbranch_vccnz {L2}")
        g.branch(f"s_branch {Lb}", keep=True)
        self.tail.append(g.end())
        return main
    def lwait(self, k, tmp, own=False, sleep=0, addr=None):
        g = self.g; L = g.newlabel("L_lw"); Lgo = g.newlabel("L_lg")
        g("s_mov_b32 s53, 0")
        g.label(L, keep=True)
        g(f"ds_read_b32 v{tmp}, v{addr if addr is not None else (self.vOwn if own else self.vAll)} offset:{16*k}")
        g("s_add_u32 s53, s53, 1"); g(f"s_cmp_gt_u32 s53, {POLL_LIMIT*16}"); g(f"s_cbranch_scc1 {Lgo}")
        if sleep: g(f"s_sleep {sleep}")
        g("s_waitcnt lgkmcnt(0)")
        g(f"v_cmp_eq_u32 vcc, 0, v{tmp}"); g(f"s_cbranch_vccnz {L}")
        g.label(Lgo, keep=True)
    def pause(self, on):
        return self.sig(K_PZ) if on else self.grp(f"ds_write_b32 v{self.vSig}, v{self.vZero} offset:{16*K_PZ}")
    def sync_consts(self, a):
        g, L = self.g, self.vL
        g(f"s_lshl_b32 s4, {sW}, 2"); g(f"s_add_u32 s4, s4, {SYNC}"); g(f"v_mov_b32 v{self.vOwn}, s4")
        g(f"v_mov_b32 v{a}, 0x40000"); g(f"v_cmp_eq_u32 vcc, 0, v{L}"); g(f"v_cndmask_b32 v{self.vSig}, v{a}, v{self.vOwn}, vcc")
        g(f"v_and_b32 v{a}, 3, v{L}"); g(f"v_lshlrev_b32 v{a}, 2, v{a}"); g(f"v_add_u32 v{self.vAll}, {SYNC}, v{a}")
    def get_nonce(self, a):
        return [self.grp(f"v_mov_b32 v{a}, {NONL}", f"ds_read_b64 {vr(self.vNON,2)}, v{a}"),
                self.grp(f"v_readfirstlane_b32 s70, v{self.vNON}", f"v_readfirstlane_b32 s71, v{self.vNON+1}")]
    def srd(self, base, ptr, size):
        g = self.g
        g(f"s_mov_b32 s{base}, s{ptr}"); g(f"s_and_b32 s{base+1}, s{ptr+1}, 0xffff"); g(f"s_mov_b32 s{base+2}, {size}"); g(f"s_mov_b32 s{base+3}, 0x20000")
    def pi8(self, acc, t):
        g, L = self.g, self.vL
        g(f"v_and_b32 v{t}, 1, v{L}"); g(f"v_lshl_add_u32 v{acc}, v{t}, 4, v{acc}")
        g(f"v_bfe_u32 v{t}, v{L}, 1, 1"); g(f"v_lshl_add_u32 v{acc}, v{t}, 3, v{acc}")
    def rbf(self, r):
        self.g(f"v_cvt_pk_bf16_f32 v{r}, v{r}, v{r}"); self.g(f"v_and_b32 v{r}, 0xffff0000, v{r}")
    def cmap(self):
        g = self.g
        if self.o("cmap", 0) == 0:
            g("s_and_b32 s4, s2, 7"); g("s_lshl_b32 s4, s4, 1"); g("s_lshr_b32 s6, s2, 7"); g(f"s_add_u32 {sR128}, s4, s6")
            g("s_lshr_b32 s4, s2, 3"); g(f"s_and_b32 {sCGX}, s4, 15")
            if self.o("cgmap", 1):
                perm = list(range(16)); perm[3], perm[14] = 14, 3; perm[11], perm[15] = 15, 11
                lo = sum(perm[i] << (4*i) for i in range(8)); hi = sum(perm[8+i] << (4*i) for i in range(8))
                g(f"s_mov_b32 s6, {lo:#x}"); g(f"s_mov_b32 s7, {hi:#x}"); g(f"s_lshl_b32 s4, {sCGX}, 2"); g("s_lshr_b64 s[6:7], s[6:7], s4"); g(f"s_and_b32 {sCGX}, s6, 15")
        else:
            g("s_and_b32 s4, s2, 6"); g("s_lshl_b32 s4, s4, 1"); g("s_lshr_b32 s6, s2, 6"); g(f"s_add_u32 {sR128}, s4, s6")
            g("s_lshr_b32 s4, s2, 3"); g("s_and_b32 s4, s4, 7"); g("s_and_b32 s6, s2, 1"); g("s_lshl_b32 s6, s6, 3"); g(f"s_add_u32 {sCGX}, s4, s6")
            perm = [0, 1, 2, 14, 3, 4, 5, 6, 7, 8, 9, 15, 10, 11, 12, 13]
            lo = sum(perm[i] << (4*i) for i in range(8)); hi = sum(perm[8+i] << (4*i) for i in range(8))
            g(f"s_mov_b32 s6, {lo:#x}"); g(f"s_mov_b32 s7, {hi:#x}"); g(f"s_lshl_b32 s4, {sCGX}, 2"); g("s_lshr_b64 s[6:7], s[6:7], s4"); g(f"s_and_b32 {sCGX}, s6, 15")

    def prologue(self):
        g, V = self.g, self.V
        g("s_cmp_ge_u32 s2, 256"); g("s_cbranch_scc1 L_end")
        g("s_load_dwordx16 s[48:63], s[0:1], 0"); g("s_load_dwordx4 s[64:67], s[0:1], 64"); g("s_memrealtime s[100:101]")
        assert V(1) == 0
        self.vL, self.vL16, self.vST, self.vNON, self.vSig, self.vOwn, self.vAll, self.vL8, self.vZero = V(1), V(1), V(1), V(2), V(1), V(1), V(1), V(1), V(1)
        self.NCOMMON = 11
        g(f"v_lshrrev_b32 v{self.vL16}, 6, v0"); g(f"v_and_b32 v{self.vL}, 63, v0"); g(f"v_readfirstlane_b32 s3, v{self.vL16}")
        g("s_and_b32 s4, s2, 7"); g("s_lshr_b32 s5, s2, 3")
        g("s_lshl_b32 s6, s4, 2"); g("s_lshr_b32 s7, s5, 3"); g(f"s_add_u32 {sRB}, s6, s7"); g(f"s_and_b32 {sCB}, s5, 7")
        g(f"s_and_b32 {sW}, s3, 3")
        if self.stamps: g(f"v_mov_b32 v{self.vST}, 0")
        g(f"v_lshlrev_b32 v{self.vL16}, 4, v{self.vL}")
        g("s_cmp_lt_u32 s3, 4"); g.branch("s_cbranch_scc1 L_compute", keep=True)
        g("s_cmp_ge_u32 s3, 6"); g.branch("s_cbranch_scc1 L_job", keep=True)

    def helper(self):
        g = self.g; V = Alloc(self.NCOMMON, 256); L = self.vL
        a, b, c, vXs, vWs = V(1), V(1), V(1), V(1), V(1)
        vKs, vCs, vCs2, vCw, vPW, vPC = V(1), V(1), V(1), V(1), V(1), V(1); vDw = [V(1) for _ in range(3)]; t2 = V(2)
        STG = V(208, 4); CA = V(16, 4); ON = V(4, 4)
        Qd = lambda i: STG + 4*i
        sBm, sBs, sCm, sD0, sD7, sDm, sUm, sCSr = "s82", "s83", "s84", "s85", "s86", "s87", "s88", "s89"
        def start_stamp():
            if self.stamps: g(f"v_writelane_b32 v{self.vST}, s100, 0"); self.names[self.role].append("start")
        def sym_setup():
            g.begin()
            self.srd(16, 52, 512*512*2); self.srd(28, 60, 1376*512*2); self.srd(40, 66, WS_SIZE)
            self.cmap()
            g(f"v_bfe_u32 v{a}, v{L}, 4, 1"); g(f"v_lshlrev_b32 v{a}, 2, v{a}")
            g(f"v_and_b32 v{b}, 7, v{L}"); g(f"v_xor_b32 v{a}, v{a}, v{b}"); g(f"v_lshlrev_b32 v{a}, 4, v{a}")
            g(f"v_lshrrev_b32 v{b}, 3, v{L}"); g(f"v_lshl_add_u32 v{a}, v{b}, 10, v{a}")
            g(f"s_lshl_b32 s4, {sCB}, 7"); g(f"v_add_u32 v{vKs}, s4, v{a}")
            g(f"s_lshl_b32 s6, {sW}, 14"); g(f"s_add_u32 {sBm}, s6, {64*K1}"); g(f"s_lshl_b32 {sBs}, {sW}, 17")
            g(f"s_lshl_b32 {sUm}, {sW}, 12")
            g(f"s_mul_i32 s4, {sCGX}, {6*32*K1}"); g(f"s_add_u32 s4, s4, {sUm}"); g(f"s_add_u32 {sCm}, s4, {WS_WC}")
            g(f"s_cmp_ge_u32 {sCGX}, 14"); g("s_cselect_b32 s4, 0x80000000, 0"); g(f"v_or_b32 v{vCs2}, s4, v{self.vL16}")
            g(f"s_cmp_eq_u32 {sCGX}, 15"); g("s_cselect_b32 s4, 0x80000000, 0"); g(f"s_cselect_b32 s6, 0, {sCGX}"); g(f"v_or_b32 v{vCs}, s4, v{self.vL16}")
            g("s_lshl_b32 s6, s6, 3"); g(f"s_add_u32 s6, s6, {sW}"); g("s_lshl_b32 s7, s6, 9"); g(f"s_add_u32 s7, s7, {WS_FW}")
            g(f"v_and_b32 v{a}, 3, v{L}"); g(f"v_bfe_u32 v{b}, v{L}, 2, 1"); g(f"v_lshl_add_u32 v{a}, v{b}, 4, v{a}"); g(f"v_lshl_add_u32 v{vPW}, v{a}, 7, s7")
            g(f"s_lshl_b32 s6, s6, 12"); g(f"s_add_u32 {sCSr}, s6, {WS_CS}"); g(f"v_mul_u32_u24 v{vPC}, 12, v{L}")
            for i in range(3):
                g(f"s_mul_i32 s4, {sW}, {DPART[i][3]}"); g(f"s_add_u32 s4, s4, {DPART[i][2]}"); g(f"v_add_u32 v{vDw[i]}, s4, v{self.vL16}")
                if i == 0: g(f"s_mov_b32 {sDm}, s4")
            g(f"s_lshr_b32 s4, {sW}, 1"); g("s_mul_i32 s4, s4, 6"); g(f"s_and_b32 s7, {sW}, 1"); g("s_add_u32 s4, s4, s7")
            g(f"s_lshl_b32 {sD0}, s4, 14"); g(f"s_lshl_b32 {sD7}, s7, 14")
            return g.end()
        events = {}
        def after(n, fn): events.setdefault(n, []).append(fn)
        PZ = self.o("pause", 1)
        def run(loads, pz_from=None, slow=0):
            pend = False; dep0 = self.o("h_dep", 9) if self.role == "H" else 0
            for n in range(len(loads) + 1):
                for fn in events.pop(n, []): fn(); pend = False
                if n == len(loads): break
                if PZ and pz_from is not None and n >= pz_from and (n - pz_from) % 2 == 0:
                    if not pend: g.add(self.lchk_issue(K_PZ, vXs))
                    g.add(self.lchk_check(K_PZ, vXs, neg=True, sleep=1))
                    g.add(loads[n]); g.add(self.lchk_issue(K_PZ, vXs)); pend = True
                else: g.add(loads[n])
                dep = self.o("tr_d", 3) if n < slow else dep0
                if dep: g(f"s_waitcnt vmcnt({dep-1})")
            for n in sorted(events):
                for fn in events.pop(n): fn()

        self.role = "S"
        if self.o("sprio", 0): g(f"s_setprio {self.o('sprio', 2)}")
        sXb, sX0, sXm, sWm, sEx, sRk, sKq, sWq = "s74", "s75", "s76", "s77", "s78", "s79", "s80", "s81"
        g(f"s_lshl_b32 s6, {sW}, 3")
        g(f"v_lshrrev_b32 v{a}, 3, v{L}"); g(f"v_add_u32 v{b}, s6, v{a}"); g(f"v_bfe_u32 v{c}, v{b}, 1, 3")
        g(f"v_and_b32 v{vXs}, 7, v{L}"); g(f"v_xor_b32 v{c}, v{c}, v{vXs}"); g(f"v_lshlrev_b32 v{vXs}, 10, v{b}"); g(f"v_lshl_add_u32 v{vXs}, v{c}, 4, v{vXs}")
        g(f"v_mul_u32_u24 v{a}, 3072, v{b}")
        g(f"v_bfe_u32 v{b}, v{L}, 4, 1"); g(f"s_lshl_b32 s6, {sW}, 1"); g(f"v_or_b32 v{b}, s6, v{b}")
        g(f"v_bfe_u32 v{c}, v{L}, 1, 2"); g(f"v_xor_b32 v{b}, v{b}, v{c}")
        g(f"v_and_b32 v{c}, 1, v{L}"); g(f"v_lshlrev_b32 v{c}, 4, v{c}"); g(f"v_lshl_add_u32 v{b}, v{b}, 5, v{c}")
        g(f"s_lshl_b32 s7, {sCB}, 7"); g(f"v_add3_u32 v{vWs}, v{a}, v{b}, s7")
        g(f"s_lshl_b32 {sXb}, {sRB}, 16"); g(f"s_sub_u32 {sX0}, {sXb}, 16384"); g(f"s_max_i32 {sX0}, {sX0}, 0")
        g(f"s_lshl_b32 {sXm}, {sW}, 10"); g(f"s_mul_i32 {sWm}, {sW}, 3072"); g(f"s_add_u32 {sWm}, {sWm}, {10*K1}")
        g(f"s_cmp_eq_u32 {sW}, 0"); g(f"s_cselect_b32 {sEx}, 0xffffff00, -1")
        RM = self.o("rotmask", 7)
        g(f"s_add_u32 s6, s4, {sCB}"); g(f"s_and_b32 {sRk}, s6, {RM}")
        if self.o("rot3", 0):
            g(f"s_lshl_b32 s7, {sRB}, 1"); g(f"s_cmp_eq_u32 {sCB}, 3"); g("s_cselect_b32 s7, s7, 0"); g(f"s_add_u32 {sRk}, {sRk}, s7")
        g("s_mov_b32 s10, %d" % (2048*512*2)); g("s_mov_b32 s11, 0x20000"); g("s_mov_b32 s14, %d" % (512*1536*2)); g("s_mov_b32 s15, 0x20000")
        g("s_waitcnt lgkmcnt(0)")
        g("s_mov_b32 s8, s48"); g("s_and_b32 s9, s49, 0xffff"); g("s_mov_b32 s12, s50"); g("s_and_b32 s13, s51, 0xffff")
        start_stamp(); self.stamp("ka")
        jobs = []; last = {}
        for P in range(8):
            sl = (P % 4) * SLOT
            for t in range(5):
                l = []
                if t == 0: l += [f"s_add_u32 {sKq}, {sRk}, {P}", f"s_and_b32 {sKq}, {sKq}, 7", f"s_mul_i32 {sWq}, {sKq}, {64*3072}", f"s_lshl_b32 {sKq}, {sKq}, 7"]
                l += [f"s_add_u32 m0, {sXm}, {sl + t*2048}"]
                if t == 0: l += [f"s_add_u32 s3, {sX0}, {sKq}", f"s_mov_b32 exec_lo, {sEx}"]
                elif t == 1: l += [f"s_add_u32 s3, {sXb}, {sKq}"]
                else: l += ["s_add_u32 s3, s3, 16384"]
                l += [f"buffer_load_dwordx4 v{vXs}, {SX}, s3 offen lds"]
                if t == 0: l += ["s_mov_b32 exec_lo, -1"]
                jobs.append(self.grp(*l, tag=f"x{P}"))
            for h in range(2):
                for bb in range(2):
                    for p in range(3):
                        l = [f"s_add_u32 m0, {sWm}, {sl + h*12288 + bb*6144}", f"s_add_u32 s3, {sWq}, {(h*32 + bb*16)*3072}"] if p == 0 else []
                        l += [f"buffer_load_dwordx4 v{vWs}, {SWQ}, s3 offen offset:{p*K1} lds"]
                        jobs.append(self.grp(*l, tag=f"w{2*P+h}"))
                last[2*P + h] = len(jobs)
        HF1 = self.o("h_first", 17); SL = self.o("h_sl", 16)
        def first():
            self.sync_consts(a); g("s_barrier")
            for k in (K_TB, K_PP): g.add(self.sig(k))
        after(HF1, first)
        chunks = []; cur = []
        for it in sym_setup():
            if len(cur) >= 6 and not it.op.startswith("s_cselect") and not cur[-1].op.startswith("s_cmp"): chunks.append(cur); cur = []
            cur.append(it)
        chunks.append(cur)
        for i, ch in enumerate(chunks): after(36 + i, (lambda ch=ch: g.add(ch)))
        assert 36 + len(chunks) < 4*17 - 3
        def stage_fn(k, s1):
            def fn():
                g.waitvm(f"w{s1}"); g.add(self.sig(K_A + k))
                if self.o("ast", 0) or k == 8: self.stamp(f"A{k}")
            return fn
        for k, s1 in enumerate([0, 1, 3, 5, 7, 9, 11, 13, 15]):
            lim = ((last[s1] + 16) // 17) * 17
            n = last[s1] + SL
            if s1 >= 7: n = last[s1] if self.o("h_blk", 0) else n
            after(max(n, HF1), stage_fn(k, s1))
        if self.o("fine", 1):
            for i, s1 in enumerate((2, 4)): after(max(last[s1] + SL, HF1), (lambda i=i, s1=s1: (g.waitvm(f"w{s1}"), g.add(self.sig(K_AX + i)))))
        for P in range(4, 8):
            after(17*P - 3, (lambda P=P: g.add(self.lchk_issue(K_F + P - 4, c))))
            after(17*P, (lambda P=P: g.add(self.lchk_check(K_F + P - 4, c, sleep=1))))
        WBR = self.o("wb_reg", 0)
        after(len(jobs), lambda: self.stamp("Ais"))
        if WBR:
            jobs += [self.grp(f"s_add_u32 s3, {sBs}, {(i//16)*256*K1 + (i%16)*8192}", f"buffer_load_dwordx4 {vr(Qd(i),4)}, v{vKs}, {SWO}, s3 offen") for i in range(32)]
        after(len(jobs) - self.o("is_early", 0), lambda: g.add(self.sig(K_IS)))
        run(jobs)
        g(f"v_add_u32 v{a}, {sBm}, v{self.vL16}")
        self.lwait(K_AE, c, sleep=1); self.stamp("AE")
        if WBR:
            for i in range(32):
                g(f"ds_write_b128 v{a}, {vr(Qd(i),4)} offset:{(i//16)*32*K1 + (i%16)*K1}")
                if i == 15: g.add(self.sig(K_WB))
        else:
            for i in range(32):
                g(f"s_add_u32 m0, {sBm}, {(i//16)*32*K1 + (i%16)*K1}"); g(f"s_add_u32 s3, {sBs}, {(i//16)*256*K1 + (i%16)*8192}")
                g(f"buffer_load_dwordx4 v{vKs}, {SWO}, s3 offen lds", tag=f"wb{i//16}")
                if self.o("wb_dep", 0): g(f"s_waitcnt vmcnt({self.o('wb_dep', 0) - 1})")
                if i == 31: g.waitvm("wb0"); g.add(self.sig(K_WB))
            g.waitvm("wb1")
        g(f"ds_write_b32 v{self.vSig}, v{self.vSig} offset:{16*K_WB + 8}")
        self.lwait(K_TB, c)
        for grp in self.get_nonce(a): g.add(grp)
        self.stamp("WB")
        g.label("L_sym")
        g(f"s_setprio {self.o('hprio', 0)}")

        g.begin(); self.role = "J"
        g.label("L_job", keep=True)
        PV = [Qd(12), Qd(12) + 1, Qd(12) + 2]; vTc = Qd(12) + 3; vPr, vPs, vP12, vF8 = Qd(13), Qd(13) + 1, Qd(13) + 2, Qd(13) + 3
        vTb, vT3 = Qd(14) + 2, Qd(14) + 3
        g(f"s_and_b32 s90, {sW}, 1")
        g("s_lshl_b32 s4, s2, 1"); g("s_add_u32 s98, s4, s90"); g("s_cmp_lt_u32 s98, 480"); g("s_cselect_b32 s91, 0, 0x80000000")
        g("s_mul_i32 s7, s98, 4370"); g("s_lshr_b32 s7, s7, 16"); g("s_mul_i32 s6, s7, 15"); g("s_sub_u32 s6, s98, s6"); g("s_and_b32 s7, s7, 31")
        g("s_lshl_b32 s92, s6, 5"); g("s_add_u32 s92, s92, s7")
        g(f"s_mul_i32 s94, s6, {6*32*K1}"); g("s_lshl_b32 s4, s7, 10"); g("s_add_u32 s94, s94, s4"); g(f"s_add_u32 s94, s94, {WS_WC}")
        g("s_mul_i32 s6, s6, 192"); g(f"s_mul_i32 s7, s7, {16*2752}"); g("s_add_u32 s6, s6, s7"); g("s_or_b32 s6, s6, s91")
        for i in range(3):
            g(f"v_add_u32 v{a}, {64*i}, v{L}"); g(f"v_mul_u32_u24 v{b}, 5462, v{a}"); g(f"v_lshrrev_b32 v{b}, 16, v{b}")
            g(f"v_mul_u32_u24 v{b}, {2752 - 192}, v{b}"); g(f"v_lshl_add_u32 v{b}, v{a}, 4, v{b}"); g(f"v_add_u32 v{PV[i]}, s6, v{b}")
        g(f"s_mul_i32 s95, s90, {6*K1 + 64}"); g(f"s_add_u32 s95, s95, {SCR}")
        g("s_lshl_b32 s6, s5, 1"); g("s_add_u32 s99, s6, s90"); g(f"v_mov_b32 v{b}, 0x80000000")
        g("s_mul_i32 s6, s99, 24"); g(f"v_add_u32 v{a}, s6, v{L}"); g(f"v_lshlrev_b32 v{a}, 10, v{a}"); g(f"v_cmp_gt_u32 vcc, 24, v{L}"); g(f"v_cndmask_b32 v{vT3}, v{b}, v{a}, vcc")
        g("s_mul_i32 s6, s98, 22"); g(f"v_add_u32 v{a}, s6, v{L}"); g(f"v_lshlrev_b32 v{a}, 7, v{a}"); g(f"v_cmp_gt_u32 vcc, 22, v{L}"); g(f"v_cndmask_b32 v{vTc}, v{b}, v{a}, vcc")
        g("s_lshl_b32 s6, s98, 3"); g(f"v_add_u32 v{a}, s6, v{L}"); g(f"v_lshlrev_b32 v{a}, 7, v{a}"); g(f"v_cmp_gt_u32 vcc, 8, v{L}"); g(f"v_cndmask_b32 v{vTb}, v{b}, v{a}, vcc")
        if self.o("t3b", 1):
            g("s_lshl_b32 s6, s99, 3"); g("s_sub_u32 s6, s6, 8"); g(f"v_add_u32 v{a}, s6, v{L}"); g(f"v_lshlrev_b32 v{a}, 10, v{a}"); g(f"v_add_u32 v{a}, 384, v{a}")
            g("s_mov_b32 s6, 0xff00"); g("s_mov_b32 s7, 0"); g(f"v_cndmask_b32 v{vTb}, v{vTb}, v{a}, s[6:7]")
        g("s_waitcnt lgkmcnt(0)")
        start_stamp()
        self.srd(12, 50, 512*1536*2); self.srd(20, 56, 512*1376*2); self.srd(24, 58, 512*1376*2); self.srd(16, 52, 512*512*2); self.srd(28, 60, 1376*512*2)
        if self.o("t3", 1): g(f"buffer_load_dword v{vT3}, v{vT3}, {SWQ}, 0 offen offset:384")
        WOT = self.o("wo_t", 1)
        if WOT == 1: g(f"buffer_load_dword v{Qd(14)}, v{vTb}, {SWO}, 0 offen")
        if self.o("wd_t", 0): g(f"buffer_load_dword v{Qd(14)+1}, v{vTc}, {SWD}, 0 offen")
        def batch_loads():
            for m in range(2):
                for i in range(3):
                    g(f"s_add_u32 m0, s95, {m*(3*K1 + 32) + i*K1}"); g("s_nop 0")
                    g(f"buffer_load_dwordx4 v{PV[i]}, {(SWG, SWU)[m]}, 0 offen lds", tag="pl")
            if not self.o("wd_t", 0) and not self.o("ct", 0): g(f"buffer_load_dword v{Qd(14)+1}, v{vTc}, {SWD}, 0 offen")
        EARLY = self.o("early", 0)
        self.sync_consts(a)
        g("s_barrier")
        for k in list(range(K_A, K_A + 9)) + [K_IS, K_AX, K_AX + 1]: g.add(self.sig(k))
        if EARLY:
            g(f"buffer_load_dword v{Qd(14)}, v{vTb}, {SWO}, 0 offen"); batch_loads(); self.stamp("go")
        g(f"v_mov_b32 v{self.vZero}, 0"); g(f"v_lshlrev_b32 v{self.vL8}, 3, v{L}")
        g.add(sym_setup())
        self.srd(8, 48, 2048*512*2); self.srd(36, 64, 256)
        g("s_lshl_b32 s93, s92, 10"); g(f"s_add_u32 s93, s93, {WS_CS}"); g("s_lshl_b32 s92, s92, 7"); g(f"s_add_u32 s92, s92, {WS_FW}")
        g(f"v_bfe_u32 v{b}, v{L}, 4, 1"); g(f"v_mul_u32_u24 v{a}, {3*K1 + 32}, v{b}")
        g(f"v_lshrrev_b32 v{b}, 5, v{L}"); g(f"v_mul_u32_u24 v{b}, {8*192}, v{b}"); g(f"v_add_u32 v{a}, v{a}, v{b}")
        g(f"v_bfe_u32 v{b}, v{L}, 2, 2"); g(f"v_mul_u32_u24 v{b}, 192, v{b}"); g(f"v_add_u32 v{a}, v{a}, v{b}")
        self.pi8(a, b); g(f"v_add_u32 v{vPr}, s95, v{a}")
        g(f"v_or_b32 v{vPs}, s91, v{self.vL16}"); g(f"v_or_b32 v{vF8}, s91, v{self.vL8}"); g(f"v_or_b32 v{vP12}, s91, v{vPC}")
        for i in range(4): g(f"v_mov_b32 v{ON+i}, 0x3f803f80")
        g(f"s_lshr_b32 s4, s2, {self.o('b_sh', 6)}"); g(f"s_and_b32 s4, s4, {self.o('b_n', 4) - 1}"); g("s_lshl_b32 s4, s4, 4"); g(f"v_add_u32 v{vWs}, s4, v{self.vAll}")
        g(f"s_lshl_b32 s96, {sRB}, 6"); g(f"s_lshl_b32 s4, {sCB}, 3"); g("s_add_u32 s96, s96, s4"); g("s_lshl_b32 s4, s90, 2"); g("s_add_u32 s96, s96, s4")
        self.stamp("set")
        if self.o("s_at", 0) >= 0: self.lwait(K_A + self.o("s_at", 0), c, sleep=2)
        g("s_lshl_b32 s4, s96, 10")
        for r in range(4): g(f"buffer_load_dwordx4 {vr(Qd(16+r),4)}, v{self.vL16}, {SX}, s4 offen offset:{r*K1}")
        g(f"buffer_load_dwordx2 {vr(self.vNON,2)}, v{self.vZero}, {SDBG}, 0 offen sc1")
        if not EARLY and WOT == 0: g(f"buffer_load_dword v{Qd(14)}, v{vTb}, {SWO}, 0 offen")
        if self.o("jprio", 0): g(f"s_setprio {self.o('jprio', 0)}")
        SQ = Qd(20); U = Qd(24)
        for r in range(4):
            for j in range(4):
                g(f"v_lshlrev_b32 v{U+2*j}, 16, v{Qd(16+r)+j}"); g(f"v_and_b32 v{U+2*j+1}, 0xffff0000, v{Qd(16+r)+j}")
            g(f"v_add_f32 v{SQ+r}, v{U}, v{U+1}"); g(f"v_mul_f32 v{SQ+4+r}, v{U}, v{U}"); g(f"v_fmac_f32 v{SQ+4+r}, v{U+1}, v{U+1}")
            for j in range(2, 8):
                g(f"v_add_f32 v{SQ+r}, v{SQ+r}, v{U+j}"); g(f"v_fmac_f32 v{SQ+4+r}, v{U+j}, v{U+j}")
        for sh in (8, 4, 2, 1):
            for i in range(8): g(f"v_add_f32_dpp v{SQ+i}, v{SQ+i}, v{SQ+i} row_ror:{sh} row_mask:0xf bank_mask:0xf")
        for sw in ("v_permlane16_swap_b32", "v_permlane32_swap_b32"):
            for i in range(8): g(f"v_mov_b32 v{U+i}, v{SQ+i}")
            for i in range(8): g(f"{sw} v{SQ+i}, v{U+i}")
            for i in range(8): g(f"v_add_f32 v{SQ+i}, v{SQ+i}, v{U+i}")
        for r in range(1, 4):
            g(f"v_cmp_eq_u32 vcc, {r}, v{L}"); g(f"v_cndmask_b32 v{SQ}, v{SQ}, v{SQ+r}, vcc"); g(f"v_cndmask_b32 v{SQ+4}, v{SQ+4}, v{SQ+4+r}, vcc")
        G = Qd(26)
        g(f"v_mul_f32 v{G}, {f32(1/512)}, v{SQ}"); g(f"v_mul_f32 v{SQ+4}, {f32(1/512)}, v{SQ+4}"); g(f"v_fma_f32 v{SQ+4}, -v{G}, v{G}, v{SQ+4}")
        g(f"v_max_f32 v{SQ+4}, 0, v{SQ+4}")
        self.rbf(G); self.rbf(SQ+4); g(f"v_add_f32 v{SQ+4}, {f32(1e-5)}, v{SQ+4}"); self.rbf(SQ+4)
        g(f"v_sqrt_f32 v{SQ+4}, v{SQ+4}"); self.rbf(SQ+4); g(f"v_rcp_f32 v{G+2}, v{SQ+4}")
        g("s_mov_b32 s52, 0")
        g.label("L_jn", keep=True)
        g(f"v_readfirstlane_b32 s70, v{self.vNON}"); g(f"v_readfirstlane_b32 s71, v{self.vNON+1}")
        g("s_cmp_lg_u32 s70, 0"); g.branch("s_cbranch_scc1 L_jn2", keep=True)
        g(f"buffer_load_dwordx2 {vr(self.vNON,2)}, v{self.vZero}, {SDBG}, 0 offen sc1")
        g("s_add_u32 s52, s52, 1"); g("s_waitcnt vmcnt(0)"); g(f"s_cmp_lt_u32 s52, {POLL_LIMIT}"); g.branch("s_cbranch_scc1 L_jn", keep=True)
        g.label("L_jn2", keep=True)
        g(f"v_mov_b32 v{G+1}, s70"); g(f"v_mov_b32 v{G+3}, s70")
        g("s_lshl_b32 s4, s96, 4"); g(f"s_add_u32 s4, s4, {WS_ST}"); g("s_mov_b64 exec, 15")
        g(f"buffer_store_dwordx4 {vr(G,4)}, v{self.vL16}, {SWS}, s4 offen sc1"); g("s_mov_b64 exec, -1")
        if self.o("jprio", 0): g("s_setprio 0")
        self.stamp("st")
        g("s_lshl_b32 s4, s90, 6"); g(f"v_add_u32 v{a}, s4, v{L}"); g(f"v_min_u32 v{a}, 79, v{a}")
        g(f"s_lshl_b32 s4, {sRB}, 6"); g("s_sub_u32 s4, s4, 16"); g(f"v_add_u32 v{b}, s4, v{a}"); g(f"v_max_i32 v{b}, 0, v{b}")
        g(f"v_lshlrev_b32 v{b}, 4, v{b}"); g(f"v_add_u32 v{b}, {WS_ST}, v{b}")
        g(f"v_lshlrev_b32 v{a}, 2, v{a}"); g(f"v_add_u32 v{a}, {TAB}, v{a}")
        def batch():
            if EARLY: return
            if self.o("b_is", 1): self.lwait(K_IS, c, sleep=1)
            else: self.lwait(K_A + self.o("b_0", 5), c, sleep=2, addr=vWs)
            self.stamp("go"); batch_loads()
        def gather():
            self.lwait(K_A + self.o("g_at", 5), c, sleep=2)
            g("s_mov_b32 s52, 0")
            g.label("L_jg", keep=True)
            g(f"buffer_load_dwordx4 {vr(G,4)}, v{b}, {SWS}, 0 offen sc1")
            g("s_add_u32 s52, s52, 1"); g(f"s_cmp_gt_u32 s52, {POLL_LIMIT}"); g("s_cbranch_scc1 L_jg2")
            g("s_waitcnt vmcnt(0)")
            g(f"v_cmp_ne_u32 vcc, s70, v{G+1}"); g(f"v_cmp_ne_u32 s[6:7], s70, v{G+3}"); g("s_or_b64 vcc, vcc, s[6:7]"); g("s_cbranch_vccz L_jg2")
            g("s_sleep 4"); g.branch("s_branch L_jg", keep=True)
            g.label("L_jg2", keep=True)
            g(f"ds_write_b32 v{a}, v{G}"); g(f"ds_write_b32 v{a}, v{G+2} offset:512")
            g(f"v_mov_b32 v{a}, {NONL}"); g(f"ds_write_b64 v{a}, {vr(self.vNON,2)}")
            g.add(self.sig(K_TB))
            self.stamp("TB")
        def patch():
            g("s_waitcnt vmcnt(0)")
            self.stamp("pl")
            if self.o("jprio2", 0): g(f"s_setprio {self.o('jprio2', 0)}")
            for u in range(6):
                for j2 in range(2): g(f"ds_read_b64_tr_b16 {vr(Qd(6+u)+2*j2,2)}, v{vPr} offset:{u*32 + j2*768}")
            g.add(self.sig(K_PP))
            for u in range(6):
                g(f"s_add_u32 s4, s94, {u*32*K1}"); g(f"buffer_store_dwordx4 {vr(Qd(6+u),4)}, v{vPs}, {SWS}, s4 offen sc1")
            g("s_mov_b32 s6, 0"); g("s_mov_b32 s7, -1")
            A6 = [CA, Qd(0), Qd(16), Qd(20), Qd(28), Qd(32)]
            for u in range(6): g(f"v_mfma_f32_32x32x16_bf16 {vr(A6[u],16)}, {vr(ON,4)}, {vr(Qd(6+u),4)}, 0")
            for i in range(3): g(f"v_cndmask_b32 v{Qd(15)+i}, v{A6[2*i]}, v{A6[2*i+1]}, s[6:7]")
            g(f"buffer_store_dwordx3 {vr(Qd(15),3)}, v{vP12}, {SWS}, s93 offen sc1")
            g("s_waitcnt vmcnt(0)")
            g("s_mov_b64 exec, 0xffff"); g(f"buffer_store_dwordx2 {vr(self.vNON,2)}, v{vF8}, {SWS}, s92 offen sc1"); g("s_mov_b64 exec, -1")
            self.stamp("PF")
        if EARLY:
            if self.o("p_at", -1) >= 0: self.lwait(K_A + self.o("p_at", -1), c, sleep=2)
            patch(); gather()
        elif self.o("b_first", 0) == 2: batch(); gather(); patch()
        elif self.o("b_first", 0): batch(); patch(); gather()
        else: gather(); batch(); patch()
        self.lwait(K_AE, c, sleep=2)
        g.branch("s_branch L_sym")
        jobcode = g.end()

        self.role = "H"
        self.stamp("sym")
        KO = (list(range(16, 32)) + list(range(16))) if self.o("c_ko", 1) else list(range(32))
        def pjob(p):
            out = []
            for half in range(2):
                for e in range(2):
                    u = 2*p + e; base = KO[16*half]*K1; v = vCs if u < 2 else vCs2
                    for j in range(4):
                        l = [f"s_add_u32 m0, {sUm}, {(p%2)*65536 + e*32768 + base}", f"s_add_u32 s3, {sCm}, {u*32*K1 + base}"] if j == 0 else []
                        l.append(f"buffer_load_dwordx4 v{v}, {SWS}, s3 offen offset:{j*K1} sc1 lds")
                        out.append(self.grp(*l, tag=f"wu{p}{half}"))
            return out
        qD = {n: Qd(2*(n - 11)) for n in range(11, 22)}
        def djob(n):
            j, i = DK[n]; sb = sD7 if (j, i) == (0, 7) else sD0; off = (12*i + 2*j)*16384
            if n < 11:
                m = (sDm, n*2048) if n < 3 else (sBm, (n-3)*2048)
                return [self.grp(f"s_add_u32 m0, {m[0]}, {m[1] + h*K1}", f"s_add_u32 s3, {sb}, {off + h*8192}", f"buffer_load_dwordx4 v{vKs}, {SWD}, s3 offen lds", tag="wd0" if n < 3 else "wd1") for h in range(2)]
            return [self.grp(f"s_add_u32 s3, {sb}, {off + h*8192}", f"buffer_load_dwordx4 {vr(qD[n]+4*h,4)}, v{vKs}, {SWD}, s3 offen") for h in range(2)]
        def dwrite(part, sk):
            f, n, _, _ = DPART[part]
            for i in range(n):
                for h in range(2): g(f"ds_write_b128 v{vDw[part % 3]}, {vr(qD[f+i]+4*h,4)} offset:{i*2048 + h*K1}")
            g.add(self.sig(sk))
        def cs_sum():
            for st in (4, 2, 1):
                for j in range(st):
                    for i in range(3): g(f"v_add_f32 v{Qd(44+j)+i}, v{Qd(44+j)+i}, v{Qd(44+j+st)+i}")
            g(f"s_lshr_b32 s4, {sW}, 1"); g("s_lshl_b32 s4, s4, 9"); g(f"s_and_b32 s6, {sW}, 1"); g("s_lshl_b32 s6, s6, 3"); g("s_add_u32 s4, s4, s6"); g(f"s_add_u32 s4, s4, {CST}")
            g(f"v_and_b32 v{b}, 31, v{L}"); g(f"v_lshl_add_u32 v{a}, v{b}, 4, s4"); g(f"v_lshrrev_b32 v{b}, 5, v{L}"); g(f"v_lshl_add_u32 v{a}, v{b}, 10, v{a}")
            self.lwait(K_T2, c, sleep=1)
            for i in range(3):
                x = Qd(44) + i; o = CA + 2*i
                g(f"v_cvt_pk_bf16_f32 v{o+1}, v{x}, 0"); g(f"v_lshlrev_b32 v{b}, 16, v{o+1}"); g(f"v_sub_f32 v{b}, v{x}, v{b}"); g(f"v_cvt_pk_bf16_f32 v{o}, v{x}, v{b}")
                g(f"ds_write_b64 v{a}, {vr(o,2)} offset:{2*i*K1}")
            g.add(self.sig(K_CS))
        LA = self.o("h_la", 8)
        gap = [x for n in range(11, 22) for x in djob(n)] + [x for n in range(3) for x in djob(n)]
        def take(n):
            nonlocal gap
            t = gap[:n]; gap = gap[n:]; return t
        self.lwait(K_PP, c)
        def trickle(n):
            d = self.o("tr_d", 3)
            for grp in take(n): g.add(grp); g(f"s_waitcnt vmcnt({d-1})")
        trickle(self.o("h_g0", 12))
        def pw(): g.add(self.apoll_issue(vPW, t2)); g.add(self.apoll_check(vPW, t2, plain=True)); self.stamp("PW")
        PF_ = self.o("pw_first", 2)
        if PF_ == 2: g.add(self.apoll_issue(vPW, t2))
        US = self.o("u_slow", 0)
        if self.o("g1", 1) and not US: self.lwait(K_G1, c, sleep=1)
        self.stamp("G1")
        if US: after(US, lambda: self.lwait(K_G1, c, sleep=1))
        if PF_ == 2: g.add(self.apoll_check(vPW, t2, plain=True)); self.stamp("PW")
        else: pw()
        p0 = pjob(0); p1 = pjob(1); p2 = pjob(2)
        csl = [self.grp(f"s_add_u32 s3, {sCSr}, {(j//4)*16*K1}", f"buffer_load_dwordx3 {vr(Qd(44+j),3)}, v{vPC}, {SWS}, s3 offen offset:{(j%4)*K1} sc1") for j in range(8)]
        CL = self.o("cs_late", 1); MB = self.o("mid", 2)
        if MB == 3:
            after(16, lambda: (g.waitvm("wu00"), g.add(self.sig(K_C01)), self.stamp("C01"), self.lwait(K_B4, c, sleep=1)))
            after(24, lambda: (g.waitvm("wu01"), g.add(self.sig(K_C01b))))
            run(p0 + p1[:8] + ([] if CL else csl), slow=US)
            g.waitvm("wu10"); g.add(self.sig(K_C23)); late = []
        else:
            run(p0[:8]); g.waitvm("wu00"); g.add(self.sig(K_C01)); self.stamp("C01"); self.lwait(K_B4, c, sleep=1)
            if MB == 2: run(p1[:8]); g.waitvm("wu10"); g.add(self.sig(K_C23)); late = p0[8:]
            else: late = p1[:8] + p0[8:]
        if not CL: cs_sum()
        if self.o("g2", 1): self.lwait(K_G2, c, sleep=1)
        self.stamp("G2")
        if MB == 1: after(8 + 4, lambda: (g.waitvm("wu10"), g.add(self.sig(K_C23))))
        if MB < 3: after(len(late) + 6, lambda: (g.waitvm("wu01"), g.add(self.sig(K_C01b))))
        if CL: late = late + csl; after(len(late) + 8, cs_sum)
        after(len(late) + 8 + LA, lambda: (g.waitvm("wu11"), g.add(self.sig(K_C23b)), self.stamp("C23")))
        run(late + p1[8:] + take(self.o("h_g2", 4)))
        self.lwait(K_P0, c, sleep=1)
        self.stamp("P0")
        after(8 + LA, lambda: (g.waitvm("wu20"), g.add(self.sig(K_C45))))
        run(p2[:8] + take(self.o("h_g3", 6)))
        self.lwait(K_P0b, c, sleep=1)
        after(8 + LA, lambda: (g.waitvm("wu21"), g.add(self.sig(K_C45b)), self.stamp("C45")))
        run(p2[8:] + take(99))
        g.waitvm("wd0"); g.add(self.sig(K_D1))
        self.stamp("n3")
        self.lwait(K_U3, c, sleep=1)
        run([x for n in range(3, 11) for x in djob(n)])
        g.waitvm("wd1"); g.add(self.sig(K_D2))
        self.stamp("D2")
        self.lwait(K_U5, c, sleep=1); dwrite(2, K_D3)
        self.lwait(K_DS, c, own=True, sleep=1); dwrite(3, K_D4)
        self.stamp("D4")
        if self.stamps:
            g(f"s_lshl_b32 s3, s2, 2"); g(f"s_add_u32 s3, s3, {sW}"); g("s_lshl_b32 s3, s3, 8"); g(f"s_add_u32 s3, s3, {WS_STAMP + 0x40000}")
            g(f"v_lshlrev_b32 v{a}, 2, v{L}"); g(f"buffer_store_dword v{self.vST}, v{a}, {SWS}, s3 offen")
        g("s_endpgm")
        g.add(jobcode)
        self.role = "C"

    def consts(self, a, b):
        g, V, L = self.g, self.V, self.vL
        self.sO0, self.sO1, self.sF1 = self.s(), self.s(), self.s()
        g(f"s_lshl_b32 s4, {sCB}, 2"); g(f"s_add_u32 s4, s4, {sW}")
        g(f"s_lshl_b32 s6, {sRB}, 6"); g("s_add_u32 s6, s6, s4"); g("s_lshl_b32 s6, s6, 10"); g(f"s_add_u32 {self.sO0}, s6, {WS_O}"); g(f"s_add_u32 {self.sO1}, {self.sO0}, {32*K1}")
        g(f"s_lshl_b32 s6, {sRB}, 5"); g("s_add_u32 s6, s6, s4"); g("s_lshl_b32 s6, s6, 3"); g(f"s_add_u32 {self.sF1}, s6, {WS_FF}")
        self.sOF = [[self.s(), self.s()], [self.s(), self.s()]]; self.sHF = [self.s(), self.s()]
        g(f"s_lshr_b32 s4, {sW}, 1"); g("s_mul_i32 s4, s4, 6"); g(f"s_and_b32 s7, {sW}, 1"); g("s_add_u32 s5, s4, s7")
        for rt in range(2):
            g(f"s_lshr_b32 s4, {sW}, 1"); g(f"s_xor_b32 s4, s4, {rt}"); g(f"s_lshl_b32 s6, {sRB}, 1"); g("s_add_u32 s4, s4, s6")
            g("s_lshl_b32 s6, s4, 5"); g(f"s_lshl_b32 s7, {sW}, 3"); g("s_add_u32 s6, s6, s7"); g("s_lshl_b32 s6, s6, 10"); g(f"s_add_u32 {self.sOF[rt][0]}, s6, {WS_O}")
            g(f"s_add_u32 {self.sOF[rt][1]}, {self.sOF[rt][0]}, 4096")
            g(f"s_mul_i32 s6, s4, {HHP}"); g(f"s_add_u32 s6, s6, {WS_HH//K1}"); g("s_add_u32 s7, s6, s5"); g(f"s_lshl_b32 {self.sHF[rt]}, s7, 10")
        self.sHs, self.sHt, self.sF2 = self.s(), self.s(), self.s()
        g(f"s_lshl_b32 s4, {sRB}, 1"); g(f"s_lshr_b32 s6, {sW}, 1"); g("s_add_u32 s4, s4, s6")
        g(f"s_lshl_b32 s6, {sCB}, 1"); g(f"s_and_b32 s7, {sW}, 1"); g("s_add_u32 s6, s6, s7")
        self.vRM = V(1)
        g(f"v_and_b32 v{a}, 31, v{L}"); g(f"v_lshlrev_b32 v{a}, 10, v{a}"); g(f"v_lshrrev_b32 v{b}, 5, v{L}"); g(f"v_lshl_add_u32 v{a}, v{b}, 4, v{a}")
        g("s_lshl_b32 s7, s4, 15"); g(f"v_add_u32 v{a}, s7, v{a}"); g("s_lshl_b32 s7, s6, 6"); g(f"v_add_u32 v{self.vRM}, s7, v{a}")
        g("s_lshl_b32 s4, s4, 4"); g("s_add_u32 s4, s4, s6")
        g("s_lshl_b32 s6, s4, 11"); g(f"s_add_u32 {self.sHs}, s6, {WS_H}")
        g("s_lshl_b32 s6, s4, 8"); g(f"s_add_u32 {self.sHt}, s6, {WS_HST}")
        g("s_lshl_b32 s6, s4, 3"); g(f"s_add_u32 {self.sF2}, s6, {WS_FF + 1024*8}")
        self.vKr = V(1)
        g(f"v_lshrrev_b32 v{a}, 5, v{L}"); g(f"v_lshlrev_b32 v{a}, 10, v{a}")
        g(f"v_bfe_u32 v{b}, v{L}, 2, 2"); g(f"v_lshl_add_u32 v{a}, v{b}, 7, v{a}")
        g(f"v_bfe_u32 v{b}, v{L}, 3, 1"); g(f"s_and_b32 s4, {sW}, 1"); g(f"v_xor_b32 v{b}, s4, v{b}"); g(f"v_lshl_add_u32 v{a}, v{b}, 6, v{a}")
        g(f"v_bfe_u32 v{b}, v{L}, 4, 1"); g(f"v_lshl_add_u32 v{a}, v{b}, 5, v{a}")
        self.pi8(a, b); g(f"v_mov_b32 v{self.vKr}, v{a}")
        self.sCh, self.sCt, self.sCo, self.sF3 = self.s(), self.s(), self.s(), self.s()
        g(f"s_lshl_b32 s4, {sR128}, 2"); g(f"s_add_u32 s4, s4, {sW}")
        g("s_lshl_b32 s6, s4, 15"); g(f"s_add_u32 {self.sCh}, s6, {WS_H}")
        g("s_lshl_b32 s6, s4, 12"); g(f"s_add_u32 {self.sCt}, s6, {WS_HST}")
        g(f"s_mul_i32 s6, s4, {HHP}"); g(f"s_mul_i32 s7, {sCGX}, 6"); g("s_add_u32 s6, s6, s7"); g("s_lshl_b32 s6, s6, 10"); g(f"s_add_u32 {self.sCo}, s6, {WS_HH}")
        g("s_mul_i32 s6, s4, 48"); g(f"s_add_u32 s6, s6, {sCGX}"); g("s_lshl_b32 s6, s6, 3"); g(f"s_add_u32 {self.sF3}, s6, {WS_FF + 2048*8}")
        self.vP1, self.vP2, self.vP3 = V(1), V(1), V(1)
        g("s_lshl_b32 s6, s4, 7"); g(f"s_add_u32 s6, s6, {WS_FF + 1024*8}")
        g(f"v_and_b32 v{a}, 15, v{L}"); g(f"v_lshl_add_u32 v{self.vP2}, v{a}, 3, s6")
        g(f"s_lshl_b32 s4, {sRB}, 5"); g(f"s_lshl_b32 s6, {sW}, 3"); g("s_add_u32 s4, s4, s6"); g("s_lshl_b32 s4, s4, 3"); g(f"s_add_u32 s4, s4, {WS_FF}")
        g(f"v_and_b32 v{a}, 7, v{L}"); g(f"v_lshl_add_u32 v{self.vP1}, v{a}, 3, s4")
        g(f"s_lshr_b32 s7, {sW}, 1"); g("s_sub_u32 s6, 7, s7"); g(f"v_min_u32 v{a}, s6, v{a}"); g(f"v_lshlrev_b32 v{a}, 4, v{a}")
        g(f"v_bfe_u32 v{b}, v{L}, 3, 1"); g(f"v_mul_u32_u24 v{b}, {48*8}, v{b}")
        g(f"s_mul_i32 s4, {sRB}, 96"); g("s_add_u32 s4, s4, s7"); g("s_lshl_b32 s4, s4, 3"); g(f"s_add_u32 s4, s4, {WS_FF + 2048*8}")
        g(f"v_add3_u32 v{self.vP3}, v{a}, v{b}, s4")

    def phaseA(self):
        g, V, L = self.g, self.V, self.vL
        g.label("L_compute", keep=True)
        self.vL4 = V(1); self.vHP = V(8, 4); self.vX3 = V(4)
        a, b, c = V(1), V(1), V(1); J = self.vX3
        if self.o("prio", 1): g(f"s_setprio {self.o('prio', 1)}")
        g("s_getpc_b64 s[6:7]"); g.raw("L_pc:")
        g(f"s_sub_u32 s6, s6, L_pc-{NAME}_kernel"); g("s_subb_u32 s7, s7, 0")
        g(f"v_lshrrev_b32 v{a}, 4, v0"); g(f"v_lshl_add_u32 v{a}, s5, 4, v{a}"); g(f"v_lshlrev_b32 v{a}, 7, v{a}")
        g(f"v_min_u32 v{a}, L_codeend-{NAME}_kernel-4, v{a}")
        g(f"global_load_dword v{J}, v{a}, s[6:7]")
        g(f"v_lshlrev_b32 v{self.vL8}, 3, v{L}"); g(f"v_lshlrev_b32 v{self.vL4}, 2, v{L}"); g(f"v_mov_b32 v{self.vZero}, 0")
        ONES = V(4, 4); Z4 = self.vHP
        for i in range(4): g(f"v_mov_b32 v{ONES+i}, 0x3f803f80"); g(f"v_mov_b32 v{Z4+i}, 0")
        g(f"v_bfe_u32 v{a}, v{L}, 3, 2"); g(f"v_mul_u32_u24 v{a}, {SLOT}, v{a}"); g(f"v_and_b32 v{b}, 7, v{L}"); g(f"v_lshl_add_u32 v{a}, v{b}, 4, v{a}")
        g(f"ds_write_b128 v{a}, {vr(ONES,4)}")
        g(f"v_add_u32 v{a}, {SYNC}, v{self.vL16}"); g(f"ds_write_b128 v{a}, {vr(Z4,4)}")
        g(f"v_mov_b32 v{c}, 0")
        for i, x in enumerate(WARM[1:]): g(f"s_mov_b32 s3, {x}"); g(f"v_writelane_b32 v{c}, s3, {i+1}")
        g(f"s_or_b32 s3, s2, {sW}")
        g("s_waitcnt lgkmcnt(0)")
        if self.stamps: g(f"v_writelane_b32 v{self.vST}, s100, 0"); self.names["C"].append("start")
        self.srd(36, 64, 256)
        g("s_cmp_eq_u32 s3, 0"); g.branch("s_cbranch_scc1 L_pubnonce", keep=True)
        g.label("L_pubdone", keep=True)
        g.begin(); g.label("L_pubnonce", keep=True)
        g("s_or_b32 s100, s100, 1"); g(f"v_mov_b32 v{self.vNON}, s100"); g(f"v_mov_b32 v{self.vNON+1}, s101")
        g("s_mov_b64 exec, 1"); g(f"buffer_store_dwordx2 {vr(self.vNON,2)}, v{self.vZero}, {SDBG}, 0 offen sc1"); g("s_mov_b64 exec, -1")
        g.branch("s_branch L_pubdone", keep=True); self.tail.append(g.end())
        self.srd(8, 48, 2048*512*2); self.srd(32, 62, 2048*512*2); self.srd(40, 66, WS_SIZE)
        if self.o("tlb", 1):
            g(f"s_cmp_eq_u32 {sW}, 1"); g("s_cselect_b64 s[6:7], s[56:57], s[52:53]")
            g(f"s_cmp_eq_u32 {sW}, 2"); g("s_cselect_b64 s[6:7], s[58:59], s[6:7]")
            g(f"s_cmp_eq_u32 {sW}, 3"); g("s_cselect_b64 s[6:7], s[60:61], s[6:7]")
            g("s_mov_b32 s20, s6"); g("s_and_b32 s21, s7, 0xffff"); g("s_mov_b32 s22, 4096"); g("s_mov_b32 s23, 0x20000")
            g(f"buffer_load_dword v{J+3}, v{self.vZero}, s[20:23], 0 offen")
            g(f"buffer_load_dword v{J+2}, v{c}, {SWS}, 0 offen")
            if self.o("tlb", 1) > 1: g(f"buffer_load_dword v{self.vHP+5}, v{self.vZero}, {SOUT}, 0 offen")
        CT = self.o("ct", 0)
        if CT:
            g(f"s_cmp_eq_u32 {sW}, 2"); g("s_cselect_b64 s[6:7], s[58:59], s[56:57]")
            g(f"s_cmp_eq_u32 {sW}, 3"); g("s_cselect_b64 s[6:7], s[60:61], s[6:7]")
            g("s_mov_b32 s16, s6"); g("s_and_b32 s17, s7, 0xffff"); g(f"s_mov_b32 s18, {512*1376*2}"); g("s_mov_b32 s19, 0x20000")
            vTch = V(1); sGrp = self.s()
            g("s_mul_i32 s6, s2, 43"); g(f"v_add_u32 v{a}, s6, v{L}"); g(f"v_lshlrev_b32 v{a}, 7, v{a}")
            g(f"s_cmp_eq_u32 {sW}, 0"); g("s_cselect_b32 s4, 0, 43")
            g(f"v_mov_b32 v{b}, 0x80000000"); g(f"v_cmp_gt_u32 vcc, s4, v{L}"); g(f"v_cndmask_b32 v{vTch}, v{b}, v{a}, vcc")
            g(f"s_mul_i32 {sGrp}, s2, {self.o('ct_n', 8)}"); g(f"s_lshr_b32 {sGrp}, {sGrp}, 8")
        g("s_barrier")
        self.cmap(); self.sync_consts(a); self.consts(a, b)
        g(f"v_lshrrev_b32 v{a}, 4, v{L}"); g(f"v_lshl_add_u32 v{a}, v{a}, 7, v{self.vP3}")
        g("s_mov_b32 s6, 0"); g("s_mov_b32 s7, 0x00ff0000"); g(f"v_cndmask_b32 v{a}, v{a}, v{self.vP2}, s[6:7]")
        g("s_mov_b32 s7, 0xff000000"); g(f"v_cndmask_b32 v{a}, v{a}, v{self.vP1}, s[6:7]")
        vFw = V(1); g(f"v_mov_b32 v{vFw}, v{a}")
        vXr = [V(1), V(1)]; vWr = V(1)
        g(f"v_bfe_u32 v{a}, v{L}, 1, 3"); g(f"v_lshrrev_b32 v{b}, 4, v{L}"); g(f"v_xor_b32 v{a}, v{a}, v{b}"); g(f"v_lshlrev_b32 v{a}, 4, v{a}")
        g(f"v_and_b32 v{c}, 15, v{L}"); g(f"v_lshl_add_u32 v{vXr[0]}, v{c}, 7, v{a}"); g(f"v_xor_b32 v{vXr[1]}, 64, v{vXr[0]}")
        g(f"v_bfe_u32 v{a}, v{L}, 3, 2"); g(f"v_xor_b32 v{a}, {sW}, v{a}"); g(f"v_lshlrev_b32 v{a}, 5, v{a}")
        g(f"v_mul_u32_u24 v{b}, 3072, v{b}"); g(f"v_bfe_u32 v{c}, v{L}, 2, 2"); g(f"v_lshl_add_u32 v{a}, v{c}, 7, v{a}")
        g(f"v_and_b32 v{c}, 3, v{L}"); g(f"v_lshl_add_u32 v{a}, v{c}, 3, v{a}"); g(f"v_add_u32 v{vWr}, v{a}, v{b}")
        BC, BP, BP1, MK = V(4, 4), V(4, 4), V(4, 4), V(4, 4); vT1, vT2 = V(1), V(1)
        g(f"v_and_b32 v{a}, 15, v{L}"); g(f"v_lshrrev_b32 v{b}, 4, v{L}")
        g(f"v_lshlrev_b32 v{vT1}, 2, v{a}"); g(f"v_add_u32 v{vT1}, {TAB}, v{vT1}")
        g(f"v_lshlrev_b32 v{vT2}, 4, v{b}"); g(f"v_add_u32 v{vT2}, {TAB}, v{vT2}")
        g(f"v_lshlrev_b32 v{b}, 2, v{b}"); g(f"v_sub_u32 v{a}, v{a}, v{b}"); g(f"v_mov_b32 v{c}, {f32(-1e30)}")
        g(f"s_cmp_eq_u32 {sRB}, 0"); g("s_cselect_b64 s[58:59], 0, -1")
        for r in range(4):
            g(f"v_subrev_u32 v{b}, {r}, v{a}"); g(f"v_and_b32 v{b}, 0x80000001, v{b}")
            g(f"v_cmp_eq_u32 vcc, 0, v{b}"); g(f"v_cndmask_b32 v{BC+r}, v{c}, 0, vcc")
            g(f"v_cmp_eq_u32 vcc, 0x80000000, v{b}"); g(f"v_cndmask_b32 v{BP+r}, v{c}, 0, vcc")
            g(f"v_cndmask_b32 v{BP1+r}, v{c}, v{BP+r}, s[58:59]")
        for i, B in enumerate((BP, BC)):
            for h in range(2):
                g(f"v_ashrrev_i32 v{a}, 31, v{B+2*h}"); g(f"v_ashrrev_i32 v{b}, 31, v{B+2*h+1}")
                g(f"v_and_b32 v{a}, 0xffff, v{a}"); g(f"v_and_b32 v{b}, 0xffff0000, v{b}"); g(f"v_or_b32 v{a}, v{a}, v{b}"); g(f"v_not_b32 v{MK+2*i+h}, v{a}")
        g(f"s_mov_b32 s60, {f32(1/512)}"); g(f"s_mov_b32 s61, {f32(0.25*LOG2E)}")
        FB = [V(32, 4), V(32, 4)]
        XF = [[FB[i] + 4*t for t in range(5)] for i in range(2)]; WF = [[FB[i] + 20 + 4*p for p in range(3)] for i in range(2)]
        Q = [V(4, 4) for t in range(5)]; Kc = [V(4, 4) for t in range(5)]; Vc = [V(4, 4) for t in range(5)]
        def reads(s):
            g.begin(); bi = s & 1
            if s and s % 2 == 0:
                d = SLOT if (s // 2) % 4 else (-3*SLOT) & 0xffffffff
                for r in (vWr, vXr[0], vXr[1]): g(f"v_add_u32 v{r}, {d}, v{r}")
            for p in range(3):
                for j2 in range(2): g(f"ds_read_b64_tr_b16 {vr(WF[bi][p]+2*j2,2)}, v{vWr} offset:{10*K1 + bi*12288 + p*K1 + j2*512}")
                if p == 0:
                    for t in range(5): g(f"ds_read_b128 {vr(XF[bi][t],4)}, v{vXr[bi]} offset:{t*2048}")
            return g.end()
        def mfmas(s):
            g.begin(); bi = s & 1
            def mf(d, x, y): g(f"v_mfma_f32_16x16x32_bf16 {vr(d,4)}, {vr(x,4)}, {vr(y,4)}, {vr(d,4) if s else 0}")
            for t in range(5): mf(Q[t], WF[bi][0], XF[bi][t])
            for t in range(5): mf(Kc[t], WF[bi][1], XF[bi][t])
            for t in range(5): mf(Vc[t], XF[bi][t], WF[bi][2])
            return g.end()
        M1 = V(6); R1 = V(6); M2 = [V(4, 4) for t in range(5)]; R2 = [V(4, 4) for t in range(5)]
        g.begin()
        for t in range(5):
            g(f"ds_read_b32 v{M1+t}, v{vT1} offset:{t*64}"); g(f"ds_read_b32 v{R1+t}, v{vT1} offset:{512+t*64}")
        for t in range(5):
            g(f"ds_read_b128 {vr(M2[t],4)}, v{vT2} offset:{t*64}"); g(f"ds_read_b128 {vr(R2[t],4)}, v{vT2} offset:{512+t*64}")
        gn = self.get_nonce(a)
        fin = singles(g.end()) + [gn[0] + self.sig(K_T2)]
        XR = self.vHP; tk = V(1)
        g(f"buffer_load_dword v{vFw}, v{vFw}, {SWS}, 0 offen sc1")
        self.stamp("pre")
        self.lwait(K_A, tk)
        self.stamp("bar0")
        g.add(reads(0)); g.add(self.lchk_issue(K_A + 1, tk))
        stg = {0: 1, 1: 2, 3: 3, 5: 4, 7: 5, 9: 6, 11: 7, 13: 8}
        if self.o('fine', 1): stg.update({1: K_AX - K_A, 2: 2, 3: K_AX + 1 - K_A, 4: 3})
        for s in range(16):
            g.comment(f"A step {s}")
            if self.o("ast", 0): self.stamp(f"s{s}")
            mf = mfmas(s); W = Weave(mf, 2); n = len(mf)
            if s in stg: W.at(0, self.lchk_check(K_A + stg[s], tk))
            if s < 15:
                rs = singles(reads(s + 1))
                if s % 2 == 0 and s <= 6: rs[-1] = rs[-1] + self.sig(K_F + s // 2)
                if s == 14: rs[-1] = rs[-1] + self.sig(K_AE)
                left, _ = W.fill(rs, 0, n - 2); assert not left
            if s + 1 in stg: W.at(n - 4, self.lchk_issue(K_A + stg[s + 1], tk))
            if CT and 0 <= s - self.o("ct_0", 2) < self.o("ct_n", 8):
                Ls = g.newlabel("L_t")
                g.begin(); g(f"s_cmp_lg_u32 {sGrp}, {s - self.o('ct_0', 2)}"); g(f"s_cbranch_scc1 {Ls}")
                g.raw(f"    buffer_load_dword v{J+1}, v{vTch}, s[16:19], 0 offen"); g.raw(Ls + ":")
                W.at(n - 2, g.end())
            if s == 12:
                W.at(n - 3, self.grp(f"buffer_load_dwordx4 {vr(XR,4)}, v{self.vRM}, {SX}, 0 offen"))
                W.at(n - 2, self.grp(f"buffer_load_dwordx4 {vr(XR+4,4)}, v{self.vRM}, {SX}, 0 offen offset:32"))
            if s == 14: W.at(n - 5, self.lchk_issue(K_TB, b)); W.at(n - 1, self.lchk_check(K_TB, b))
            if s == 15:
                left, _ = W.fill(fin, 0); assert not left
            g.add(W.out())
        self.stamp("loop")
        for r in [vWr, vT1, vT2, tk, vFw] + vXr + ([vTch] if CT else []): V.release(r)
        V.release(FB[0], 32); V.release(FB[1], 32)
        CSQ, CSK = V(4, 4), V(4, 4); CSV = V(2)
        for r in range(4): g(f"v_mov_b32_dpp v{CSQ+r}, v{Q[0]+r} row_newbcast:0 row_mask:0xf bank_mask:0xf")
        for r in range(4): g(f"v_mov_b32_dpp v{CSK+r}, v{Kc[0]+r} row_newbcast:0 row_mask:0xf bank_mask:0xf")
        QB = [None] + [V(2) for t in range(4)]; KB = [V(2) for t in range(5)]; VB = V(10, 2)
        bc = lambda reg: (vr(reg & ~1, 2), reg & 1)
        for t in range(5):
            mp, ms = bc(M1 + t); rp, rs = bc(R1 + t)
            for X, CS in ((Q[t], CSQ), (Kc[t], CSK)):
                if X == Q[0]: continue
                for h in range(2):
                    g(f"v_pk_fma_f32 {vr(X+2*h,2)}, {mp}, {vr(CS+2*h,2)}, {vr(X+2*h,2)} op_sel:[{ms},0,0] op_sel_hi:[{ms},1,1] neg_lo:[1,0,0] neg_hi:[1,0,0]")
            for h in range(2): g(f"v_pk_mul_f32 {vr(Kc[t]+2*h,2)}, {rp}, {vr(Kc[t]+2*h,2)} op_sel:[{rs},0] op_sel_hi:[{rs},1]")
            if t == 0: g(f"v_mov_b32 v{CSV}, v{Vc[0]}"); g(f"v_mov_b32 v{CSV+1}, v{Vc[0]}")
            if t == 1: g(f"v_permlane16_swap_b32 v{CSV}, v{CSV+1}")
            if t == 2: g(f"v_mov_b32 v{CSV+1}, v{CSV}")
            if t == 3: g(f"v_permlane32_swap_b32 v{CSV}, v{CSV+1}")
            if t:
                for h in range(2): g(f"v_cvt_pk_bf16_f32 v{QB[t]+h}, v{Q[t]+2*h}, v{Q[t]+2*h+1}")
            for h in range(2): g(f"v_cvt_pk_bf16_f32 v{KB[t]+h}, v{Kc[t]+2*h}, v{Kc[t]+2*h+1}")
        for t in range(5):
            for h in range(2):
                g(f"v_pk_fma_f32 {vr(Vc[t]+2*h,2)}, {vr(M2[t]+2*h,2)}, {vr(CSV,2)}, {vr(Vc[t]+2*h,2)} op_sel_hi:[1,0,1] neg_lo:[1,0,0] neg_hi:[1,0,0]")
            for h in range(2): g(f"v_pk_mul_f32 {vr(Vc[t]+2*h,2)}, {vr(R2[t]+2*h,2)}, {vr(Vc[t]+2*h,2)}")
        R4 = range(1, 5)
        SP = {t: Q[t] for t in R4}; SC = {t: Kc[t] for t in R4}
        AQ = {t: V(1) for t in R4}; U = {t: V(2) for t in R4}; MX = {t: V(1) for t in R4}; TX = {t: V(1) for t in R4}
        cv = [f"v_cvt_pk_bf16_f32 v{VB+2*t+h}, v{Vc[t]+2*h}, v{Vc[t]+2*h+1}" for t in range(5) for h in range(2)]
        cv += [f"v_mul_f32 v{AQ[t]}, s61, v{R1+t}" for t in R4] + [i.text for i in gn[1]]
        for t in R4:
            g(f"v_mfma_f32_16x16x16_bf16 {vr(SP[t],4)}, {vr(KB[t-1],2)}, {vr(QB[t],2)}, {vr(BP1 if t == 1 else BP,4)}")
            g(cv.pop(0)); g(cv.pop(0))
            g(f"v_mfma_f32_16x16x16_bf16 {vr(SC[t],4)}, {vr(KB[t],2)}, {vr(QB[t],2)}, {vr(BC,4)}")
            g(cv.pop(0)); g(cv.pop(0))
        for t in R4:
            for h in range(2): g(f"v_max3_f32 v{U[t]+h}, v{SP[t]+2*h}, v{SP[t]+2*h+1}, v{SC[t]+2*h}")
        for t in R4:
            for h in range(2): g(f"v_max_f32 v{U[t]+h}, v{U[t]+h}, v{SC[t]+2*h+1}")
        for t in R4: g(f"v_max_f32 v{MX[t]}, v{U[t]}, v{U[t]+1}")
        for t in R4: g(f"v_max_f32 v{TX[t]}, v{U[t]}, v{U[t]+1}")
        for t in R4: g(f"v_permlane16_swap_b32 v{MX[t]}, v{TX[t]}")
        for t in R4: g(f"v_max_f32 v{MX[t]}, v{MX[t]}, v{TX[t]}")
        for t in R4: g(f"v_mov_b32 v{TX[t]}, v{MX[t]}")
        for t in R4: g(f"v_permlane32_swap_b32 v{MX[t]}, v{TX[t]}")
        for t in R4: g(f"v_max_f32 v{MX[t]}, v{MX[t]}, v{TX[t]}")
        for t in R4:
            for h in range(2): g(f"v_sub_f32 v{U[t]+h}, v{U[t]+h}, v{MX[t]}")
        for t in R4:
            for h in range(2): g(f"v_mul_f32 v{U[t]+h}, v{U[t]+h}, v{AQ[t]}")
        for t in R4:
            for h in range(2): g(f"v_exp_f32 v{U[t]+h}, v{U[t]+h}")
        PB = {t: V(4, 4) for t in R4}
        for t in R4:
            for h in range(2): g(f"v_cvt_pk_bf16_f32 v{U[t]+h}, v{U[t]+h}, v{U[t]+h}")
        for t in R4:
            for i in range(4): g(f"v_and_b32 v{PB[t]+i}, v{MK+i}, v{U[t]+(i&1)}")
            if t > 1:
                g(f"v_mfma_f32_16x16x32_bf16 {vr(SP[t-1],4)}, {vr(ONES,4)}, {vr(PB[t-1],4)}, 0")
                g(f"v_mfma_f32_16x16x32_bf16 {vr(SC[t-1],4)}, {vr(VB+2*(t-2),4)}, {vr(PB[t-1],4)}, 0")
        g(f"v_mfma_f32_16x16x32_bf16 {vr(SP[4],4)}, {vr(ONES,4)}, {vr(PB[4],4)}, 0")
        g(f"v_mfma_f32_16x16x32_bf16 {vr(SC[4],4)}, {vr(VB+6,4)}, {vr(PB[4],4)}, 0")
        OB = [PB[1], PB[3]]
        g.needs(vr(XR, 8))
        for pr in range(2):
            for t in (1 + 2*pr, 2 + 2*pr): g(f"v_rcp_f32 v{MX[t]}, v{SP[t]}")
            for t in (1 + 2*pr, 2 + 2*pr):
                for r in range(4): g(f"v_mul_f32 v{SC[t]+r}, v{MX[t]}, v{SC[t]+r}")
            for i, t in enumerate((1 + 2*pr, 2 + 2*pr)):
                for h in range(2): g(f"v_cvt_pk_bf16_f32 v{OB[pr]+2*i+h}, v{SC[t]+2*h}, v{SC[t]+2*h+1}")
            for h in range(2): g(f"v_permlane16_swap_b32 v{OB[pr]+h}, v{OB[pr]+2+h}")
            g(f"buffer_store_dwordx4 {vr(OB[pr],4)}, v{self.vL16}, {SWS}, {self.sO1 if pr else self.sO0} offen {self.SC}", tag="ost")
        self.stamp("Aepi")
        for t in range(5):
            V.release(Q[t], 4); V.release(Kc[t], 4); V.release(Vc[t], 4); V.release(KB[t], 2); V.release(M2[t], 4); V.release(R2[t], 4)
        for t in R4:
            V.release(QB[t], 2); V.release(MX[t]); V.release(TX[t]); V.release(AQ[t]); V.release(U[t], 2); V.release(PB[t], 4)
        V.release(M1, 6); V.release(R1, 6); V.release(VB, 10); V.release(CSV, 2)
        for r in (CSQ, CSK, BC, BP, BP1, MK, ONES): V.release(r, 4)
        V.release(a); V.release(b); V.release(c); V.release(0); V.release(self.vX3, 4)

    def red_consts(self, alloc=True):
        g, V = self.g, self.V
        if alloc: self.vRw = [V(1), V(1), V(1)]; self.vRr = V(1)
        for i in (1, 2, 3):
            g(f"s_xor_b32 s5, {sW}, {i}"); g("s_lshl_b32 s5, s5, 14"); g(f"s_add_u32 s5, s5, {64*K1 + (i-1)*4096}"); g(f"v_add_u32 v{self.vRw[i-1]}, s5, v{self.vL16}")
        g(f"s_lshl_b32 s5, {sW}, 14"); g(f"s_add_u32 s5, s5, {64*K1}"); g(f"v_add_u32 v{self.vRr}, s5, v{self.vL16}")
    def red_write(self, ACC, a):
        return [self.grp(f"ds_write_b128 v{self.vRw[a-1]}, {vr(ACC[a]+4*j,4)} offset:{j*K1}") for j in range(4)]
    def red_add(self, ACC, T):
        for i in range(12): self.g(f"ds_read_b128 {vr(T+4*i,4)}, v{self.vRr} offset:{i*K1}")
        return [f"v_pk_add_f32 {vr(ACC[0]+2*j,2)}, {vr(ACC[0]+2*j,2)}, {vr(T+16*a+2*j,2)}" for a in range(3) for j in range(8)]

    def phaseB(self):
        g, V = self.g, self.V
        XR = self.vHP; PZ = self.o("pause", 1)
        WB = V(64, 4); OF = V(64, 4); ACC = [V(16, 4) for _ in range(4)]; rd = [V(1), V(1)]; t2 = V(2); t1 = V(1); self.vX3 = V(4)
        self.red_consts()
        g(f"v_add_u32 v{rd[0]}, s5, v{self.vKr}"); g(f"v_xor_b32 v{rd[1]}, 64, v{rd[0]}")
        g.add(self.lchk_issue(K_WB, t1, own=True))
        for j in range(8):
            g(f"v_lshlrev_b32 v{ACC[0]+2*j}, 16, v{XR+j}"); g(f"v_and_b32 v{ACC[0]+2*j+1}, 0xffff0000, v{XR+j}")
        def wbreads():
            for ks in range(8):
                for ct in range(2):
                    for j2 in range(2): g(f"ds_read_b64_tr_b16 {vr(WB+(ks*2+ct)*4+2*j2,2)}, v{rd[ct]} offset:{ks*2048+j2*512}")
            g.add(self.sig(K_B2))
        if self.o("wb_early", 0): g.add(self.lchk_check(K_WB, t1, own=True)); wbreads()
        g.waitvm("ost"); g.add(self.flag_fast(self.sF1))
        self.stamp("F1")
        if not self.o("wb_early", 0): g.add(self.lchk_check(K_WB, t1, own=True)); wbreads()
        self.poll(self.vP1, t2, pre=[self.flag_slow(self.sF1)])
        self.stamp("P1")
        lo = [(ks, rt) for rt in (1, 0) for ks in range(8)]
        lds = [self.grp(f"buffer_load_dwordx4 {vr(OF+(ks*2+rt)*4,4)}, v{self.vL16}, {SWS}, {self.sOF[rt][ks//4]} offen offset:{(ks%4)*K1} sc1") for ks, rt in lo]
        NL0 = self.o("b_l0", 8)
        for grp in lds[:NL0]: g.add(grp)
        g.begin()
        for ks, rt in lo:
            for ct in (1, 0):
                a = 2*rt + ct
                g(f"v_mfma_f32_32x32x16_bf16 {vr(ACC[a],16)}, {vr(WB+(ks*2+ct)*4,4)}, {vr(OF+(ks*2+rt)*4,4)}, {vr(ACC[a],16) if (ks or a == 0) else 0}")
        mf = g.end(); W = Weave(mf, 5)
        for i, grp in enumerate(lds[NL0:]): W.at(2*i, grp)
        W.at(2*(len(lds) - NL0), self.flag_slow(self.sF1)); W.at(self.o('b_go', 14), self.sig(K_G1))
        W.at(12, self.lchk_issue(K_B2, t1)); W.at(17, self.lchk_check(K_B2, t1))
        W.even(self.red_write(ACC, 3) + self.red_write(ACC, 2), 19, 31)
        g.add(W.out())
        self.stamp("Bmf")
        for grp in self.red_write(ACC, 1): g.add(grp)
        g.add(self.sig(K_B3))
        self.lwait(K_B3, t1)
        adds = self.red_add(ACC, WB)
        g.add(self.sig(K_B4))
        for l in adds: g(l)
        H = ACC[0]
        for j in range(8): g(f"v_cvt_pk_bf16_f32 v{self.vHP+j}, v{H+2*j}, v{H+2*j+1}")
        g(f"buffer_store_dwordx4 {vr(self.vHP,4)}, v{self.vL16}, {SWS}, {self.sHs} offen {self.SC}", tag="hst")
        g(f"buffer_store_dwordx4 {vr(self.vHP+4,4)}, v{self.vL16}, {SWS}, {self.sHs} offen offset:1024 {self.SC}", tag="hst")
        S2, Q2 = ACC[1], ACC[1] + 2
        g(f"v_pk_add_f32 {vr(S2,2)}, {vr(H,2)}, {vr(H+2,2)}"); g(f"v_pk_mul_f32 {vr(Q2,2)}, {vr(H,2)}, {vr(H,2)}")
        g(f"v_pk_fma_f32 {vr(Q2,2)}, {vr(H+2,2)}, {vr(H+2,2)}, {vr(Q2,2)}")
        for j in range(2, 8):
            g(f"v_pk_add_f32 {vr(S2,2)}, {vr(S2,2)}, {vr(H+2*j,2)}"); g(f"v_pk_fma_f32 {vr(Q2,2)}, {vr(H+2*j,2)}, {vr(H+2*j,2)}, {vr(Q2,2)}")
        g(f"v_add_f32 v{S2}, v{S2}, v{S2+1}"); g(f"v_add_f32 v{Q2}, v{Q2}, v{Q2+1}")
        g(f"v_permlane32_swap_b32 v{S2}, v{Q2}"); g(f"v_add_f32 v{S2}, v{S2}, v{Q2}")
        g(f"buffer_store_dword v{S2}, v{self.vL4}, {SWS}, {self.sHt} offen {self.SC}", tag="hst")
        self.stamp("Bst")
        V.release(WB, 64); V.release(OF, 64); V.release(t2, 2); V.release(t1); V.release(self.vP1); V.release(self.vX3, 4)
        for x in ACC: V.release(x, 16)
        for x in rd + self.vRw + [self.vRr]: V.release(x)

    def phaseC(self):
        g, V = self.g, self.V
        HF = V(128, 4); ACC = [V(16, 4) for _ in range(4)]; ST = HF + 112
        NF = self.o("c_nf", 5); FR = [V(4, 4) for _ in range(NF)]
        MF = V(4, 4); T = V(8, 4); t2 = V(2); AA = V(2); VV, t1, vHi, vCt = V(1), V(1), V(1), V(1)
        A0, A1 = AA, AA + 1; self.vX3 = T; PZ = self.o("pause", 1)
        g(f"v_add_u32 v{vHi}, 0x10000, v{self.vL16}"); g(f"v_add_u32 v{vCt}, {CST}, v{self.vL16}")
        g(f"s_add_u32 s54, {self.sCo}, 4096")
        g.waitvm("hst"); g.add(self.flag_fast(self.sF2))
        if self.o("cmap", 0): g.add(self.flag_slow(self.sF2)); self.opt["nfast"] = 0
        self.stamp("F2")
        g(f"s_cmp_eq_u32 {sCGX}, 15"); g.branch("s_cbranch_scc1 L_skipC", keep=True)
        g.begin(); g.label("L_skipC", keep=True)
        g.add(self.flag_slow(self.sF2)); g.add(self.sig(K_G2))
        for kw, k in ((K_C01b, K_P0), (K_C01b, K_P0b), (K_C23b, K_U3), (K_C45b, K_U5)): self.lwait(kw, t1, sleep=2); g.add(self.sig(k))
        g.branch("s_branch L_cdone"); self.tail.append(g.end())
        seq = []; k1 = 0; L0 = self.o("c_lead", 4); RN, RD = self.o("c_rn", 1), self.o("c_rd", 2)
        for ks in range(33):
            seq += [(0, ks), (1, ks)]
            while ks >= L0 and ks < 31 and k1 < ((ks - L0 + 1) * RN) // RD: seq += [(2, k1), (3, k1)]; k1 += 1
        self.K1 = k1
        seq += [(2 + e, ks) for ks in range(k1, 33) for e in range(2)] + [(4 + e, ks) for ks in range(33) for e in range(2)]
        idx = {x: i for i, x in enumerate(seq)}; RA = NF - 1
        KO = (list(range(16, 32)) + list(range(16))) if self.o('c_ko', 1) else list(range(32))
        def rd(i):
            u, ks = seq[i]; g.begin()
            if ks < 32: g(f"ds_read_b128 {vr(FR[i % NF],4)}, v{vHi if (u//2) % 2 else self.vL16} offset:{(u%2)*32768 + KO[ks]*K1}")
            else: g(f"ds_read_b128 {vr(FR[i % NF],4)}, v{vCt} offset:{u*K1}")
            if ks == 31 and u % 2: g.add(self.sig((K_P0b, K_U3, K_U5)[u // 2]))
            if (u, ks) == (1, 15): g.add(self.sig(K_P0))
            return g.end()
        if self.o("c_ko", 1):
            vPa = MF; g(f"v_or_b32 v{vPa}, 64, v{self.vP2}")
            self.poll(vPa, t2, pre=[self.flag_slow(self.sF2)])
        else: self.poll(self.vP2, t2, pre=[self.flag_slow(self.sF2)])
        self.stamp("P2")
        hl = []
        for ks in range(32):
            l = [f"s_add_u32 s55, {self.sCh}, {KO[ks]*K1}"] if ks % 4 == 0 else []
            l.append(f"buffer_load_dwordx4 {vr(HF+4*ks,4)}, v{self.vL16}, {SWS}, s55 offen offset:{(ks%4)*K1} sc1")
            hl.append(self.grp(*l))
        sl = [self.grp(f"buffer_load_dword v{ST+i}, v{self.vL4}, {SWS}, {self.sCt} offen offset:{i*256} sc1") for i in range(16)]
        NH0 = self.o("c_h0", 8)
        g.add(self.lchk_issue(K_C01, t1))
        for grp in hl[:NH0]: g.add(grp)
        g.add(self.lchk_check(K_C01, t1))
        for i in range(RA): g.add(rd(i))
        g.begin()
        for st in (8, 4, 2, 1):
            for i in range(st): g(f"v_add_f32 v{ST+i}, v{ST+i}, v{ST+i+st}")
        g(f"v_mov_b32 v{ST+1}, v{ST}"); g(f"v_permlane32_swap_b32 v{ST}, v{ST+1}")
        g(f"v_mul_f32 v{ST}, s60, v{ST}"); g(f"v_mul_f32 v{ST+1}, s60, v{ST+1}")
        g(f"v_fma_f32 v{ST+1}, -v{ST}, v{ST}, v{ST+1}"); g(f"v_max_f32 v{ST+1}, 0, v{ST+1}")
        self.rbf(ST+1); g(f"v_add_f32 v{ST+1}, {f32(1e-5)}, v{ST+1}"); self.rbf(ST+1)
        g(f"v_sqrt_f32 v{ST+1}, v{ST+1}"); g(f"v_cvt_pk_bf16_f32 v{MF}, -v{ST}, -v{ST}"); self.rbf(ST+1)
        g(f"v_rcp_f32 v{ST+2}, v{ST+1}"); g(f"v_mul_f32 v{VV}, v{ST+1}, v{ST+1}")
        c0 = -2.0 * 0.7978845608028654 * LOG2E
        g(f"v_mul_f32 v{A0}, {f32(c0)}, v{ST+2}"); g(f"v_mul_f32 v{ST+3}, v{ST+2}, v{ST+2}")
        g(f"v_mul_f32 v{A1}, {f32(0.044715)}, v{A0}"); g(f"v_mul_f32 v{A1}, v{ST+3}, v{A1}")
        g(f"v_mov_b32 v{MF+1}, 0"); g(f"v_mov_b32 v{MF+2}, v{MF}"); g(f"v_mov_b32 v{MF+3}, 0")
        stats = singles(g.end())
        def store(u, G): g(f"buffer_store_dwordx4 {vr(G,4)}, v{self.vL16}, {SWS}, {self.sCo if u < 4 else 's54'} offen offset:{(u%4)*K1} {self.SC}", tag=f"hh{u//2}")
        def epi(u):
            g.begin(); G = ACC[u % 4]; U = G + 8
            for i in range(8): g(f"v_mul_f32 v{T+i}, v{G+i}, v{G+i}")
            for i in range(8): g(f"v_fma_f32 v{T+i}, v{T+i}, v{A1}, v{A0}")
            for i in range(8): g(f"v_mul_f32 v{T+i}, v{G+i}, v{T+i}")
            for i in range(8): g(f"v_exp_f32 v{T+i}, v{T+i}"); g(f"v_mul_f32 v{U+i}, v{G+i}, v{U+i}")
            for i in range(8): g(f"v_fma_f32 v{T+i}, v{T+i}, v{VV}, v{VV}")
            for i in range(8):
                g(f"v_rcp_f32 v{T+i}, v{T+i}")
                if i: g(f"v_mul_f32 v{U+i-1}, v{U+i-1}, v{T+i-1}")
            g(f"v_mul_f32 v{U+7}, v{U+7}, v{T+7}")
            for i in range(4): g(f"v_cvt_pk_bf16_f32 v{G+i}, v{U+2*i}, v{U+2*i+1}")
            store(u, G)
            return singles(g.end())
        def epi_pk(u):
            g.begin(); G = ACC[u % 4]; U = G + 8; P = lambda x, i: vr(x + 2*i, 2); vv = (vr(VV & ~1, 2), VV & 1)
            for i in range(4): g(f"v_pk_mul_f32 {P(T,i)}, {P(G,i)}, {P(G,i)}")
            for i in range(4): g(f"v_pk_fma_f32 {P(T,i)}, {P(T,i)}, {vr(AA,2)}, {vr(AA,2)} op_sel:[0,1,0] op_sel_hi:[1,1,0]")
            for i in range(4): g(f"v_pk_mul_f32 {P(T,i)}, {P(G,i)}, {P(T,i)}")
            for i in range(8): g(f"v_exp_f32 v{T+i}, v{T+i}")
            for i in range(4): g(f"v_pk_mul_f32 {P(U,i)}, {P(G,i)}, {P(U,i)}")
            for i in range(4): g(f"v_pk_fma_f32 {P(T,i)}, {P(T,i)}, {vv[0]}, {vv[0]} op_sel:[0,{vv[1]},{vv[1]}] op_sel_hi:[1,{vv[1]},{vv[1]}]")
            for i in range(8): g(f"v_rcp_f32 v{T+i}, v{T+i}")
            for i in range(4): g(f"v_pk_mul_f32 {P(U,i)}, {P(U,i)}, {P(T,i)}")
            for i in range(4): g(f"v_cvt_pk_bf16_f32 v{G+i}, v{U+2*i}, v{U+2*i+1}")
            store(u, G)
            return g.end()
        def flg(p, slow=True):
            g.begin(); g.waitvm(f"hh{p}"); g.add(self.flag_fast(self.sF3, 128*p))
            if slow: g.add(self.flag_slow(self.sF3, 128*p))
            return g.end()
        NK = 22; NWF = 4
        DA = [HF, HF + 80, HF + 96, HF + 112]
        WF = HF + 16
        HRq = [HF + 48 + 4*i for i in range(8)] + [ACC[2] + 4*i for i in range(4)] + [ACC[3] + 4*i for i in range(4)] + list(FR) + [MF]
        NH = len(HRq)
        HR2 = [ACC[0] + 4*i for i in range(4)] + [ACC[1] + 4*i for i in range(4)]
        drd = [[V(1), self.vL4], [vCt, vHi]]; vZ = self.vP2
        lo = [(n, rt) for n in range(NK) for rt in (1, 0)]
        hreg = lambda m: HRq[m % NH]
        g.begin()
        for i, (u, ks) in enumerate(seq):
            acc = ACC[u % 4]
            g(f"v_mfma_f32_32x32x16_bf16 {vr(acc,16)}, {vr(FR[i % NF],4)}, {vr(HF+4*ks,4) if ks < 32 else vr(MF,4)}, {vr(acc,16) if ks else 0}")
        D0 = len(seq)
        DT = self.o("d_tail", 3)
        mo = list(enumerate(lo)); mo = mo[:len(mo) - 2*DT] + [x for x in mo[len(mo) - 2*DT:] if x[1][1] == 1] + [x for x in mo[len(mo) - 2*DT:] if x[1][1] == 0]
        for m, (n, rt) in mo:
            for ct in (1, 0):
                a = 2*rt + ct
                g(f"v_mfma_f32_32x32x16_bf16 {vr(DA[a],16)}, {vr(WF+((n%NWF)*2+ct)*4,4)}, {vr(hreg(m),4)}, {vr(DA[a],16) if (n or a == 0) else 0}")
        mf = g.end(); W = Weave(mf, 5)
        for key, k in (((2, 0), K_C23), ((0, 16), K_C01b), ((2, 16), K_C23b), ((4, 0), K_C45), ((4, 16), K_C45b), ((0, 32), K_CS)):
            at = idx[key] - RA; tk = t1 if key[1] < 32 else t2
            W.at(max(at - 5, 0), self.lchk_issue(k, tk)); W.at(at - 1, self.lchk_check(k, tk))
        for i in range(RA, len(seq)): W.at(i - RA, rd(i))
        for i in range(0, len(seq) - 1, 2):
            g.begin(); g.needs(vr(FR[(i + 1) % NF], 4)); W.before(i, g.end())
        HS = self.o("c_hs", 2)
        at = HS*(16 - NH0)
        W.at(max(at - self.o("c_p2l", 12), 0), self.apoll_issue(self.vP2, t2)); W.at(at, self.apoll_check(self.vP2, t2, pre=[self.flag_slow(self.sF2)]))
        for i, grp in enumerate(hl[NH0:16]): W.at(HS*i, grp)
        for k, grp in enumerate(sl): W.at(at + k // 2, grp)
        pos = at + 8
        for grp in hl[16:28]: W.at(pos, grp); pos += HS
        left, sp = W.fill(stats, pos - self.o('c_se', 6), 80, cap=6); assert not left
        sp = max(sp, pos)
        for i, grp in enumerate(hl[28:]): W.at(sp + 1 + i, grp)
        assert sp + 5 < idx[(0, 28)] - 14, (sp, idx[(0, 28)])
        W.at(sp + 6, self.flag_slow(self.sF2))
        W.at(self.o("c_unp", 0), self.sig(K_G2))
        if self.stamps:
            keys = [(0, 4), (0, 8), (0, 16), (0, 24), (1, 32), (4, 0), (4, 8), (4, 16), (4, 21), (4, 26)] if self.o("cst", 0) else []
            for key in keys:
                g.begin(); self.stamp("c%d_%d" % key); W.before(idx[key], g.end())
            g.begin(); self.stamp("Cmf"); cm = g.end()
        EC = self.o("e_cap", 5); epos = {}
        rest, epos[0] = W.fill(epi(0) + epi(1), idx[(1, 32)] + 3, idx[(4, 0)] - 1, cap=self.o("e_cap0", 7)); assert not rest, len(rest)
        rest, epos[1] = W.fill(epi(2) + epi(3), idx[(4, 1)], idx[(4, 32)], cap=EC + self.o("e_x", 1)); assert not rest
        W.at(epos[0] + self.o("c_fl", 20), flg(0))
        self.vX3 = HR2[0] if False else None
        X3 = V(3, 2) if False else None
        lds = [self.grp(f"s_add_u32 s3, {self.sHF[rt]}, {(12*DK[n][1] + 2*DK[n][0])*K1}",
                        f"buffer_load_dwordx4 {vr(hreg(m),4)}, v{vZ if DK[n] == (0, 7) else self.vL16}, {SWS}, s3 offen sc1") for m, (n, rt) in enumerate(lo)]
        def part_of(i):
            for p, (f, n, _, _) in enumerate(DPART):
                if f <= i < f + n: return p, i - f
        def rdset(p):
            r = drd[p % 2]
            return self.grp(f"s_mul_i32 s5, {sW}, {DPART[p][3]}", f"s_add_u32 s5, s5, {DPART[p][2]}", f"v_add_u32 v{r[0]}, s5, v{self.vKr}", f"v_xor_b32 v{r[1]}, 64, v{r[0]}")
        def wread(i):
            p, j = part_of(i)
            out = [self.grp(f"ds_read_b64_tr_b16 {vr(WF+((i%NWF)*2+ct)*4+2*j2,2)}, v{drd[p%2][ct]} offset:{j*2048+j2*512}") for ct in range(2) for j2 in range(2)]
            if i == 2: out[-1] = out[-1] + self.sig(K_DS)
            return out
        init = singles(self.grp(*[x for j in range(8) for x in (f"v_lshlrev_b32 v{DA[0]+2*j}, 16, v{self.vHP+j}", f"v_and_b32 v{DA[0]+2*j+1}, 0xffff0000, v{self.vHP+j}")]))
        zset = self.grp(f"s_cmp_ge_u32 {sW}, 2", "s_cselect_b32 s5, 0x80000000, 0", f"v_or_b32 v{vZ}, s5, v{self.vL16}")
        self.vX3 = WF + 24
        p0 = idx[(4, 20)]; p1 = epos[1] + 3
        PRE = 8 + min(self.o("d_pre", 4), max(0, D0 - 1 - p1))
        W.at(p0 - self.o("d_pl", 16), self.apoll_issue(self.vP3, t2)); W.at(p0, self.apoll_check(self.vP3, t2))
        W.even(lds[:8], p0 + 1, p0 + 17)
        for i, grp in enumerate(lds[8:PRE]): W.at(max(p1, p0 + 17) + i, grp)
        W.at(idx[(4, 18)], rdset(0)); W.at(idx[(4, 19)], zset)
        W.at(idx[(4, 22)], self.lchk_issue(K_D1, t1, own=True)); W.at(idx[(4, 25)], self.lchk_check(K_D1, t1, own=True))
        W.even([x for i in range(NWF - 1) for x in wread(i)], idx[(4, 26)], D0 - 1)
        left, _ = W.fill(init, epos[1], D0 - 1, cap=8); assert not left
        g.begin(); g.label("L_cdone", keep=True)
        self.poll(self.vP3, t2)
        for grp in [rdset(0), zset] + lds[:PRE] + init: g.add(grp)
        self.lwait(K_D1, t1, own=True)
        for i in range(NWF - 1):
            for grp in wread(i): g.add(grp)
        g.branch("s_branch L_dgo"); self.tail.append(g.end())
        DM = self.o("d_mode", 2)
        if self.stamps: W.before(D0, cm)
        if DM == 1: W.before(D0, epi_pk(4) + flg(1) + epi_pk(5))
        if DM == 2: W.before(D0, flg(1, slow=bool(self.o('cmap', 0))) + epi_pk(4) + epi_pk(5) + self.flag_slow(self.sF3, 128))
        g.begin(); g.raw("L_dgo:"); W.before(D0, g.end())
        self.vX3 = self.vHP
        W.before(D0, rdset(1) + self.lchk_issue(K_D2, t1, own=True) + self.lchk_check(K_D2, t1, own=True))
        for p, k in ((2, K_D3), (3, K_D4)):
            at = D0 + 4*(DPART[p][0] - (NWF - 1))
            W.at(at - 6, rdset(p)); W.at(at - 4, self.lchk_issue(k, t1, own=True)); W.at(at - 1, self.lchk_check(k, t1, own=True))
        for i in range(NWF - 1, NK):
            for j, grp in enumerate(wread(i)): W.at(D0 + 4*(i - (NWF - 1)) + j, grp)
        assert DT <= NWF - 1
        LD = self.o("d_la", 14)
        lat = lambda m: D0 + max(m - PRE, 2*(m - LD))
        S1 = self.o("d_s1", 12); lat0 = lat
        lat = lambda m: max(lat0(m), D0 + S1 + (m - 16)) if m >= 16 else lat0(m)
        W.at(D0 + self.o("d_s1p", 0), ([] if DM else flg(1)) + self.apoll_issue(self.vP3, t2, 128))
        W.at(lat(16), self.apoll_check(self.vP3, t2, 128))
        LD2 = self.o("d_la2", 7)
        lat2 = lambda m: D0 + 2*(m - LD2) if m >= 30 else lat(m)
        pi = lat2(30) - self.o("d_p2", 6)
        W.at(pi, self.apoll_issue(self.vP3, t2, 256)) if False else None
        for m in range(PRE, 30):
            assert m < NH or lat2(m) > D0 + 2*(m - NH) + 1
            W.at(lat2(m), lds[m])
        if DM: e2 = D0
        else:
            rest, e2 = W.fill(epi(4) + epi(5), D0 + 2, pi - 2, cap=self.o("e_cap2", 9)); assert not rest, len(rest)
        f2 = min(e2 + self.o("d_fl", 10), pi - 1)
        W.at(f2, flg(2))
        W.at(pi, self.apoll_issue(self.vP3, t2, 256)); W.at(lat2(30), self.apoll_check(self.vP3, t2, 256))
        for m in range(30, len(lds)): W.at(lat2(m), lds[m])
        self.info = (e2 - D0, f2 - D0, pi - D0, p0 - D0)
        if self.stamps and self.o("dst", 0):
            for at in (1, 16, 32, 46, 60, 74):
                g.begin(); self.stamp(f"d{at}"); W.before(D0 + at, g.end())
        self.vRw = [T, T + 1, T + 2]; self.vRr = T + 3
        g.begin(); self.red_consts(alloc=False); rc = g.end()
        for i in range(4): W.at(e2 + 3 + 2*i, rc[4*i:4*i+4])
        W.at(D0 + 4*(DPART[3][0] - (NWF - 1)) + 6, self.grp("s_barrier"))
        if DT >= 2: W.even(self.red_write(DA, 3) + self.red_write(DA, 2), len(mf) - 2*DT + 1, len(mf))
        g.add(W.out())
        self.stamp("Dmf")
        for a in ((1,) if DT >= 2 else (3, 2, 1)):
            for grp in self.red_write(DA, a): g.add(grp)
        g.waitds(); g("s_barrier")
        assert ACC[1] == ACC[0] + 16 and ACC[2] == ACC[0] + 32
        OF_ = ("", "sc1", "nt", "sc0 sc1")[self.o("ost", 0)]
        for l in self.red_add(DA, ACC[0]): g(l)
        for j in range(8): g(f"v_cvt_pk_bf16_f32 v{self.vHP+j}, v{DA[0]+2*j}, v{DA[0]+2*j+1}")
        g(f"buffer_store_dwordx4 {vr(self.vHP,4)}, v{self.vRM}, {SOUT}, 0 offen {OF_}")
        g(f"buffer_store_dwordx4 {vr(self.vHP+4,4)}, v{self.vRM}, {SOUT}, 0 offen offset:32 {OF_}")

    def build(self):
        g = self.g
        self.prologue(); self.helper(); self.phaseA(); self.phaseB(); self.phaseC()
        if self.stamps:
            self.stamp("end")
            g(f"s_lshl_b32 s3, s2, 2"); g(f"s_add_u32 s3, s3, {sW}"); g("s_lshl_b32 s3, s3, 8"); g(f"s_add_u32 s3, s3, {WS_STAMP}")
            g(f"v_lshlrev_b32 v{self.vL4}, 2, v{self.vL}"); g(f"buffer_store_dword v{self.vST}, v{self.vL4}, {SWS}, s3 offen")
        if self.o("diag_t", 0):
            g("s_mov_b32 s52, 0")
            g.label("L_dg", keep=True)
            g("s_memrealtime s[72:73]"); g("s_add_u32 s52, s52, 1"); g("s_waitcnt lgkmcnt(0)"); g("s_sub_u32 s72, s72, s70")
            g("s_cmp_gt_u32 s52, 100000"); g("s_cbranch_scc1 L_end")
            g(f"s_cmp_lt_u32 s72, {self.o('diag_t', 0)}"); g("s_cbranch_scc1 L_dg")
        g.label("L_end", keep=True)
        g("s_endpgm")
        for st in self.tail: g.add(st)
        g.raw("L_codeend:")
        body = g.finalize()
        hdr = open("ref.txt").read().split("; Override launch geometry")[0]
        s = hdr + "; @launch grid=(256,1,1) block=(512,1,1) lds=163840\n"
        s += '.amdgcn_target "amdgcn-amd-amdhsa--gfx950"\n.text\n'
        s += f".globl {NAME}_kernel\n.p2align 8\n.type {NAME}_kernel,@function\n{NAME}_kernel:\n"
        s += body + "    s_endpgm\n"
        s += f'.section .rodata,"a"\n.p2align 6\n.amdhsa_kernel {NAME}_kernel\n'
        s += "  .amdhsa_next_free_vgpr 256\n  .amdhsa_next_free_sgpr 102\n  .amdhsa_accum_offset 256\n"
        s += "  .amdhsa_group_segment_fixed_size 0\n  .amdhsa_kernarg_size 80\n  .amdhsa_user_sgpr_count 2\n"
        s += "  .amdhsa_user_sgpr_kernarg_segment_ptr 1\n  .amdhsa_system_sgpr_workgroup_id_x 1\n"
        s += "  .amdhsa_float_denorm_mode_32 3\n.end_amdhsa_kernel\n"
        return s

if __name__ == "__main__":
    import argparse
    ap = argparse.ArgumentParser()
    ap.add_argument("-o", default="k.s"); ap.add_argument("--stamps", action="store_true"); ap.add_argument("--opt", default="")
    a = ap.parse_args()
    opt = {kv.split("=")[0]: int(kv.split("=")[1]) for kv in a.opt.split(",") if kv}
    k = K(a.stamps, opt); s = k.build()
    open(a.o, "w").write(s)
    if a.stamps: open(a.o + ".names", "w").write("\n".join(" ".join(k.names[r]) for r in "CSJ"))
    print("ins", k.g.stats, "vgpr hi", k.V.hi, "sgpr hi", k.S.hi, k.info)
```

```python
import sys, struct
sys.path.insert(0, "gen")
from asmgen import *

NAME = "sequential_preLN__sliding_local_dilated__glu_gated_geglu__prompt"
K1 = 1024
WS_O, WS_H, WS_HH, WS_HST, WS_CS, WS_ST = 0x001000, 0x202000, 0x403000, 0xA04000, 0xA44000, 0xAC4000
WS_FF, WS_FW, WS_FS, WS_STAMP, WS_WC = 0xAD0000, 0xAE0000, 0xB00000, 0xC00000, 0xD00000
WS_SIZE = 0x1000000
HHP = 96
HHPAD = lambda pg: WS_HH + (-(-((pg << 21) - WS_HH) // (HHP*K1)))*HHP*K1 + 92*K1
WARM = [0, 0x201000, 0x402000, HHPAD(3), HHPAD(4), 0xA03000, 0xCF0000, 0xFF0000]
assert [x >> 21 for x in WARM] == list(range(8))
SX, SWQ, SWO, SWG, SWU, SWD, SOUT, SDBG, SWS = [f"s[{b}:{b+3}]" for b in range(8, 44, 4)]
sW, sRB, sCB, sR128, sCGX = "s44", "s45", "s46", "s47", "s68"
sNON = "s[70:71]"
POLL_LIMIT = 1 << 16
LOG2E = 1.4426950408889634
SLOT = 34*K1; SCR = 136*K1; TAB = 152*K1; CST = 152*K1; SYNC = 159*K1; NONL = SYNC + 1008
(K_WB, K_B2, K_B3, K_B4, K_C01, K_C23, K_P0, K_C45, K_U3, K_U5, K_D1, K_D2, K_D3, K_D4, K_DS, K_AE, K_TB, K_PZ, K_CS, K_T2, K_PP, K_IS) = range(22)
K_A = 22; K_F = 31; K_AX = 41; K_G1 = 35; K_G2 = 36; K_C23b = 37; K_C45b = 38; K_P0b = 39; K_C01b = 40
DPART = [(0, 3, 128*K1, 6*K1), (3, 8, 64*K1, 16*K1), (11, 8, 0, 16*K1), (19, 3, 128*K1, 6*K1)]
DK = [(0, i) for i in range(8)] + [(1, i) for i in range(7)] + [(2, i) for i in range(7)]
def f32(x): return "0x%08x" % struct.unpack("<I", struct.pack("<f", x))[0]

class K:
    def __init__(self, stamps=False, opt=None):
        self.g = Gen(); self.V = Alloc(0, 256); self.S = Alloc(74, 100)
        self.stamps = stamps; self.tail = []; self.opt = opt or {}; self.names = {"C": [], "S": [], "J": []}; self.role = "C"
        self.SC = "" if self.opt.get("loc", 0) else "sc1"
    def o(self, k, d): return self.opt.get(k, d)
    def stamp(self, name):
        if not self.stamps: return
        roles = "SJ" if self.role == "H" else self.role
        if self.role == "H":
            n = max(len(self.names["S"]), len(self.names["J"]))
            for r in "SJ": self.names[r] += ["-"] * (n - len(self.names[r]))
        i = len(self.names[roles[0]])
        for r in roles: self.names[r].append(name)
        self.g("s_memtime s[72:73]" if self.o("cyc", 0) else "s_memrealtime s[72:73]"); self.g("s_waitcnt lgkmcnt(0)"); self.g(f"v_writelane_b32 v{self.vST}, s72, {i}")
    def s(self): return f"s{self.S(1)}"
    def grp(self, *lines, tag=None):
        g = self.g; g.begin()
        for l in lines: g(l, tag)
        return g.end()

    def flag_fast(self, sid, off=0):
        if not self.o("fast", 1): return []
        return self.grp("s_mov_b64 exec, 1", f"buffer_store_dwordx2 {vr(self.vNON,2)}, v{self.vZero}, {SWS}, {sid} offen offset:{off}", "s_mov_b64 exec, -1")
    def flag_slow(self, sid, off=0):
        return self.grp(f"s_lshl_b32 s4, {sid}, 4", f"s_add_u32 s4, s4, {(WS_FS - WS_FF*16 + off*16) & 0xffffffff}", "s_mov_b64 exec, 0xffff",
                        f"buffer_store_dwordx2 {vr(self.vNON,2)}, v{self.vL8}, {SWS}, s4 offen sc1", "s_mov_b64 exec, -1")
    def pull(self, dst, items):
        l = ["s_mov_b32 exec_lo, 0x01010101", "s_mov_b32 exec_hi, 0x01010101"]
        l += [f"buffer_load_dword v{dst}, v{self.vL16}, {SWS}, {so} offen offset:{off} sc1" for so, off in items]
        g = self.g; g.begin()
        for x in l[:2]: g(x)
        for x in l[2:]: g.raw("    " + x)
        g("s_mov_b64 exec, -1")
        return g.end()
    def slow_loop(self, Ls, Lb, vaddr, tmp, off, pre):
        g = self.g; L2 = g.newlabel("L_sl"); x = self.vX3
        g.begin()
        g.label(Ls, keep=True)
        for grp in pre: g.add(grp)
        g("s_mov_b32 s69, 0")
        g(f"v_lshlrev_b32 v{x+2}, 4, v{vaddr}"); g(f"v_add_u32 v{x+2}, {(WS_FS - WS_FF*16 + off*16) & 0xffffffff}, v{x+2}")
        g.label(L2, keep=True)
        g(f"buffer_load_dwordx2 {vr(tmp,2)}, v{vaddr}, {SWS}, 0 offen offset:{off} sc1")
        g(f"buffer_load_dwordx2 {vr(x,2)}, v{x+2}, {SWS}, 0 offen sc1")
        g("s_add_u32 s69, s69, 1"); g("s_waitcnt vmcnt(0)")
        g(f"s_cmp_gt_u32 s69, {POLL_LIMIT}"); g(f"s_cbranch_scc1 {Lb}")
        g(f"v_cmp_ne_u64 vcc, {sNON}, {vr(tmp,2)}"); g(f"v_cmp_ne_u64 s[6:7], {sNON}, {vr(x,2)}")
        g("s_and_b64 vcc, vcc, s[6:7]"); g(f"s_cbranch_vccnz {L2}")
        g.branch(f"s_branch {Lb}", keep=True)
        self.tail.append(g.end())
    def poll(self, vaddr, tmp, off=0, pre=()):
        g = self.g; L = g.newlabel("L_poll"); Lb = g.newlabel("L_go"); Ls = g.newlabel("L_slow")
        if not self.o("fast", 1):
            g.branch(f"s_cbranch_execnz {Ls}", keep=True); g("s_waitcnt vmcnt(0)")
        else:
            g("s_mov_b32 s52, 0")
            g.label(L, keep=True)
            g(f"buffer_load_dwordx2 {vr(tmp,2)}, v{vaddr}, {SWS}, 0 offen offset:{off} sc1")
            g("s_add_u32 s52, s52, 1"); g(f"s_cmp_gt_u32 s52, {self.o('nfast', 24)}"); g(f"s_cbranch_scc1 {Ls}")
            g("s_waitcnt vmcnt(0)")
            g(f"v_cmp_ne_u64 vcc, {sNON}, {vr(tmp,2)}"); g(f"s_cbranch_vccnz {L}")
        g.label(Lb, keep=True)
        self.slow_loop(Ls, Lb, vaddr, tmp, off, pre)
    def apoll_issue(self, vaddr, tmp, off=0):
        return self.grp(f"buffer_load_dwordx2 {vr(tmp,2)}, v{vaddr}, {SWS}, 0 offen offset:{off} sc1")
    def apoll_check(self, vaddr, tmp, off=0, pre=(), plain=False):
        g = self.g; Ls = g.newlabel("L_as"); Lb = g.newlabel("L_ab")
        g.begin(); g(f"v_cmp_ne_u64 vcc, {sNON}, {vr(tmp,2)}"); g(f"s_cbranch_vccnz {Ls}"); g.raw(Lb + ":"); main = g.end()
        g.begin(); g.label(Ls, keep=True)
        if plain:
            L2 = g.newlabel("L_al"); g("s_mov_b32 s69, 0"); g.label(L2, keep=True)
            g(f"buffer_load_dwordx2 {vr(tmp,2)}, v{vaddr}, {SWS}, 0 offen offset:{off} sc1")
            g("s_add_u32 s69, s69, 1"); g("s_waitcnt vmcnt(0)"); g(f"s_sleep {self.o('pw_slp', 1)}")
            g(f"s_cmp_gt_u32 s69, {POLL_LIMIT}"); g(f"s_cbranch_scc1 {Lb}")
            g(f"v_cmp_ne_u64 vcc, {sNON}, {vr(tmp,2)}"); g(f"s_cbranch_vccnz {L2}")
        else: self.poll(vaddr, tmp, off, pre)
        g.branch(f"s_branch {Lb}", keep=True)
        self.tail.append(g.end())
        return main
    def sig(self, k): return self.grp(f"ds_write_b32 v{self.vSig}, v{self.vSig} offset:{16*k}")
    def lchk_issue(self, k, tmp, own=False):
        return self.grp(f"ds_read_b32 v{tmp}, v{self.vOwn if own else self.vAll} offset:{16*k}")
    def lchk_check(self, k, tmp, own=False, neg=False, sleep=0):
        g = self.g; Ls = g.newlabel("L_ls"); Lb = g.newlabel("L_lb"); L2 = g.newlabel("L_ll"); cmp_ = "ne" if neg else "eq"
        g.begin(); g(f"v_cmp_{cmp_}_u32 vcc, 0, v{tmp}"); g(f"s_cbranch_vccnz {Ls}"); g.raw(Lb + ":"); main = g.end()
        g.begin()
        g.label(Ls, keep=True); g("s_mov_b32 s69, 0")
        g.label(L2, keep=True)
        g(f"ds_read_b32 v{tmp}, v{self.vOwn if own else self.vAll} offset:{16*k}")
        g("s_add_u32 s69, s69, 1")
        if sleep: g(f"s_sleep {sleep}")
        g("s_waitcnt lgkmcnt(0)")
        g(f"s_cmp_gt_u32 s69, {POLL_LIMIT*16}"); g(f"s_cbranch_scc1 {Lb}")
        g(f"v_cmp_{cmp_}_u32 vcc, 0, v{tmp}"); g(f"s_cbranch_vccnz {L2}")
        g.branch(f"s_branch {Lb}", keep=True)
        self.tail.append(g.end())
        return main
    def lwait(self, k, tmp, own=False, sleep=0, addr=None):
        g = self.g; L = g.newlabel("L_lw"); Lgo = g.newlabel("L_lg")
        g("s_mov_b32 s69, 0")
        g.label(L, keep=True)
        g(f"ds_read_b32 v{tmp}, v{addr if addr is not None else (self.vOwn if own else self.vAll)} offset:{16*k}")
        g("s_add_u32 s69, s69, 1"); g(f"s_cmp_gt_u32 s69, {POLL_LIMIT*16}"); g(f"s_cbranch_scc1 {Lgo}")
        if sleep: g(f"s_sleep {sleep}")
        g("s_waitcnt lgkmcnt(0)")
        g(f"v_cmp_eq_u32 vcc, 0, v{tmp}"); g(f"s_cbranch_vccnz {L}")
        g.label(Lgo, keep=True)
    def pause(self, on):
        return self.sig(K_PZ) if on else self.grp(f"ds_write_b32 v{self.vSig}, v{self.vZero} offset:{16*K_PZ}")
    def sync_consts(self, a):
        g, L = self.g, self.vL
        g(f"s_lshl_b32 s4, {sW}, 2"); g(f"s_add_u32 s4, s4, {SYNC}"); g(f"v_mov_b32 v{self.vOwn}, s4")
        g(f"v_mov_b32 v{a}, 0x40000"); g(f"v_cmp_eq_u32 vcc, 0, v{L}"); g(f"v_cndmask_b32 v{self.vSig}, v{a}, v{self.vOwn}, vcc")
        g(f"v_and_b32 v{a}, 3, v{L}"); g(f"v_lshlrev_b32 v{a}, 2, v{a}"); g(f"v_add_u32 v{self.vAll}, {SYNC}, v{a}")
    def get_nonce(self, a):
        return [self.grp(f"v_mov_b32 v{a}, {NONL}", f"ds_read_b64 {vr(self.vNON,2)}, v{a}"),
                self.grp(f"v_readfirstlane_b32 s70, v{self.vNON}", f"v_readfirstlane_b32 s71, v{self.vNON+1}")]
    def srd(self, base, ptr, size):
        g = self.g
        g(f"s_mov_b32 s{base}, s{ptr}"); g(f"s_and_b32 s{base+1}, s{ptr+1}, 0xffff"); g(f"s_mov_b32 s{base+2}, {size}"); g(f"s_mov_b32 s{base+3}, 0x20000")
    def pi8(self, acc, t):
        g, L = self.g, self.vL
        g(f"v_and_b32 v{t}, 1, v{L}"); g(f"v_lshl_add_u32 v{acc}, v{t}, 4, v{acc}")
        g(f"v_bfe_u32 v{t}, v{L}, 1, 1"); g(f"v_lshl_add_u32 v{acc}, v{t}, 3, v{acc}")
    def rbf(self, r):
        self.g(f"v_cvt_pk_bf16_f32 v{r}, v{r}, v{r}"); self.g(f"v_and_b32 v{r}, 0xffff0000, v{r}")
    def cmap(self):
        g = self.g
        if self.o("cmap", 0) == 0:
            g("s_and_b32 s4, s2, 7"); g("s_lshl_b32 s4, s4, 1"); g("s_lshr_b32 s6, s2, 7"); g(f"s_add_u32 {sR128}, s4, s6")
            g("s_lshr_b32 s4, s2, 3"); g(f"s_and_b32 {sCGX}, s4, 15")
            if self.o("cgmap", 1):
                perm = list(range(16)); perm[3], perm[14] = 14, 3; perm[11], perm[15] = 15, 11
                lo = sum(perm[i] << (4*i) for i in range(8)); hi = sum(perm[8+i] << (4*i) for i in range(8))
                g(f"s_mov_b32 s6, {lo:#x}"); g(f"s_mov_b32 s7, {hi:#x}"); g(f"s_lshl_b32 s4, {sCGX}, 2"); g("s_lshr_b64 s[6:7], s[6:7], s4"); g(f"s_and_b32 {sCGX}, s6, 15")
        else:
            g("s_and_b32 s4, s2, 6"); g("s_lshl_b32 s4, s4, 1"); g("s_lshr_b32 s6, s2, 6"); g(f"s_add_u32 {sR128}, s4, s6")
            g("s_lshr_b32 s4, s2, 3"); g("s_and_b32 s4, s4, 7"); g("s_and_b32 s6, s2, 1"); g("s_lshl_b32 s6, s6, 3"); g(f"s_add_u32 {sCGX}, s4, s6")
            perm = [0, 1, 2, 14, 3, 4, 5, 6, 7, 8, 9, 15, 10, 11, 12, 13]
            lo = sum(perm[i] << (4*i) for i in range(8)); hi = sum(perm[8+i] << (4*i) for i in range(8))
            g(f"s_mov_b32 s6, {lo:#x}"); g(f"s_mov_b32 s7, {hi:#x}"); g(f"s_lshl_b32 s4, {sCGX}, 2"); g("s_lshr_b64 s[6:7], s[6:7], s4"); g(f"s_and_b32 {sCGX}, s6, 15")

    def prologue(self):
        g, V = self.g, self.V
        g("s_cmp_ge_u32 s2, 256"); g("s_cbranch_scc1 L_end")
        g("s_load_dwordx16 s[48:63], s[0:1], 0"); g("s_load_dwordx4 s[64:67], s[0:1], 64"); g("s_memrealtime s[100:101]")
        assert V(1) == 0
        self.vL, self.vL16, self.vST, self.vNON, self.vSig, self.vOwn, self.vAll, self.vL8, self.vZero = V(1), V(1), V(1), V(2), V(1), V(1), V(1), V(1), V(1)
        self.NCOMMON = 11
        g(f"v_lshrrev_b32 v{self.vL16}, 6, v0"); g(f"v_and_b32 v{self.vL}, 63, v0"); g(f"v_readfirstlane_b32 s3, v{self.vL16}")
        g("s_and_b32 s4, s2, 7"); g("s_lshr_b32 s5, s2, 3")
        g("s_lshl_b32 s6, s4, 2"); g("s_lshr_b32 s7, s5, 3"); g(f"s_add_u32 {sRB}, s6, s7"); g(f"s_and_b32 {sCB}, s5, 7")
        g(f"s_and_b32 {sW}, s3, 3")
        if self.stamps: g(f"v_mov_b32 v{self.vST}, 0")
        g(f"v_lshlrev_b32 v{self.vL16}, 4, v{self.vL}")
        g("s_cmp_lt_u32 s3, 4"); g.branch("s_cbranch_scc1 L_compute", keep=True)
        g("s_cmp_ge_u32 s3, 6"); g.branch("s_cbranch_scc1 L_job", keep=True)

    def helper(self):
        g = self.g; V = Alloc(self.NCOMMON, 256); L = self.vL
        a, b, c, vXs, vWs = V(1), V(1), V(1), V(1), V(1)
        vKs, vCs, vCs2, vCw, vPW, vPC = V(1), V(1), V(1), V(1), V(1), V(1); vDw = [V(1) for _ in range(3)]; t2 = V(2)
        STG = V(208, 4); CA = V(16, 4); ON = V(4, 4)
        Qd = lambda i: STG + 4*i
        sBm, sBs, sCm, sD0, sD7, sDm, sUm, sCSr = "s82", "s83", "s84", "s85", "s86", "s87", "s88", "s89"
        def start_stamp():
            if self.stamps: g(f"v_writelane_b32 v{self.vST}, s100, 0"); self.names[self.role].append("start")
        def sym_setup():
            g.begin()
            self.srd(16, 52, 512*512*2); self.srd(28, 60, 1376*512*2); self.srd(40, 66, WS_SIZE)
            self.cmap()
            g(f"v_bfe_u32 v{a}, v{L}, 4, 1"); g(f"v_lshlrev_b32 v{a}, 2, v{a}")
            g(f"v_and_b32 v{b}, 7, v{L}"); g(f"v_xor_b32 v{a}, v{a}, v{b}"); g(f"v_lshlrev_b32 v{a}, 4, v{a}")
            g(f"v_lshrrev_b32 v{b}, 3, v{L}"); g(f"v_lshl_add_u32 v{a}, v{b}, 10, v{a}")
            g(f"s_lshl_b32 s4, {sCB}, 7"); g(f"v_add_u32 v{vKs}, s4, v{a}")
            g(f"s_lshl_b32 s6, {sW}, 14"); g(f"s_add_u32 {sBm}, s6, {64*K1}"); g(f"s_lshl_b32 {sBs}, {sW}, 17")
            g(f"s_lshl_b32 {sUm}, {sW}, 12")
            g(f"s_mul_i32 s4, {sCGX}, {6*32*K1}"); g(f"s_add_u32 s4, s4, {sUm}"); g(f"s_add_u32 {sCm}, s4, {WS_WC}")
            g(f"s_cmp_ge_u32 {sCGX}, 14"); g("s_cselect_b32 s4, 0x80000000, 0"); g(f"v_or_b32 v{vCs2}, s4, v{self.vL16}")
            g(f"s_cmp_eq_u32 {sCGX}, 15"); g("s_cselect_b32 s4, 0x80000000, 0"); g(f"s_cselect_b32 s6, 0, {sCGX}"); g(f"v_or_b32 v{vCs}, s4, v{self.vL16}")
            g("s_lshl_b32 s6, s6, 3"); g(f"s_add_u32 s6, s6, {sW}"); g("s_lshl_b32 s7, s6, 9"); g(f"s_add_u32 s7, s7, {WS_FW}")
            g(f"v_and_b32 v{a}, 3, v{L}"); g(f"v_bfe_u32 v{b}, v{L}, 2, 1"); g(f"v_lshl_add_u32 v{a}, v{b}, 4, v{a}"); g(f"v_lshl_add_u32 v{vPW}, v{a}, 7, s7")
            g(f"s_lshl_b32 s6, s6, 12"); g(f"s_add_u32 {sCSr}, s6, {WS_CS}"); g(f"v_mul_u32_u24 v{vPC}, 12, v{L}")
            for i in range(3):
                g(f"s_mul_i32 s4, {sW}, {DPART[i][3]}"); g(f"s_add_u32 s4, s4, {DPART[i][2]}"); g(f"v_add_u32 v{vDw[i]}, s4, v{self.vL16}")
                if i == 0: g(f"s_mov_b32 {sDm}, s4")
            g(f"s_lshr_b32 s4, {sW}, 1"); g("s_mul_i32 s4, s4, 6"); g(f"s_and_b32 s7, {sW}, 1"); g("s_add_u32 s4, s4, s7")
            g(f"s_lshl_b32 {sD0}, s4, 14"); g(f"s_lshl_b32 {sD7}, s7, 14")
            return g.end()
        events = {}
        def after(n, fn): events.setdefault(n, []).append(fn)
        PZ = self.o("pause", 1)
        def run(loads, pz_from=None, slow=0):
            pend = False; dep0 = self.o("h_dep", 9) if self.role == "H" else 0
            for n in range(len(loads) + 1):
                for fn in events.pop(n, []): fn(); pend = False
                if n == len(loads): break
                if PZ and pz_from is not None and n >= pz_from and (n - pz_from) % 2 == 0:
                    if not pend: g.add(self.lchk_issue(K_PZ, vXs))
                    g.add(self.lchk_check(K_PZ, vXs, neg=True, sleep=1))
                    g.add(loads[n]); g.add(self.lchk_issue(K_PZ, vXs)); pend = True
                else: g.add(loads[n])
                dep = self.o("tr_d", 3) if n < slow else dep0
                if dep: g(f"s_waitcnt vmcnt({dep-1})")
            for n in sorted(events):
                for fn in events.pop(n): fn()

        qD = {n: Qd(22 + 2*(n - 11)) for n in range(11, 22)}
        def djob(n):
            j, i = DK[n]; sb = sD7 if (j, i) == (0, 7) else sD0; off = (12*i + 2*j)*16384
            if n < 11:
                m = (sDm, n*2048) if n < 3 else (sBm, (n-3)*2048)
                return [self.grp(f"s_add_u32 m0, {m[0]}, {m[1] + h*K1}", f"s_add_u32 s3, {sb}, {off + h*8192}", f"buffer_load_dwordx4 v{vKs}, {SWD}, s3 offen lds", tag="wd0" if n < 3 else "wd1") for h in range(2)]
            return [self.grp(f"s_add_u32 s3, {sb}, {off + h*8192}", f"buffer_load_dwordx4 {vr(qD[n]+4*h,4)}, v{vKs}, {SWD}, s3 offen") for h in range(2)]
        NPS = self.o("presym", 0)
        presym = lambda: [x for n in range(11, 22) for x in djob(n)][:NPS]
        self.role = "S"
        if self.o("sprio", 0): g(f"s_setprio {self.o('sprio', 2)}")
        sXb, sX0, sXm, sWm, sEx, sRk, sKq, sWq = "s74", "s75", "s76", "s77", "s78", "s79", "s80", "s81"
        g(f"s_lshl_b32 s6, {sW}, 3")
        g(f"v_lshrrev_b32 v{a}, 3, v{L}"); g(f"v_add_u32 v{b}, s6, v{a}"); g(f"v_bfe_u32 v{c}, v{b}, 1, 3")
        g(f"v_and_b32 v{vXs}, 7, v{L}"); g(f"v_xor_b32 v{c}, v{c}, v{vXs}"); g(f"v_lshlrev_b32 v{vXs}, 10, v{b}"); g(f"v_lshl_add_u32 v{vXs}, v{c}, 4, v{vXs}")
        g(f"v_mul_u32_u24 v{a}, 3072, v{b}")
        g(f"v_bfe_u32 v{b}, v{L}, 4, 1"); g(f"s_lshl_b32 s6, {sW}, 1"); g(f"v_or_b32 v{b}, s6, v{b}")
        g(f"v_bfe_u32 v{c}, v{L}, 1, 2"); g(f"v_xor_b32 v{b}, v{b}, v{c}")
        g(f"v_and_b32 v{c}, 1, v{L}"); g(f"v_lshlrev_b32 v{c}, 4, v{c}"); g(f"v_lshl_add_u32 v{b}, v{b}, 5, v{c}")
        g(f"s_lshl_b32 s7, {sCB}, 7"); g(f"v_add3_u32 v{vWs}, v{a}, v{b}, s7")
        g(f"s_lshl_b32 {sXb}, {sRB}, 16"); g(f"s_sub_u32 {sX0}, {sXb}, 16384"); g(f"s_max_i32 {sX0}, {sX0}, 0")
        g(f"s_lshl_b32 {sXm}, {sW}, 10"); g(f"s_mul_i32 {sWm}, {sW}, 3072"); g(f"s_add_u32 {sWm}, {sWm}, {10*K1}")
        g(f"s_cmp_eq_u32 {sW}, 0"); g(f"s_cselect_b32 {sEx}, 0xffffff00, -1")
        RM = self.o("rotmask", 7)
        g(f"s_add_u32 s6, s4, {sCB}"); g(f"s_and_b32 {sRk}, s6, {RM}")
        if self.o("rot3", 0):
            g(f"s_lshl_b32 s7, {sRB}, 1"); g(f"s_cmp_eq_u32 {sCB}, 3"); g("s_cselect_b32 s7, s7, 0"); g(f"s_add_u32 {sRk}, {sRk}, s7")
        g("s_mov_b32 s10, %d" % (2048*512*2)); g("s_mov_b32 s11, 0x20000"); g("s_mov_b32 s14, %d" % (512*1536*2)); g("s_mov_b32 s15, 0x20000")
        g("s_waitcnt lgkmcnt(0)")
        g("s_mov_b32 s8, s48"); g("s_and_b32 s9, s49, 0xffff"); g("s_mov_b32 s12, s50"); g("s_and_b32 s13, s51, 0xffff")
        start_stamp(); self.stamp("ka")
        jobs = []; last = {}
        for P in range(8):
            sl = (P % 4) * SLOT
            for t in range(5):
                l = []
                if t == 0: l += [f"s_add_u32 {sKq}, {sRk}, {P}", f"s_and_b32 {sKq}, {sKq}, 7", f"s_mul_i32 {sWq}, {sKq}, {64*3072}", f"s_lshl_b32 {sKq}, {sKq}, 7"]
                l += [f"s_add_u32 m0, {sXm}, {sl + t*2048}"]
                if t == 0: l += [f"s_add_u32 s3, {sX0}, {sKq}", f"s_mov_b32 exec_lo, {sEx}"]
                elif t == 1: l += [f"s_add_u32 s3, {sXb}, {sKq}"]
                else: l += ["s_add_u32 s3, s3, 16384"]
                if not self.o("nox", 0): l += [f"buffer_load_dwordx4 v{vXs}, {SX}, s3 offen lds"]
                if t == 0: l += ["s_mov_b32 exec_lo, -1"]
                jobs.append(self.grp(*l, tag=f"x{P}"))
            for h in range(2):
                for bb in range(2):
                    for p in range(3):
                        l = [f"s_add_u32 m0, {sWm}, {sl + h*12288 + bb*6144}", f"s_add_u32 s3, {sWq}, {(h*32 + bb*16)*3072}"] if p == 0 else []
                        l += [f"buffer_load_dwordx4 v{vWs}, {SWQ}, s3 offen offset:{p*K1} lds"]
                        jobs.append(self.grp(*l, tag=f"w{2*P+h}"))
                last[2*P + h] = len(jobs)
        HF1 = self.o("h_first", 17); SL = self.o("h_sl", 16)
        def first():
            self.sync_consts(a); g("s_barrier")
            for k in (K_TB, K_PP): g.add(self.sig(k))
        after(HF1, first)
        chunks = []; cur = []
        for it in sym_setup():
            if len(cur) >= 6 and not it.op.startswith("s_cselect") and not cur[-1].op.startswith("s_cmp"): chunks.append(cur); cur = []
            cur.append(it)
        chunks.append(cur)
        for i, ch in enumerate(chunks): after(36 + i, (lambda ch=ch: g.add(ch)))
        assert 36 + len(chunks) < 4*17 - 3
        def stage_fn(k, s1):
            def fn():
                g.waitvm(f"w{s1}"); g.add(self.sig(K_A + k))
                if self.o("ast", 0) or k == 8: self.stamp(f"A{k}")
            return fn
        for k, s1 in enumerate([0, 1, 3, 5, 7, 9, 11, 13, 15]):
            lim = ((last[s1] + 16) // 17) * 17
            n = last[s1] + (SL if s1 < self.o("sl_from", 99) else self.o("h_sl2", 24))
            if s1 >= 7: n = last[s1] if self.o("h_blk", 0) else n
            after(max(n, HF1), stage_fn(k, s1))
        if self.o("fine", 1):
            for i, s1 in enumerate((2, 4)): after(max(last[s1] + SL, HF1), (lambda i=i, s1=s1: (g.waitvm(f"w{s1}"), g.add(self.sig(K_AX + i)))))
        for P in range(4, 8):
            after(17*P - 3, (lambda P=P: g.add(self.lchk_issue(K_F + P - 4, c))))
            after(17*P, (lambda P=P: g.add(self.lchk_check(K_F + P - 4, c, sleep=1))))
        WBR = self.o("wb_reg", 0)
        after(len(jobs), lambda: self.stamp("Ais"))
        if WBR:
            jobs += [self.grp(f"s_add_u32 s3, {sBs}, {(i//16)*256*K1 + (i%16)*8192}", f"buffer_load_dwordx4 {vr(Qd(i),4)}, v{vKs}, {SWO}, s3 offen") for i in range(32)]
        after(len(jobs) - self.o("is_early", 0), lambda: g.add(self.sig(K_IS)))
        run(jobs + presym())
        g(f"v_add_u32 v{a}, {sBm}, v{self.vL16}")
        self.lwait(K_AE, c, sleep=1); self.stamp("AE")
        if WBR:
            for i in range(32):
                g(f"ds_write_b128 v{a}, {vr(Qd(i),4)} offset:{(i//16)*32*K1 + (i%16)*K1}")
                if i == 15: g.add(self.sig(K_WB))
        else:
            for i in range(32):
                g(f"s_add_u32 m0, {sBm}, {(i//16)*32*K1 + (i%16)*K1}"); g(f"s_add_u32 s3, {sBs}, {(i//16)*256*K1 + (i%16)*8192}")
                g(f"buffer_load_dwordx4 v{vKs}, {SWO}, s3 offen lds", tag=f"wb{i//16}")
                if self.o("wb_dep", 0): g(f"s_waitcnt vmcnt({self.o('wb_dep', 0) - 1})")
                if i == 31: g.waitvm("wb0"); g.add(self.sig(K_WB))
            g.waitvm("wb1")
        g(f"ds_write_b32 v{self.vSig}, v{self.vSig} offset:{16*K_WB + 8}")
        self.lwait(K_TB, c)
        for grp in self.get_nonce(a): g.add(grp)
        self.stamp("WB")
        g.label("L_sym")
        g(f"s_setprio {self.o('hprio', 0)}")

        g.begin(); self.role = "J"
        g.label("L_job", keep=True)
        PV = [Qd(12), Qd(12) + 1, Qd(12) + 2]; vTc = Qd(12) + 3; vPr, vPs, vP12, vF8 = Qd(13), Qd(13) + 1, Qd(13) + 2, Qd(13) + 3
        vTb, vT3 = Qd(14) + 2, Qd(14) + 3
        g(f"s_and_b32 s90, {sW}, 1")
        g("s_lshl_b32 s4, s2, 1"); g("s_add_u32 s98, s4, s90"); g("s_cmp_lt_u32 s98, 480"); g("s_cselect_b32 s91, 0, 0x80000000")
        g("s_mul_i32 s7, s98, 4370"); g("s_lshr_b32 s7, s7, 16"); g("s_mul_i32 s6, s7, 15"); g("s_sub_u32 s6, s98, s6"); g("s_and_b32 s7, s7, 31")
        g("s_lshl_b32 s92, s6, 5"); g("s_add_u32 s92, s92, s7")
        g(f"s_mul_i32 s94, s6, {6*32*K1}"); g("s_lshl_b32 s4, s7, 10"); g("s_add_u32 s94, s94, s4"); g(f"s_add_u32 s94, s94, {WS_WC}")
        g("s_mul_i32 s6, s6, 192"); g(f"s_mul_i32 s7, s7, {16*2752}"); g("s_add_u32 s6, s6, s7"); g("s_or_b32 s6, s6, s91")
        for i in range(3):
            g(f"v_add_u32 v{a}, {64*i}, v{L}"); g(f"v_mul_u32_u24 v{b}, 5462, v{a}"); g(f"v_lshrrev_b32 v{b}, 16, v{b}")
            g(f"v_mul_u32_u24 v{b}, {2752 - 192}, v{b}"); g(f"v_lshl_add_u32 v{b}, v{a}, 4, v{b}"); g(f"v_add_u32 v{PV[i]}, s6, v{b}")
        g(f"s_mul_i32 s95, s90, {6*K1 + 64}"); g(f"s_add_u32 s95, s95, {SCR}")
        g("s_lshl_b32 s6, s5, 1"); g("s_add_u32 s99, s6, s90"); g(f"v_mov_b32 v{b}, 0x80000000")
        g("s_mul_i32 s6, s99, 24"); g(f"v_add_u32 v{a}, s6, v{L}"); g(f"v_lshlrev_b32 v{a}, 10, v{a}"); g(f"v_cmp_gt_u32 vcc, 24, v{L}"); g(f"v_cndmask_b32 v{vT3}, v{b}, v{a}, vcc")
        g("s_mul_i32 s6, s98, 22"); g(f"v_add_u32 v{a}, s6, v{L}"); g(f"v_lshlrev_b32 v{a}, 7, v{a}"); g(f"v_cmp_gt_u32 vcc, 22, v{L}"); g(f"v_cndmask_b32 v{vTc}, v{b}, v{a}, vcc")
        g("s_lshl_b32 s6, s98, 3"); g(f"v_add_u32 v{a}, s6, v{L}"); g(f"v_lshlrev_b32 v{a}, 7, v{a}"); g(f"v_cmp_gt_u32 vcc, 8, v{L}"); g(f"v_cndmask_b32 v{vTb}, v{b}, v{a}, vcc")
        if self.o("t3b", 1):
            g("s_lshl_b32 s6, s99, 3"); g("s_sub_u32 s6, s6, 8"); g(f"v_add_u32 v{a}, s6, v{L}"); g(f"v_lshlrev_b32 v{a}, 10, v{a}"); g(f"v_add_u32 v{a}, 384, v{a}")
            g("s_mov_b32 s6, 0xff00"); g("s_mov_b32 s7, 0"); g(f"v_cndmask_b32 v{vTb}, v{vTb}, v{a}, s[6:7]")
        g("s_waitcnt lgkmcnt(0)")
        start_stamp()
        self.srd(12, 50, 512*1536*2); self.srd(20, 56, 512*1376*2); self.srd(24, 58, 512*1376*2); self.srd(16, 52, 512*512*2); self.srd(28, 60, 1376*512*2)
        if self.o("t3", 1): g(f"buffer_load_dword v{vT3}, v{vT3}, {SWQ}, 0 offen offset:384")
        WOT = self.o("wo_t", 1)
        if WOT == 1: g(f"buffer_load_dword v{Qd(14)}, v{vTb}, {SWO}, 0 offen")
        if self.o("wd_t", 0): g(f"buffer_load_dword v{Qd(14)+1}, v{vTc}, {SWD}, 0 offen")
        def batch_loads():
            for m in range(2):
                for i in range(3):
                    g(f"s_add_u32 m0, s95, {m*(3*K1 + 32) + i*K1}"); g("s_nop 0")
                    g(f"buffer_load_dwordx4 v{PV[i]}, {(SWG, SWU)[m]}, 0 offen lds", tag="pl")
            if not self.o("wd_t", 0) and not self.o("ct", 0): g(f"buffer_load_dword v{Qd(14)+1}, v{vTc}, {SWD}, 0 offen")
        EARLY = self.o("early", 0)
        self.sync_consts(a)
        g("s_barrier")
        for k in list(range(K_A, K_A + 9)) + [K_IS, K_AX, K_AX + 1]: g.add(self.sig(k))
        if EARLY:
            g(f"buffer_load_dword v{Qd(14)}, v{vTb}, {SWO}, 0 offen"); batch_loads(); self.stamp("go")
        g(f"v_mov_b32 v{self.vZero}, 0"); g(f"v_lshlrev_b32 v{self.vL8}, 3, v{L}")
        g.add(sym_setup())
        self.srd(8, 48, 2048*512*2); self.srd(36, 64, 256)
        g("s_lshl_b32 s93, s92, 10"); g(f"s_add_u32 s93, s93, {WS_CS}"); g("s_lshl_b32 s92, s92, 7"); g(f"s_add_u32 s92, s92, {WS_FW}")
        g(f"v_bfe_u32 v{b}, v{L}, 4, 1"); g(f"v_mul_u32_u24 v{a}, {3*K1 + 32}, v{b}")
        g(f"v_lshrrev_b32 v{b}, 5, v{L}"); g(f"v_mul_u32_u24 v{b}, {8*192}, v{b}"); g(f"v_add_u32 v{a}, v{a}, v{b}")
        g(f"v_bfe_u32 v{b}, v{L}, 2, 2"); g(f"v_mul_u32_u24 v{b}, 192, v{b}"); g(f"v_add_u32 v{a}, v{a}, v{b}")
        self.pi8(a, b); g(f"v_add_u32 v{vPr}, s95, v{a}")
        g(f"v_or_b32 v{vPs}, s91, v{self.vL16}"); g(f"v_or_b32 v{vF8}, s91, v{self.vL8}"); g(f"v_or_b32 v{vP12}, s91, v{vPC}")
        for i in range(4): g(f"v_mov_b32 v{ON+i}, 0x3f803f80")
        g(f"s_lshr_b32 s4, s2, {self.o('b_sh', 6)}"); g(f"s_and_b32 s4, s4, {self.o('b_n', 4) - 1}"); g("s_lshl_b32 s4, s4, 4"); g(f"v_add_u32 v{vWs}, s4, v{self.vAll}")
        g(f"s_lshl_b32 s96, {sRB}, 6"); g(f"s_lshl_b32 s4, {sCB}, 3"); g("s_add_u32 s96, s96, s4"); g("s_lshl_b32 s4, s90, 2"); g("s_add_u32 s96, s96, s4")
        self.stamp("set")
        if self.o("s_at", 0) >= 0: self.lwait(K_A + self.o("s_at", 0), c, sleep=2)
        g("s_lshl_b32 s4, s96, 10")
        for r in range(4): g(f"buffer_load_dwordx4 {vr(Qd(16+r),4)}, v{self.vL16}, {SX}, s4 offen offset:{r*K1}")
        g(f"buffer_load_dwordx2 {vr(self.vNON,2)}, v{self.vZero}, {SDBG}, 0 offen sc1")
        if not EARLY and WOT == 0: g(f"buffer_load_dword v{Qd(14)}, v{vTb}, {SWO}, 0 offen")
        if self.o("jprio", 0): g(f"s_setprio {self.o('jprio', 0)}")
        SQ = Qd(20); U = Qd(24)
        for r in range(4):
            for j in range(4):
                g(f"v_lshlrev_b32 v{U+2*j}, 16, v{Qd(16+r)+j}"); g(f"v_and_b32 v{U+2*j+1}, 0xffff0000, v{Qd(16+r)+j}")
            g(f"v_add_f32 v{SQ+r}, v{U}, v{U+1}"); g(f"v_mul_f32 v{SQ+4+r}, v{U}, v{U}"); g(f"v_fmac_f32 v{SQ+4+r}, v{U+1}, v{U+1}")
            for j in range(2, 8):
                g(f"v_add_f32 v{SQ+r}, v{SQ+r}, v{U+j}"); g(f"v_fmac_f32 v{SQ+4+r}, v{U+j}, v{U+j}")
        for sh in (8, 4, 2, 1):
            for i in range(8): g(f"v_add_f32_dpp v{SQ+i}, v{SQ+i}, v{SQ+i} row_ror:{sh} row_mask:0xf bank_mask:0xf")
        for sw in ("v_permlane16_swap_b32", "v_permlane32_swap_b32"):
            for i in range(8): g(f"v_mov_b32 v{U+i}, v{SQ+i}")
            for i in range(8): g(f"{sw} v{SQ+i}, v{U+i}")
            for i in range(8): g(f"v_add_f32 v{SQ+i}, v{SQ+i}, v{U+i}")
        for r in range(1, 4):
            g(f"v_cmp_eq_u32 vcc, {r}, v{L}"); g(f"v_cndmask_b32 v{SQ}, v{SQ}, v{SQ+r}, vcc"); g(f"v_cndmask_b32 v{SQ+4}, v{SQ+4}, v{SQ+4+r}, vcc")
        G = Qd(26)
        g(f"v_mul_f32 v{G}, {f32(1/512)}, v{SQ}"); g(f"v_mul_f32 v{SQ+4}, {f32(1/512)}, v{SQ+4}"); g(f"v_fma_f32 v{SQ+4}, -v{G}, v{G}, v{SQ+4}")
        g(f"v_max_f32 v{SQ+4}, 0, v{SQ+4}")
        self.rbf(G); self.rbf(SQ+4); g(f"v_add_f32 v{SQ+4}, {f32(1e-5)}, v{SQ+4}"); self.rbf(SQ+4)
        g(f"v_sqrt_f32 v{SQ+4}, v{SQ+4}"); self.rbf(SQ+4); g(f"v_rcp_f32 v{G+2}, v{SQ+4}")
        g("s_mov_b32 s52, 0")
        g.label("L_jn", keep=True)
        g(f"v_readfirstlane_b32 s70, v{self.vNON}"); g(f"v_readfirstlane_b32 s71, v{self.vNON+1}")
        g("s_cmp_lg_u32 s70, 0"); g.branch("s_cbranch_scc1 L_jn2", keep=True)
        g(f"buffer_load_dwordx2 {vr(self.vNON,2)}, v{self.vZero}, {SDBG}, 0 offen sc1")
        g("s_add_u32 s52, s52, 1"); g("s_waitcnt vmcnt(0)"); g(f"s_cmp_lt_u32 s52, {POLL_LIMIT}"); g.branch("s_cbranch_scc1 L_jn", keep=True)
        g.label("L_jn2", keep=True)
        g(f"v_mov_b32 v{G+1}, s70"); g(f"v_mov_b32 v{G+3}, s70")
        g("s_lshl_b32 s4, s96, 4"); g(f"s_add_u32 s4, s4, {WS_ST}"); g("s_mov_b64 exec, 15")
        g(f"buffer_store_dwordx4 {vr(G,4)}, v{self.vL16}, {SWS}, s4 offen sc1"); g("s_mov_b64 exec, -1")
        if self.o("jprio", 0): g("s_setprio 0")
        self.stamp("st")
        g("s_lshl_b32 s4, s90, 6"); g(f"v_add_u32 v{a}, s4, v{L}"); g(f"v_min_u32 v{a}, 79, v{a}")
        g(f"s_lshl_b32 s4, {sRB}, 6"); g("s_sub_u32 s4, s4, 16"); g(f"v_add_u32 v{b}, s4, v{a}"); g(f"v_max_i32 v{b}, 0, v{b}")
        g(f"v_lshlrev_b32 v{b}, 4, v{b}"); g(f"v_add_u32 v{b}, {WS_ST}, v{b}")
        g(f"v_lshlrev_b32 v{a}, 2, v{a}"); g(f"v_add_u32 v{a}, {TAB}, v{a}")
        def batch():
            if EARLY: return
            if self.o("b_is", 1): self.lwait(K_IS, c, sleep=1)
            else: self.lwait(K_A + self.o("b_0", 5), c, sleep=2, addr=vWs)
            self.stamp("go"); batch_loads()
        def gather():
            self.lwait(K_A + self.o("g_at", 5), c, sleep=2)
            g("s_mov_b32 s52, 0")
            g.label("L_jg", keep=True)
            g(f"buffer_load_dwordx4 {vr(G,4)}, v{b}, {SWS}, 0 offen sc1")
            g("s_add_u32 s52, s52, 1"); g(f"s_cmp_gt_u32 s52, {POLL_LIMIT}"); g("s_cbranch_scc1 L_jg2")
            g("s_waitcnt vmcnt(0)")
            g(f"v_cmp_ne_u32 vcc, s70, v{G+1}"); g(f"v_cmp_ne_u32 s[6:7], s70, v{G+3}"); g("s_or_b64 vcc, vcc, s[6:7]"); g("s_cbranch_vccz L_jg2")
            g("s_sleep 4"); g.branch("s_branch L_jg", keep=True)
            g.label("L_jg2", keep=True)
            g(f"ds_write_b32 v{a}, v{G}"); g(f"ds_write_b32 v{a}, v{G+2} offset:512")
            g(f"v_mov_b32 v{a}, {NONL}"); g(f"ds_write_b64 v{a}, {vr(self.vNON,2)}")
            g.add(self.sig(K_TB))
            self.stamp("TB")
        def patch():
            g("s_waitcnt vmcnt(0)")
            self.stamp("pl")
            if self.o("jprio2", 0): g(f"s_setprio {self.o('jprio2', 0)}")
            for u in range(6):
                for j2 in range(2): g(f"ds_read_b64_tr_b16 {vr(Qd(6+u)+2*j2,2)}, v{vPr} offset:{u*32 + j2*768}")
            g.add(self.sig(K_PP))
            for u in range(6):
                g(f"s_add_u32 s4, s94, {u*32*K1}"); g(f"buffer_store_dwordx4 {vr(Qd(6+u),4)}, v{vPs}, {SWS}, s4 offen sc1")
            g("s_mov_b32 s6, 0"); g("s_mov_b32 s7, -1")
            A6 = [CA, Qd(0), Qd(16), Qd(44), Qd(48), CA]
            for u in range(5): g(f"v_mfma_f32_32x32x16_bf16 {vr(A6[u],16)}, {vr(ON,4)}, {vr(Qd(6+u),4)}, 0")
            g(f"v_cndmask_b32 v{Qd(15)}, v{A6[0]}, v{A6[1]}, s[6:7]")
            g(f"v_mfma_f32_32x32x16_bf16 {vr(CA,16)}, {vr(ON,4)}, {vr(Qd(11),4)}, 0")
            for i in range(1, 3): g(f"v_cndmask_b32 v{Qd(15)+i}, v{A6[2*i]}, v{A6[2*i+1]}, s[6:7]")
            g(f"buffer_store_dwordx3 {vr(Qd(15),3)}, v{vP12}, {SWS}, s93 offen sc1", tag="pst")
            for grp in presym(): g.add(grp)
            g.waitvm("pst")
            g("s_mov_b64 exec, 0xffff"); g(f"buffer_store_dwordx2 {vr(self.vNON,2)}, v{vF8}, {SWS}, s92 offen sc1"); g("s_mov_b64 exec, -1")
            self.stamp("PF")
        if EARLY:
            if self.o("p_at", -1) >= 0: self.lwait(K_A + self.o("p_at", -1), c, sleep=2)
            patch(); gather()
        elif self.o("b_first", 0) == 2: batch(); gather(); patch()
        elif self.o("b_first", 0): batch(); patch(); gather()
        else: gather(); batch(); patch()
        self.lwait(K_AE, c, sleep=2)
        g.branch("s_branch L_sym")
        jobcode = g.end()

        self.role = "H"
        self.stamp("sym")
        KO = (list(range(16, 32)) + list(range(16))) if self.o("c_ko", 1) else list(range(32))
        def pjob(p):
            out = []
            for half in range(2):
                for e in range(2):
                    u = 2*p + e; base = KO[16*half]*K1; v = vCs if u < 2 else vCs2
                    for j in range(4):
                        l = [f"s_add_u32 m0, {sUm}, {(p%2)*65536 + e*32768 + base}", f"s_add_u32 s3, {sCm}, {u*32*K1 + base}"] if j == 0 else []
                        l.append(f"buffer_load_dwordx4 v{v}, {SWS}, s3 offen offset:{j*K1} sc1 lds")
                        out.append(self.grp(*l, tag=f"wu{p}{half}"))
            return out
        def dwrite(part, sk):
            f, n, _, _ = DPART[part]
            for i in range(n):
                for h in range(2): g(f"ds_write_b128 v{vDw[part % 3]}, {vr(qD[f+i]+4*h,4)} offset:{i*2048 + h*K1}")
            g.add(self.sig(sk))
        def cs_sum():
            for st in (4, 2, 1):
                for j in range(st):
                    for i in range(3): g(f"v_add_f32 v{Qd(44+j)+i}, v{Qd(44+j)+i}, v{Qd(44+j+st)+i}")
            g(f"s_lshr_b32 s4, {sW}, 1"); g("s_lshl_b32 s4, s4, 9"); g(f"s_and_b32 s6, {sW}, 1"); g("s_lshl_b32 s6, s6, 3"); g("s_add_u32 s4, s4, s6"); g(f"s_add_u32 s4, s4, {CST}")
            g(f"v_and_b32 v{b}, 31, v{L}"); g(f"v_lshl_add_u32 v{a}, v{b}, 4, s4"); g(f"v_lshrrev_b32 v{b}, 5, v{L}"); g(f"v_lshl_add_u32 v{a}, v{b}, 10, v{a}")
            self.lwait(K_T2, c, sleep=1)
            for i in range(3):
                x = Qd(44) + i; o = CA + 2*i
                g(f"v_cvt_pk_bf16_f32 v{o+1}, v{x}, 0"); g(f"v_lshlrev_b32 v{b}, 16, v{o+1}"); g(f"v_sub_f32 v{b}, v{x}, v{b}"); g(f"v_cvt_pk_bf16_f32 v{o}, v{x}, v{b}")
                g(f"ds_write_b64 v{a}, {vr(o,2)} offset:{2*i*K1}")
            g.add(self.sig(K_CS))
        LA = self.o("h_la", 8)
        gap = ([x for n in range(11, 22) for x in djob(n)] + [x for n in range(3) for x in djob(n)])[NPS:]
        def take(n):
            nonlocal gap
            t = gap[:n]; gap = gap[n:]; return t
        self.lwait(K_PP, c)
        def trickle(n):
            d = self.o("tr_d", 3)
            for grp in take(n): g.add(grp); g(f"s_waitcnt vmcnt({d-1})")
        trickle(self.o("h_g0", 12))
        def pw(): g.add(self.apoll_issue(vPW, t2)); g.add(self.apoll_check(vPW, t2, plain=True)); self.stamp("PW")
        PF_ = self.o("pw_first", 2)
        if PF_ == 2: g.add(self.apoll_issue(vPW, t2))
        US = self.o("u_slow", 0)
        if self.o("g1", 1) and not US: self.lwait(K_G1, c, sleep=1)
        self.stamp("G1")
        if US: after(US, lambda: self.lwait(K_G1, c, sleep=1))
        if PF_ == 2: g.add(self.apoll_check(vPW, t2, plain=True)); self.stamp("PW")
        else: pw()
        p0 = pjob(0); p1 = pjob(1); p2 = pjob(2)
        csl = [self.grp(f"s_add_u32 s3, {sCSr}, {(j//4)*16*K1}", f"buffer_load_dwordx3 {vr(Qd(44+j),3)}, v{vPC}, {SWS}, s3 offen offset:{(j%4)*K1} sc1") for j in range(8)]
        CL = self.o("cs_late", 1); MB = self.o("mid", 2)
        if MB == 3:
            after(16, lambda: (g.waitvm("wu00"), g.add(self.sig(K_C01)), self.stamp("C01"), self.lwait(K_B4, c, sleep=1)))
            after(24, lambda: (g.waitvm("wu01"), g.add(self.sig(K_C01b))))
            run(p0 + p1[:8] + ([] if CL else csl), slow=US)
            g.waitvm("wu10"); g.add(self.sig(K_C23)); late = []
        else:
            run(p0[:8]); g.waitvm("wu00"); g.add(self.sig(K_C01)); self.stamp("C01"); self.lwait(K_B4, c, sleep=1)
            if MB == 2: run(p1[:8]); g.waitvm("wu10"); g.add(self.sig(K_C23)); late = p0[8:]
            else: late = p1[:8] + p0[8:]
        if not CL: cs_sum()
        if self.o("g2", 1): self.lwait(K_G2, c, sleep=1)
        self.stamp("G2")
        if MB == 1: after(8 + 4, lambda: (g.waitvm("wu10"), g.add(self.sig(K_C23))))
        if MB < 3: after(len(late) + 6, lambda: (g.waitvm("wu01"), g.add(self.sig(K_C01b))))
        if CL: late = late + csl; after(len(late) + 8, cs_sum)
        after(len(late) + 8 + LA, lambda: (g.waitvm("wu11"), g.add(self.sig(K_C23b)), self.stamp("C23")))
        run(late + p1[8:] + take(self.o("h_g2", 4)))
        self.lwait(K_P0, c, sleep=1)
        self.stamp("P0")
        after(8 + LA, lambda: (g.waitvm("wu20"), g.add(self.sig(K_C45))))
        run(p2[:8] + take(self.o("h_g3", 6)))
        self.lwait(K_P0b, c, sleep=1)
        after(8 + LA, lambda: (g.waitvm("wu21"), g.add(self.sig(K_C45b)), self.stamp("C45")))
        run(p2[8:] + take(99))
        g.waitvm("wd0"); g.add(self.sig(K_D1))
        self.stamp("n3")
        self.lwait(K_U3, c, sleep=1)
        run([x for n in range(3, 11) for x in djob(n)])
        g.waitvm("wd1"); g.add(self.sig(K_D2))
        self.stamp("D2")
        self.lwait(K_U5, c, sleep=1); dwrite(2, K_D3)
        self.lwait(K_DS, c, own=True, sleep=1); dwrite(3, K_D4)
        self.stamp("D4")
        if self.stamps:
            g(f"s_lshl_b32 s3, s2, 2"); g(f"s_add_u32 s3, s3, {sW}"); g("s_lshl_b32 s3, s3, 8"); g(f"s_add_u32 s3, s3, {WS_STAMP + 0x40000}")
            g(f"v_lshlrev_b32 v{a}, 2, v{L}"); g(f"buffer_store_dword v{self.vST}, v{a}, {SWS}, s3 offen")
        g("s_endpgm")
        g.add(jobcode)
        self.role = "C"

    def consts(self, a, b):
        g, V, L = self.g, self.V, self.vL
        self.sO0, self.sO1, self.sF1 = self.s(), self.s(), self.s()
        g(f"s_lshl_b32 s4, {sCB}, 2"); g(f"s_add_u32 s4, s4, {sW}")
        g(f"s_lshl_b32 s6, {sRB}, 6"); g("s_add_u32 s6, s6, s4"); g("s_lshl_b32 s6, s6, 10"); g(f"s_add_u32 {self.sO0}, s6, {WS_O}"); g(f"s_add_u32 {self.sO1}, {self.sO0}, {32*K1}")
        g(f"s_lshl_b32 s6, {sRB}, 5"); g("s_add_u32 s6, s6, s4"); g("s_lshl_b32 s6, s6, 3"); g(f"s_add_u32 {self.sF1}, s6, {WS_FF}")
        self.sOF = [[self.s(), self.s()], [self.s(), self.s()]]; self.sHF = [self.s(), self.s()]
        g(f"s_lshr_b32 s4, {sW}, 1"); g("s_mul_i32 s4, s4, 6"); g(f"s_and_b32 s7, {sW}, 1"); g("s_add_u32 s5, s4, s7")
        for rt in range(2):
            g(f"s_lshr_b32 s4, {sW}, 1"); g(f"s_xor_b32 s4, s4, {rt}"); g(f"s_lshl_b32 s6, {sRB}, 1"); g("s_add_u32 s4, s4, s6")
            g("s_lshl_b32 s6, s4, 5"); g(f"s_lshl_b32 s7, {sW}, 3"); g("s_add_u32 s6, s6, s7"); g("s_lshl_b32 s6, s6, 10"); g(f"s_add_u32 {self.sOF[rt][0]}, s6, {WS_O}")
            g(f"s_add_u32 {self.sOF[rt][1]}, {self.sOF[rt][0]}, 4096")
            g(f"s_mul_i32 s6, s4, {HHP}"); g(f"s_add_u32 s6, s6, {WS_HH//K1}"); g("s_add_u32 s7, s6, s5"); g(f"s_lshl_b32 {self.sHF[rt]}, s7, 10")
        self.sHs, self.sHt, self.sF2 = self.s(), self.s(), self.s()
        g(f"s_lshl_b32 s4, {sRB}, 1"); g(f"s_lshr_b32 s6, {sW}, 1"); g("s_add_u32 s4, s4, s6")
        g(f"s_lshl_b32 s6, {sCB}, 1"); g(f"s_and_b32 s7, {sW}, 1"); g("s_add_u32 s6, s6, s7")
        self.vRM = V(1)
        g(f"v_and_b32 v{a}, 31, v{L}"); g(f"v_lshlrev_b32 v{a}, 10, v{a}"); g(f"v_lshrrev_b32 v{b}, 5, v{L}"); g(f"v_lshl_add_u32 v{a}, v{b}, 4, v{a}")
        g("s_lshl_b32 s7, s4, 15"); g(f"v_add_u32 v{a}, s7, v{a}"); g("s_lshl_b32 s7, s6, 6"); g(f"v_add_u32 v{self.vRM}, s7, v{a}")
        g("s_lshl_b32 s4, s4, 4"); g("s_add_u32 s4, s4, s6")
        g("s_lshl_b32 s6, s4, 11"); g(f"s_add_u32 {self.sHs}, s6, {WS_H}")
        g("s_lshl_b32 s6, s4, 8"); g(f"s_add_u32 {self.sHt}, s6, {WS_HST}")
        g("s_lshl_b32 s6, s4, 3"); g(f"s_add_u32 {self.sF2}, s6, {WS_FF + 1024*8}")
        self.vKr = V(1)
        g(f"v_lshrrev_b32 v{a}, 5, v{L}"); g(f"v_lshlrev_b32 v{a}, 10, v{a}")
        g(f"v_bfe_u32 v{b}, v{L}, 2, 2"); g(f"v_lshl_add_u32 v{a}, v{b}, 7, v{a}")
        g(f"v_bfe_u32 v{b}, v{L}, 3, 1"); g(f"s_and_b32 s4, {sW}, 1"); g(f"v_xor_b32 v{b}, s4, v{b}"); g(f"v_lshl_add_u32 v{a}, v{b}, 6, v{a}")
        g(f"v_bfe_u32 v{b}, v{L}, 4, 1"); g(f"v_lshl_add_u32 v{a}, v{b}, 5, v{a}")
        self.pi8(a, b); g(f"v_mov_b32 v{self.vKr}, v{a}")
        self.sCh, self.sCt, self.sCo, self.sF3 = self.s(), self.s(), self.s(), self.s()
        g(f"s_lshl_b32 s4, {sR128}, 2"); g(f"s_add_u32 s4, s4, {sW}")
        g("s_lshl_b32 s6, s4, 15"); g(f"s_add_u32 {self.sCh}, s6, {WS_H}")
        g("s_lshl_b32 s6, s4, 12"); g(f"s_add_u32 {self.sCt}, s6, {WS_HST}")
        g(f"s_mul_i32 s6, s4, {HHP}"); g(f"s_mul_i32 s7, {sCGX}, 6"); g("s_add_u32 s6, s6, s7"); g("s_lshl_b32 s6, s6, 10"); g(f"s_add_u32 {self.sCo}, s6, {WS_HH}")
        g("s_mul_i32 s6, s4, 48"); g(f"s_add_u32 s6, s6, {sCGX}"); g("s_lshl_b32 s6, s6, 3"); g(f"s_add_u32 {self.sF3}, s6, {WS_FF + 2048*8}")
        self.vP1, self.vP2, self.vP3 = V(1), V(1), V(1)
        g("s_lshl_b32 s6, s4, 7"); g(f"s_add_u32 s6, s6, {WS_FF + 1024*8}")
        g(f"v_and_b32 v{a}, 15, v{L}"); g(f"v_lshl_add_u32 v{self.vP2}, v{a}, 3, s6")
        g(f"s_lshl_b32 s4, {sRB}, 5"); g(f"s_lshl_b32 s6, {sW}, 3"); g("s_add_u32 s4, s4, s6"); g("s_lshl_b32 s4, s4, 3"); g(f"s_add_u32 s4, s4, {WS_FF}")
        g(f"v_and_b32 v{a}, 7, v{L}"); g(f"v_lshl_add_u32 v{self.vP1}, v{a}, 3, s4")
        g(f"s_lshr_b32 s7, {sW}, 1"); g("s_sub_u32 s6, 7, s7"); g(f"v_min_u32 v{a}, s6, v{a}"); g(f"v_lshlrev_b32 v{a}, 4, v{a}")
        g(f"v_bfe_u32 v{b}, v{L}, 3, 1"); g(f"v_mul_u32_u24 v{b}, {48*8}, v{b}")
        g(f"s_mul_i32 s4, {sRB}, 96"); g("s_add_u32 s4, s4, s7"); g("s_lshl_b32 s4, s4, 3"); g(f"s_add_u32 s4, s4, {WS_FF + 2048*8}")
        g(f"v_add3_u32 v{self.vP3}, v{a}, v{b}, s4")

    def phaseA(self):
        g, V, L = self.g, self.V, self.vL
        g.label("L_compute", keep=True)
        self.vL4 = V(1); self.vHP = V(8, 4); self.vX3 = V(4)
        a, b, c = V(1), V(1), V(1); J = self.vX3
        if self.o("prio", 1): g(f"s_setprio {self.o('prio', 1)}")
        g("s_getpc_b64 s[6:7]"); g.raw("L_pc:")
        g(f"s_sub_u32 s6, s6, L_pc-{NAME}_kernel"); g("s_subb_u32 s7, s7, 0")
        g(f"v_lshrrev_b32 v{a}, 4, v0"); g(f"v_lshl_add_u32 v{a}, s5, 4, v{a}"); g(f"v_lshlrev_b32 v{a}, 7, v{a}")
        g(f"v_min_u32 v{a}, L_codeend-{NAME}_kernel-4, v{a}")
        g(f"global_load_dword v{J}, v{a}, s[6:7]")
        g(f"v_lshlrev_b32 v{self.vL8}, 3, v{L}"); g(f"v_lshlrev_b32 v{self.vL4}, 2, v{L}"); g(f"v_mov_b32 v{self.vZero}, 0")
        ONES = V(4, 4); Z4 = self.vHP
        for i in range(4): g(f"v_mov_b32 v{ONES+i}, 0x3f803f80"); g(f"v_mov_b32 v{Z4+i}, 0")
        g(f"v_bfe_u32 v{a}, v{L}, 3, 2"); g(f"v_mul_u32_u24 v{a}, {SLOT}, v{a}"); g(f"v_and_b32 v{b}, 7, v{L}"); g(f"v_lshl_add_u32 v{a}, v{b}, 4, v{a}")
        g(f"ds_write_b128 v{a}, {vr(ONES,4)}")
        g(f"v_add_u32 v{a}, {SYNC}, v{self.vL16}"); g(f"ds_write_b128 v{a}, {vr(Z4,4)}")
        g(f"v_mov_b32 v{c}, 0")
        for i, x in enumerate(WARM[1:]): g(f"s_mov_b32 s3, {x}"); g(f"v_writelane_b32 v{c}, s3, {i+1}")
        g(f"s_or_b32 s3, s2, {sW}")
        g("s_waitcnt lgkmcnt(0)")
        if self.stamps: g(f"v_writelane_b32 v{self.vST}, s100, 0"); self.names["C"].append("start")
        self.srd(36, 64, 256)
        g("s_cmp_eq_u32 s3, 0"); g.branch("s_cbranch_scc1 L_pubnonce", keep=True)
        g.label("L_pubdone", keep=True)
        g.begin(); g.label("L_pubnonce", keep=True)
        g("s_or_b32 s100, s100, 1"); g(f"v_mov_b32 v{self.vNON}, s100"); g(f"v_mov_b32 v{self.vNON+1}, s101")
        g("s_mov_b64 exec, 1"); g(f"buffer_store_dwordx2 {vr(self.vNON,2)}, v{self.vZero}, {SDBG}, 0 offen sc1"); g("s_mov_b64 exec, -1")
        g.branch("s_branch L_pubdone", keep=True); self.tail.append(g.end())
        self.srd(8, 48, 2048*512*2); self.srd(32, 62, 2048*512*2); self.srd(40, 66, WS_SIZE)
        if self.o("tlb", 1):
            g(f"s_cmp_eq_u32 {sW}, 1"); g("s_cselect_b64 s[6:7], s[56:57], s[52:53]")
            g(f"s_cmp_eq_u32 {sW}, 2"); g("s_cselect_b64 s[6:7], s[58:59], s[6:7]")
            g(f"s_cmp_eq_u32 {sW}, 3"); g("s_cselect_b64 s[6:7], s[60:61], s[6:7]")
            g("s_mov_b32 s20, s6"); g("s_and_b32 s21, s7, 0xffff"); g("s_mov_b32 s22, 4096"); g("s_mov_b32 s23, 0x20000")
            g(f"buffer_load_dword v{J+3}, v{self.vZero}, s[20:23], 0 offen")
            g(f"buffer_load_dword v{J+2}, v{c}, {SWS}, 0 offen")
            if self.o("tlb", 1) > 1: g(f"buffer_load_dword v{self.vHP+5}, v{self.vZero}, {SOUT}, 0 offen")
        CT = self.o("ct", 0)
        if CT:
            g(f"s_cmp_eq_u32 {sW}, 2"); g("s_cselect_b64 s[6:7], s[58:59], s[56:57]")
            g(f"s_cmp_eq_u32 {sW}, 3"); g("s_cselect_b64 s[6:7], s[60:61], s[6:7]")
            g("s_mov_b32 s16, s6"); g("s_and_b32 s17, s7, 0xffff"); g(f"s_mov_b32 s18, {512*1376*2}"); g("s_mov_b32 s19, 0x20000")
            vTch = V(1); sGrp = self.s()
            g("s_mul_i32 s6, s2, 43"); g(f"v_add_u32 v{a}, s6, v{L}"); g(f"v_lshlrev_b32 v{a}, 7, v{a}")
            g(f"s_cmp_eq_u32 {sW}, 0"); g("s_cselect_b32 s4, 0, 43")
            g(f"v_mov_b32 v{b}, 0x80000000"); g(f"v_cmp_gt_u32 vcc, s4, v{L}"); g(f"v_cndmask_b32 v{vTch}, v{b}, v{a}, vcc")
            g(f"s_mul_i32 {sGrp}, s2, {self.o('ct_n', 8)}"); g(f"s_lshr_b32 {sGrp}, {sGrp}, 8")
        g("s_barrier")
        self.cmap(); self.sync_consts(a); self.consts(a, b)
        g(f"v_lshrrev_b32 v{a}, 4, v{L}"); g(f"v_lshl_add_u32 v{a}, v{a}, 7, v{self.vP3}")
        g("s_mov_b32 s6, 0"); g("s_mov_b32 s7, 0x00ff0000"); g(f"v_cndmask_b32 v{a}, v{a}, v{self.vP2}, s[6:7]")
        g("s_mov_b32 s7, 0xff000000"); g(f"v_cndmask_b32 v{a}, v{a}, v{self.vP1}, s[6:7]")
        vFw = V(1); g(f"v_mov_b32 v{vFw}, v{a}")
        vXr = [V(1), V(1)]; vWr = V(1)
        g(f"v_bfe_u32 v{a}, v{L}, 1, 3"); g(f"v_lshrrev_b32 v{b}, 4, v{L}"); g(f"v_xor_b32 v{a}, v{a}, v{b}"); g(f"v_lshlrev_b32 v{a}, 4, v{a}")
        g(f"v_and_b32 v{c}, 15, v{L}"); g(f"v_lshl_add_u32 v{vXr[0]}, v{c}, 7, v{a}"); g(f"v_xor_b32 v{vXr[1]}, 64, v{vXr[0]}")
        g(f"v_bfe_u32 v{a}, v{L}, 3, 2"); g(f"v_xor_b32 v{a}, {sW}, v{a}"); g(f"v_lshlrev_b32 v{a}, 5, v{a}")
        g(f"v_mul_u32_u24 v{b}, 3072, v{b}"); g(f"v_bfe_u32 v{c}, v{L}, 2, 2"); g(f"v_lshl_add_u32 v{a}, v{c}, 7, v{a}")
        g(f"v_and_b32 v{c}, 3, v{L}"); g(f"v_lshl_add_u32 v{a}, v{c}, 3, v{a}"); g(f"v_add_u32 v{vWr}, v{a}, v{b}")
        BC, BP, BP1, MK = V(4, 4), V(4, 4), V(4, 4), V(4, 4); vT1, vT2 = V(1), V(1)
        g(f"v_and_b32 v{a}, 15, v{L}"); g(f"v_lshrrev_b32 v{b}, 4, v{L}")
        g(f"v_lshlrev_b32 v{vT1}, 2, v{a}"); g(f"v_add_u32 v{vT1}, {TAB}, v{vT1}")
        g(f"v_lshlrev_b32 v{vT2}, 4, v{b}"); g(f"v_add_u32 v{vT2}, {TAB}, v{vT2}")
        g(f"v_lshlrev_b32 v{b}, 2, v{b}"); g(f"v_sub_u32 v{a}, v{a}, v{b}"); g(f"v_mov_b32 v{c}, {f32(-1e30)}")
        g(f"s_cmp_eq_u32 {sRB}, 0"); g("s_cselect_b64 s[58:59], 0, -1")
        for r in range(4):
            g(f"v_subrev_u32 v{b}, {r}, v{a}"); g(f"v_and_b32 v{b}, 0x80000001, v{b}")
            g(f"v_cmp_eq_u32 vcc, 0, v{b}"); g(f"v_cndmask_b32 v{BC+r}, v{c}, 0, vcc")
            g(f"v_cmp_eq_u32 vcc, 0x80000000, v{b}"); g(f"v_cndmask_b32 v{BP+r}, v{c}, 0, vcc")
            g(f"v_cndmask_b32 v{BP1+r}, v{c}, v{BP+r}, s[58:59]")
        for i, B in enumerate((BP, BC)):
            for h in range(2):
                g(f"v_ashrrev_i32 v{a}, 31, v{B+2*h}"); g(f"v_ashrrev_i32 v{b}, 31, v{B+2*h+1}")
                g(f"v_and_b32 v{a}, 0xffff, v{a}"); g(f"v_and_b32 v{b}, 0xffff0000, v{b}"); g(f"v_or_b32 v{a}, v{a}, v{b}"); g(f"v_not_b32 v{MK+2*i+h}, v{a}")
        g(f"s_mov_b32 s60, {f32(1/512)}"); g(f"s_mov_b32 s61, {f32(0.25*LOG2E)}")
        FB = [V(32, 4), V(32, 4)]
        XF = [[FB[i] + 4*t for t in range(5)] for i in range(2)]; WF = [[FB[i] + 20 + 4*p for p in range(3)] for i in range(2)]
        Q = [V(4, 4) for t in range(5)]; Kc = [V(4, 4) for t in range(5)]; Vc = [V(4, 4) for t in range(5)]
        def reads(s):
            g.begin(); bi = s & 1
            if s and s % 2 == 0:
                d = SLOT if (s // 2) % 4 else (-3*SLOT) & 0xffffffff
                for r in (vWr, vXr[0], vXr[1]): g(f"v_add_u32 v{r}, {d}, v{r}")
            for p in range(3):
                for j2 in range(2): g(f"ds_read_b64_tr_b16 {vr(WF[bi][p]+2*j2,2)}, v{vWr} offset:{10*K1 + bi*12288 + p*K1 + j2*512}")
                if p == 0:
                    for t in range(5): g(f"ds_read_b128 {vr(XF[bi][t],4)}, v{vXr[bi]} offset:{t*2048}")
            return g.end()
        def mfmas(s):
            g.begin(); bi = s & 1
            def mf(d, x, y): g(f"v_mfma_f32_16x16x32_bf16 {vr(d,4)}, {vr(x,4)}, {vr(y,4)}, {vr(d,4) if s else 0}")
            for t in range(5): mf(Q[t], WF[bi][0], XF[bi][t])
            for t in range(5): mf(Kc[t], WF[bi][1], XF[bi][t])
            for t in range(5): mf(Vc[t], XF[bi][t], WF[bi][2])
            return g.end()
        M1 = V(6); R1 = V(6); M2 = [V(4, 4) for t in range(5)]; R2 = [V(4, 4) for t in range(5)]
        g.begin()
        for t in range(5):
            g(f"ds_read_b32 v{M1+t}, v{vT1} offset:{t*64}"); g(f"ds_read_b32 v{R1+t}, v{vT1} offset:{512+t*64}")
        for t in range(5):
            g(f"ds_read_b128 {vr(M2[t],4)}, v{vT2} offset:{t*64}"); g(f"ds_read_b128 {vr(R2[t],4)}, v{vT2} offset:{512+t*64}")
        gn = self.get_nonce(a)
        fin = singles(g.end()) + [gn[0] + self.sig(K_T2)]
        XR = self.vHP; tk = V(1)
        g(f"buffer_load_dword v{vFw}, v{vFw}, {SWS}, 0 offen sc1")
        self.stamp("pre")
        self.lwait(K_A, tk)
        self.stamp("bar0")
        g.add(reads(0)); g.add(self.lchk_issue(K_A + 1, tk))
        stg = {0: 1, 1: 2, 3: 3, 5: 4, 7: 5, 9: 6, 11: 7, 13: 8}
        if self.o('fine', 1): stg.update({1: K_AX - K_A, 2: 2, 3: K_AX + 1 - K_A, 4: 3})
        for s in range(16):
            g.comment(f"A step {s}")
            if self.o("ast", 0): self.stamp(f"s{s}")
            mf = mfmas(s); W = Weave(mf, 2); n = len(mf)
            if self.o("nomf", 0): W = Weave([Ins("s_nop 0") for _ in mf], 2)
            if s in stg: W.at(0, self.lchk_check(K_A + stg[s], tk))
            if s < 15:
                rs = singles(reads(s + 1))
                if s % 2 == 0 and s <= 6: rs[-1] = rs[-1] + self.sig(K_F + s // 2)
                if s == 14: rs[-1] = rs[-1] + self.sig(K_AE)
                left, _ = W.fill(rs, 0, n - 2); assert not left
            if s + 1 in stg: W.at(n - 4, self.lchk_issue(K_A + stg[s + 1], tk))
            if CT and 0 <= s - self.o("ct_0", 2) < self.o("ct_n", 8):
                Ls = g.newlabel("L_t")
                g.begin(); g(f"s_cmp_lg_u32 {sGrp}, {s - self.o('ct_0', 2)}"); g(f"s_cbranch_scc1 {Ls}")
                g.raw(f"    buffer_load_dword v{J+1}, v{vTch}, s[16:19], 0 offen"); g.raw(Ls + ":")
                W.at(n - 2, g.end())
            if s == 12:
                W.at(n - 3, self.grp(f"buffer_load_dwordx4 {vr(XR,4)}, v{self.vRM}, {SX}, 0 offen"))
                W.at(n - 2, self.grp(f"buffer_load_dwordx4 {vr(XR+4,4)}, v{self.vRM}, {SX}, 0 offen offset:32"))
            if s == 14: W.at(n - 5, self.lchk_issue(K_TB, b)); W.at(n - 1, self.lchk_check(K_TB, b))
            if s == 15:
                left, _ = W.fill(fin, 0); assert not left
            g.add(W.out())
        self.stamp("loop")
        for r in [vWr, vT1, vT2, tk, vFw] + vXr + ([vTch] if CT else []): V.release(r)
        V.release(FB[0], 32); V.release(FB[1], 32)
        CSQ, CSK = V(4, 4), V(4, 4); CSV = V(2)
        for r in range(4): g(f"v_mov_b32_dpp v{CSQ+r}, v{Q[0]+r} row_newbcast:0 row_mask:0xf bank_mask:0xf")
        for r in range(4): g(f"v_mov_b32_dpp v{CSK+r}, v{Kc[0]+r} row_newbcast:0 row_mask:0xf bank_mask:0xf")
        QB = [None] + [V(2) for t in range(4)]; KB = [V(2) for t in range(5)]; VB = V(10, 2)
        bc = lambda reg: (vr(reg & ~1, 2), reg & 1)
        for t in range(5):
            mp, ms = bc(M1 + t); rp, rs = bc(R1 + t)
            for X, CS in ((Q[t], CSQ), (Kc[t], CSK)):
                if X == Q[0]: continue
                for h in range(2):
                    g(f"v_pk_fma_f32 {vr(X+2*h,2)}, {mp}, {vr(CS+2*h,2)}, {vr(X+2*h,2)} op_sel:[{ms},0,0] op_sel_hi:[{ms},1,1] neg_lo:[1,0,0] neg_hi:[1,0,0]")
            for h in range(2): g(f"v_pk_mul_f32 {vr(Kc[t]+2*h,2)}, {rp}, {vr(Kc[t]+2*h,2)} op_sel:[{rs},0] op_sel_hi:[{rs},1]")
            if t == 0: g(f"v_mov_b32 v{CSV}, v{Vc[0]}"); g(f"v_mov_b32 v{CSV+1}, v{Vc[0]}")
            if t == 1: g(f"v_permlane16_swap_b32 v{CSV}, v{CSV+1}")
            if t == 2: g(f"v_mov_b32 v{CSV+1}, v{CSV}")
            if t == 3: g(f"v_permlane32_swap_b32 v{CSV}, v{CSV+1}")
            if t:
                for h in range(2): g(f"v_cvt_pk_bf16_f32 v{QB[t]+h}, v{Q[t]+2*h}, v{Q[t]+2*h+1}")
            for h in range(2): g(f"v_cvt_pk_bf16_f32 v{KB[t]+h}, v{Kc[t]+2*h}, v{Kc[t]+2*h+1}")
        for t in range(5):
            for h in range(2):
                g(f"v_pk_fma_f32 {vr(Vc[t]+2*h,2)}, {vr(M2[t]+2*h,2)}, {vr(CSV,2)}, {vr(Vc[t]+2*h,2)} op_sel_hi:[1,0,1] neg_lo:[1,0,0] neg_hi:[1,0,0]")
            for h in range(2): g(f"v_pk_mul_f32 {vr(Vc[t]+2*h,2)}, {vr(R2[t]+2*h,2)}, {vr(Vc[t]+2*h,2)}")
        R4 = range(1, 5)
        SP = {t: Q[t] for t in R4}; SC = {t: Kc[t] for t in R4}
        AQ = {t: V(1) for t in R4}; U = {t: V(2) for t in R4}; MX = {t: V(1) for t in R4}; TX = {t: V(1) for t in R4}
        cv = [f"v_cvt_pk_bf16_f32 v{VB+2*t+h}, v{Vc[t]+2*h}, v{Vc[t]+2*h+1}" for t in range(5) for h in range(2)]
        cv += [f"v_mul_f32 v{AQ[t]}, s61, v{R1+t}" for t in R4] + [i.text for i in gn[1]]
        for t in R4:
            g(f"v_mfma_f32_16x16x16_bf16 {vr(SP[t],4)}, {vr(KB[t-1],2)}, {vr(QB[t],2)}, {vr(BP1 if t == 1 else BP,4)}")
            g(cv.pop(0)); g(cv.pop(0))
            g(f"v_mfma_f32_16x16x16_bf16 {vr(SC[t],4)}, {vr(KB[t],2)}, {vr(QB[t],2)}, {vr(BC,4)}")
            g(cv.pop(0)); g(cv.pop(0))
        for t in R4:
            for h in range(2): g(f"v_max3_f32 v{U[t]+h}, v{SP[t]+2*h}, v{SP[t]+2*h+1}, v{SC[t]+2*h}")
        for t in R4:
            for h in range(2): g(f"v_max_f32 v{U[t]+h}, v{U[t]+h}, v{SC[t]+2*h+1}")
        for t in R4: g(f"v_max_f32 v{MX[t]}, v{U[t]}, v{U[t]+1}")
        for t in R4: g(f"v_max_f32 v{TX[t]}, v{U[t]}, v{U[t]+1}")
        for t in R4: g(f"v_permlane16_swap_b32 v{MX[t]}, v{TX[t]}")
        for t in R4: g(f"v_max_f32 v{MX[t]}, v{MX[t]}, v{TX[t]}")
        for t in R4: g(f"v_mov_b32 v{TX[t]}, v{MX[t]}")
        for t in R4: g(f"v_permlane32_swap_b32 v{MX[t]}, v{TX[t]}")
        for t in R4: g(f"v_max_f32 v{MX[t]}, v{MX[t]}, v{TX[t]}")
        for t in R4:
            for h in range(2): g(f"v_sub_f32 v{U[t]+h}, v{U[t]+h}, v{MX[t]}")
        for t in R4:
            for h in range(2): g(f"v_mul_f32 v{U[t]+h}, v{U[t]+h}, v{AQ[t]}")
        for t in R4:
            for h in range(2): g(f"v_exp_f32 v{U[t]+h}, v{U[t]+h}")
        PB = {t: V(4, 4) for t in R4}
        for t in R4:
            for h in range(2): g(f"v_cvt_pk_bf16_f32 v{U[t]+h}, v{U[t]+h}, v{U[t]+h}")
        for t in R4:
            for i in range(4): g(f"v_and_b32 v{PB[t]+i}, v{MK+i}, v{U[t]+(i&1)}")
            if t > 1:
                g(f"v_mfma_f32_16x16x32_bf16 {vr(SP[t-1],4)}, {vr(ONES,4)}, {vr(PB[t-1],4)}, 0")
                g(f"v_mfma_f32_16x16x32_bf16 {vr(SC[t-1],4)}, {vr(VB+2*(t-2),4)}, {vr(PB[t-1],4)}, 0")
        g(f"v_mfma_f32_16x16x32_bf16 {vr(SP[4],4)}, {vr(ONES,4)}, {vr(PB[4],4)}, 0")
        g(f"v_mfma_f32_16x16x32_bf16 {vr(SC[4],4)}, {vr(VB+6,4)}, {vr(PB[4],4)}, 0")
        OB = [PB[1], PB[3]]
        g.needs(vr(XR, 8))
        for pr in range(2):
            for t in (1 + 2*pr, 2 + 2*pr): g(f"v_rcp_f32 v{MX[t]}, v{SP[t]}")
            for t in (1 + 2*pr, 2 + 2*pr):
                for r in range(4): g(f"v_mul_f32 v{SC[t]+r}, v{MX[t]}, v{SC[t]+r}")
            for i, t in enumerate((1 + 2*pr, 2 + 2*pr)):
                for h in range(2): g(f"v_cvt_pk_bf16_f32 v{OB[pr]+2*i+h}, v{SC[t]+2*h}, v{SC[t]+2*h+1}")
            for h in range(2): g(f"v_permlane16_swap_b32 v{OB[pr]+h}, v{OB[pr]+2+h}")
            g(f"buffer_store_dwordx4 {vr(OB[pr],4)}, v{self.vL16}, {SWS}, {self.sO1 if pr else self.sO0} offen {self.SC}", tag="ost")
        self.stamp("Aepi")
        for t in range(5):
            V.release(Q[t], 4); V.release(Kc[t], 4); V.release(Vc[t], 4); V.release(KB[t], 2); V.release(M2[t], 4); V.release(R2[t], 4)
        for t in R4:
            V.release(QB[t], 2); V.release(MX[t]); V.release(TX[t]); V.release(AQ[t]); V.release(U[t], 2); V.release(PB[t], 4)
        V.release(M1, 6); V.release(R1, 6); V.release(VB, 10); V.release(CSV, 2)
        for r in (CSQ, CSK, BC, BP, BP1, MK, ONES): V.release(r, 4)
        V.release(a); V.release(b); V.release(c); V.release(0); V.release(self.vX3, 4)

    def red_consts(self, alloc=True):
        g, V = self.g, self.V
        if alloc: self.vRw = [V(1), V(1), V(1)]; self.vRr = V(1)
        for i in (1, 2, 3):
            g(f"s_xor_b32 s5, {sW}, {i}"); g("s_lshl_b32 s5, s5, 14"); g(f"s_add_u32 s5, s5, {64*K1 + (i-1)*4096}"); g(f"v_add_u32 v{self.vRw[i-1]}, s5, v{self.vL16}")
        g(f"s_lshl_b32 s5, {sW}, 14"); g(f"s_add_u32 s5, s5, {64*K1}"); g(f"v_add_u32 v{self.vRr}, s5, v{self.vL16}")
    def red_write(self, ACC, a):
        return [self.grp(f"ds_write_b128 v{self.vRw[a-1]}, {vr(ACC[a]+4*j,4)} offset:{j*K1}") for j in range(4)]
    def red_add(self, ACC, T):
        for i in range(12): self.g(f"ds_read_b128 {vr(T+4*i,4)}, v{self.vRr} offset:{i*K1}")
        return [f"v_pk_add_f32 {vr(ACC[0]+2*j,2)}, {vr(ACC[0]+2*j,2)}, {vr(T+16*a+2*j,2)}" for a in range(3) for j in range(8)]

    def phaseB(self):
        g, V = self.g, self.V
        XR = self.vHP; PZ = self.o("pause", 1)
        WB = V(64, 4); OF = V(64, 4); ACC = [V(16, 4) for _ in range(4)]; rd = [V(1), V(1)]; t2 = V(2); t1 = V(1); self.vX3 = V(4)
        self.red_consts()
        g(f"v_add_u32 v{rd[0]}, s5, v{self.vKr}"); g(f"v_xor_b32 v{rd[1]}, 64, v{rd[0]}")
        g.add(self.lchk_issue(K_WB, t1, own=True))
        for j in range(8):
            g(f"v_lshlrev_b32 v{ACC[0]+2*j}, 16, v{XR+j}"); g(f"v_and_b32 v{ACC[0]+2*j+1}, 0xffff0000, v{XR+j}")
        def wbreads():
            for ks in range(8):
                for ct in range(2):
                    for j2 in range(2): g(f"ds_read_b64_tr_b16 {vr(WB+(ks*2+ct)*4+2*j2,2)}, v{rd[ct]} offset:{ks*2048+j2*512}")
            g.add(self.sig(K_B2))
        if self.o("wb_early", 0): g.add(self.lchk_check(K_WB, t1, own=True)); wbreads()
        g.waitvm("ost"); g.add(self.flag_fast(self.sF1))
        if self.o("pull", 0) & 1: g.add(self.pull(t2, [(self.sO0, 0), (self.sO1, 0)]))
        self.stamp("F1")
        if not self.o("wb_early", 0): g.add(self.lchk_check(K_WB, t1, own=True)); wbreads()
        self.poll(self.vP1, t2, pre=[self.flag_slow(self.sF1)])
        self.stamp("P1")
        lo = [(ks, rt) for rt in (1, 0) for ks in range(8)]
        lds = [self.grp(f"buffer_load_dwordx4 {vr(OF+(ks*2+rt)*4,4)}, v{self.vL16}, {SWS}, {self.sOF[rt][ks//4]} offen offset:{(ks%4)*K1} sc1") for ks, rt in lo]
        NL0 = self.o("b_l0", 8)
        for grp in lds[:NL0]: g.add(grp)
        g.begin()
        for ks, rt in lo:
            for ct in (1, 0):
                a = 2*rt + ct
                g(f"v_mfma_f32_32x32x16_bf16 {vr(ACC[a],16)}, {vr(WB+(ks*2+ct)*4,4)}, {vr(OF+(ks*2+rt)*4,4)}, {vr(ACC[a],16) if (ks or a == 0) else 0}")
        mf = g.end(); W = Weave(mf, 5)
        for i, grp in enumerate(lds[NL0:]): W.at(2*i, grp)
        W.at(2*(len(lds) - NL0), self.flag_slow(self.sF1)); W.at(self.o('b_go', 14), self.sig(K_G1))
        W.at(12, self.lchk_issue(K_B2, t1)); W.at(17, self.lchk_check(K_B2, t1))
        W.even(self.red_write(ACC, 3) + self.red_write(ACC, 2), 19, 31)
        g.add(W.out())
        self.stamp("Bmf")
        for grp in self.red_write(ACC, 1): g.add(grp)
        g.add(self.sig(K_B3))
        self.lwait(K_B3, t1)
        adds = self.red_add(ACC, WB)
        g.add(self.sig(K_B4))
        for l in adds: g(l)
        H = ACC[0]
        for j in range(8): g(f"v_cvt_pk_bf16_f32 v{self.vHP+j}, v{H+2*j}, v{H+2*j+1}")
        g(f"buffer_store_dwordx4 {vr(self.vHP,4)}, v{self.vL16}, {SWS}, {self.sHs} offen {self.SC}", tag="hst")
        g(f"buffer_store_dwordx4 {vr(self.vHP+4,4)}, v{self.vL16}, {SWS}, {self.sHs} offen offset:1024 {self.SC}", tag="hst")
        S2, Q2 = ACC[1], ACC[1] + 2
        g(f"v_pk_add_f32 {vr(S2,2)}, {vr(H,2)}, {vr(H+2,2)}"); g(f"v_pk_mul_f32 {vr(Q2,2)}, {vr(H,2)}, {vr(H,2)}")
        g(f"v_pk_fma_f32 {vr(Q2,2)}, {vr(H+2,2)}, {vr(H+2,2)}, {vr(Q2,2)}")
        for j in range(2, 8):
            g(f"v_pk_add_f32 {vr(S2,2)}, {vr(S2,2)}, {vr(H+2*j,2)}"); g(f"v_pk_fma_f32 {vr(Q2,2)}, {vr(H+2*j,2)}, {vr(H+2*j,2)}, {vr(Q2,2)}")
        g(f"v_add_f32 v{S2}, v{S2}, v{S2+1}"); g(f"v_add_f32 v{Q2}, v{Q2}, v{Q2+1}")
        g(f"v_permlane32_swap_b32 v{S2}, v{Q2}"); g(f"v_add_f32 v{S2}, v{S2}, v{Q2}")
        g(f"buffer_store_dword v{S2}, v{self.vL4}, {SWS}, {self.sHt} offen {self.SC}", tag="hst")
        self.stamp("Bst")
        V.release(WB, 64); V.release(OF, 64); V.release(t2, 2); V.release(t1); V.release(self.vP1); V.release(self.vX3, 4)
        for x in ACC: V.release(x, 16)
        for x in rd + self.vRw + [self.vRr]: V.release(x)

    def phaseC(self):
        g, V = self.g, self.V
        HF = V(128, 4); ACC = [V(16, 4) for _ in range(4)]; ST = HF + 112
        NF = self.o("c_nf", 5); FR = [V(4, 4) for _ in range(NF)]
        MF = V(4, 4); T = V(8, 4); t2 = V(2); AA = V(2); VV, t1, vHi, vCt = V(1), V(1), V(1), V(1)
        A0, A1 = AA, AA + 1; self.vX3 = T; self.vJ = self.vST if not self.stamps else self.vL; PZ = self.o("pause", 1)
        g(f"v_add_u32 v{vHi}, 0x10000, v{self.vL16}"); g(f"v_add_u32 v{vCt}, {CST}, v{self.vL16}")
        g(f"s_add_u32 s54, {self.sCo}, 4096")
        g.waitvm("hst"); g.add(self.flag_fast(self.sF2))
        if self.o("pull", 0) & 2: g.add(self.pull(t2, [(self.sHs, 0), (self.sHs, 1024)]))
        if self.o("cmap", 0): g.add(self.flag_slow(self.sF2)); self.opt["nfast"] = 0
        self.stamp("F2")
        g(f"s_cmp_eq_u32 {sCGX}, 15"); g.branch("s_cbranch_scc1 L_skipC", keep=True)
        g.begin(); g.label("L_skipC", keep=True)
        g.add(self.flag_slow(self.sF2)); g.add(self.sig(K_G2))
        for kw, k in ((K_C01b, K_P0), (K_C01b, K_P0b), (K_C23b, K_U3), (K_C45b, K_U5)): self.lwait(kw, t1, sleep=2); g.add(self.sig(k))
        g.branch("s_branch L_cdone"); self.tail.append(g.end())
        seq = []; k1 = 0; L0 = self.o("c_lead", 4); RN, RD = self.o("c_rn", 1), self.o("c_rd", 2)
        for ks in range(33):
            seq += [(0, ks), (1, ks)]
            while ks >= L0 and ks < 31 and k1 < ((ks - L0 + 1) * RN) // RD: seq += [(2, k1), (3, k1)]; k1 += 1
        self.K1 = k1
        seq += [(2 + e, ks) for ks in range(k1, 33) for e in range(2)] + [(4 + e, ks) for ks in range(33) for e in range(2)]
        idx = {x: i for i, x in enumerate(seq)}; RA = NF - 1
        KO = (list(range(16, 32)) + list(range(16))) if self.o('c_ko', 1) else list(range(32))
        def rd(i):
            u, ks = seq[i]; g.begin()
            if ks < 32: g(f"ds_read_b128 {vr(FR[i % NF],4)}, v{vHi if (u//2) % 2 else self.vL16} offset:{(u%2)*32768 + KO[ks]*K1}")
            else: g(f"ds_read_b128 {vr(FR[i % NF],4)}, v{vCt} offset:{u*K1}")
            if ks == 31 and u % 2: g.add(self.sig((K_P0b, K_U3, K_U5)[u // 2]))
            if (u, ks) == (1, 15): g.add(self.sig(K_P0))
            return g.end()
        if self.o("c_ko", 1):
            vPa = MF; g(f"v_or_b32 v{vPa}, 64, v{self.vP2}")
            self.poll(vPa, t2, pre=[self.flag_slow(self.sF2)])
        else: self.poll(self.vP2, t2, pre=[self.flag_slow(self.sF2)])
        self.stamp("P2")
        hl = []
        for ks in range(32):
            l = [f"s_add_u32 s55, {self.sCh}, {KO[ks]*K1}"] if ks % 4 == 0 else []
            l.append(f"buffer_load_dwordx4 {vr(HF+4*ks,4)}, v{self.vL16}, {SWS}, s55 offen offset:{(ks%4)*K1} sc1")
            hl.append(self.grp(*l))
        sl = [self.grp(f"buffer_load_dword v{ST+i}, v{self.vL4}, {SWS}, {self.sCt} offen offset:{i*256} sc1") for i in range(16)]
        NH0 = self.o("c_h0", 8)
        g.add(self.lchk_issue(K_C01, t1))
        for grp in hl[:NH0]: g.add(grp)
        g.add(self.lchk_check(K_C01, t1))
        for i in range(RA): g.add(rd(i))
        g.begin()
        for st in (8, 4, 2, 1):
            for i in range(st): g(f"v_add_f32 v{ST+i}, v{ST+i}, v{ST+i+st}")
        g(f"v_mov_b32 v{ST+1}, v{ST}"); g(f"v_permlane32_swap_b32 v{ST}, v{ST+1}")
        g(f"v_mul_f32 v{ST}, s60, v{ST}"); g(f"v_mul_f32 v{ST+1}, s60, v{ST+1}")
        g(f"v_fma_f32 v{ST+1}, -v{ST}, v{ST}, v{ST+1}"); g(f"v_max_f32 v{ST+1}, 0, v{ST+1}")
        self.rbf(ST+1); g(f"v_add_f32 v{ST+1}, {f32(1e-5)}, v{ST+1}"); self.rbf(ST+1)
        g(f"v_sqrt_f32 v{ST+1}, v{ST+1}"); g(f"v_cvt_pk_bf16_f32 v{MF}, -v{ST}, -v{ST}"); self.rbf(ST+1)
        g(f"v_rcp_f32 v{ST+2}, v{ST+1}"); g(f"v_mul_f32 v{VV}, v{ST+1}, v{ST+1}")
        c0 = -2.0 * 0.7978845608028654 * LOG2E
        g(f"v_mul_f32 v{A0}, {f32(c0)}, v{ST+2}"); g(f"v_mul_f32 v{ST+3}, v{ST+2}, v{ST+2}")
        g(f"v_mul_f32 v{A1}, {f32(0.044715)}, v{A0}"); g(f"v_mul_f32 v{A1}, v{ST+3}, v{A1}")
        g(f"v_mov_b32 v{MF+1}, 0"); g(f"v_mov_b32 v{MF+2}, v{MF}"); g(f"v_mov_b32 v{MF+3}, 0")
        stats = singles(g.end())
        def store(u, G): g(f"buffer_store_dwordx4 {vr(G,4)}, v{self.vL16}, {SWS}, {self.sCo if u < 4 else 's54'} offen offset:{(u%4)*K1} {self.SC}", tag=f"hh{u//2}")
        def epi(u):
            g.begin(); G = ACC[u % 4]; U = G + 8
            for i in range(8): g(f"v_mul_f32 v{T+i}, v{G+i}, v{G+i}")
            for i in range(8): g(f"v_fma_f32 v{T+i}, v{T+i}, v{A1}, v{A0}")
            for i in range(8): g(f"v_mul_f32 v{T+i}, v{G+i}, v{T+i}")
            for i in range(8): g(f"v_exp_f32 v{T+i}, v{T+i}"); g(f"v_mul_f32 v{U+i}, v{G+i}, v{U+i}")
            for i in range(8): g(f"v_fma_f32 v{T+i}, v{T+i}, v{VV}, v{VV}")
            for i in range(8):
                g(f"v_rcp_f32 v{T+i}, v{T+i}")
                if i: g(f"v_mul_f32 v{U+i-1}, v{U+i-1}, v{T+i-1}")
            g(f"v_mul_f32 v{U+7}, v{U+7}, v{T+7}")
            for i in range(4): g(f"v_cvt_pk_bf16_f32 v{G+i}, v{U+2*i}, v{U+2*i+1}")
            store(u, G)
            return singles(g.end())
        def epi_pk(u):
            g.begin(); G = ACC[u % 4]; U = G + 8; P = lambda x, i: vr(x + 2*i, 2); vv = (vr(VV & ~1, 2), VV & 1)
            for i in range(4): g(f"v_pk_mul_f32 {P(T,i)}, {P(G,i)}, {P(G,i)}")
            for i in range(4): g(f"v_pk_fma_f32 {P(T,i)}, {P(T,i)}, {vr(AA,2)}, {vr(AA,2)} op_sel:[0,1,0] op_sel_hi:[1,1,0]")
            for i in range(4): g(f"v_pk_mul_f32 {P(T,i)}, {P(G,i)}, {P(T,i)}")
            for i in range(8): g(f"v_exp_f32 v{T+i}, v{T+i}")
            for i in range(4): g(f"v_pk_mul_f32 {P(U,i)}, {P(G,i)}, {P(U,i)}")
            for i in range(4): g(f"v_pk_fma_f32 {P(T,i)}, {P(T,i)}, {vv[0]}, {vv[0]} op_sel:[0,{vv[1]},{vv[1]}] op_sel_hi:[1,{vv[1]},{vv[1]}]")
            for i in range(8): g(f"v_rcp_f32 v{T+i}, v{T+i}")
            for i in range(4): g(f"v_pk_mul_f32 {P(U,i)}, {P(U,i)}, {P(T,i)}")
            for i in range(4): g(f"v_cvt_pk_bf16_f32 v{G+i}, v{U+2*i}, v{U+2*i+1}")
            store(u, G)
            return g.end()
        def flg(p, slow=True):
            g.begin(); g.waitvm(f"hh{p}"); g.add(self.flag_fast(self.sF3, 128*p))
            if self.o("pull", 0) & 4: g.add(self.pull(self.vJ, [(self.sCo if p < 2 else "s54", (2*p % 4)*K1 + e*K1) for e in range(2)]))
            if slow: g.add(self.flag_slow(self.sF3, 128*p))
            return g.end()
        NK = 22; NWF = 4
        DA = [HF, HF + 80, HF + 96, HF + 112]
        WF = HF + 16
        HRq = [HF + 48 + 4*i for i in range(8)] + [ACC[2] + 4*i for i in range(4)] + [ACC[3] + 4*i for i in range(4)] + list(FR) + [MF]
        NH = len(HRq)
        HR2 = [ACC[0] + 4*i for i in range(4)] + [ACC[1] + 4*i for i in range(4)]
        drd = [[V(1), self.vL4], [vCt, vHi]]; vZ = self.vP2
        lo = [(n, rt) for n in range(NK) for rt in (1, 0)]
        hreg = lambda m: HRq[m % NH]
        g.begin()
        for i, (u, ks) in enumerate(seq):
            acc = ACC[u % 4]
            g(f"v_mfma_f32_32x32x16_bf16 {vr(acc,16)}, {vr(FR[i % NF],4)}, {vr(HF+4*ks,4) if ks < 32 else vr(MF,4)}, {vr(acc,16) if ks else 0}")
        D0 = len(seq)
        DT = self.o("d_tail", 3)
        mo = list(enumerate(lo)); mo = mo[:len(mo) - 2*DT] + [x for x in mo[len(mo) - 2*DT:] if x[1][1] == 1] + [x for x in mo[len(mo) - 2*DT:] if x[1][1] == 0]
        for m, (n, rt) in mo:
            for ct in (1, 0):
                a = 2*rt + ct
                g(f"v_mfma_f32_32x32x16_bf16 {vr(DA[a],16)}, {vr(WF+((n%NWF)*2+ct)*4,4)}, {vr(hreg(m),4)}, {vr(DA[a],16) if (n or a == 0) else 0}")
        mf = g.end(); W = Weave(mf, 5)
        for key, k in (((2, 0), K_C23), ((0, 16), K_C01b), ((2, 16), K_C23b), ((4, 0), K_C45), ((4, 16), K_C45b), ((0, 32), K_CS)):
            at = idx[key] - RA; tk = t1 if key[1] < 32 else t2
            W.at(max(at - 5, 0), self.lchk_issue(k, tk)); W.at(at - 1, self.lchk_check(k, tk))
        for i in range(RA, len(seq)): W.at(i - RA, rd(i))
        for i in range(0, len(seq) - 1, 2):
            g.begin(); g.needs(vr(FR[(i + 1) % NF], 4)); W.before(i, g.end())
        HS = self.o("c_hs", 2)
        at = HS*(16 - NH0)
        W.at(max(at - self.o("c_p2l", 12), 0), self.apoll_issue(self.vP2, t2)); W.at(at, self.apoll_check(self.vP2, t2, pre=[self.flag_slow(self.sF2)]))
        for i, grp in enumerate(hl[NH0:16]): W.at(HS*i, grp)
        for k, grp in enumerate(sl): W.at(at + k // 2, grp)
        pos = at + 8
        for grp in hl[16:28]: W.at(pos, grp); pos += HS
        left, sp = W.fill(stats, pos - self.o('c_se', 6), 80, cap=6); assert not left
        sp = max(sp, pos)
        for i, grp in enumerate(hl[28:]): W.at(sp + 1 + i, grp)
        assert sp + 5 < idx[(0, 28)] - 14, (sp, idx[(0, 28)])
        W.at(sp + 6, self.flag_slow(self.sF2))
        W.at(self.o("c_unp", 0), self.sig(K_G2))
        if self.stamps:
            keys = [(0, 4), (0, 8), (0, 16), (0, 24), (1, 32), (4, 0), (4, 8), (4, 16), (4, 21), (4, 26)] if self.o("cst", 0) else []
            for key in keys:
                g.begin(); self.stamp("c%d_%d" % key); W.before(idx[key], g.end())
            g.begin(); self.stamp("Cmf"); cm = g.end()
        EC = self.o("e_cap", 5); epos = {}
        rest, epos[0] = W.fill(epi(0) + epi(1), idx[(1, 32)] + 3, idx[(4, 0)] - 1, cap=self.o("e_cap0", 7)); assert not rest, len(rest)
        rest, epos[1] = W.fill(epi(2) + epi(3), idx[(4, 1)], idx[(4, 32)], cap=EC + self.o("e_x", 1)); assert not rest
        W.at(epos[0] + self.o("c_fl", 20), flg(0))
        self.vX3 = HR2[0] if False else None
        X3 = V(3, 2) if False else None
        lds = [self.grp(f"s_add_u32 s3, {self.sHF[rt]}, {(12*DK[n][1] + 2*DK[n][0])*K1}",
                        f"buffer_load_dwordx4 {vr(hreg(m),4)}, v{vZ if DK[n] == (0, 7) else self.vL16}, {SWS}, s3 offen sc1") for m, (n, rt) in enumerate(lo)]
        def part_of(i):
            for p, (f, n, _, _) in enumerate(DPART):
                if f <= i < f + n: return p, i - f
        def rdset(p):
            r = drd[p % 2]
            return self.grp(f"s_mul_i32 s5, {sW}, {DPART[p][3]}", f"s_add_u32 s5, s5, {DPART[p][2]}", f"v_add_u32 v{r[0]}, s5, v{self.vKr}", f"v_xor_b32 v{r[1]}, 64, v{r[0]}")
        def wread(i):
            p, j = part_of(i)
            out = [self.grp(f"ds_read_b64_tr_b16 {vr(WF+((i%NWF)*2+ct)*4+2*j2,2)}, v{drd[p%2][ct]} offset:{j*2048+j2*512}") for ct in range(2) for j2 in range(2)]
            if i == 2: out[-1] = out[-1] + self.sig(K_DS)
            return out
        init = singles(self.grp(*[x for j in range(8) for x in (f"v_lshlrev_b32 v{DA[0]+2*j}, 16, v{self.vHP+j}", f"v_and_b32 v{DA[0]+2*j+1}, 0xffff0000, v{self.vHP+j}")]))
        zset = self.grp(f"s_cmp_ge_u32 {sW}, 2", "s_cselect_b32 s5, 0x80000000, 0", f"v_or_b32 v{vZ}, s5, v{self.vL16}")
        self.vX3 = WF + 24
        p0 = idx[(4, 20)]; p1 = epos[1] + 3
        PRE = 8 + min(self.o("d_pre", 4), max(0, D0 - 1 - p1))
        W.at(p0 - self.o("d_pl", 16), self.apoll_issue(self.vP3, t2)); W.at(p0, self.apoll_check(self.vP3, t2))
        W.even(lds[:8], p0 + 1, p0 + 17)
        for i, grp in enumerate(lds[8:PRE]): W.at(max(p1, p0 + 17) + i, grp)
        W.at(idx[(4, 18)], rdset(0)); W.at(idx[(4, 19)], zset)
        W.at(idx[(4, 22)], self.lchk_issue(K_D1, t1, own=True)); W.at(idx[(4, 25)], self.lchk_check(K_D1, t1, own=True))
        W.even([x for i in range(NWF - 1) for x in wread(i)], idx[(4, 26)], D0 - 1)
        left, _ = W.fill(init, epos[1], D0 - 1, cap=8); assert not left
        g.begin(); g.label("L_cdone", keep=True)
        self.poll(self.vP3, t2)
        for grp in [rdset(0), zset] + lds[:PRE] + init: g.add(grp)
        self.lwait(K_D1, t1, own=True)
        for i in range(NWF - 1):
            for grp in wread(i): g.add(grp)
        g.branch("s_branch L_dgo"); self.tail.append(g.end())
        DM = self.o("d_mode", 2)
        if self.stamps: W.before(D0, cm)
        if DM == 1: W.before(D0, epi_pk(4) + flg(1) + epi_pk(5))
        if DM == 2: W.before(D0, flg(1, slow=bool(self.o('cmap', 0))) + epi_pk(4) + epi_pk(5) + self.flag_slow(self.sF3, 128))
        g.begin(); g.raw("L_dgo:"); W.before(D0, g.end())
        self.vX3 = self.vHP
        W.before(D0, rdset(1) + self.lchk_issue(K_D2, t1, own=True) + self.lchk_check(K_D2, t1, own=True))
        for p, k in ((2, K_D3), (3, K_D4)):
            at = D0 + 4*(DPART[p][0] - (NWF - 1))
            W.at(at - 6, rdset(p)); W.at(at - 4, self.lchk_issue(k, t1, own=True)); W.at(at - 1, self.lchk_check(k, t1, own=True))
        for i in range(NWF - 1, NK):
            for j, grp in enumerate(wread(i)): W.at(D0 + 4*(i - (NWF - 1)) + j, grp)
        assert DT <= NWF - 1
        LD = self.o("d_la", 14)
        lat = lambda m: D0 + max(m - PRE, 2*(m - LD))
        S1 = self.o("d_s1", 12); lat0 = lat
        lat = lambda m: max(lat0(m), D0 + S1 + (m - 16)) if m >= 16 else lat0(m)
        W.at(D0 + self.o("d_s1p", 0), ([] if DM else flg(1)) + self.apoll_issue(self.vP3, t2, 128))
        W.at(lat(16), self.apoll_check(self.vP3, t2, 128))
        LD2 = self.o("d_la2", 7)
        lat2 = lambda m: D0 + 2*(m - LD2) if m >= 30 else lat(m)
        pi = lat2(30) - self.o("d_p2", 6)
        W.at(pi, self.apoll_issue(self.vP3, t2, 256)) if False else None
        for m in range(PRE, 30):
            assert m < NH or lat2(m) > D0 + 2*(m - NH) + 1
            W.at(lat2(m), lds[m])
        if DM: e2 = D0
        else:
            rest, e2 = W.fill(epi(4) + epi(5), D0 + 2, pi - 2, cap=self.o("e_cap2", 9)); assert not rest, len(rest)
        f2 = min(e2 + self.o("d_fl", 10), pi - 1)
        W.at(f2, flg(2))
        W.at(pi, self.apoll_issue(self.vP3, t2, 256)); W.at(lat2(30), self.apoll_check(self.vP3, t2, 256))
        for m in range(30, len(lds)): W.at(lat2(m), lds[m])
        self.info = (e2 - D0, f2 - D0, pi - D0, p0 - D0)
        if self.stamps and self.o("dst", 0):
            for at in (1, 16, 32, 46, 60, 74):
                g.begin(); self.stamp(f"d{at}"); W.before(D0 + at, g.end())
        self.vRw = [T, T + 1, T + 2]; self.vRr = T + 3
        g.begin(); self.red_consts(alloc=False); rc = g.end()
        for i in range(4): W.at(e2 + 3 + 2*i, rc[4*i:4*i+4])
        W.at(D0 + 4*(DPART[3][0] - (NWF - 1)) + 6, self.grp("s_barrier"))
        if DT >= 2: W.even(self.red_write(DA, 3) + self.red_write(DA, 2), len(mf) - 2*DT + 1, len(mf))
        g.add(W.out())
        self.stamp("Dmf")
        for a in ((1,) if DT >= 2 else (3, 2, 1)):
            for grp in self.red_write(DA, a): g.add(grp)
        g.waitds(); g("s_barrier")
        assert ACC[1] == ACC[0] + 16 and ACC[2] == ACC[0] + 32
        OF_ = ("", "sc1", "nt", "sc0 sc1")[self.o("ost", 0)]
        for l in self.red_add(DA, ACC[0]): g(l)
        for j in range(8): g(f"v_cvt_pk_bf16_f32 v{self.vHP+j}, v{DA[0]+2*j}, v{DA[0]+2*j+1}")
        g(f"buffer_store_dwordx4 {vr(self.vHP,4)}, v{self.vRM}, {SOUT}, 0 offen {OF_}")
        g(f"buffer_store_dwordx4 {vr(self.vHP+4,4)}, v{self.vRM}, {SOUT}, 0 offen offset:32 {OF_}")

    def build(self):
        g = self.g
        self.prologue(); self.helper(); self.phaseA(); self.phaseB(); self.phaseC()
        if self.stamps:
            self.stamp("end")
            g(f"s_lshl_b32 s3, s2, 2"); g(f"s_add_u32 s3, s3, {sW}"); g("s_lshl_b32 s3, s3, 8"); g(f"s_add_u32 s3, s3, {WS_STAMP}")
            g(f"v_lshrrev_b32 v{self.vL4}, 2, v{self.vL16}"); g(f"buffer_store_dword v{self.vST}, v{self.vL4}, {SWS}, s3 offen")
        if self.o("diag_t", 0):
            g("s_mov_b32 s52, 0")
            g.label("L_dg", keep=True)
            g("s_memrealtime s[72:73]"); g("s_add_u32 s52, s52, 1"); g("s_waitcnt lgkmcnt(0)"); g("s_sub_u32 s72, s72, s70")
            g("s_cmp_gt_u32 s52, 100000"); g("s_cbranch_scc1 L_end")
            g(f"s_cmp_lt_u32 s72, {self.o('diag_t', 0)}"); g("s_cbranch_scc1 L_dg")
        g.label("L_end", keep=True)
        g("s_endpgm")
        for st in self.tail: g.add(st)
        g.raw("L_codeend:")
        body = g.finalize()
        hdr = open("ref.txt").read().split("; Override launch geometry")[0]
        s = hdr + "; @launch grid=(256,1,1) block=(512,1,1) lds=163840\n"
        s += '.amdgcn_target "amdgcn-amd-amdhsa--gfx950"\n.text\n'
        s += f".globl {NAME}_kernel\n.p2align 8\n.type {NAME}_kernel,@function\n{NAME}_kernel:\n"
        s += body + "    s_endpgm\n"
        s += f'.section .rodata,"a"\n.p2align 6\n.amdhsa_kernel {NAME}_kernel\n'
        s += "  .amdhsa_next_free_vgpr 256\n  .amdhsa_next_free_sgpr 102\n  .amdhsa_accum_offset 256\n"
        s += "  .amdhsa_group_segment_fixed_size 0\n  .amdhsa_kernarg_size 80\n  .amdhsa_user_sgpr_count 2\n"
        s += "  .amdhsa_user_sgpr_kernarg_segment_ptr 1\n  .amdhsa_system_sgpr_workgroup_id_x 1\n"
        s += "  .amdhsa_float_denorm_mode_32 3\n.end_amdhsa_kernel\n"
        return s

if __name__ == "__main__":
    import argparse
    ap = argparse.ArgumentParser()
    ap.add_argument("-o", default="k.s"); ap.add_argument("--stamps", action="store_true"); ap.add_argument("--opt", default="")
    a = ap.parse_args()
    opt = {kv.split("=")[0]: int(kv.split("=")[1]) for kv in a.opt.split(",") if kv}
    k = K(a.stamps, opt); s = k.build()
    open(a.o, "w").write(s)
    if a.stamps: open(a.o + ".names", "w").write("\n".join(" ".join(k.names[r]) for r in "CSJ"))
    print("ins", k.g.stats, "vgpr hi", k.V.hi, "sgpr hi", k.S.hi, k.info)
```
